```python
import torch

def _softmax(x, axis=-1):
    return torch.softmax(x, dim=axis)

def _gelu(x):
    return torch.nn.functional.gelu(x, approximate='tanh')

def _silu(x):
    return torch.nn.functional.silu(x)

def _sigmoid(x):
    return torch.sigmoid(x)

def _layernorm(x, axis=-1, eps=1e-05):
    m = x.mean(dim=axis, keepdim=True)
    v = x.var(dim=axis, keepdim=True, unbiased=False)
    return (x - m) / torch.sqrt(v + eps)

def _scatter_add(tgt, idx, src, axis=0):
    return tgt.clone().index_add_(axis, idx, src)

def _segment_sum(src, seg, n):
    out = torch.zeros((n,) + src.shape[1:], dtype=src.dtype)
    return out.index_add_(0, seg, src)

def _pad(x, pw):
    flat = tuple((v for pair in reversed(pw) for v in pair))
    return torch.nn.functional.pad(x, flat)
kernel_name = 'adaLN_cond__ssm_conv_s4__glu_gated_geglu__prompt'

def setup_inputs():

    _w = lambda a: (lambda t: t.to(torch.bfloat16) if t.is_floating_point() else t)(torch.as_tensor(a))

    def _A_setup():
        B, L, D, N = (1, 2048, 640, 192)
        A_re = -(lambda _x: torch.exp(torch.as_tensor(_x)))((lambda *s: torch.randn(*s, dtype=torch.bfloat16) * 3.2)(D, N))
        A_im = torch.pi * (lambda *s: torch.randn(*s, dtype=torch.bfloat16) * 0.1)(D, N)
        B_re = (lambda *s: torch.randn(*s, dtype=torch.bfloat16) * 0.1)(D, N)
        B_im = (lambda *s: torch.randn(*s, dtype=torch.bfloat16) * 0.1)(D, N)
        C_re = (lambda *s: torch.randn(*s, dtype=torch.bfloat16) * 0.1)(D, N)
        C_im = (lambda *s: torch.randn(*s, dtype=torch.bfloat16) * 0.1)(D, N)
        log_dt = (lambda *s: torch.randn(*s, dtype=torch.bfloat16) * 0.1)(D) * 0.5 - 4.0
        Dskip = (lambda *s: torch.randn(*s, dtype=torch.bfloat16) * 0.1)(D)
        return {'u': _w((lambda *s: torch.randn(*s, dtype=torch.bfloat16) * 0.05)(B, L, D)), 'A_re': _w(A_re), 'A_im': _w(A_im), 'B_re': _w(B_re), 'B_im': _w(B_im), 'C_re': _w(C_re), 'C_im': _w(C_im), 'log_dt': _w(log_dt), 'Dskip': _w(Dskip)}
    _A_in = _A_setup()

    def _B_setup():
        B, S, Dm, Df = (1, 2048, 640, 1536)
        return {'x': _w((lambda *s: torch.randn(*s, dtype=torch.bfloat16) * 0.05)(B, S, Dm)), 'w_gate': _w((lambda *s: torch.randn(*s, dtype=torch.bfloat16) * 1.6)(Dm, Df) * Dm ** (-0.5)), 'w_up': _w((lambda *s: torch.randn(*s, dtype=torch.bfloat16) * 1.6)(Dm, Df) * Dm ** (-0.5)), 'w_down': _w((lambda *s: torch.randn(*s, dtype=torch.bfloat16) * 1.6)(Df, Dm) * Df ** (-0.5))}
    _B_in = _B_setup()
    return {'A_u': _A_in['u'], 'A_A_re': _A_in['A_re'], 'A_A_im': _A_in['A_im'], 'A_B_re': _A_in['B_re'], 'A_B_im': _A_in['B_im'], 'A_C_re': _A_in['C_re'], 'A_C_im': _A_in['C_im'], 'A_log_dt': _A_in['log_dt'], 'A_Dskip': _A_in['Dskip'], 'B_x': _B_in['x'], 'B_w_gate': _B_in['w_gate'], 'B_w_up': _B_in['w_up'], 'B_w_down': _B_in['w_down'], 'c': _w((lambda *s: torch.randn(*s, dtype=torch.bfloat16) * 0.1)(1, 640) * 8.0), 'w_mod': _w((lambda *s: torch.randn(*s, dtype=torch.bfloat16) * 0.1)(640, 6 * 640) * 640 ** (-0.5) * 8.0)}

def reference(A_u, A_A_re, A_A_im, A_B_re, A_B_im, A_C_re, A_C_im, A_log_dt, A_Dskip, B_x, B_w_gate, B_w_up, B_w_down, c, w_mod):

    def _A_ref(u, A_re, A_im, B_re, B_im, C_re, C_im, log_dt, Dskip):
        Bsz, L, D = u.shape
        dt = torch.exp(log_dt)[:, None]
        A = A_re + 1j * A_im
        Bc = B_re + 1j * B_im
        Cc = C_re + 1j * C_im
        logdA = dt * A
        dB = dt * Bc
        l = (lambda x, dt: x.to(dt))(torch.arange(L), A_re.dtype)
        P = torch.exp(logdA[:, :, None] * l[None, None, :])
        K = torch.einsum('dn,dnl,dn->dl', Cc, P, dB).real
        L2 = 2 * L
        Kp = _pad(K, ((0, 0), (0, L)))
        up = (lambda x, *d: x.permute(*d))(u, 0, 2, 1)
        up = _pad(up, ((0, 0), (0, 0), (0, L)))
        Kf = (lambda x, axes=(-2, -1): torch.fft.rfft2(x.float(), dim=axes))(Kp[:, None, :], axes=(-2, -1))
        Uf = (lambda x, axes=(-2, -1): torch.fft.rfft2(x.float(), dim=axes))(up[:, :, None, :], axes=(-2, -1))
        Yf = Uf * Kf[None, :, :, :]
        y = (lambda x, s, axes=(-2, -1): torch.fft.irfft2(x, s=s, dim=axes).to(torch.bfloat16))(Yf, (1, L2), axes=(-2, -1))[:, :, 0, :L]
        y = (lambda x, *d: x.permute(*d))(y, 0, 2, 1) + u * Dskip[None, None, :]
        return y

    def _B_ref(x, w_gate, w_up, w_down):
        g = torch.einsum('bsd,df->bsf', x, w_gate)
        u = torch.einsum('bsd,df->bsf', x, w_up)
        h = _gelu(g) * u
        return torch.einsum('bsf,fd->bsd', h, w_down)
    x = A_u
    mod = (_silu(c) @ w_mod).reshape(c.shape[0], 6, 1, -1)
    sa, ca, ga, sb, cb, gb = (mod[:, 0].clone(), mod[:, 1].clone(), mod[:, 2].clone(), mod[:, 3].clone(), mod[:, 4].clone(), mod[:, 5].clone())
    h = _layernorm(x, axis=-1) * (1 + ca) + sa
    x = x + ga * _A_ref(h, A_A_re, A_A_im, A_B_re, A_B_im, A_C_re, A_C_im, A_log_dt, A_Dskip)
    h = _layernorm(x, axis=-1) * (1 + cb) + sb
    x = x + gb * _B_ref(h, B_w_gate, B_w_up, B_w_down)
    return x
```

```python
import re, subprocess, os, tempfile

REG = re.compile(r'^(-|abs\()?([vas])(?:(\d+)|\[(\d+):(\d+)\])\)?$')
TRANS = ('v_exp_f32', 'v_log_f32', 'v_rcp_f32', 'v_rsq_f32', 'v_sqrt_f32', 'v_sin_f32', 'v_cos_f32')
NODEF_S = ('s_cmp', 's_cbranch', 's_waitcnt', 's_barrier', 's_nop', 's_branch', 's_setprio', 's_sleep', 's_endpgm', 's_bitcmp')

def regs_of(op):
    op = op.strip()
    if op in ('vcc', 'exec', 'm0'): return [op]
    if op in ('vcc_lo', 'vcc_hi'): return ['vcc']
    if op in ('exec_lo', 'exec_hi'): return ['exec']
    m = REG.match(op)
    if not m: return []
    k = m.group(2)
    if m.group(3) is not None: return [(k, int(m.group(3)))]
    return [(k, i) for i in range(int(m.group(4)), int(m.group(5)) + 1)]

class Ins:
    __slots__ = ('text', 'mn', 'kind', 'defs', 'uses', 'ops', 'tag', 'waitfor', 'size', 'srcc', 'srcab', 'passes', 'wide', 'lanesel', 'note', 'src', 'xuses', 'xdefs')
    def __init__(self, text, tag=None, waitfor=None):
        self.text = text.strip(); self.tag = tag; self.waitfor = waitfor or []
        self.size = None; self.srcc = []; self.srcab = []; self.passes = 0; self.wide = False; self.lanesel = []; self.note = None; self.src = None; self.xuses = set(); self.xdefs = set()
        t = self.text
        if t.endswith(':') or t.startswith('.') or t.startswith(';') or t == '':
            self.mn = ''; self.kind = 'label' if t.endswith(':') else 'dir'; self.defs = set(); self.uses = set(); self.ops = []; return
        parts = t.split(None, 1)
        mn = parts[0]; rest = parts[1] if len(parts) > 1 else ''
        ops = []; cur = ''; depth = 0
        for ch in rest:
            if ch == '[': depth += 1
            if ch == ']': depth -= 1
            if ch == ',' and depth == 0: ops.append(cur.strip()); cur = ''
            else: cur += ch
        mods = ''
        if cur.strip():
            sp = cur.strip().split(None, 1); ops.append(sp[0]); mods = sp[1] if len(sp) > 1 else ''
        self.mn = mn; self.ops = ops
        base = re.sub(r'_(e32|e64|dpp|sdwa)$', '', mn)
        R = [regs_of(o) for o in ops]
        flat = lambda L: set(x for l in L for x in l)
        d = set(); u = set()
        if mn.startswith('v_mfma'):
            self.kind = 'mfma'; d = set(R[0]); u = flat(R[1:]); self.srcc = R[3]; self.srcab = R[1] + R[2]
            self.passes = 8 if '32x32' in mn else 4
        elif mn.startswith('v_'):
            self.kind = 'trans' if base in TRANS else 'valu'
            if 'permlane' in mn: d = flat(R); u = flat(R)
            elif base in ('v_add_co_u32', 'v_sub_co_u32', 'v_addc_co_u32'): d = flat(R[:2]); u = flat(R[2:])
            else:
                d = set(R[0]); u = flat(R[1:])
                if base in ('v_fmac_f32', 'v_dot2c_f32_bf16', 'v_writelane_b32') or mn.endswith('_dpp'): u |= d
                if base == 'v_cndmask_b32' and len(ops) == 3: u.add('vcc')
                if base in ('v_readlane_b32', 'v_writelane_b32'): self.lanesel = R[2]
            u.add('exec')
        elif mn.startswith('ds_'):
            self.kind = 'ds'
            if mn.startswith('ds_read') or mn.startswith('ds_bperm') or mn.startswith('ds_swizzle'):
                d = set(R[0]); u = flat(R[1:])
                if 'd16' in mn: u |= d
            else:
                u = flat(R)
            if 'addtid' in mn: u.add('m0')
        elif mn.startswith('buffer_') or mn.startswith('global_'):
            self.kind = 'vmem'
            lds = ' lds' in (' ' + mods) or '_lds_' in mn
            if 'load' in mn and not lds:
                d = set(R[0]); u = flat(R[1:])
                if 'd16' in mn: u |= d
            else:
                u = flat(R)
                if lds: u.add('m0')
                if 'store' in mn and ('x3' in mn or 'x4' in mn):
                    self.wide = set(R[0] if mn.startswith('buffer_') else R[1])
        elif mn.startswith('s_load') or mn.startswith('s_memtime') or mn.startswith('s_memrealtime'):
            self.kind = 'smem'; d = set(R[0]); u = flat(R[1:])
        elif mn.startswith('s_'):
            self.kind = 'salu'
            if any(mn.startswith(p) for p in NODEF_S): u = flat(R)
            else: d = set(R[0]); u = flat(R[1:])
            if re.match(r's_(cmp|add|sub|and|or|xor|lshl|lshr|ashr|bfe|min|max|not|bitcmp)', mn): d.add('scc')
            if re.match(r's_(cselect|cbranch_scc|addc|subb)', mn): u.add('scc')
            if mn.startswith('s_cbranch_vcc'): u.add('vcc')
        else:
            raise ValueError('unknown instruction ' + t)
        self.defs = d; self.uses = u
    def states(self):
        if self.kind in ('label', 'dir'): return 0
        if self.mn == 's_nop': return int(self.ops[0], 0) + 1
        return 1
    def __repr__(self): return self.text

def L(text, **kw):
    out = []
    for l in text.strip('\n').split('\n'):
        l = l.split(';')[0].strip() if not l.strip().startswith(';') else ''
        if l: out.append(Ins(l, **kw))
    return out

def isv(r): return isinstance(r, tuple) and r[0] in 'va'
def iss(r): return r == 'vcc' or (isinstance(r, tuple) and r[0] == 's')

def need_states(p, c):
    n = 0
    pv = p.kind in ('valu', 'trans'); cv = c.kind in ('valu', 'trans')
    if pv:
        dv = set(r for r in p.defs if isv(r)); dsg = set(r for r in p.defs if iss(r))
        if c.kind == 'mfma' and dv & c.uses: n = max(n, 2)
        if cv and dv & c.uses:
            if c.mn.endswith('_dpp') or 'permlane' in c.mn: n = max(n, 2)
            if 'readlane' in c.mn or 'readfirstlane' in c.mn: n = max(n, 1)
            if p.kind == 'trans' and c.kind != 'trans': n = max(n, 1)
        if p.mn.startswith('v_dot2') and (dv & (c.uses | c.defs)):
            same_c = c.mn == p.mn and not (dv & set(regs_of(c.ops[1]) + regs_of(c.ops[2])))
            if not same_c: n = max(n, 3)
        if dsg:
            if cv and dsg & c.uses: n = max(n, 2)
            if cv and dsg & set(c.lanesel): n = max(n, 4)
            if c.kind == 'vmem' and dsg & c.uses: n = max(n, 5)
            if c.kind in ('salu', 'smem') and dsg & c.uses and not c.mn.startswith('s_cbranch'): n = max(n, 1)
    if p.kind == 'mfma':
        big = 12 if p.passes == 8 else 8
        if c.kind == 'mfma':
            if p.defs & set(c.srcab): n = max(n, big)
            if p.defs & set(c.srcc):
                if not (set(c.srcc) == p.defs and c.passes == p.passes): n = max(n, big - 2)
            elif p.defs & c.defs: n = max(n, big)
        elif c.kind in ('valu', 'trans', 'ds', 'vmem'):
            if p.defs & (c.uses | c.defs): n = max(n, big)
            if set(r for r in p.srcc if isv(r)) & c.defs: n = max(n, 7 if p.passes == 8 else 3)
    if p.wide and (p.wide & c.defs): n = max(n, 2 if cv else 1)
    if p.kind == 'salu' and 'm0' in p.defs and 'm0' in c.uses and c.kind in ('ds', 'vmem'): n = max(n, 1)
    return n

class Stream:
    def __init__(self):
        self.out = []
        self.vm = []
        self.lg = []
        self.sm = []
        self.nops = 0; self.nwait = 0
        self.log = []
    def state(self): return (list(self.vm), list(self.lg), list(self.sm))
    def set_state(self, st): self.vm, self.lg, self.sm = list(st[0]), list(st[1]), list(st[2])
    def _raw(self, ins):
        if ins.kind not in ('label', 'dir'):
            dist = 0; need = 0; who = None
            for p in reversed(self.out):
                if dist >= 12: break
                if p.kind in ('label', 'dir'): continue
                k = need_states(p, ins) - dist
                if k > need: need = k; who = p
                dist += p.states()
            if need > 0:
                self.nops += need
                self.log.append(f'pad {need}: [{who}] -> [{ins}]')
                self.out.append(Ins(f's_nop {need-1}'))
        self.out.append(ins)
    def _wait(self, vm=None, lg=None):
        parts = []
        if vm is not None and vm < len(self.vm):
            vm = min(vm, 63); parts.append(f'vmcnt({vm})'); self.vm = self.vm[len(self.vm)-vm:] if vm else []
        if lg is not None and (lg < len(self.lg) or (lg == 0 and self.sm)):
            lg = min(lg, 15); parts.append(f'lgkmcnt({lg})'); self.lg = self.lg[len(self.lg)-lg:] if lg else []
            if lg == 0: self.sm = []
        if parts:
            self.nwait += 1
            self._raw(Ins('s_waitcnt ' + ' '.join(parts)))
    def wait_tags(self, tags):
        vm = lg = None
        for i, o in enumerate(self.vm):
            if o.tag in tags: vm = len(self.vm) - 1 - i
        for i, o in enumerate(self.lg):
            if o.tag in tags: lg = len(self.lg) - 1 - i
        self._wait(vm, lg)
    def wait_all(self): self._wait(0, 0)
    def emit(self, x):
        if isinstance(x, str): x = L(x)
        if isinstance(x, (list, tuple)):
            for i in x: self.emit(i)
            return
        ins = x
        if ins.mn == 's_waitcnt':
            m = re.search(r'vmcnt\((\d+)\)', ins.text); m2 = re.search(r'lgkmcnt\((\d+)\)', ins.text)
            self._wait(int(m.group(1)) if m else None, int(m2.group(1)) if m2 else None)
            return
        touch = ins.uses | ins.defs
        vm = lg = None
        for i, o in enumerate(self.vm):
            if (o.defs & touch) or (o.tag is not None and o.tag in ins.waitfor): vm = len(self.vm) - 1 - i
        for i, o in enumerate(self.lg):
            if (o.defs & touch) or (o.tag is not None and o.tag in ins.waitfor): lg = len(self.lg) - 1 - i
        for o in self.sm:
            if (o.defs & touch) and o.note != 'stamp': lg = 0
        self._wait(vm, lg)
        self._raw(ins)
        if ins.kind == 'vmem': self.vm.append(ins)
        elif ins.kind == 'ds': self.lg.append(ins)
        elif ins.kind == 'smem' and ins.note != 'stamp': self.sm.append(ins)

def cost(ins):
    if ins.kind in ('label', 'dir'): return 0
    if ins.kind == 'ds': return 8
    if ins.kind == 'trans': return 8
    if ins.kind == 'vmem': return 16
    if ins.kind == 'mfma': return 4 * ins.passes
    return 4

class Fill:
    def __init__(self, items, g0, g1, prio=1, hard=False, name=None):
        self.items = [i if isinstance(i, list) else [i] for i in items]
        self.g0 = g0; self.g1 = g1; self.prio = prio; self.hard = hard; self.k = 0; self.name = name
        n = len(self.items)
        tot = sum(max(1, sum(cost(x) for x in it)) for it in self.items); acc = 0; self.want = []
        for it in self.items:
            self.want.append(g0 + (g1 - g0) * acc / max(tot, 1)); acc += max(1, sum(cost(x) for x in it))

def interleave(backbone, fills, pinned=None, slack=2.0):
    pinned = pinned or {}
    out = []
    for g, m in enumerate(backbone):
        out.append(m)
        budget = 4 * m.passes - 4
        cur = []
        for x in pinned.get(g, []): cur.append(x); budget -= cost(x)
        last = g == len(backbone) - 1
        progress = True
        while progress:
            progress = False
            cands = [f for f in fills if f.k < len(f.items) and (f.want[f.k] <= g or last)]
            def key(f):
                it = f.items[f.k]
                memfirst = 0 if (not cur and it[0].kind in ('ds', 'vmem', 'salu')) else 1
                return (memfirst, -f.prio, f.want[f.k])
            for f in sorted(cands, key=key):
                it = f.items[f.k]
                c = sum(cost(x) for x in it)
                if not cur and it[0].kind in ('valu', 'trans'): c += 4
                if cur and cur[-1].kind in ('valu', 'trans') and it[0].kind == 'ds': c += 4
                late = g - f.want[f.k]
                if c <= budget or late >= slack or last or (f.hard and late >= 0) or (not cur and it[0].kind == 'vmem'):
                    cur += it; budget -= c; f.k += 1; progress = True
                    break
        out += cur
    for n, f in enumerate(fills):
        for it in f.items:
            for x in it: x.src = f.name or f'F{n}'
    audit(out)
    return out

AUDIT = []
def audit(seq):
    last = {}; own = {}; cross = {}
    g = -1
    for i in seq:
        if i.kind == 'mfma' and i.src is None: g += 1
        me = i.src or 'bb'
        for r in (i.uses | i.xuses) - {'exec'}:
            if r in last and last[r][0] != me:
                if (me, r) in own and me != 'bb' and last[r][0] != 'bb':
                    AUDIT.append(f'CONFLICT gap {g}: {me} [{i}] reads {r} last written by {last[r][0]} [{last[r][1]}]')
                cross.setdefault((last[r][0], me), {}).setdefault(r, g)
        for r in i.defs | i.xdefs:
            last[r] = (me, i); own[(me, r)] = i
    def fmt(d):
        return ' '.join((f'{r[0]}{r[1]}' if isinstance(r, tuple) else r) + f'@{g}' for r, g in sorted(d.items(), key=str))
    for (a, b), d in cross.items():
        AUDIT.append(f'flow {a} -> {b}: {fmt(d)}')

CLANG = 'clang'; OBJDUMP = 'llvm-objdump'
def measure_sizes(ins_list):
    real = [i for i in ins_list if i.kind not in ('label', 'dir')]
    txt = '.amdgcn_target "amdgcn-amd-amdhsa--gfx950"\n.text\n' + '\n'.join(
        (i.text if not (i.mn.startswith('s_cbranch') or i.mn == 's_branch') else 's_nop 0') for i in real) + '\n'
    with tempfile.TemporaryDirectory() as td:
        open(td + '/a.s', 'w').write(txt)
        r = subprocess.run([CLANG, '-x', 'assembler', '-target', 'amdgcn-amd-amdhsa', '-mcpu=gfx950', '-c', td + '/a.s', '-o', td + '/a.o'], capture_output=True, text=True)
        if r.returncode: raise RuntimeError(r.stderr[:3000])
        o = subprocess.run([OBJDUMP, '-d', td + '/a.o'], capture_output=True, text=True).stdout
    sz = [len(m.group(1).split()) * 4 for m in re.finditer(r'// [0-9A-F]+: ([0-9A-F ]+)$', o, re.M)]
    assert len(sz) == len(real), (len(sz), len(real))
    for i, s in zip(real, sz): i.size = s

NOPROMO = ('v_readfirstlane', 'v_accvgpr', 'v_permlane', 'v_dot2c', 'v_nop')
def promotable(i):
    return i.kind in ('valu', 'trans') and i.size == 4 and not any(i.mn.startswith(p) for p in NOPROMO) and not re.search(r'_(e32|e64|dpp|sdwa)$', i.mn)

def layout(ins_list, stub_every=4, minrun=6, minrun_m=3, minpages=0, stubs=True):
    measure_sizes(ins_list)
    real_idx = [k for k, i in enumerate(ins_list) if i.kind not in ('label', 'dir')]
    nxt = {a: b for a, b in zip(real_idx, real_idx[1:])}
    out = []; off = 0; page = 0; dostub = stubs; stubs = []; mis = 0
    def stub(p):
        s = Ins(f's_cbranch_execz L_stub{p + stub_every}'); s.size = 4; stubs.append((p, s))
        return [Ins(f'L_stub{p}:'), s]
    for k, i in enumerate(ins_list):
        if i.kind in ('label', 'dir'): out.append(i); continue
        if dostub and off >= page * 4096:
            out += stub(page); off += 4; page += 1
        if i.size == 4 and off % 8 == 0 and k in nxt and ins_list[nxt[k]].size == 8 and promotable(i):
            parts = i.text.split(None, 1); i.text = parts[0] + '_e64 ' + parts[1]; i.size = 8
        if i.size == 8 and off % 8 == 4:
            run = 0; kk = k; hasm = False
            while kk is not None and ins_list[kk].size == 8 and run < 12:
                hasm |= ins_list[kk].kind == 'mfma'; run += 1; kk = nxt.get(kk)
            prevm = out and out[-1].kind == 'mfma'
            if (run >= minrun and not hasm) or (run >= minrun_m and prevm and i.kind in ('valu', 'trans', 'mfma')):
                n = Ins('s_nop 0'); n.size = 4; out.append(n); off += 4
        if i.size == 8 and off % 8 == 4: mis += 1
        out.append(i); off += i.size
    for p, s in stubs:
        if p < stub_every: s.text = 's_cbranch_execz L_tdone'
        elif p + stub_every >= page: s.text = 's_cbranch_execz L_tdone2'
    for p in range(page, minpages):
        out += [Ins(f'L_stub{p}:'), Ins('s_branch L_tdone2' if p >= stub_every else 's_branch L_tdone')]
    return out, page, off, mis

def render(ins_list):
    return '\n'.join((i.text if i.kind in ('label', 'dir') else '    ' + i.text) for i in ins_list) + '\n'
```

```python
from fw import *
from gen import *

ACCK = [128, 96]; ACCH = [144, 112]; ACCS = 160
RING = [40, 44, 48, 52, 56, 60]
RECV = 64
GT = 72
PK = 76
BX = 84
WXK, WXH = 88, 92
vK1, vK3, vI2 = 'v7', 'v8', 'v9'
vST = 10
vTR, vTR2, vEW, vER, vHX, vHY, vSR = 'v12', 'v13', 'v14', 'v16', 'v17', 'v18', 'v19'
IC2 = 20
M32 = 'v_mfma_f32_32x32x16_bf16'; M16 = 'v_mfma_f32_16x16x32_bf16'
def r16(b): return f'v[{b}:{b+15}]'
def w2reg(ct, ks):
    k = ct*12 + ks
    if k < 20: b = 176 + 4*k; return f'v[{b}:{b+3}]'
    if k < 24: b = 240 + 4*(k - 20); return f'a[{b}:{b+3}]'
    b = 48 + 4*(k - 24); return f'a[{b}:{b+3}]'
def tokreg(stage, ks):
    if stage in (0, 3): b = 4*ks; return f'a[{b}:{b+3}]'
    if stage == 1: b = 192 + 4*ks; return f'a[{b}:{b+3}]'
    b = 128 + 4*ks; return f'v[{b}:{b+3}]'

def gemms(g, S):
    o = g.o
    S.emit(f'''
    v_bfe_u32 v12, v2, 2, 2
    v_lshrrev_b32 v13, 5, v2
    v_lshl_add_u32 v14, v13, 3, v12
    v_lshrrev_b32 v12, 1, v12
    v_lshl_or_b32 v12, v13, 1, v12
    v_bfe_u32 v13, v2, 4, 1
    v_bfe_u32 v16, v2, 1, 1
    v_lshl_or_b32 v13, v13, 1, v16
    v_xor_b32 v12, v12, v13
    v_lshlrev_b32 v12, 4, v12
    v_lshl_add_u32 v12, v14, 6, v12
    v_and_b32 v13, 1, v2
    v_lshl_add_u32 v12, v13, 3, v12
    s_and_b32 s33, s3, 1
    s_mul_i32 s58, s33, 20480
    v_add_u32 v12, s58, v12
    ''')
    S.emit(g.barrier(['tile0']))
    S.emit(g.stamp('g1'))
    setupA = L(f'''
    v_add_u32 v13, {L_SLOT[2]}, v12
    s_lshr_b32 s32, s3, 1
    s_lshl_b32 s58, {sSIG}, 1
    s_add_u32 s58, s58, s33
    s_lshr_b32 s59, s58, 3
    s_and_b32 s58, s58, 7
    s_lshl_b32 s58, s58, 1
    v_bfe_u32 v0, v2, 1, 1
    v_bfe_u32 v10, v2, 3, 1
    v_lshl_or_b32 v0, v10, 1, v0
    v_xor_b32 v0, s59, v0
    v_lshlrev_b32 v0, 4, v0
    v_lshl_add_u32 v0, v2, 6, v0
    v_add_u32 v0, s58, v0
    s_lshl_b32 s37, {sR}, 13
    s_add_u32 s37, s37, {WS_ST2}
    s_lshl_b32 s58, {sSIG}, 7
    s_lshl_b32 s59, s33, 3
    s_add_u32 s38, s58, s59
    s_add_u32 s38, s38, s37
    ''')
    def stats_step(kind):
        T = 68; a = 'v11'; x = lambda i: f'v{T + (i & 3)}'
        it = []
        if kind < 2:
            it.append(L(f'v_add_u32 {a}, {L_SLOT[kind]}, v0'))
            it.append(L(f's_cmp_eq_u32 s32, 0\ns_cselect_b32 s39, s38, {OOB}\ns_add_u32 s39, s39, {2048*kind}'))
        else:
            it.append(L(f's_cmp_eq_u32 s32, 0\ns_cselect_b32 s39, {L_SLOT[2]}, {L_SLOT[3]}\nv_add_u32 {a}, s39, v0'))
            it.append(L(f's_lshl_b32 s39, s32, 11\ns_add_u32 s39, s39, s38\ns_add_u32 s39, s39, 4096'))
        rd = lambda i: L(f'ds_read_u16_d16_hi v{32+i if i < 8 else 66+i-8}, {a} offset:{4096*i}')
        xr = lambda i: f'v{32+i if i < 8 else 66+i-8}'
        for i in range(10): it.append(rd(i))
        for i in range(10):
            if i == 0: it += [L(f'v_mul_f32 v64, {xr(0)}, v{IC2}'), L('v_mul_f32 v65, v64, v64')]
            else: it += [L(f'v_mul_f32 {xr(i)}, {xr(i)}, v{IC2+i}'), L(f'v_add_f32 v64, v64, {xr(i)}'), L(f'v_fmac_f32 v65, {xr(i)}, {xr(i)}')]
        it.append(L(f'v_mov_b32 v33, {OOB}'))
        for k in ('row_ror:8 row_mask:0xf', 'row_ror:4 row_mask:0xf', 'row_ror:2 row_mask:0xf', 'row_ror:1 row_mask:0xf', 'row_bcast:15 row_mask:0xa', 'row_bcast:31 row_mask:0xc'):
            it.append(L(f'v_add_f32_dpp v64, v64, v64 {k} bank_mask:0xf\nv_add_f32_dpp v65, v65, v65 {k} bank_mask:0xf\ns_nop 0'))
        it += [[i] for i in g.finish_stats('v64', 'v65', 'v64')]
        it.append(L(f'v_writelane_b32 v33, s39, 63\nv_mov_b32 v65, v1'))
        it.append(L(f'buffer_store_dwordx2 v[64:65], v33, {sWS}, 0 offen sc1'))
        return it
    setupB = L(f'''
    s_mul_i32 s58, s3, 6144
    s_add_u32 s58, s58, {L_EX}
    v_add_u32 v14, s58, v3
    s_xor_b32 s59, s3, 1
    s_mul_i32 s59, s59, 6144
    s_add_u32 s59, s59, {L_EX}
    v_add_u32 v16, s59, v3
    v_bfe_u32 v17, v2, 4, 1
    v_mul_u32_u24 v17, 49152, v17
    v_and_b32 v18, 15, v2
    v_lshl_add_u32 v18, v18, 4, v17
    v_lshrrev_b32 v19, 5, v2
    v_lshl_add_u32 v17, v19, 8, v18
    s_mul_i32 s40, {sR}, 98304
    s_mul_i32 s58, {sSIG}, 3072
    s_add_u32 s40, s40, s58
    s_add_u32 s40, s40, {WS_HH}
    s_lshl_b32 s58, s3, 9
    v_add_u32 v17, s58, v17
    s_lshl_b32 s58, s3, 8
    s_add_u32 s58, s58, 2048
    v_add_u32 v18, s58, v18
    v_mul_u32_u24 v19, 0x7f, v19
    v_lshl_or_b32 v18, v19, 24, v18
    v_bfe_u32 v19, v2, 1, 4
    v_lshlrev_b32 v19, 7, v19
    v_and_b32 v84, 1, v2
    v_lshl_add_u32 v19, v84, 3, v19
    v_mov_b32 v86, 0
    v_mov_b32 v87, 0
    s_lshl_b32 s41, {sR}, 4
    s_add_u32 s41, s41, {sSIG}
    s_lshl_b32 s41, s41, 7
    s_add_u32 s41, s41, {WS_FLH}
    s_mov_b32 s42, 0x01000100
    s_mov_b32 s43, 0x03020302
    s_and_b32 s34, {sJ}, 7
    s_lshl_b32 s35, {sXC}, 1
    s_lshr_b32 s58, {sJ}, 4
    s_add_u32 s35, s35, s58
    s_bfe_u32 s36, {sJ}, 0x10003
    s_mul_i32 s44, s34, {5*49152}
    s_mul_i32 s58, s3, 12288
    s_add_u32 s44, s44, s58
    s_add_u32 s44, s44, {WS_W2P}
    s_lshl_b32 s45, s35, 1
    s_add_u32 s45, s45, s36
    s_mul_i32 s45, s45, 49152
    s_add_u32 s45, s45, s58
    s_add_u32 s45, s45, {WS_HH}
    ''')
    wxld_pre = L(f'''
    s_mul_i32 s58, s32, 3
    s_mul_i32 s59, {sSIG}, 6
    s_add_u32 s58, s58, s59
    s_lshl_b32 s58, s58, 10
    s_add_u32 s49, s58, {WS_WX + 2048}
    s_lshl_b32 s59, s33, 10
    s_add_u32 s46, s58, s59
    s_add_u32 s46, s46, {WS_WX}
    ''')
    wxld = L(f'buffer_load_dwordx4 v[{WXK}:{WXK+3}], v3, {sWS}, s46 offen sc1\nbuffer_load_dwordx4 v[{WXH}:{WXH+3}], v5, {sWS}, s49 offen sc1')
    wxfix = [g.check(wxld, [f'v{WXK+3}', f'v{WXH+3}'], f'v{GT}')] + [[i] for i in L(f'''
    v_mov_b32 v{WXK+3}, 0
    v_mov_b32 v{WXH+3}, 0
    v_bfe_i32 v{GT}, v2, 3, 1
    v_bfi_b32 v{WXH}, v{GT}, 0, v{WXH}
    v_bfi_b32 v{WXH+1}, v{GT}, 0, v{WXH+1}
    ''')]
    def w2_loads(k0, k1):
        items = []
        for k in range(k0, k1):
            ct, ks = divmod(k, 12); it = []
            if ks % 4 == 0 or k == k0: it += L(f's_add_u32 s67, s44, {ct*49152 + 4096*(ks//4)}')
            it += L(f'buffer_load_dwordx4 {w2reg(ct, ks)}, v3, {sWS}, s67 offen offset:{1024*(ks%4)} sc1')
            items.append(it)
        return items
    def tok_loads(stage):
        items = []
        for ks in range(12):
            it = []
            if ks % 4 == 0: it += L(f's_add_u32 s68, s45, {stage*32*49152 + 1024*ks}')
            it += L(f'buffer_load_dwordx4 {tokreg(stage, ks)}, v3, {sWS}, s68 offen offset:{1024*(ks%4)} sc1')
            items.append(it)
        return items
    def flagH(stage, waits=()):
        return L(f's_add_u32 s63, s41, {stage*32768}') + g.barrier([f'hh{stage}'] + list(waits)) + L(f'buffer_store_dword v1, v30, {sWS}, s63 offen sc1')
    setupC = L(f'''
    s_cmp_eq_u32 s3, 0
    s_cselect_b32 s58, 0, {OOB}
    v_or_b32 v30, s58, v31
    ''')
    setupD = L(f'''
    s_lshl_b32 s58, s35, 4
    s_lshl_b32 s59, s3, 2
    s_add_u32 s58, s58, s59
    v_and_b32 v4, 3, v2
    v_add_u32 v4, s58, v4
    v_lshlrev_b32 v4, 7, v4
    v_add_u32 v4, {WS_FLH}, v4
    ''')
    def pollH(stage, dst): return L(f's_mov_b32 s63, {stage*32768}\nbuffer_load_dword {dst}, v4, {sWS}, s63 offen sc1')
    w2p_pre = L(f'''
    s_mul_i32 s58, s34, 5
    s_add_u32 s59, s58, 4
    s_lshr_b32 s58, s58, 2
    s_lshr_b32 s59, s59, 2
    s_sub_u32 s59, s59, s58
    s_mul_i32 s69, s3, 30
    s_add_u32 s58, s58, s69
    v_and_b32 v15, 3, v2
    v_min_u32 v15, 2, v15
    v_mul_u32_u24 v15, 10, v15
    v_bfe_u32 v{GT+1}, v2, 2, 1
    v_mad_u32_u24 v15, v{GT+1}, s59, v15
    v_add_u32 v15, s58, v15
    v_lshlrev_b32 v15, 7, v15
    v_add_u32 v15, {WS_FLW2}, v15
    ''')
    w2p = L(f'buffer_load_dwordx4 v[{PK}:{PK+3}], v15, {sWS}, 0 offen sc1')
    w2chk = g.check(w2p, [f'v{PK+k}' for k in range(4)], f'v{GT+1}')
    cst_pre = L(f'''
    s_mul_i32 s58, s34, 80
    s_mul_i32 s59, s3, 24
    s_add_u32 s58, s58, s59
    v_and_b32 v15, 31, v2
    v_add_u32 v15, s58, v15
    v_min_u32 v15, 639, v15
    v_lshrrev_b32 v{GT+2}, 5, v2
    v_mul_u32_u24 v{GT+2}, 3840, v{GT+2}
    v_add_lshl_u32 v15, v15, v{GT+2}, 3
    s_mov_b32 s47, {WS_MODP + 4*640*8}
    s_mov_b32 s48, {WS_MODP + 5*640*8}
    ''')
    cstld = L(f'buffer_load_dwordx2 v[{PK+4}:{PK+5}], v15, {sWS}, s47 offen sc1\nbuffer_load_dwordx2 v[{PK+6}:{PK+7}], v15, {sWS}, s48 offen sc1')
    a_, b_, c_, d_ = (f'v{PK+4+k}' for k in range(4))
    cstfin = [g.check(cstld, [b_, d_], f'v{GT+2}')] + [[i] for i in L(f'''
    v_mov_b32 {b_}, {a_}
    v_mov_b32 {d_}, {c_}
    s_lshl_b32 s58, s3, 8
    s_add_u32 s58, s58, {L_CST}
    v_permlane32_swap_b32 {a_}, {b_}
    v_permlane32_swap_b32 {c_}, {d_}
    v_add_f32 {a_}, {a_}, {b_}
    v_add_f32 {c_}, {c_}, {d_}
    v_cvt_pk_bf16_f32 {a_}, 0, {a_}
    v_cvt_pk_bf16_f32 {c_}, 0, {c_}
    v_add_f32 {a_}, 1.0, {a_}
    v_cvt_pk_bf16_f32 {a_}, 0, {a_}
    v_mov_b32 {b_}, 0x21800000
    ''')] + [L(f'''
    v_cmp_eq_f32 vcc, 0, {a_}
    v_and_b32 {d_}, 31, v2
    v_lshl_add_u32 {d_}, {d_}, 2, s58
    v_cndmask_b32 {a_}, {a_}, {b_}, vcc
    ''')] + [[i] for i in L(f'''
    v_rcp_f32 {a_}, {a_}
    ds_write_b32 {d_}, {c_}
    ds_write_b32 {d_}, {a_} offset:128
    ''')]
    res_dma = [L(f'''
    s_lshl_b32 s58, s3, 4
    s_add_u32 s58, s58, s35
    s_mul_i32 s58, s58, 40960
    s_mul_i32 s59, s34, 5120
    s_add_u32 s58, s58, s59
    s_add_u32 s62, s58, {WS_X1S}
    s_mul_i32 s59, s3, 5120
    s_add_u32 m0, s59, {L_RES}
    ''')] + [L(f'buffer_load_dwordx4 v3, {sWS}, s62 offen offset:{1024*i} sc1 lds', tag='res') for i in range(4)] + [
        L(f's_add_u32 m0, m0, 4096\ns_add_u32 s62, s62, 4096') + L(f'buffer_load_dwordx4 v3, {sWS}, s62 offen sc1 lds', tag='res')]
    def sendS(j): return [L(f'ds_write_b128 {vEW}, v[{ACCS+4*q}:{ACCS+4*q+3}] offset:{1024*q}', tag=f'snd{j}') for q in range(4)]
    def sendH(j): return [L(f'ds_write_b128 {vEW}, v[{ACCH[j&1]+4+8*q}:{ACCH[j&1]+7+8*q}] offset:{4096+1024*q}', tag=f'snd{j}') for q in range(2)]
    def recv(j):
        dst = [ACCK[j&1] + 4*q for q in range(4)] + [ACCH[j&1], ACCH[j&1] + 8]
        rd = lambda q: L(f'ds_read_b128 v[{RECV+4*(q&1)}:{RECV+4*(q&1)+3}], {vER} offset:{1024*q}')
        it = [rd(0), rd(1)]
        for q in range(6):
            it += [L(f'v_add_f32 v{dst[q]+b}, v{dst[q]+b}, v{RECV+4*(q&1)+b}') for b in range(4)]
            if q + 2 < 6: it.append(rd(q + 2))
        return it
    def statld(j): return L(f's_add_u32 s63, s37, {2048*j}\nbuffer_load_dwordx2 v[{vST}:{vST+1}], {vSR}, {sWS}, s63 offen sc1')
    def statuse(j, ld):
        return [g.check(ld, [f'v{vST+1}'], None)] + [[i] for i in L(f'''
        v_and_b32 {vI2}, 0xffff0000, v{vST}
        v_rcp_f32 {vK1}, {vI2}
        v_perm_b32 v{BX}, v{vST}, v{vST}, s42
        v_perm_b32 v{BX+1}, v{vST}, v{vST}, s43
        v_mul_f32 {vI2}, {vI2}, {vI2}
        v_mul_f32 {vK3}, {vK1}, {vK1}
        v_mul_f32 {vK1}, 0xc0135761, {vK1}
        v_mul_f32 {vK3}, 0x3d372713, {vK3}
        v_mul_f32 {vK3}, {vK3}, {vK1}
        ''')]
    def fold(j): return [(r16(ACCK[j&1]), f'v[{WXK}:{WXK+3}]', f'v[{BX}:{BX+3}]', r16(ACCK[j&1])), (r16(ACCH[j&1]), f'v[{WXH}:{WXH+3}]', f'v[{BX}:{BX+3}]', r16(ACCH[j&1]))]
    def gelu(j):
        prs = [(ACCK[j&1] + b, PK + (b >> 1)) for b in range(0, 8, 2)] + [(ACCH[j&1] + b, PK + 4 + (b >> 1)) for b in (0, 2)]
        it = []
        for n, (a, p) in enumerate(prs):
            t0, t1 = GT + 2*(n & 1), GT + 1 + 2*(n & 1)
            it += [[i] for i in L(f'''
            v_mul_f32 v{t0}, v{a}, v{a}
            v_mul_f32 v{t1}, v{a+1}, v{a+1}
            v_fma_f32 v{t0}, v{t0}, {vK3}, {vK1}
            v_fma_f32 v{t1}, v{t1}, {vK3}, {vK1}
            v_mul_f32 v{t0}, v{t0}, v{a}
            v_mul_f32 v{t1}, v{t1}, v{a+1}
            v_exp_f32 v{t0}, v{t0}
            v_mul_f32 v{a}, v{a}, v{a+8}
            v_exp_f32 v{t1}, v{t1}
            v_mul_f32 v{a+1}, v{a+1}, v{a+9}
            v_fma_f32 v{t0}, v{t0}, {vI2}, {vI2}
            v_fma_f32 v{t1}, v{t1}, {vI2}, {vI2}
            v_rcp_f32 v{t0}, v{t0}
            v_rcp_f32 v{t1}, v{t1}
            v_mul_f32 v{a}, v{a}, v{t0}
            v_mul_f32 v{a+1}, v{a+1}, v{t1}
            v_cvt_pk_bf16_f32 v{p}, v{a}, v{a+1}
            ''')]
            if n == 3: it.append(L(f's_add_u32 s69, s40, {j*32*49152}') + L(f'buffer_store_dwordx4 v[{PK}:{PK+3}], {vHX}, {sWS}, s69 offen sc1', tag=f'hh{j}'))
        it.append(L(f'v_permlane32_swap_b32 v{PK+4}, v{PK+6}'))
        it.append(L(f'v_permlane32_swap_b32 v{PK+5}, v{PK+7}'))
        it.append(L(f'buffer_store_dwordx4 v[{PK+4}:{PK+7}], {vHY}, {sWS}, s69 offen sc1', tag=f'hh{j}'))
        return it
    FP = o('foldpos', 17)
    seq = []; T0 = []; freeat = {}
    for j in range(4):
        order = [(2, 0), (1, 0), (2, 1), (1, 1), (2, 2), (1, 2), (0, 0), (0, 1), (0, 2)]
        for s in range(3, 17): order += [(2, s), (1, s), (0, s)]
        order += [(ro, s) for ro in (0, 1, 2) for s in (17, 18, 19)]
        T0.append(len(seq))
        for n, (ro, s) in enumerate(order):
            if j > 0 and n == FP: seq += fold(j - 1)
            d = r16([ACCS, ACCH[j&1], ACCK[j&1]][ro]); a = 12*s + 4*ro
            seq.append((d, f'a[{a}:{a+3}]', ('t', j, s), '0' if s == 0 else d))
            if j == 3: freeat[a] = len(seq) - 1
    T0.append(len(seq))
    B2 = [T0[j+1] - o('b2back', 11) for j in range(4)]
    def tload(f, dst):
        _, j, s = f
        a, base = (vTR2, 0) if j == 2 else (vTR, L_SLOT[j])
        return [Ins(f'ds_read_b64_tr_b16 v[{dst+2*e}:{dst+2*e+1}], {a} offset:{base + 1024*s + 256*e}') for e in range(2)]
    bb, pinned, head = alloc_frags(seq, M32, RING, tload, lead=o('lead1', 5), maxper=1, notbefore=lambda f: B2[f[1]-1] + 1 if f[1] > 0 else -1)
    S.emit(head)
    F = []
    one = lambda items, gp, prio=5: Fill([items], gp, gp, prio=prio, hard=True)
    t0, t1, t2, t3, t4 = T0
    pB = g.pollC(1, f'v{GT+3}')
    F.append(Fill([pB] + [[i] for i in g.epi(2, 's47', 'pC') + g.epi(3, 's48', 'pC')] + [[i] for i in setupA] + stats_step(0), 0, o('st0end', 20), prio=4))
    F.append(Fill(g.w1_loads(g.nw1, 60), 1, 8, prio=3))
    gB = o('gchkB', 17)
    F.append(Fill([g.stamp('_b0') + g.check(pB, [f'v{GT+3}'], None) + g.stamp('_b1')] + g.tile_dma(1), gB, gB + 12, prio=5))
    gC = o('gflC', 30)
    F.append(one(g.flagC(2, 'pC'), gC))
    F.append(Fill([[i] for i in setupB] + [wxld_pre] + [[i] for i in wxld] + [setupC] + [[i] for i in w2p_pre] + [w2p], 23, 42, prio=2))
    sl0 = statld(0)
    F.append(Fill([w2chk] + [[i] for i in cst_pre] + [[i] for i in cstld] + wxfix, 47, t1 - 6, prio=2))
    F.append(Fill([g.stamp('_t1w') + g.barrier(['tile1']) + g.stamp('_t1b')] + stats_step(1), B2[0], t1 + 2, prio=4, hard=True))
    for j in range(3):
        b = T0[j+1]
        F.append(Fill(sendS(j), b - 5, b - 2, prio=6, hard=True))
        F.append(Fill(sendH(j), b - 0, b + 1, prio=6, hard=True))
        bar = g.barrier([f'snd{j}']) if j == 0 else flagH(j - 1, [f'snd{j}'] + (['tile3'] if j == 1 else []))
        F.append(Fill([bar] + recv(j), b + 4, b + FP - 4, prio=5, hard=True))
        ld = statld(j)
        F.append(one(ld, b + (o('gst0', 3) if j == 0 else -8)))
        F.append(Fill([g.stamp(f'_s{j}a') + statuse(j, ld)[0] + g.stamp(f'_s{j}b')] + statuse_rest(statuse, j, ld, g), b + FP - 4, b + FP - 2, prio=5, hard=True))
        F.append(Fill(gelu(j), b + FP + 4, b + o('gelend', 44), prio=3))
        if j > 0: F.append(one(g.barrier([f'tile{j+1}'] if j == 1 else []), B2[j]))
    F.append(one(g.barrier([]), B2[3]))
    F.append(Fill(sendS(3), t4 - 5, t4 - 2, prio=6, hard=True))
    pC = g.pollC(2, 'v32')
    F.append(one(pC, t1 + o('gpC', 5)))
    F.append(Fill(cstfin, t1 + 5, t1 + 16, prio=2))
    gk = t1 + o('gchkC', 22)
    F.append(Fill([g.stamp('_c0') + g.check(pC, ['v32'], None) + g.stamp('_c1')] + g.tile_dma(2) + g.tile_dma(3) + [[i] for i in setupD], gk, gk + 26, prio=5))
    F.append(Fill(w2_loads(0, 8), t1 + 7, gk - 2, prio=1))
    F.append(Fill(stats_step(2), t2 + FP - 3, t2 + o('st2end', 40), prio=4))
    F.append(Fill(w2_loads(8, 24) + res_dma, t2 - 6, t3 - 14, prio=1))
    pH0 = pollH(0, 'v32')
    F.append(one(pH0, t3 - 12))
    lateld = [g.check(pH0, ['v32'], None)] + tok_loads(0) + w2_loads(24, 60)
    f3 = Fill(lateld, t3 + 6, t4 + o('late_over', 12), prio=2)
    for k, it in enumerate(f3.items):
        for i in it:
            for r in i.defs:
                if isinstance(r, tuple) and r[0] == 'a' and r[1] in freeat: f3.want[k] = max(f3.want[k], freeat[r[1]])
    for k in range(1, len(f3.want)): f3.want[k] = max(f3.want[k], f3.want[k-1])
    nin = sum(1 for w in f3.want if w <= t4 - 1)
    late_rest = f3.items[nin:]; f3.items = f3.items[:nin]; f3.want = f3.want[:nin]
    F.append(f3)
    sl3 = statld(3); F.append(one(sl3, t4 - 10))
    pH1 = pollH(1, 'v33'); F.append(one(pH1, t4 - 8))
    S.emit(interleave(bb, F, pinned))
    S.emit(g.stamp('g1end'))
    g2set = L(f'''
    v_lshrrev_b32 v40, 4, v2
    v_and_b32 v41, 15, v2
    s_mul_i32 s58, s3, 3
    v_min_u32 v42, 2, v40
    v_add_u32 v43, s58, v42
    v_cmp_lt_u32 vcc, 9, v43
    v_cmp_eq_u32 s[46:47], 3, v40
    v_min_u32 v43, 9, v43
    s_or_b64 vcc, vcc, s[46:47]
    v_lshlrev_b32 v44, 9, v43
    v_lshl_add_u32 v12, v41, 4, v44
    v_add_u32 v12, {L_PART}, v12
    s_mul_i32 s58, s3, 5120
    s_add_u32 s58, s58, {L_PART}
    v_add_u32 v13, s58, v3
    v_bfe_u32 v45, v2, 2, 2
    v_lshl_add_u32 v44, v45, 6, v44
    v_and_b32 v45, 3, v2
    v_lshl_add_u32 v44, v45, 3, v44
    s_lshl_b32 s58, s36, 5
    s_add_u32 s58, s58, {L_RES}
    v_add_u32 v5, s58, v44
    s_lshl_b32 s58, s3, 8
    s_add_u32 s58, s58, {L_CST}
    v_lshl_add_u32 v42, v42, 5, s58
    s_lshr_b32 s58, s35, 3
    s_lshl_b32 s58, s58, 8
    s_bfe_u32 s59, s35, 0x20001
    s_lshl_b32 s59, s59, 6
    s_add_u32 s58, s58, s59
    s_and_b32 s59, s35, 1
    s_lshl_b32 s59, s59, 3
    s_add_u32 s58, s58, s59
    s_lshl_b32 s59, s36, 5
    s_add_u32 s58, s58, s59
    v_and_b32 v44, 8, v41
    v_add3_u32 v44, v44, v41, s58
    v_mul_u32_u24 v44, 1280, v44
    v_lshl_add_u32 v44, v43, 4, v44
    s_mul_i32 s58, s34, 160
    v_add_u32 v44, s58, v44
    v_mov_b32 v45, {OOB}
    v_cndmask_b32 v6, v44, v45, vcc
    ds_read_b128 v[20:23], v42
    ds_read_b128 v[24:27], v42 offset:16
    ds_read_b128 v[32:35], v42 offset:128
    ds_read_b128 v[36:39], v42 offset:144
    ''')
    lr = list(late_rest)
    def drip(n):
        out = []
        for _ in range(n):
            if lr: out += lr.pop(0)
        return out
    S.emit(flat(statuse(3, sl3)))
    S.emit(flat(sendH(3)))
    S.emit(g.check(pH1, ['v33'], None))
    lr += tok_loads(1)
    S.emit(drip(2))
    S.emit(flagH(2, ['snd3', 'res']))
    rc = recv(3)
    S.emit(flat(rc[:2])); S.emit(drip(2)); S.emit(flat(rc[2:]))
    for d, a, b, c in fold(3): S.emit(f'{M32} {d}, {a}, {b}, {c}')
    S.emit(drip(2)); S.emit(g2set[:12])
    gl = gelu(3); step = o('dripstep', 9)
    for k in range(0, len(gl), step):
        S.emit(flat(gl[k:k+step])); S.emit(drip(1))
    S.emit(g.stamp('epi3'))
    S.emit(g2set[12:])
    if g.stop == 'g1':
        return
    ACC = [40, 60]; FT = 80
    bb = []
    for st in range(4):
        for ct in range(5):
            d = f'v[{ACC[st&1]+4*ct}:{ACC[st&1]+4*ct+3}]'
            for ks in range(12): bb.append(Ins(f'{M16} {d}, {w2reg(ct, ks)}, {tokreg(st, ks)}, {"0" if ks == 0 else d}'))
    def pwrite(st, ct): return L(f'ds_write_b128 v13, v[{ACC[st&1]+4*ct}:{ACC[st&1]+4*ct+3}] offset:{20480*(st&1) + 1024*ct}', tag=f'pw{st}')
    def final(st):
        it = []
        for w in range(4):
            for h in range(2): it.append(L(f'ds_read_b128 v[{FT+8*w+4*h}:{FT+8*w+4*h+3}], v12 offset:{20480*(st&1) + 5120*w + 256*h}'))
        X = FT + 32
        for e in range(2): it.append(L(f'ds_read_b64_tr_b16 v[{X+2*e}:{X+2*e+1}], v5 offset:{5120*st + 256*e}'))
        for c in range(8):
            it += [L(f'v_add_f32 v{FT+c}, v{FT+c}, v{FT+8+c}'), L(f'v_add_f32 v{FT+16+c}, v{FT+16+c}, v{FT+24+c}')]
        for c in range(8):
            u = f'v_lshlrev_b32 v{FT+8+c}, 16, v{X+(c>>1)}' if c % 2 == 0 else f'v_and_b32 v{FT+8+c}, 0xffff0000, v{X+(c>>1)}'
            it += [L(f'v_add_f32 v{FT+c}, v{FT+c}, v{FT+16+c}'), L(u), L(f'v_mul_f32 v{FT+c}, v{FT+c}, v{20+c}'), L(f'v_fmac_f32 v{FT+c}, v{FT+8+c}, v{32+c}')]
            if c % 2 == 1: it.append(L(f'v_cvt_pk_bf16_f32 v{X+4+(c>>1)}, v{FT+c-1}, v{FT+c}'))
        it.append(L(f's_mov_b32 s69, {st*512*1280}\nbuffer_store_dwordx4 v[{X+4}:{X+7}], v6, {sOUT}, s69 offen'))
        return it
    F = []
    F.append(Fill(lr, 0, max(1, 4*len(lr)), prio=3))
    nl = 4*len(lr)
    for st in range(4):
        b = 60*st
        for ct in range(5):
            gp = b + 12*ct + 16
            if gp < 240: F.append(one(pwrite(st, ct), gp))
        if st < 3:
            F.append(Fill([g.barrier([f'pw{st}'])] + final(st), b + 68, b + 112, prio=2))
    g3 = o('gfl3', 44)
    F.append(one(flagH(3), g3))
    pH2 = pollH(2, 'v7'); gp2 = o('gpH2', 20)
    F.append(one(pH2, gp2))
    g2c = max(o('gcH2', 56), nl + 3)
    F.append(Fill([g.stamp('_h2a') + g.check(pH2, ['v7'], None) + g.stamp('_h2b')] + tok_loads(2), g2c, g2c + 44, prio=4))
    pH3 = pollH(3, 'v8'); gp3 = max(o('gpH3', 100), g2c + 47)
    F.append(one(pH3, gp3))
    g3c = o('gcH3', 135)
    F.append(Fill([g.stamp('_h3a') + g.check(pH3, ['v8'], None) + g.stamp('_h3b')] + tok_loads(3), g3c, g3c + 24, prio=4))
    S.emit(interleave(bb, F))
    S.emit(g.stamp('g2m'))
    S.emit(pwrite(3, 4)); S.emit(g.barrier(['pw3'])); S.emit(flat(final(3)))

def statuse_rest(statuse, j, ld, g):
    n, sl = g.npoll, len(g.slow)
    r = statuse(j, ld)[1:]
    g.npoll = n; del g.slow[sl:]
    return r
```

```python
import sys
from fw import *

NAME = 'adaLN_cond__ssm_conv_s4__glu_gated_geglu__prompt_kernel'
WS_E = 0; WS_STAT = 0x1000; WS_FLW2 = 0x10000; WS_IC2 = 0x1E000
WS_MODP = 0x20000; WS_WX = 0x40000; WS_FLH = 0x60000; WS_DBG = 0x80000
WS_XT = 0x100000; WS_X1S = 0x400000; WS_W1P = 0x700000; WS_W2P = 0xB20000; WS_HH = 0xD00000
WS_FLA = 0x1300000; WS_FLC = 0x1340000; WS_ST2 = 0x13C0000; WS_SIZE = 0x1400000
FLC_REP = 160*128; FLC_STG = 8*FLC_REP
OOB = 0x7F000000
L_TAB = 0; L_STG = 65536
L_KC = 81920; KC_PITCH = 4736; KC1 = 2236; KCD = 4384
L_LN = 81920 + 4 * KC_PITCH
L_VEC = L_LN + 10240
L_H = 122880; H_PITCH = 4608
L_X = L_H + 4 * H_PITCH
L_SLOT = [0, 40960, 81920, 0]
L_EX = 122880
L_CST = 159744
L_RES = 40960; L_PART = 81920
LDS_BYTES = 163840
TP = 272
P2 = 2*1056
sWS, sX, sOUT, sWG, sWU, sWD, sWM = 's[4:7]', 's[8:11]', 's[12:15]', 's[16:19]', 's[20:23]', 's[24:27]', 's[28:31]'
sN, sXC, sJ, sSIG, sR, sBUD = 's50', 's51', 's52', 's53', 's54', 's55'
sCH, sCB4 = 's56', 's57'
BUD = 40000
def cp(l): return [Ins(i.text, tag=i.tag, waitfor=i.waitfor) for i in l]
def flat(items): return [x for it in items for x in (it if isinstance(it, list) else [it])]

class Gen:
    def __init__(self, stop=None, stamps=False, probe=None, **opt):
        self.stop = stop; self.stamps = stamps; self.opt = opt; self.probe = probe
        if probe: self.stamps = [probe]
        self.slow = []; self.npoll = 0; self.stamp_names = []
    def o(self, k, d): return self.opt.get(k, d)
    def stamp(self, name):
        if not self.stamps: return []
        if self.stamps is not True and name not in self.stamps and name not in ('start', 'end'): return []
        if self.stamps is True and name.startswith('_'): return []
        if name not in self.stamp_names: self.stamp_names.append(name)
        k = self.stamp_names.index(name); assert k < 14
        i = Ins(f's_{"memtime" if self.o("cyc", 0) else "memrealtime"} s[{74+2*k}:{75+2*k}]'); i.note = 'stamp'
        return [i]
    def check(self, loads, tagregs, tmp, sleep=4):
        k = self.npoll; self.npoll += 1
        def cmp():
            if len(tagregs) == 1: return L(f'v_cmp_ne_u32 vcc, {sN}, {tagregs[0]}')
            t = list(tagregs)
            o = L(f'v_xor_b32 {tmp}, {t[0]}, {t[1]}')
            for r in t[2:]: o += L(f'v_sad_u32 {tmp}, {t[0]}, {r}, {tmp} clamp')
            return o + L(f'v_sad_u32 {tmp}, {t[0]}, {sN}, {tmp} clamp\nv_cmp_ne_u32 vcc, 0, {tmp}')
        fast = cmp() + L(f's_cbranch_vccnz L_slow{k}\nL_back{k}:')
        dd = set()
        for i in loads:
            fast[-2].xuses |= (i.uses - dd); dd |= i.defs
        fast[-2].xdefs = set(r for r in dd if not isv(r)) | {'scc'}
        s = Stream()
        s.emit(f'L_slow{k}:\ns_sub_u32 {sBUD}, {sBUD}, 1\ns_cbranch_scc1 L_giveup{k}\ns_sleep {sleep}')
        s.emit([Ins(i.text) for i in loads]); s.wait_all(); s.emit(cmp())
        s.emit(f's_cbranch_vccnz L_slow{k}\ns_branch L_back{k}\nL_giveup{k}:\ns_mov_b32 {sBUD}, 0\ns_branch L_back{k}')
        self.slow += s.out
        return fast
    def barrier(self, waitfor=None): return [Ins('s_barrier', waitfor=waitfor)]
    def touch(self, first):
        return L(f'''
        s_mov_b64 exec, 0
        s_cmp_eq_u32 s3, 0
        s_cbranch_scc1 L_stub{first}
        s_cmp_eq_u32 s3, 1
        s_cbranch_scc1 L_stub{first+1}
        s_cmp_eq_u32 s3, 2
        s_cbranch_scc1 L_stub{first+2}
        s_branch L_stub{first+3}
        ''')
    def prologue(self, S):
        S.emit(self.stamp('start'))
        S.emit(f'''
        s_cmp_ge_u32 s2, 256
        s_cbranch_scc1 L_exit
        s_load_dwordx2 s[8:9], s[0:1], 0
        s_load_dwordx2 s[16:17], s[0:1], 80
        s_load_dwordx2 s[20:21], s[0:1], 88
        s_load_dwordx2 s[4:5], s[0:1], 136
        s_load_dwordx16 s[32:47], s[0:1], 8
        v_and_b32 v2, 63, v0
        v_min_u32 v4, {self.o('ntouch', 17)}, v2
        v_lshlrev_b32 v4, 3, v4
        global_load_dwordx2 v[4:5], v4, s[0:1]
        s_getpc_b64 s[58:59]
        s_lshr_b32 {sJ}, s2, 3
        v_lshrrev_b32 v1, 6, v0
        v_min_u32 v6, 2, v2
        v_mad_u32_u24 v6, v1, 3, v6
        v_readfirstlane_b32 s3, v1
        s_mul_i32 s60, {sJ}, 12
        v_add_u32 v6, s60, v6
        v_lshlrev_b32 v6, 7, v6
        v_min_u32 v6, @CODEMAX@, v6
        {'global_load_dword v252, v6, s[58:59]' if self.o('codepf', 1) else 's_nop 0'}
        s_load_dwordx2 s[24:25], s[0:1], 96
        s_load_dwordx2 s[48:49], s[0:1], 104
        s_load_dwordx2 s[28:29], s[0:1], 112
        s_load_dwordx2 s[12:13], s[0:1], 120
        v_lshlrev_b32 v3, 4, v2
        s_mov_b32 s10, 2621440
        s_mov_b32 s11, 0x20000
        s_mov_b32 s18, 1966080
        s_mov_b32 s19, 0x20000
        s_mov_b32 s22, s18
        s_mov_b32 s23, s19
        s_mul_i32 s60, s2, 10240
        s_mul_i32 s58, s3, 2560
        s_add_u32 s60, s60, s58
        s_add_u32 s61, s58, {L_LN}
        s_mul_hi_u32 s62, s2, {(2**32 + 9)//10}
        s_mul_i32 s58, s62, 10
        s_sub_u32 s63, s2, s58
        s_lshl_b32 s63, s63, 2
        s_add_u32 s63, s63, s3
        v_lshrrev_b32 v104, 3, v2
        v_bfe_u32 v105, v2, 4, 1
        v_lshlrev_b32 v105, 1, v105
        v_and_b32 v106, 7, v2
        v_xor_b32 v105, v105, v106
        v_lshlrev_b32 v105, 4, v105
        v_xor_b32 v106, 64, v105
        s_movk_i32 s58, 3072
        v_mad_u32_u24 v107, v104, s58, v105
        v_mad_u32_u24 v108, v104, s58, v106
        s_mul_i32 s64, s63, {16*3072}
        s_lshl_b32 s58, s62, 7
        s_add_u32 s64, s64, s58
        s_add_u32 s65, s64, {8*3072}
        s_lshl_b32 s66, s3, 12
        s_add_u32 s66, s66, {L_STG}
        s_mov_b32 m0, s61
        ''')
        S.emit(self.stamp('_a'))
        if self.o('pretouch', 1): S.emit('global_load_dword v253, v[4:5], off')
        S.emit(self.stamp('_b'))
        S.emit('s_waitcnt lgkmcnt(0)')
        S.emit(self.stamp('_karg'))
        S.emit(L('\n'.join(f'buffer_load_dwordx4 v3, {sX}, s60 offen offset:{o} nt lds' for o in (0, 1024, 1536)), tag='lndma'))
        S.emit(self.stamp('_c'))
        for d in range(4):
            S.emit(f's_add_u32 m0, s66, {1024*d}')
            S.emit(['s_load_dword s67, s[4:5], 0', f's_and_b32 {sXC}, s2, 7', f's_mul_i32 {sCB4}, {sXC}, 20', f's_add_u32 {sCB4}, {sCB4}, {sJ}'][d])
            S.emit(L(f'buffer_load_dwordx4 v{107+(d&1)}, {sWU if d&1 else sWG}, s{64+(d>>1)} offen nt lds', tag='w1dma'))
        S.emit(self.stamp('_d'))
        S.emit(f'''
        s_lshl_b32 {sCH}, {sCB4}, 2
        s_add_u32 {sCH}, {sCH}, s3
        s_mov_b32 s6, {WS_SIZE}
        s_mov_b32 s7, s19
        s_mov_b32 s14, s10
        s_mov_b32 s15, s19
        s_mov_b32 s26, s18
        s_mov_b32 s27, s19
        s_mov_b32 s30, 4915200
        s_mov_b32 s31, s19
        s_movk_i32 s58, 7680
        v_mad_u32_u24 v110, v104, s58, v105
        v_mad_u32_u24 v111, v104, s58, v106
        s_cmp_ge_u32 {sJ}, 20
        s_cselect_b32 s0, 1, 0
        s_cmp_eq_u32 s0, 1
        s_cbranch_scc1 L_sp_pro
        ''')
        st0 = S.state()
        S.emit(f'''
        s_mul_i32 s58, {sCH}, 384
        v_lshlrev_b32 v109, 1, v2
        v_add_u32 v109, s58, v109
        s_lshr_b32 s58, {sCH}, 1
        s_lshl_b32 s58, s58, 2
        s_load_dword s68, s[44:45], s58
        s_load_dword s69, s[46:47], s58
        ''')
        for slot in range(3):
            S.emit('\n'.join(f'global_load_short_d16_hi v{200+6*slot+k}, v109, s[{32+2*k}:{33+2*k}] offset:{128*slot} nt' for k in range(6)))
        S.emit('s_branch L_cv_const')
        stc = S.state()
        S.set_state(st0)
        S.emit(f'''
        L_sp_pro:
        s_mul_i32 s70, {sXC}, 12
        s_add_u32 s70, s70, {sJ}
        s_sub_u32 s70, s70, 20
        s_and_b32 s58, s70, 1
        s_mul_i32 s58, s58, 640
        v_lshlrev_b32 v12, 2, v0
        v_min_u32 v12, 636, v12
        v_add_u32 v12, s58, v12
        global_load_dword v200, v12, s[48:49]
        ''')
        md = self.mod_dma('s70')
        self.nmod_early = self.o('modearly', 10)
        S.emit(md[0]); S.emit(flat(md[1][:self.nmod_early])); self.mod_late = flat(md[1][self.nmod_early:])
        sts = S.state()
        S.emit('s_branch L_pro_join')
        S.set_state(stc)
        S.emit('L_cv_const:')
        S.emit(self.stamp('_issued'))
        self.conv_consts(S)
        stc = S.state()
        S.emit('L_pro_join:')
        nbase = len(st0[0]); extra_c = stc[0][nbase:]; extra_s = sts[0][nbase:]
        nmin = min(len(extra_c), len(extra_s))
        dummy = [Ins('buffer_load_dword v254, v3, s[4:7], 0 offen') for _ in range(nmin)]
        S.set_state((st0[0] + dummy, stc[1], list(stc[2]) + list(sts[2])))
        S.emit(self.stamp('_e'))
        S.emit(self.touch(0)); S.emit('L_tdone:\ns_mov_b64 exec, -1')
        S.emit(self.stamp('_touched'))
        S.emit(self.common_consts())
        self.ln_w1(S)
        S.emit(self.stamp('ln'))
        tail = [x for x in S.vm if x not in dummy]
        self.st_conv = (extra_c + tail, list(S.lg), []); self.st_spare = (extra_s + tail, list(S.lg), [])
        S.emit(f'''
        s_cmp_eq_u32 s0, 1
        s_cbranch_scc1 L_spare
        s_branch L_main
        L_tdone2:
        s_mov_b64 exec, -1
        s_cmp_eq_u32 s0, 1
        s_cbranch_scc1 L_sp_t2
        s_branch L_cv_t2
        L_exit:
        s_endpgm
        ''')
    def mod_dma(self, su):
        o = L(f'''
        s_lshr_b32 s58, {su}, 1
        s_mul_hi_u32 s59, s58, {(2**32 + 9)//10}
        s_mul_i32 s71, s59, 10
        s_sub_u32 s58, s58, s71
        s_lshl_b32 s59, s59, 2
        s_lshr_b32 s59, 0x534201, s59
        s_and_b32 s59, s59, 15
        s_mul_i32 s71, s59, 640
        s_lshl_b32 s58, s58, 6
        s_add_u32 s71, s71, s58
        s_and_b32 s58, {su}, 1
        s_mul_i32 s58, s58, {320*7680}
        s_mul_i32 s59, s3, {80*7680}
        s_add_u32 s72, s58, s59
        s_lshl_b32 s58, s71, 1
        s_add_u32 s72, s72, s58
        s_mul_i32 s73, s3, 10240
        ''')
        items = []
        for d in range(10):
            it = L(f's_add_u32 m0, s73, {1024*d}')
            it += L('s_nop 0') if d == 0 else L(f's_add_u32 s72, s72, {8*7680}')
            it += L(f'buffer_load_dwordx4 v{110+(d&1)}, {sWM}, s72 offen nt lds', tag='moddma')
            items.append(it)
        return o, items
    def common_consts(self):
        return L(f'''
        v_lshrrev_b32 v112, 4, v2
        v_bfe_u32 v113, v2, 2, 2
        v_lshlrev_b32 v114, 10, v112
        v_lshl_add_u32 v114, v113, 7, v114
        v_and_b32 v112, 1, v112
        v_lshrrev_b32 v113, 1, v113
        v_lshl_or_b32 v112, v112, 1, v113
        v_lshl_add_u32 v114, v112, 5, v114
        v_and_b32 v112, 3, v2
        v_lshl_add_u32 v112, v112, 3, v114
        v_add_u32 v112, s66, v112
        v_xor_b32 v113, 32, v112
        v_xor_b32 v114, 64, v112
        v_xor_b32 v115, 96, v112
        s_mov_b32 {sBUD}, {BUD}
        s_and_b32 s58, {sXC}, 3
        s_lshl_b32 s58, s58, 2
        s_and_b32 s59, {sJ}, 3
        s_add_u32 {sSIG}, s58, s59
        s_lshr_b32 s58, {sXC}, 2
        s_lshl_b32 s58, s58, 3
        s_lshr_b32 s59, {sJ}, 2
        s_add_u32 {sR}, s58, s59
        v_mov_b32 v31, {OOB}
        s_lshl_b32 s58, s3, 16
        s_lshl_b32 s59, s2, 7
        s_add_u32 s58, s58, s59
        s_add_u32 s58, s58, {WS_FLA}
        v_mov_b32 v127, v31
        s_add_u32 s59, s58, 0x8000
        v_writelane_b32 v127, s58, 0
        v_writelane_b32 v127, s59, 1
        v_writelane_b32 v31, 0, 0
        s_lshl_b32 s58, {sXC}, 15
        s_add_u32 s58, s58, {WS_FLA}
        v_lshlrev_b32 v28, 7, v0
        v_add_u32 v28, s58, v28
        s_mul_i32 {sN}, s67, 1664525
        s_add_u32 {sN}, {sN}, 1013904223
        v_mov_b32 v1, {sN}
        ''')
    def ln_w1(self, S):
        S.emit(f'''
        v_lshrrev_b32 v120, 5, v2
        v_and_b32 v121, 31, v2
        v_mul_u32_u24 v120, 1280, v120
        v_add_u32 v120, s61, v120
        v_lshl_add_u32 v122, v121, 3, v120
        v_lshl_add_u32 v120, v121, 4, v120
        v_bfe_u32 v121, v2, 2, 2
        v_mul_u32_u24 v121, 1280, v121
        v_lshrrev_b32 v123, 4, v2
        v_lshl_add_u32 v121, v123, 5, v121
        v_and_b32 v123, 3, v2
        v_lshl_add_u32 v121, v123, 3, v121
        s_mul_i32 s58, s3, 320
        s_add_u32 s58, s58, {L_LN}
        v_add_u32 v121, s58, v121
        v_lshrrev_b32 v124, 2, v2
        v_lshlrev_b32 v124, 14, v124
        v_lshl_add_u32 v124, v123, 4, v124
        v_mov_b32 v125, {OOB}
        v_mov_b32 v126, v125
        v_cmp_gt_u32 vcc, 32, v2
        s_lshl_b32 s58, s3, 12
        s_lshl_b32 s59, s2, 4
        s_add_u32 s58, s58, s59
        s_add_u32 s58, s58, {WS_STAT}
        v_cndmask_b32 v125, v125, v124, vcc
        v_writelane_b32 v126, s58, 31
        s_mul_i32 s60, s62, 160
        s_add_u32 s60, s60, s63
        s_lshl_b32 s60, s60, 10
        s_add_u32 s60, s60, {WS_W1P}
        s_mul_i32 s58, s3, {40*16384}
        s_lshl_b32 s59, s2, 6
        s_add_u32 s58, s58, s59
        s_add_u32 s58, s58, {WS_XT}
        s_mov_b32 s59, 0x3f803f80
        ''')
        S.emit(self.stamp('_preln'))
        S.wait_tags(['lndma'])
        S.emit(self.stamp('_lndma'))
        S.emit('''
        ds_read_b128 v[32:35], v120
        ds_read_b128 v[36:39], v120 offset:512
        ds_read_b64 v[40:41], v122 offset:1024
        s_barrier
        ''')
        for p in range(3):
            S.emit(f'ds_read_b64_tr_b16 v[{44+4*p}:{45+4*p}], v121 offset:{128*p}\nds_read_b64_tr_b16 v[{46+4*p}:{47+4*p}], v121 offset:{128*p+5120}')
        S.emit('v_dot2_f32_bf16 v116, v32, s59, 0\nv_dot2_f32_bf16 v117, v32, v32, 0')
        for r in range(33, 36): S.emit(f'v_dot2_f32_bf16 v116, v{r}, s59, v116\nv_dot2_f32_bf16 v117, v{r}, v{r}, v117')
        for p in range(3):
            S.emit(L(f'buffer_store_dwordx4 v[{44+4*p}:{47+4*p}], v{124 if p < 2 else 125}, {sWS}, s58 offen sc1', tag='pa'))
            if p < 2: S.emit(f's_add_u32 s58, s58, {16*16384}')
        for r in range(36, 42): S.emit(f'v_dot2_f32_bf16 v116, v{r}, s59, v116\nv_dot2_f32_bf16 v117, v{r}, v{r}, v117')
        for k in (8, 4, 2, 1):
            S.emit(f'v_add_f32_dpp v116, v116, v116 row_ror:{k} row_mask:0xf bank_mask:0xf\nv_add_f32_dpp v117, v117, v117 row_ror:{k} row_mask:0xf bank_mask:0xf')
        S.emit('v_add_f32_dpp v116, v116, v116 row_bcast:15 row_mask:0xa bank_mask:0xf\nv_add_f32_dpp v117, v117, v117 row_bcast:15 row_mask:0xa bank_mask:0xf')
        S.emit(self.finish_stats('v116', 'v117', 'v118'))
        S.emit(f'''
        v_and_b32 v116, 0xffff0000, v118
        v_rcp_f32 v116, v116
        v_lshlrev_b32 v118, 16, v118
        v_mul_f32 v118, -v118, v116
        v_permlane32_swap_b32 v116, v117
        v_permlane32_swap_b32 v118, v119
        ''')
        S.emit(L(f'buffer_store_dwordx4 v[116:119], v126, {sWS}, 0 offen sc1', tag='pa'))
        S.emit(self.prep_task('w1dma', 's60', 40960, 'pa', tmp=60))
    def finish_stats(self, s1, s2, out):
        return L(f'''
        v_mul_f32 {s1}, 0x3acccccd, {s1}
        v_mul_f32 {s2}, 0x3acccccd, {s2}
        v_fma_f32 {s2}, -{s1}, {s1}, {s2}
        v_max_f32 {s2}, 0, {s2}
        v_cvt_pk_bf16_f32 {s2}, 0, {s2}
        v_add_f32 {s2}, 0x3727c5ac, {s2}
        v_cvt_pk_bf16_f32 {s2}, 0, {s2}
        v_sqrt_f32 {s2}, {s2}
        v_cvt_pk_bf16_f32 {out}, {s1}, {s2}
        ''')
    def prep_task(self, dmatag, sdst, stride, sttag, tmp):
        o = []
        for t in range(4):
            o += L(f'ds_read_b64_tr_b16 v[{tmp+4*t}:{tmp+4*t+1}], v{112+t}\nds_read_b64_tr_b16 v[{tmp+4*t+2}:{tmp+4*t+3}], v{112+t} offset:512', waitfor=[dmatag])
        for t in range(4):
            o += L(f'buffer_store_dwordx4 v[{tmp+4*t}:{tmp+4*t+3}], v3, {sWS}, {sdst} offen sc1', tag=sttag)
            if t < 3: o += L(f's_add_u32 {sdst}, {sdst}, {stride}')
        return o
    def flagA(self):
        return self.barrier(['pa']) + L(f'buffer_store_dword v1, v127, {sWS}, 0 offen sc1')
    def g_setup(self):
        return L(f'''
        s_lshr_b32 s58, s3, 1
        s_mul_i32 s58, s58, 3
        s_mul_i32 s59, {sSIG}, 6
        s_add_u32 s58, s58, s59
        s_and_b32 s59, s3, 1
        s_lshl_b32 s60, s59, 7
        v_xor_b32 v5, s60, v3
        s_mul_i32 s58, s58, 40960
        s_mul_i32 s60, s59, 20480
        s_add_u32 s58, s58, s60
        s_add_u32 s58, s58, {WS_W1P}
        s_mul_i32 s60, s59, 40960
        s_add_u32 s66, s58, s60
        s_sub_u32 s64, s58, s60
        s_add_u32 s64, s64, 40960
        s_add_u32 s65, s58, 81920
        s_mul_i32 s61, s3, 10240
        s_mul_i32 s60, {sR}, 40960
        s_add_u32 s60, s60, s61
        s_add_u32 s60, s60, {WS_X1S}
        ''')
    def tile_consts(self):
        return L(f'''
        v_bfe_u32 v4, v2, 3, 1
        v_lshrrev_b32 v6, 5, v2
        v_lshl_or_b32 v4, v6, 1, v4
        v_lshlrev_b32 v4, 4, v4
        v_xor_b32 v6, v4, v3
        s_mul_i32 s58, s3, 40
        s_mul_i32 s59, {sXC}, 160
        s_add_u32 s58, s58, s59
        v_min_u32 v4, 39, v2
        v_add_u32 v4, s58, v4
        v_lshlrev_b32 v4, 7, v4
        v_add_u32 v4, {WS_FLC}, v4
        ''')
    def w1_loads(self, k0=0, k1=60):
        items = []
        for k in range(k0, k1):
            s, role = divmod(k, 3); a = 4*k; it = []
            if s % 4 == 0 or k < k0 + 3: it += L(f's_add_u32 s{67+role}, s{64+role}, {4096*(s//4)}')
            it += L(f'buffer_load_dwordx4 a[{a}:{a+3}], {"v5" if role == 1 else "v3"}, {sWS}, s{67+role} offen offset:{1024*(s%4)} sc1')
            items.append(it)
        return items
    def tile_dma(self, j):
        items = []
        for i in range(10):
            it = []
            if i % 4 == 0:
                it += L(f's_add_u32 m0, s61, {L_SLOT[j] + 1024*i}\ns_add_u32 s62, s60, {j*16*40960 + 1024*i}')
            it += L(f'buffer_load_dwordx4 v6, {sWS}, s62 offen offset:{1024*(i%4)} sc1 lds', tag=f'tile{j}')
            items.append(it)
        return items
    def pollC(self, stage, dst):
        return L(f's_mov_b32 s63, {stage*FLC_STG}\nbuffer_load_dword {dst}, v4, {sWS}, s63 offen sc1')
    def ic2_loads(self):
        return [L(f's_mov_b32 s63, {WS_IC2}\nbuffer_load_dwordx4 v[20:23], v3, {sWS}, s63 offen sc1'),
                L(f'buffer_load_dwordx4 v[24:27], v3, {sWS}, s63 offen offset:1024 sc1'),
                L(f'v_lshlrev_b32 v28, 3, v2\nbuffer_load_dwordx2 v[28:29], v28, {sWS}, s63 offen offset:2048 sc1')]
    def cmul(self, out, z, e, t):
        return L(f'''
        v_pk_mul_f32 v[{t}:{t+1}], v[{z}:{z+1}], v[{e}:{e+1}] op_sel:[0,0] op_sel_hi:[1,0]
        v_pk_fma_f32 v[{out}:{out+1}], v[{z}:{z+1}], v[{e}:{e+1}], v[{t}:{t+1}] op_sel:[1,1,0] op_sel_hi:[0,1,1] neg_lo:[1,0,0]
        ''')
    ALPHA = {}
    for _h in range(2):
        for _r in range(5): ALPHA[(_h, _r)] = 4*_h + _r
        for _k in range(3): ALPHA[(_h, 5+_k)] = 256 + 4*_h + 2*_k; ALPHA[(_h, 8+_k)] = 512 + 256*_h + 4*_k
        ALPHA[(_h, 11)] = 1032 + 256*_h; ALPHA[(_h, 12)] = 1544 + 256*_h
    def alpha_rows(self):
        di = lambda h, r: 8*(r >> 2) + 4*h + (r & 3)
        row = {}; fixes = {}
        for (h, r), al in sorted(self.ALPHA.items(), key=lambda x: di(*x[0])):
            i = di(h, r)
            if al in row: fixes[i] = row[al]
            else: row[al] = i
        free = sorted(fixes.keys())
        for al, i in list(row.items()):
            if i >= 24: row[al] = free.pop(0); fixes[i] = row[al]
        assert max(row.values()) < 24 and len(set(row.values())) == 24
        return row, fixes
    def kgen_setup(self, slot):
        P = 200 + 6*slot; o = []
        for k in range(3): o += L(f'v_mul_f32 v{66+k}, v{P}, v{220+k}\nv_mul_f32 v{61+2*k}, v{P+1}, v{223+k}')
        for k in range(3): o += L(f'v_exp_f32 v{66+k}, v{66+k}\nv_fract_f32 v{61+2*k}, v{61+2*k}')
        for k in range(3): o += L(f'v_cos_f32 v{60+2*k}, v{61+2*k}\nv_sin_f32 v{61+2*k}, v{61+2*k}')
        for k in range(3): o += L(f'v_mul_f32 v{60+2*k}, v{60+2*k}, v{66+k}\nv_mul_f32 v{61+2*k}, v{61+2*k}, v{66+k}')
        o += L(f'v_mul_f32 v{P+2}, v{P+2}, v226\nv_mul_f32 v{P+3}, v{P+3}, v226')
        return o
    def kgen_chains(self, slot):
        P = 200 + 6*slot; E1, E8, E256 = 60, 62, 64; T = 70
        row, _ = self.alpha_rows()
        U = lambda k: 76 + 2*k
        pts = []
        pts.append((self.cmul(U(0), P+4, P+2, T), U(0), 32+row[0], True))
        for k in range(1, 9): pts.append((self.cmul(U(k), U(k-1), E1, T), U(k), 32+row[k], True))
        for e in (0, 2, 4, 6, 8): pts.append((self.cmul(U(e), U(e), E256, T), U(e), 32+row[256+e], True))
        for b in (512, 768):
            for e in (0, 4, 8): pts.append((self.cmul(U(e), U(e), E256, T), U(e), 32+row[b+e], True))
        for b in range(4): pts.append((self.cmul(U(8), U(8), E256, T), U(8), 32+row[1032+256*b], True))
        pts.append(([], E8, 1, False))
        pts.append((self.cmul(74, E8, E8, T), 74, 2, False))
        for j in range(3, 32): pts.append((self.cmul(74, 74, E8, T), 74, j, False))
        B = self.o('kbatch', 11); out = []
        for i in range(0, len(pts), B):
            o = []; w = []
            for k, (c, z, r, neg) in enumerate(pts[i:i+B]):
                o += c + L(f'v_cvt_pk_bf16_f32 v{230+k}, v{z}, {"-" if neg else ""}v{z+1}')
                w += L(f'ds_write_addtid_b32 v{230+k} offset:{r*TP}')
            out.append(o + w)
        return out
    def kgen_mfma(self, slot, fillers):
        o = []
        for k in range(8):
            o += L(f'ds_read_b128 v[{128+8*k}:{131+8*k}], v227 offset:{32*k}\nds_read_b128 v[{132+8*k}:{135+8*k}], v228 offset:{32*k}')
        bb = [Ins(f'v_mfma_f32_32x32x16_bf16 v[96:111], v[{128+8*k}:{131+8*k}], v[{132+8*k}:{135+8*k}], {"0" if slot == 0 and k == 0 else "v[96:111]"}') for k in range(8)]
        return o + interleave(bb, [Fill(fillers, 0, 6)])
    def conv_consts(self, S):
        row, fixes = self.alpha_rows()
        S.emit(f'''
        v_and_b32 v228, 31, v2
        v_min_u32 v227, 23, v228
        s_lshl_b32 s70, s3, 14
        s_mul_i32 s71, s3, {KC_PITCH}
        s_add_u32 s71, s71, {L_KC}
        s_mul_i32 s72, s3, {H_PITCH}
        s_add_u32 s72, s72, {L_H}
        ''')
        for i, rr in fixes.items():
            S.emit(f'v_writelane_b32 v227, {rr}, {i}\nv_writelane_b32 v227, {rr}, {i+32}')
        S.emit(f'''
        v_lshrrev_b32 v229, 5, v2
        v_lshlrev_b32 v243, 4, v228
        v_lshl_add_u32 v242, v229, 3, v243
        v_sub_u32 v242, s71, v242
        v_lshl_add_u32 v243, v229, 9, v243
        v_sub_u32 v243, s71, v243
        v_lshlrev_b32 v244, 1, v2
        v_sub_u32 v244, s71, v244
        v_mov_b32 v246, s71
        v_lshl_add_u32 v229, v229, 4, s70
        s_movk_i32 s58, {TP}
        v_add_u32 v227, 32, v227
        v_mad_u32_u24 v227, v227, s58, v229
        v_mad_u32_u24 v228, v228, s58, v229
        s_mov_b32 m0, s70
        v_mov_b32 v72, 0x00003f80
        v_mov_b32 v32, 0
        v_mov_b32 v33, 0
        v_lshl_add_u32 v34, v2, 3, s72
        v_and_b32 v7, 15, v2
        v_lshl_add_u32 v35, v7, 2, s71
        ds_write_addtid_b32 v72
        ds_write_b64 v34, v[32:33]
        ds_write_b32 v35, v32
        ds_write_b32 v35, v32 offset:{2112}
        ds_write_b32 v35, v32 offset:{KC1}
        ds_write_b32 v35, v32 offset:{KC1 + 2116}
        ds_write_b32 v35, v32 offset:{KCD + 256}
        v_bfe_u32 v247, v0, 2, 2
        v_lshlrev_b32 v247, 4, v247
        v_lshl_add_u32 v247, v0, 6, v247
        v_add_u32 v247, {L_X}, v247
        v_xor_b32 v248, 16, v247
        v_xor_b32 v249, 32, v247
        v_xor_b32 v250, 48, v247
        v_lshlrev_b32 v251, 4, v0
        v_add_u32 v192, {WS_STAT}, v251
        v_add_u32 v251, {L_H + 512}, v251
        v_lshrrev_b32 v8, 4, v2
        v_lshlrev_b32 v193, 4, v8
        v_lshlrev_b32 v9, 5, v7
        v_add3_u32 v9, v9, v193, s72
        v_and_b32 v10, 1, v7
        v_mul_u32_u24 v10, {KC1}, v10
        v_add3_u32 v10, v10, v193, s71
        v_xor_b32 v193, v193, v3
        v_lshrrev_b32 v11, 1, v7
        v_lshlrev_b32 v11, 2, v11
        v_sub_u32 v10, v10, v11
        v_add_u32 v11, {P2 - 32 - 2048}, v10
        v_add_u32 v12, {P2 - 32 - 1024 - 960}, v10
        v_add_u32 v10, {P2 - 32 - 960}, v10
        v_bfe_u32 v13, v7, 1, 2
        v_xor_b32 v13, s3, v13
        v_lshlrev_b32 v13, 4, v13
        v_lshl_add_u32 v13, v7, 7, v13
        v_and_b32 v14, 1, v8
        v_lshl_add_u32 v13, v14, 6, v13
        v_add_u32 v13, {L_X}, v13
        v_lshlrev_b32 v15, 3, v14
        v_lshrrev_b32 v29, 2, v7
        v_lshl_add_u32 v15, v29, 1, v15
        v_lshrrev_b32 v30, 1, v8
        v_add_u32 v15, v15, v30
        v_mul_u32_u24 v15, 40960, v15
        v_and_b32 v30, 3, v7
        v_lshl_add_u32 v15, v30, 4, v15
        s_lshl_b32 s58, {sCH}, 6
        s_add_u32 s58, s58, {WS_X1S}
        v_add_u32 v15, s58, v15
        v_lshrrev_b32 v16, 1, v29
        v_and_b32 v16, v16, v29
        v_add_u32 v29, v29, v16
        v_mul_u32_u24 v29, 640, v29
        v_mul_u32_u24 v14, 3840, v14
        v_add3_u32 v29, v29, v14, v30
        s_lshl_b32 s58, {sCB4}, 5
        s_add_u32 s58, s58, {WS_MODP}
        v_lshl_add_u32 v29, v29, 3, s58
        v_lshlrev_b32 v14, 2, v8
        v_sub_u32 v14, v14, v7
        v_lshl_add_u32 v14, v14, 2, s71
        v_add_u32 v14, {KCD + 60}, v14
        s_mul_i32 s58, s3, {2*FLC_REP}
        s_lshl_b32 s59, {sCB4}, 7
        s_add_u32 s58, s58, s59
        s_add_u32 s58, s58, {WS_FLC}
        s_add_u32 s59, s58, {FLC_REP}
        v_mov_b32 v30, {OOB}
        v_writelane_b32 v30, s58, 0
        v_writelane_b32 v30, s59, 1
        ''')
        S.emit(f'''
        v_lshlrev_b32 v8, 3, v8
        v_lshlrev_b32 v32, v7, 1
        v_lshrrev_b32 v32, v8, v32
        s_movk_i32 s58, 0x1ff0
        v_lshlrev_b32 v33, v7, s58
        v_lshrrev_b32 v33, v8, v33
        s_movk_i32 s58, 0x0fe0
        v_lshlrev_b32 v34, v7, s58
        v_lshrrev_b32 v34, v8, v34
        s_mov_b32 s58, 0xffff
        s_mov_b32 s59, 0x3f803f80
        ''')
        for dw in range(4):
            for dst, m in ((16, 32), (20, 33), (24, 34)):
                S.emit(f'''
                v_bfe_i32 v36, v{m}, {2*dw}, 1
                v_bfe_i32 v37, v{m}, {2*dw+1}, 1
                v_bfi_b32 v{dst+dw}, s58, v36, v37
                ''')
                if dst != 16: S.emit(f'v_and_b32 v{dst+dw}, s59, v{dst+dw}')
        S.emit(self.tile_consts())
        S.emit(f'''
        s_and_b32 s58, {sCH}, 63
        s_lshr_b32 s59, {sCH}, 6
        s_lshl_b32 s73, s58, 2
        s_and_b32 s42, s59, 3
        s_add_u32 s73, s73, s42
        s_and_b32 s42, s59, 4
        s_lshl_b32 s42, s42, 6
        s_add_u32 s73, s73, s42
        s_lshl_b32 s58, s58, 1
        s_add_u32 s58, s58, s59
        s_add_u32 s58, s58, 504
        s_cmp_ge_u32 s59, 8
        s_cselect_b32 s73, s58, s73
        s_lshl_b32 s73, s73, 2
        s_add_u32 s73, s73, {WS_IC2}
        s_and_b32 s58, {sCH}, 1
        s_lshl_b32 s59, s68, 16
        s_and_b32 s68, s68, 0xffff0000
        s_lshl_b32 s42, s69, 16
        s_and_b32 s69, s69, 0xffff0000
        s_cmp_eq_u32 s58, 0
        s_cselect_b32 s68, s59, s68
        s_cselect_b32 s69, s42, s69
        v_mov_b32 v226, s68
        v_mul_f32 v226, 0x3fb8aa3b, v226
        v_exp_f32 v226, v226
        v_mov_b32 v245, 0
        v_writelane_b32 v245, s69, 0
        v_cvt_pk_bf16_f32 v226, 0, v226
        v_mul_f32 v220, 0x3fb8aa3b, v226
        v_mul_f32 v223, 0.15915494, v226
        v_mul_f32 v221, 0x41000000, v220
        v_mul_f32 v224, 0x41000000, v223
        v_mul_f32 v222, 0x43800000, v220
        v_mul_f32 v225, 0x43800000, v223
        s_mov_b32 s46, {16*40960}
        s_mov_b32 s47, {32*40960}
        s_mov_b32 s48, {48*40960}
        ''')
    def conv_path(self, S):
        S.set_state(self.st_conv)
        S.emit('L_main:')
        S.emit(self.kgen_setup(0)); S.emit(flat(self.kgen_chains(0)))
        S.emit(self.stamp('_ch0'))
        S.emit(self.flagA())
        S.emit(self.stamp('_fla'))
        S.emit(self.kgen_mfma(0, self.kgen_setup(1)))
        S.emit(self.stamp('slot0'))
        S.emit(flat(self.kgen_chains(1)))
        S.emit(self.kgen_mfma(1, self.kgen_setup(2)))
        S.emit(self.stamp('slot1'))
        pollA = L(f'buffer_load_dword v50, v28, {sWS}, 0 offen sc1')
        modld = L(f'buffer_load_dwordx2 v[48:49], v29, {sWS}, 0 offen sc1')
        ch2 = self.kgen_chains(2); cut = self.o('cut', 1)
        S.emit(flat(ch2[:cut])); S.emit(pollA); S.emit(modld); S.emit(flat(ch2[cut:]))
        S.emit(self.kgen_mfma(2, self.g_setup() + L(f'''
        s_lshl_b32 s58, {sCB4}, 14
        s_lshl_b32 s59, s3, 12
        s_add_u32 s58, s58, s59
        s_add_u32 s58, s58, {WS_XT}
        s_add_u32 m0, s59, {L_X}
        s_movk_i32 s59, 0x1000
        s_movk_i32 s42, 0x2000
        s_movk_i32 s43, 0x3000
        ''')))
        S.emit(self.stamp('slot2'))
        S.emit(self.check(pollA, ['v50'], None))
        S.emit(self.stamp('_aok'))
        S.emit(L('\n'.join(f'buffer_load_dwordx4 v193, {sWS}, s58 offen offset:{1024*i} sc1 lds' for i in range(4)), tag='xdma'))
        S.emit('\n'.join(f'buffer_load_dwordx4 v[{32+4*g}:{35+4*g}], v192, {sWS}, {so} offen sc1' for g, so in enumerate(('0', 's59', 's42', 's43'))))
        S.emit('s_barrier')
        npre_w1 = self.o('w1pre', 6)
        S.emit(flat(self.w1_loads(0, npre_w1)))
        S.emit(f'''
        s_or_b32 s58, s2, s3
        s_cselect_b32 s58, {OOB}, 0
        v_or_b32 v51, s58, v31
        buffer_store_dword v1, v51, {sWS}, 0 offen sc1
        ''')
        S.emit(self.check(modld, ['v49'], None))
        S.emit(self.stamp('_modok'))
        S.emit(f'''
        v_mov_b32 v49, v48
        v_bfe_u32 v50, v2, 2, 1
        v_cvt_f32_u32 v50, v50
        v_permlane16_swap_b32 v48, v49
        v_add_f32 v48, v48, v49
        v_cvt_pk_bf16_f32 v48, 0, v48
        v_add_f32 v48, v48, v50
        v_cvt_pk_bf16_f32 v48, 0, v48
        s_add_u32 s58, s3, 8
        s_add_u32 s59, s3, 12
        v_readlane_b32 s40, v48, s58
        v_readlane_b32 s41, v48, s59
        ''')
        for c in range(4): S.emit(f'v_readlane_b32 s{32+2*c}, v48, {4+c}\nv_readlane_b32 s{33+2*c}, v48, {c}')
        S.emit(f'''
        s_and_b32 s58, s41, 0x7fffffff
        s_cselect_b32 s41, s41, 0x21800000
        v_mov_b32 v50, s41
        v_mul_f32 v51, s40, v50
        v_rcp_f32 v50, v50
        s_lshr_b32 s58, s41, 16
        s_or_b32 s58, s58, s41
        v_add_f32 v96, v96, v245
        buffer_store_dword v50, v31, {sWS}, s73 offen sc1
        ''')
        for r in range(13): S.emit(f'v_mul_f32 v{96+r}, v{96+r}, v51')
        cv = lambda d, a, b: f'v_cvt_pk_bf16_f32 v{d}, v{96+a}, v{96+b}\n'
        S.emit(cv(64, 4, 3) + cv(65, 2, 1) + cv(66, 3, 2) + cv(67, 1, 0) + cv(68, 7, 7) + cv(69, 6, 5) + cv(70, 7, 6) + cv(71, 5, 5) +
               cv(72, 10, 10) + cv(73, 10, 9) + cv(74, 9, 9) + cv(75, 8, 8) + cv(76, 10, 10) + cv(77, 9, 9) + cv(78, 9, 8) + cv(79, 8, 8) +
               cv(80, 11, 12) + cv(82, 10, 10) + cv(83, 10, 10) + f'''
        ds_write_b64 v242, v[64:65] offset:{P2 - 8}
        ds_write_b64 v242, v[66:67] offset:{KC1 + P2 - 4}
        ds_write_b64 v242, v[68:69] offset:{P2 - 8 - 512}
        ds_write_b64 v242, v[70:71] offset:{KC1 + P2 - 4 - 512}
        ds_write_b128 v243, v[72:75] offset:{P2 - 16 - 1024}
        ds_write_b128 v243, v[76:79] offset:{KC1 + P2 - 12 - 1024}
        ds_write_b16 v244, v80 offset:{KCD + 254}
        ds_write_b16_d16_hi v244, v80 offset:{KCD + 254 - 128}
        s_mov_b64 exec, 1
        ds_write_b16_d16_hi v246, v67 offset:{P2}
        s_mov_b32 exec_hi, 0x80000000
        s_mov_b32 exec_lo, 0
        ds_write_b64 v246, v[82:83] offset:56
        ds_write_b16 v246, v82 offset:{KC1 + 58}
        ds_write_b64 v246, v[82:83] offset:{KC1 + 60}
        s_mov_b64 exec, -1
        v_and_b32 v16, s58, v16
        v_and_b32 v17, s58, v17
        v_and_b32 v18, s58, v18
        v_and_b32 v19, s58, v19
        ''')
        S.emit(self.stamp('kexp'))
        def kread(G, dst):
            if G == 32: a, o = 'v11', 0
            else: a, o = ('v10', 16*(15 - G)) if G < 16 else ('v12', 16*(31 - G))
            return [Ins(f'ds_read2_b32 v[{dst}:{dst+1}], {a} offset0:{o} offset1:{o+1}'), Ins(f'ds_read2_b32 v[{dst+2}:{dst+3}], {a} offset0:{o+2} offset1:{o+3}')]
        KF = lambda p, r: 128 + 64*(p >> 1) + 8*r + 4*(p & 1)
        kreads = [x for pp in (0, 2) for r in range(8) for p in (pp, pp+1) for x in kread(8*p + r, KF(p, r))]
        npre = self.o('npre', 32); assert npre <= 32
        S.emit(kreads[:npre])
        S.emit(self.touch(4)); S.emit('L_cv_t2:')
        S.emit(self.stamp('_t2'))
        S.emit(L('\n'.join(f'ds_read_b128 v[{64+4*c}:{67+4*c}], v{247+c}' for c in range(4)), waitfor=['xdma']))
        S.emit(self.stamp('_xin'))
        for c in range(4):
            x = 64 + 4*c; o = []
            for g in range(4):
                t = 80 + 2*(g & 1); b = 32 + 4*g
                o += L(f'''
                v_lshlrev_b32 v{t}, 16, v{x+g}
                v_and_b32 v{t+1}, 0xffff0000, v{x+g}
                v_pk_fma_f32 v[{t}:{t+1}], v[{t}:{t+1}], v[{b}:{b+1}], v[{b+2}:{b+3}]
                v_pk_fma_f32 v[{t}:{t+1}], v[{t}:{t+1}], s[{32+2*c}:{33+2*c}], s[{32+2*c}:{33+2*c}] op_sel:[0,0,1] op_sel_hi:[1,0,1]
                v_cvt_pk_bf16_f32 v{x+g}, v{t}, v{t+1}
                ''')
            o += L(f'ds_write_b128 v251, v[{x}:{x+3}] offset:{H_PITCH*c}', tag='hw')
            S.emit(o)
            n2 = self.o('w1pre2', 2)
            S.emit(flat(self.w1_loads(npre_w1, npre_w1 + n2))); npre_w1 += n2
        S.emit(self.barrier(['hw']))
        S.emit(self.stamp('prep'))
        acc = lambda q: f'v[{96+4*q}:{99+4*q}]'
        seq = []; started = set()
        def mm(q, A, B):
            C = acc(q) if q in started else '0'; started.add(q); seq.append((acc(q), A, B, C))
        def box(u):
            d = 112 + 8*(u & 1)
            seq.append((f'v[{d}:{d+3}]', ('h9', u), 'v[20:23]', '0')); seq.append((f'v[{d+4}:{d+7}]', ('h', 3, 0, u), 'v[24:27]', '0'))
        kf = lambda p, r: f'v[{KF(p, r)}:{KF(p, r)+3}]'
        for r in range(8):
            for q in range(2):
                if r == 7: mm(q, 'v[16:19]', ('x', q))
                for p in range(q + 1): mm(q, kf(p, r), ('h', 0, r, q - p))
        nA = len(seq)
        for r in range(8):
            if r == 3: a1 = len(seq); box(0); box(1)
            if r == 6: a2 = len(seq); box(2); box(3)
            for q in range(2, 4):
                if r == 7: mm(q, 'v[16:19]', ('x', q))
                for p in range(q + 1): mm(q, kf(p, r), ('h', 1, r, q - p))
        nB = len(seq)
        for r in range(8):
            for q in range(4, 8):
                if r == 0: mm(q, ('k32',), ('h', 2, 0, q - 4))
                if r == 2: mm(q, 'v[16:19]', ('x', q))
                for p in range(4): mm(q, kf(p, r), ('h', 2, r, q - p))
                if r == 1:
                    for u in range(q - 3): mm(q, f'v[{40+4*u}:{43+4*u}]', f'a[{240+4*(q-u-4)}:{243+4*(q-u-4)}]')
        def fragload(f, dst):
            if f[0] == 'h': return [Ins(f'ds_read_b128 v[{dst}:{dst+3}], v9 offset:{512 + 512*f[3] - 64*f[2] - 32}')]
            if f[0] == 'h9': return [Ins(f'ds_read_b128 v[{dst}:{dst+3}], v9 offset:{512 + 512*f[1] - 48}')]
            if f[0] == 'x': return [Ins(f'ds_read_b128 v[{dst}:{dst+3}], v13 offset:{2048*f[1]}')]
            if f[0] == 'k32': return kread(32, dst)
        bb, pinned, head = alloc_frags(seq, 'v_mfma_f32_16x16x32_bf16', list(range(56, 96, 4)), fragload, lead=self.o('lead', 7))
        S.emit(head)
        def cvts(us):
            o = []
            for u in us:
                d = 112 + 8*(u & 1)
                o += L('\n'.join(f'v_cvt_pk_bf16_f32 v{40+4*u+r}, v{d+r}, v{d+4+r}' for r in range(4)))
            return o
        farld = []
        for dl in range(4):
            o = 16*(3 - dl)
            farld += [Ins(f'ds_read2_b32 a[{240+4*dl}:{241+4*dl}], v14 offset0:{o} offset1:{o+1}'), Ins(f'ds_read2_b32 a[{242+4*dl}:{243+4*dl}], v14 offset0:{o+2} offset1:{o+3}')]
        N = len(bb)
        dr = self.o('drain', 55)
        gfA = nA + 10 + dr; gfB = nB + 10 + dr
        g_poll = self.o('g_poll', 155); g_chk = self.o('g_chk', 200)
        nA1 = self.o('w1a', 48); nA2 = self.o('w1b', 54); self.nw1 = self.o('nw1', 57)
        pc = self.pollC(0, 'v128')
        fills = [
            Fill(kreads[npre:], 0, 70, prio=3, hard=True),
            Fill(cvts((0, 1)), a1 + 8, a1 + 15, prio=2, hard=True),
            Fill(cvts((2, 3)), a2 + 8, a2 + 15, prio=2, hard=True),
            Fill(farld, nB, nB + 14, prio=2, hard=True),
            Fill(self.epi(0, '0', 'pA'), nA + 3, nA + 10, prio=3),
            Fill(self.epi(1, 's46', 'pB'), nB + 3, nB + 10, prio=3),
            Fill(self.w1_loads(npre_w1, nA1), 2, g_poll - 1, prio=1),
            Fill(self.w1_loads(nA1, nA2), g_poll + 3, g_chk - 4, prio=1),
            Fill([self.stamp('_fa0') + self.flagC(0, 'pA') + self.stamp('_fa1')], gfA, gfA, prio=4, hard=True),
            Fill([self.stamp('_fb0') + self.flagC(1, 'pB') + self.stamp('_fb1')], gfB, gfB, prio=4, hard=True),
            Fill([pc], g_poll, g_poll, prio=4, hard=True),
            Fill([self.stamp('_chk0') + self.check(pc, ['v128'], None) + self.stamp('_chk1')] + self.tile_dma(0) + [self.barrier()] + self.ic2_loads()
                 + self.w1_loads(nA2, self.nw1), g_chk, N - 4, prio=4),
        ]
        S.emit(interleave(bb, fills, pinned))
        S.emit(self.stamp('conv'))
    def flagC(self, stage, tag):
        return L(f's_mov_b32 s63, {stage*FLC_STG}') + self.barrier([tag]) + L(f'buffer_store_dword v1, v30, {sWS}, s63 offen sc1')
    def epi(self, j, soff, tag):
        t = 32 + 4*(j & 1); qa, qb = 96 + 8*j, 100 + 8*j
        return L(f'''
        v_cvt_pk_bf16_f32 v{t}, v{qa}, v{qa+1}
        v_cvt_pk_bf16_f32 v{t+2}, v{qb}, v{qb+1}
        v_cvt_pk_bf16_f32 v{t+1}, v{qa+2}, v{qa+3}
        v_cvt_pk_bf16_f32 v{t+3}, v{qb+2}, v{qb+3}
        v_permlane16_swap_b32 v{t}, v{t+2}
        v_permlane16_swap_b32 v{t+1}, v{t+3}
        ''') + L(f'buffer_store_dwordx4 v[{t}:{t+3}], v15, {sWS}, {soff} offen sc1', tag=tag)
    def mod_unit(self, S):
        S.wait_tags(['moddma']); S.emit('s_waitcnt lgkmcnt(0)\ns_barrier')
        for b in range(10):
            S.emit(f'''
            ds_read_b64_tr_b16 v[{128+8*b}:{129+8*b}], v57 offset:{4096*b}
            ds_read_b64_tr_b16 v[{130+8*b}:{131+8*b}], v57 offset:{4096*b+512}
            ds_read_b128 v[{132+8*b}:{135+8*b}], v58 offset:{64*b}
            ''')
        for b in range(10):
            S.emit(f'v_mfma_f32_16x16x32_bf16 v[52:55], v[{132+8*b}:{135+8*b}], v[{128+8*b}:{131+8*b}], {"0" if b == 0 else "v[52:55]"}')
        S.emit(f'''
        s_and_b32 s58, s70, 1
        s_mul_i32 s58, s58, 3840
        s_add_u32 s58, s58, s71
        s_lshl_b32 s59, s3, 4
        s_add_u32 s58, s58, s59
        s_lshl_b32 s58, s58, 3
        s_add_u32 s58, s58, {WS_MODP}
        v_mov_b32 v53, {sN}
        buffer_store_dwordx2 v[52:53], v59, {sWS}, s58 offen sc1
        ''')
    def w2_dma(self, sT):
        o = L(f'''
        s_mul_hi_u32 s40, {sT}, {(2**32 + 9)//10}
        s_mul_i32 s58, s40, 10
        s_sub_u32 s41, {sT}, s58
        s_lshl_b32 s40, s40, 2
        s_add_u32 s40, s40, s3
        s_mul_hi_u32 s58, s40, {(2**32 + 2)//3}
        s_mul_i32 s59, s58, 3
        s_sub_u32 s59, s40, s59
        s_mul_i32 s58, s58, 96
        s_mul_i32 s42, s59, 48
        s_cmp_eq_u32 s59, 2
        s_cselect_b32 s42, 32, s42
        s_cselect_b32 s43, 8, 4
        s_cselect_b32 s44, 48, 16
        s_cselect_b32 s45, 0, 4
        s_mul_i32 s43, s43, 1280
        s_mul_i32 s44, s44, 1280
        s_add_u32 s58, s58, s42
        s_mul_i32 s58, s58, 1280
        s_lshl_b32 s59, s41, 7
        s_add_u32 s42, s58, s59
        s_add_u32 s43, s42, s43
        v_and_b32 v12, s45, v104
        v_add_u32 v12, v12, v104
        v_mul_u32_u24 v12, 1280, v12
        v_add_u32 v13, v12, v106
        v_add_u32 v12, v12, v105
        ''')
        for d in range(4):
            if d == 2: o += L('s_add_u32 s42, s42, s44\ns_add_u32 s43, s43, s44')
            o += L(f's_add_u32 m0, s66, {1024*d}\ns_nop 0')
            o += L(f'buffer_load_dwordx4 v{12+(d&1)}, {sWD}, s{42+(d&1)} offen nt lds', tag='w2dma')
        return o
    def w2_finish(self, sT):
        o = L(f'''
        s_mul_i32 s58, s41, 192
        s_add_u32 s58, s58, s40
        s_lshl_b32 s58, s58, 10
        s_add_u32 s58, s58, {WS_W2P}
        ''') + self.prep_task('w2dma', 's58', 49152, 'w2st', tmp=60)
        o += L(f'''
        s_lshl_b32 s58, {sT}, 7
        s_lshl_b32 s59, s3, 2
        s_add_u32 s58, s58, s59
        s_add_u32 s58, s58, {WS_FLW2}
        ''') + L(f'buffer_store_dword v1, v31, {sWS}, s58 offen sc1', waitfor=['w2st'])
        return o
    def spare_path(self, S):
        S.set_state(self.st_spare)
        S.emit('L_spare:')
        S.emit(self.mod_late)
        S.emit(f'''
        v_lshlrev_b32 v56, 16, v200
        v_and_b32 v57, 0xffff0000, v200
        v_mul_f32 v58, 0xbfb8aa3b, v56
        v_mul_f32 v59, 0xbfb8aa3b, v57
        v_exp_f32 v58, v58
        v_exp_f32 v59, v59
        v_lshlrev_b32 v55, 2, v0
        v_add_f32 v58, 1.0, v58
        v_add_f32 v59, 1.0, v59
        v_rcp_f32 v58, v58
        v_rcp_f32 v59, v59
        v_add_u32 v55, {L_VEC}, v55
        v_mul_f32 v56, v56, v58
        v_mul_f32 v57, v57, v59
        v_cvt_pk_bf16_f32 v56, v56, v57
        ds_write_b32 v55, v56
        s_lshl_b32 s58, s3, 5
        v_subrev_u32 v57, s66, v112
        v_xor_b32 v57, s58, v57
        v_lshrrev_b32 v58, 4, v2
        v_lshlrev_b32 v58, 4, v58
        v_add_u32 v58, {L_VEC}, v58
        v_lshlrev_b32 v59, 3, v2
        v_mov_b32 v55, {OOB}
        v_cmp_gt_u32 vcc, 16, v2
        s_nop 1
        v_cndmask_b32 v59, v55, v59, vcc
        ''')
        if self.nmod_early == 10:
            self.mod_unit(S); S.emit(self.stamp('slot0')); S.emit(self.flagA()); S.emit(self.stamp('_fla'))
        else:
            S.emit(self.flagA()); S.emit(self.stamp('_fla')); self.mod_unit(S); S.emit(self.stamp('slot0'))
        S.emit(self.w2_dma('s70'))
        S.emit('s_cmp_ge_u32 s70, 24\ns_cbranch_scc1 L_sp_nomod2')
        st = S.state()
        S.emit('s_add_u32 s46, s70, 96\ns_barrier')
        md = self.mod_dma('s46'); S.emit(md[0]); S.emit(flat(md[1]))
        self.mod_unit(S)
        S.wait_all()
        S.set_state(st)
        S.emit('L_sp_nomod2:')
        S.emit(self.w2_finish('s70'))
        S.emit('s_cmp_lt_u32 s70, 72\ns_cbranch_scc1 L_sp_now2')
        st = S.state()
        S.emit('s_add_u32 s46, s70, 24')
        S.emit(self.w2_dma('s46'))
        S.emit(self.w2_finish('s46'))
        S.wait_all()
        S.set_state(st)
        S.emit('L_sp_now2:')
        S.emit(self.stamp('slot1'))
        S.emit(self.touch(4)); S.emit('L_sp_t2:')
        S.emit(self.g_setup()); S.emit(self.tile_consts())
        pollA = L(f'buffer_load_dword v50, v28, {sWS}, 0 offen sc1')
        S.emit(pollA); S.emit(self.check(pollA, ['v50'], None, sleep=8)); S.emit('s_barrier')
        S.emit(self.stamp('slot2'))
        S.emit(f'''
        s_sub_u32 s58, {sXC}, 2
        s_sub_u32 s59, {sJ}, 24
        s_or_b32 s58, s58, s59
        s_cmp_lt_u32 s58, 4
        s_cbranch_scc1 L_sp_wx
        ''')
        st = S.state()
        S.emit(flat(self.w1_loads(0, self.nw1)))
        S.emit('s_branch L_sp_wxdone')
        S.set_state(st)
        S.emit('L_sp_wx:')
        S.emit(f'''
        v_min_u32 v56, 159, v0
        v_lshlrev_b32 v57, 5, v56
        v_add_u32 v57, {WS_MODP + 3*640*8}, v57
        v_add_u32 v58, {640*8}, v57
        s_mov_b32 s59, {3840*8}
        ''')
        S.emit(flat(self.w1_loads(0, 30)))
        gl = []
        for k, (a, so) in enumerate((('v58', '0'), ('v58', 's59'), ('v57', '0'), ('v57', 's59'))):
            gl += L(f'buffer_load_dwordx4 v[{64+8*k}:{67+8*k}], {a}, {sWS}, {so} offen sc1\nbuffer_load_dwordx4 v[{68+8*k}:{71+8*k}], {a}, {sWS}, {so} offen offset:16 sc1')
        S.emit(gl)
        S.emit(flat(self.w1_loads(30, 60)))
        S.emit(self.check(gl, [f'v{65+2*k}' for k in range(16)], 'v50', sleep=8))
        for k in range(4):
            S.emit(f'''
            v_add_f32 v{64+2*k}, v{64+2*k}, v{72+2*k}
            v_add_f32 v{80+2*k}, v{80+2*k}, v{88+2*k}
            v_cvt_pk_bf16_f32 v{64+2*k}, 0, v{64+2*k}
            v_add_f32 v{64+2*k}, 1.0, v{64+2*k}
            ''')
        S.emit(f'''
        v_cvt_pk_bf16_f32 v72, v64, v66
        v_cvt_pk_bf16_f32 v73, v68, v70
        v_cvt_pk_bf16_f32 v74, v80, v82
        v_cvt_pk_bf16_f32 v75, v84, v86
        v_lshlrev_b32 v56, 3, v56
        v_add_u32 v56, {L_VEC + 1024}, v56
        ds_write_b64 v56, v[72:73]
        ds_write_b64 v56, v[74:75] offset:1280
        v_and_b32 v57, 1, v2
        v_mul_u32_u24 v57, 1280, v57
        v_lshrrev_b32 v58, 5, v2
        v_lshl_add_u32 v57, v58, 4, v57
        s_and_b32 s59, s3, 1
        s_mul_i32 s58, s59, 640
        s_add_u32 s58, s58, {L_VEC + 1024}
        v_add_u32 v57, s58, v57
        s_waitcnt lgkmcnt(0)
        s_barrier
        ''')
        for s in range(20): S.emit(f'ds_read_b128 v[{128+4*s}:{131+4*s}], v57 offset:{32*s}')
        for s in range(20):
            for role in range(3):
                a = 12*s + 4*role; d = f'v[{64+16*role}:{79+16*role}]'
                S.emit(f'v_mfma_f32_32x32x16_bf16 {d}, v[{128+4*s}:{131+4*s}], a[{a}:{a+3}], {"0" if s == 0 else d}')
        S.emit(f'''
        s_lshr_b32 s58, s3, 1
        s_mul_i32 s58, s58, 3
        s_mul_i32 s43, {sSIG}, 6
        s_add_u32 s58, s58, s43
        s_lshl_b32 s58, s58, 10
        s_lshl_b32 s43, s59, 9
        s_add_u32 s58, s58, s43
        s_add_u32 s58, s58, {WS_WX}
        s_lshl_b32 s43, s59, 10
        s_add_u32 s42, s58, s43
        s_sub_u32 s40, s58, s43
        s_add_u32 s40, s40, 1024
        s_add_u32 s41, s58, 2048
        v_mov_b32 v58, {OOB}
        v_cmp_gt_u32 vcc, 32, v2
        s_nop 1
        v_cndmask_b32 v56, v58, v3, vcc
        v_cndmask_b32 v57, v58, v5, vcc
        ''')
        for role in range(3):
            d = 64 + 16*role
            S.emit(f'''
            v_cvt_pk_bf16_f32 v{d+2}, 0, v{d}
            v_cvt_pk_bf16_f32 v{d+3}, 0, v{d+1}
            v_sub_f32 v{d}, v{d}, v{d+2}
            v_sub_f32 v{d+1}, v{d+1}, v{d+3}
            v_cvt_pk_bf16_f32 v{d}, -v{d+2}, -v{d}
            v_cvt_pk_bf16_f32 v{d+1}, v{d+3}, v{d+1}
            v_mov_b32 v{d+2}, 0
            v_mov_b32 v{d+3}, {sN}
            buffer_store_dwordx4 v[{d}:{d+3}], v{57 if role == 1 else 56}, {sWS}, s{40+role} offen sc1
            ''')
        S.emit('L_sp_wxdone:')
        S.emit(f'''
        v_mov_b32 v15, {OOB}
        v_mov_b32 v30, {OOB}
        s_mov_b32 s47, 0
        s_mov_b32 s48, 0
        ''')
        S.vm = [Ins('buffer_load_dword v255, v3, s[4:7], 0 offen')] * 64
        S.wait_all()
        S.emit(self.stamp('kexp'))
        pc = self.pollC(0, 'v128')
        S.emit(pc); S.emit(self.check(pc, ['v128'], None, sleep=8))
        S.emit(self.stamp('_chk1'))
        S.emit(flat(self.tile_dma(0))); S.emit('s_barrier'); S.emit(flat(self.ic2_loads()))
        S.wait_all()
        S.emit(self.stamp('conv'))
        S.emit('s_branch L_g1')
    def finish(self, S):
        if self.probe:
            S.emit(self.stamp('end'))
            S.wait_all(); S.out.append(Ins('s_waitcnt vmcnt(0) lgkmcnt(0)'))
            k = self.stamp_names.index(self.probe)
            role = self.o('prole', 2)
            S.emit(f's_sub_u32 s58, s{74+2*k}, s74')
            if role < 2: S.emit(f's_cmp_eq_u32 s0, {role}\ns_cselect_b32 s58, s58, 0')
            if self.o('pwg', -1) >= 0: S.emit(f's_cmp_eq_u32 s2, {self.o("pwg", 0)}\ns_cselect_b32 s58, s58, 0')
            S.emit('s_min_u32 s58, s58, 20000\ns_add_u32 s58, s58, 6000\nL_spin:')
            S.out += L('s_memrealtime s[60:61]\ns_waitcnt lgkmcnt(0)\ns_sub_u32 s60, s60, s74\ns_cmp_lt_u32 s60, s58\ns_cbranch_scc1 L_spin')
        elif self.stamps:
            S.emit(self.stamp('end'))
            S.wait_all()
            S.out.append(Ins('s_waitcnt vmcnt(0) lgkmcnt(0)'))
            S.emit(f'''
            s_lshl_b32 s58, s2, 2
            s_add_u32 s58, s58, s3
            s_lshl_b32 s58, s58, 8
            s_add_u32 s58, s58, {WS_DBG}
            v_mov_b32 v31, {OOB}
            v_writelane_b32 v31, 0, 0
            ''')
            for k in range(len(self.stamp_names)):
                S.emit(f'v_mov_b32 v1, s{74+2*k}\nbuffer_store_dword v1, v31, {sWS}, s58 offen offset:{4*k}')
            S.emit(f'v_mov_b32 v1, {sBUD}\nbuffer_store_dword v1, v31, {sWS}, s58 offen offset:60')
        S.emit('s_endpgm')
    def build(self):
        P = Stream(); self.prologue(P)
        S = Stream(); self.conv_path(S)
        S.emit('L_g1:')
        if self.stop == 'conv':
            S.emit('s_nop 7')
            S.emit(self.epi(2, 's47', 'p2') + self.epi(3, 's48', 'p2'))
        else:
            import gen2
            gen2.gemms(self, S)
        self.finish(S)
        Q = Stream(); self.spare_path(Q)
        body = S.out + Q.out + self.slow
        body, npages, nbytes, mis = layout(body, minpages=8)
        for i in P.out: i.text = i.text.replace('@CODEMAX@', str(nbytes // 128 * 128))
        pro, _, pbytes, _ = layout(P.out, stubs=False)
        self.info = dict(pages=npages, bytes=nbytes, pro=pbytes, misaligned=mis, nops=S.nops, waits=S.nwait, n=len(S.out))
        self.log = P.log + S.log + Q.log
        txt = f'; @launch grid=(256,1,1) block=(256,1,1) lds={LDS_BYTES}\n.amdgcn_target "amdgcn-amd-amdhsa--gfx950"\n.text\n.p2align 12\n.globl {NAME}\n.p2align 8\n.type {NAME},@function\n{NAME}:\n'
        txt += render(pro)
        txt += '.p2align 12\n' + render(body)
        txt += f'''.section .rodata,"a"
.p2align 6
.amdhsa_kernel {NAME}
  .amdhsa_next_free_vgpr 512
  .amdhsa_next_free_sgpr 102
  .amdhsa_accum_offset 256
  .amdhsa_group_segment_fixed_size 0
  .amdhsa_kernarg_size 144
  .amdhsa_user_sgpr_count 2
  .amdhsa_user_sgpr_kernarg_segment_ptr 1
  .amdhsa_system_sgpr_workgroup_id_x 1
  .amdhsa_float_denorm_mode_32 3
.end_amdhsa_kernel
'''
        return txt

def alloc_frags(seq, mn, pool, loader, lead, maxper=1, notbefore=None):
    first = {}; last = {}
    for k, (D, A, B, C) in enumerate(seq):
        for f in (A, B):
            if isinstance(f, tuple): first.setdefault(f, k); last[f] = k
    order = sorted(first, key=lambda f: first[f])
    freeat = {r: -1 for r in pool}
    used = {}; pinned = {}; head = []; reg = {}
    for f in order:
        r = min(freeat, key=lambda x: freeat[x])
        lds = loader(f, r)
        want = first[f] - 1 - lead
        lo = max(freeat[r], notbefore(f) if notbefore else -1)
        for i in lds:
            g = max(want, lo)
            if g >= 0:
                c = g
                while c > max(lo, 0) and used.get(c, 0) >= maxper and c > g - 4: c -= 1
                if used.get(c, 0) >= maxper:
                    c = g
                    while used.get(c, 0) >= maxper and c < first[f] - 3: c += 1
                g = c
            assert g < first[f], (f, g, first[f])
            if g < 0: head.append(i)
            else: pinned.setdefault(g, []).append(i); used[g] = used.get(g, 0) + 1
        reg[f] = r; freeat[r] = last[f]
    R = lambda f: f'v[{reg[f]}:{reg[f]+3}]' if isinstance(f, tuple) else f
    bb = [Ins(f'{mn} {D}, {R(A)}, {R(B)}, {C}') for D, A, B, C in seq]
    return bb, pinned, head

if __name__ == '__main__':
    import argparse
    ap = argparse.ArgumentParser(); ap.add_argument('-o', default='k.s'); ap.add_argument('--stop'); ap.add_argument('--stamps', action='store_true'); ap.add_argument('--log', action='store_true')
    ap.add_argument('--opt', default=''); ap.add_argument('--audit', action='store_true'); ap.add_argument('--probe')
    a = ap.parse_args()
    opt = {k: int(v) for k, v in (x.split('=') for x in a.opt.split(',') if x)}
    g = Gen(stop=a.stop, stamps=a.stamps, probe=a.probe, **opt)
    t = g.build(); open(a.o, 'w').write(t)
    print(g.info, g.stamp_names)
    if a.log: print('\n'.join(g.log))
    import fw
    print('\n'.join(x for x in fw.AUDIT if a.audit or x.startswith('CONFLICT')))
```

```python
import re, subprocess, os, tempfile

REG = re.compile(r'^(-|abs\()?([vas])(?:(\d+)|\[(\d+):(\d+)\])\)?$')
TRANS = ('v_exp_f32', 'v_log_f32', 'v_rcp_f32', 'v_rsq_f32', 'v_sqrt_f32', 'v_sin_f32', 'v_cos_f32')
NODEF_S = ('s_cmp', 's_cbranch', 's_waitcnt', 's_barrier', 's_nop', 's_branch', 's_setprio', 's_sleep', 's_endpgm', 's_bitcmp')

def regs_of(op):
    op = op.strip()
    if op in ('vcc', 'exec', 'm0'): return [op]
    if op in ('vcc_lo', 'vcc_hi'): return ['vcc']
    if op in ('exec_lo', 'exec_hi'): return ['exec']
    m = REG.match(op)
    if not m: return []
    k = m.group(2)
    if m.group(3) is not None: return [(k, int(m.group(3)))]
    return [(k, i) for i in range(int(m.group(4)), int(m.group(5)) + 1)]

class Ins:
    __slots__ = ('text', 'mn', 'kind', 'defs', 'uses', 'ops', 'tag', 'waitfor', 'size', 'srcc', 'srcab', 'passes', 'wide', 'lanesel', 'note', 'src', 'xuses', 'xdefs')
    def __init__(self, text, tag=None, waitfor=None):
        self.text = text.strip(); self.tag = tag; self.waitfor = waitfor or []
        self.size = None; self.srcc = []; self.srcab = []; self.passes = 0; self.wide = False; self.lanesel = []; self.note = None; self.src = None; self.xuses = set(); self.xdefs = set()
        t = self.text
        if t.endswith(':') or t.startswith('.') or t.startswith(';') or t == '':
            self.mn = ''; self.kind = 'label' if t.endswith(':') else 'dir'; self.defs = set(); self.uses = set(); self.ops = []; return
        parts = t.split(None, 1)
        mn = parts[0]; rest = parts[1] if len(parts) > 1 else ''
        ops = []; cur = ''; depth = 0
        for ch in rest:
            if ch == '[': depth += 1
            if ch == ']': depth -= 1
            if ch == ',' and depth == 0: ops.append(cur.strip()); cur = ''
            else: cur += ch
        mods = ''
        if cur.strip():
            sp = cur.strip().split(None, 1); ops.append(sp[0]); mods = sp[1] if len(sp) > 1 else ''
        self.mn = mn; self.ops = ops
        base = re.sub(r'_(e32|e64|dpp|sdwa)$', '', mn)
        R = [regs_of(o) for o in ops]
        flat = lambda L: set(x for l in L for x in l)
        d = set(); u = set()
        if mn.startswith('v_mfma'):
            self.kind = 'mfma'; d = set(R[0]); u = flat(R[1:]); self.srcc = R[3]; self.srcab = R[1] + R[2]
            self.passes = 8 if '32x32' in mn else 4
        elif mn.startswith('v_'):
            self.kind = 'trans' if base in TRANS else 'valu'
            if 'permlane' in mn: d = flat(R); u = flat(R)
            elif base in ('v_add_co_u32', 'v_sub_co_u32', 'v_addc_co_u32'): d = flat(R[:2]); u = flat(R[2:])
            else:
                d = set(R[0]); u = flat(R[1:])
                if base in ('v_fmac_f32', 'v_dot2c_f32_bf16', 'v_writelane_b32') or mn.endswith('_dpp'): u |= d
                if base == 'v_cndmask_b32' and len(ops) == 3: u.add('vcc')
                if base in ('v_readlane_b32', 'v_writelane_b32'): self.lanesel = R[2]
            u.add('exec')
        elif mn.startswith('ds_'):
            self.kind = 'ds'
            if mn.startswith('ds_read') or mn.startswith('ds_bperm') or mn.startswith('ds_swizzle'):
                d = set(R[0]); u = flat(R[1:])
                if 'd16' in mn: u |= d
            else:
                u = flat(R)
            if 'addtid' in mn: u.add('m0')
        elif mn.startswith('buffer_') or mn.startswith('global_'):
            self.kind = 'vmem'
            lds = ' lds' in (' ' + mods) or '_lds_' in mn
            if 'load' in mn and not lds:
                d = set(R[0]); u = flat(R[1:])
                if 'd16' in mn: u |= d
            else:
                u = flat(R)
                if lds: u.add('m0')
                if 'store' in mn and ('x3' in mn or 'x4' in mn):
                    self.wide = set(R[0] if mn.startswith('buffer_') else R[1])
        elif mn.startswith('s_load') or mn.startswith('s_memtime') or mn.startswith('s_memrealtime'):
            self.kind = 'smem'; d = set(R[0]); u = flat(R[1:])
        elif mn.startswith('s_'):
            self.kind = 'salu'
            if any(mn.startswith(p) for p in NODEF_S): u = flat(R)
            else: d = set(R[0]); u = flat(R[1:])
            if re.match(r's_(cmp|add|sub|and|or|xor|lshl|lshr|ashr|bfe|min|max|not|bitcmp)', mn): d.add('scc')
            if re.match(r's_(cselect|cbranch_scc|addc|subb)', mn): u.add('scc')
            if mn.startswith('s_cbranch_vcc'): u.add('vcc')
        else:
            raise ValueError('unknown instruction ' + t)
        self.defs = d; self.uses = u
    def states(self):
        if self.kind in ('label', 'dir'): return 0
        if self.mn == 's_nop': return int(self.ops[0], 0) + 1
        return 1
    def __repr__(self): return self.text

def L(text, **kw):
    out = []
    for l in text.strip('\n').split('\n'):
        l = l.split(';')[0].strip() if not l.strip().startswith(';') else ''
        if l: out.append(Ins(l, **kw))
    return out

def isv(r): return isinstance(r, tuple) and r[0] in 'va'
def iss(r): return r == 'vcc' or (isinstance(r, tuple) and r[0] == 's')

def need_states(p, c):
    n = 0
    pv = p.kind in ('valu', 'trans'); cv = c.kind in ('valu', 'trans')
    if pv:
        dv = set(r for r in p.defs if isv(r)); dsg = set(r for r in p.defs if iss(r))
        if c.kind == 'mfma' and dv & c.uses: n = max(n, 2)
        if cv and dv & c.uses:
            if c.mn.endswith('_dpp') or 'permlane' in c.mn: n = max(n, 2)
            if 'readlane' in c.mn or 'readfirstlane' in c.mn: n = max(n, 1)
            if p.kind == 'trans' and c.kind != 'trans': n = max(n, 1)
        if p.mn.startswith('v_dot2') and (dv & (c.uses | c.defs)):
            same_c = c.mn == p.mn and not (dv & set(regs_of(c.ops[1]) + regs_of(c.ops[2])))
            if not same_c: n = max(n, 3)
        if dsg:
            if cv and dsg & c.uses: n = max(n, 2)
            if cv and dsg & set(c.lanesel): n = max(n, 4)
            if c.kind == 'vmem' and dsg & c.uses: n = max(n, 5)
            if c.kind in ('salu', 'smem') and dsg & c.uses and not c.mn.startswith('s_cbranch'): n = max(n, 1)
    if p.kind == 'mfma':
        big = 12 if p.passes == 8 else 8
        if c.kind == 'mfma':
            if p.defs & set(c.srcab): n = max(n, big)
            if p.defs & set(c.srcc):
                if not (set(c.srcc) == p.defs and c.passes == p.passes): n = max(n, big - 2)
            elif p.defs & c.defs: n = max(n, big)
        elif c.kind in ('valu', 'trans', 'ds', 'vmem'):
            if p.defs & (c.uses | c.defs): n = max(n, big)
            if set(r for r in p.srcc if isv(r)) & c.defs: n = max(n, 7 if p.passes == 8 else 3)
    if p.wide and (p.wide & c.defs): n = max(n, 2 if cv else 1)
    if p.kind == 'salu' and 'm0' in p.defs and 'm0' in c.uses and c.kind in ('ds', 'vmem'): n = max(n, 1)
    return n

class Stream:
    def __init__(self):
        self.out = []
        self.vm = []
        self.lg = []
        self.sm = []
        self.nops = 0; self.nwait = 0
        self.log = []
    def state(self): return (list(self.vm), list(self.lg), list(self.sm))
    def set_state(self, st): self.vm, self.lg, self.sm = list(st[0]), list(st[1]), list(st[2])
    def _raw(self, ins):
        if ins.kind not in ('label', 'dir'):
            dist = 0; need = 0; who = None; tm = None
            for p in reversed(self.out):
                if dist >= 12: break
                if p.kind in ('label', 'dir'): continue
                d = dist
                if p.kind == 'mfma':
                    if tm is None: tm = dist
                    else: tm += p.passes; d = max(dist, tm - 1)
                k = need_states(p, ins) - d
                if k > need: need = k; who = p
                dist += p.states()
            if need > 0:
                self.nops += need
                self.log.append(f'pad {need}: [{who}] -> [{ins}]')
                self.out.append(Ins(f's_nop {need-1}'))
        self.out.append(ins)
    def _wait(self, vm=None, lg=None):
        parts = []
        if vm is not None and vm < len(self.vm):
            vm = min(vm, 63); parts.append(f'vmcnt({vm})'); self.vm = self.vm[len(self.vm)-vm:] if vm else []
        if lg is not None and (lg < len(self.lg) or (lg == 0 and self.sm)):
            lg = min(lg, 15); parts.append(f'lgkmcnt({lg})'); self.lg = self.lg[len(self.lg)-lg:] if lg else []
            if lg == 0: self.sm = []
        if parts:
            self.nwait += 1
            self._raw(Ins('s_waitcnt ' + ' '.join(parts)))
    def wait_tags(self, tags):
        vm = lg = None
        for i, o in enumerate(self.vm):
            if o.tag in tags: vm = len(self.vm) - 1 - i
        for i, o in enumerate(self.lg):
            if o.tag in tags: lg = len(self.lg) - 1 - i
        self._wait(vm, lg)
    def wait_all(self): self._wait(0, 0)
    def needs(self, ins):
        touch = ins.uses | ins.defs
        vm = lg = None
        for i, o in enumerate(self.vm):
            if (o.defs & touch) or (o.tag is not None and o.tag in ins.waitfor): vm = len(self.vm) - 1 - i
        for i, o in enumerate(self.lg):
            if (o.defs & touch) or (o.tag is not None and o.tag in ins.waitfor): lg = len(self.lg) - 1 - i
        for o in self.sm:
            if (o.defs & touch) and o.note != 'stamp': lg = 0
        return vm, lg
    def emit(self, x):
        if isinstance(x, str): x = L(x)
        if isinstance(x, (list, tuple)):
            for k, i in enumerate(x):
                self.emit(i)
                if isinstance(i, Ins) and i.note == 'gap':
                    grp = []
                    for y in x[k+1:]:
                        grp.append(y)
                        if y.note == 'gap': break
                    vm = lg = None
                    for y in grp:
                        v, l = self.needs(y)
                        if v is not None: vm = v if vm is None else min(vm, v)
                        if l is not None: lg = l if lg is None else min(lg, l)
                    self._wait(vm, lg)
            return
        ins = x
        if ins.mn == 's_waitcnt':
            m = re.search(r'vmcnt\((\d+)\)', ins.text); m2 = re.search(r'lgkmcnt\((\d+)\)', ins.text)
            self._wait(int(m.group(1)) if m else None, int(m2.group(1)) if m2 else None)
            return
        self._wait(*self.needs(ins))
        self._raw(ins)
        if ins.kind == 'vmem': self.vm.append(ins)
        elif ins.kind == 'ds': self.lg.append(ins)
        elif ins.kind == 'smem' and ins.note != 'stamp': self.sm.append(ins)

def ismem(i): return i.kind in ('ds', 'vmem')
def cost(ins):
    k = ins.kind
    if k in ('label', 'dir'): return 0
    if k == 'ds':
        if 'write' in ins.mn: return 20 if 'b128' in ins.mn else (12 if 'b64' in ins.mn else 8)
        return 4
    if k == 'trans': return 8
    if k == 'vmem': return (20 if 'x4' in ins.mn else 12) if 'store' in ins.mn else 8
    if k == 'mfma': return 4 * ins.passes
    if ins.mn == 's_barrier': return 8
    if ins.mn == 's_nop': return 4 * ins.states()
    return 4

class Fill:
    def __init__(self, items, g0, g1, prio=1, hard=False, name=None, ahead=0, slack=None, burst=False):
        self.items = [i if isinstance(i, list) else [i] for i in items if not (isinstance(i, list) and not i)]
        self.g0 = g0; self.g1 = g1; self.prio = prio; self.hard = hard; self.k = 0; self.name = name
        self.ahead = ahead; self.slack = slack; self.burst = burst
        w = [max(1, sum(cost(x) for x in it)) for it in self.items]
        tot = max(sum(w) - (w[-1] if w else 0), 1); acc = 0; self.want = []
        for c in w:
            self.want.append(g0 + (g1 - g0) * acc / tot); acc += c
        self.lo = [g0] * len(self.items)
        self.placed = []

def interleave(backbone, fills, pinned=None, slack=3.0, vgap=66, dlat=None, report=None):
    pinned = pinned or {}
    out = []; est = 0; lastv = -10**9; ready = {}; over = []
    N = len(backbone)
    for g, m in enumerate(backbone):
        span = 4 * m.passes
        dl = dlat if dlat is not None else (3 if m.passes == 8 else 5)
        hz = 3 if m.passes == 8 else 4
        for r in m.defs: ready[r] = g + hz
        mem = list(pinned.get(g, [])); alu = []; front = []
        budget = span - 8 - sum(cost(x) for x in mem)
        nxt = backbone[g+1] if g + 1 < N else None
        freeS = not (nxt is not None and any(ready.get(r, -99) > g - 6 and r not in nxt.srcc for r in nxt.srcab))
        for x in mem:
            for r in x.defs: ready[r] = g + dl
        last = g == N - 1
        usedalu = set()
        while True:
            best = None
            for f in fills:
                if f.k >= len(f.items): continue
                it = f.items[f.k]; late = g - f.want[f.k]
                if not last and (g < f.lo[f.k] or late < -f.ahead): continue
                sl = f.slack if f.slack is not None else slack
                force = last or (late >= 0 and f.hard) or late >= sl
                real = [x for x in it if x.kind not in ('label', 'dir')]
                memitem = any(ismem(x) for x in real) and all(ismem(x) or x.kind in ('salu', 'smem') for x in real) and not any(x.mn == 's_barrier' or x.mn.startswith('s_cbranch') for x in real)
                sonly = len(real) == 1 and real[0].kind in ('salu', 'smem') and real[0].mn not in ('s_barrier', 's_nop') and not real[0].mn.startswith('s_cbranch')
                if any(ready.get(r, -99) > g for x in real for r in (x.uses | x.defs)) and not (last or late >= sl + 3 or (f.hard and late >= 0)): continue
                c = sum(cost(x) for x in real); where = 'alu'
                if sonly and freeS and id(f) not in usedalu and not any(x.src is f for x in mem): c = 0; where = 'front'
                elif memitem:
                    if id(f) in usedalu:
                        if not force: continue
                        c += 8
                    else: where = 'mem'
                    if any(x.kind == 'vmem' for x in real) and not f.burst and est - lastv < vgap and not force: continue
                else:
                    c += 8 * sum(1 for a_, b_ in zip([None] + real, real) if ismem(b_) and not (a_ is not None and ismem(a_)))
                if c > budget and not force and not (not mem and not alu and late >= 0): continue
                key = (0 if (force and (f.hard or c <= budget)) else 1, 0 if c <= budget else 1, -f.prio, -late)
                if best is None or key < best[0]: best = (key, f, it, c, where)
            if best is None: break
            _, f, it, c, where = best
            for x in it: x.src = f
            if where == 'front': front += it; freeS = False
            elif where == 'mem': mem += it
            else: alu += it; usedalu.add(id(f))
            for x in it:
                if x.kind == 'ds':
                    for r in x.defs: ready[r] = g + dl
                elif x.kind == 'vmem': lastv = est
            budget -= c; f.k += 1; f.placed.append(g)
        m.note = 'gap'
        out += [m] + front + mem + alu
        est += span + max(0, -budget); over.append(max(0, -budget))
    for n, f in enumerate(fills):
        for it in f.items:
            for x in it: x.src = f.name or f'F{n}'
    if report:
        AUDIT.append(f'sched {report}: gaps {N} est {est} over ' + ' '.join(str(sum(over[k:k+10])) for k in range(0, N, 10)))
        for n, f in enumerate(fills):
            if f.placed: AUDIT.append(f'   place {f.name or "F%d" % n}: [{f.g0},{f.g1}] -> {f.placed[0]}..{f.placed[-1]} n={len(f.placed)}')
    audit(out)
    return out

AUDIT = []
def audit(seq):
    last = {}; own = {}; cross = {}
    g = -1
    for i in seq:
        if i.kind == 'mfma' and i.src is None: g += 1
        me = i.src or 'bb'
        for r in (i.uses | i.xuses) - {'exec'}:
            if r in last and last[r][0] != me:
                if (me, r) in own and me != 'bb' and last[r][0] != 'bb':
                    AUDIT.append(f'CONFLICT gap {g}: {me} [{i}] reads {r} last written by {last[r][0]} [{last[r][1]}]')
                cross.setdefault((last[r][0], me), {}).setdefault(r, g)
        for r in i.defs | i.xdefs:
            last[r] = (me, i); own[(me, r)] = i
    def fmt(d):
        return ' '.join((f'{r[0]}{r[1]}' if isinstance(r, tuple) else r) + f'@{g}' for r, g in sorted(d.items(), key=str))
    for (a, b), d in cross.items():
        AUDIT.append(f'flow {a} -> {b}: {fmt(d)}')

CLANG = 'clang'; OBJDUMP = 'llvm-objdump'
def measure_sizes(ins_list):
    real = [i for i in ins_list if i.kind not in ('label', 'dir')]
    txt = '.amdgcn_target "amdgcn-amd-amdhsa--gfx950"\n.text\n' + '\n'.join(
        (i.text if not (i.mn.startswith('s_cbranch') or i.mn == 's_branch') else 's_nop 0') for i in real) + '\n'
    with tempfile.TemporaryDirectory() as td:
        open(td + '/a.s', 'w').write(txt)
        r = subprocess.run([CLANG, '-x', 'assembler', '-target', 'amdgcn-amd-amdhsa', '-mcpu=gfx950', '-c', td + '/a.s', '-o', td + '/a.o'], capture_output=True, text=True)
        if r.returncode: raise RuntimeError(r.stderr[:3000])
        o = subprocess.run([OBJDUMP, '-d', td + '/a.o'], capture_output=True, text=True).stdout
    sz = [len(m.group(1).split()) * 4 for m in re.finditer(r'// [0-9A-F]+: ([0-9A-F ]+)$', o, re.M)]
    assert len(sz) == len(real), (len(sz), len(real))
    for i, s in zip(real, sz): i.size = s

NOPROMO = ('v_readfirstlane', 'v_accvgpr', 'v_permlane', 'v_dot2c', 'v_nop')
def promotable(i):
    return i.kind in ('valu', 'trans') and i.size == 4 and not any(i.mn.startswith(p) for p in NOPROMO) and not re.search(r'_(e32|e64|dpp|sdwa)$', i.mn)

def layout(ins_list, stub_every=4, minrun=6, minrun_m=3, minpages=0, stubs=True):
    measure_sizes(ins_list)
    real_idx = [k for k, i in enumerate(ins_list) if i.kind not in ('label', 'dir')]
    nxt = {a: b for a, b in zip(real_idx, real_idx[1:])}
    out = []; off = 0; page = 0; dostub = stubs; stubs = []; mis = 0
    def stub(p):
        s = Ins(f's_cbranch_execz L_stub{p + stub_every}'); s.size = 4; stubs.append((p, s))
        return [Ins(f'L_stub{p}:'), s]
    for k, i in enumerate(ins_list):
        if i.kind in ('label', 'dir'): out.append(i); continue
        if dostub and off >= page * 4096:
            out += stub(page); off += 4; page += 1
        if i.size == 4 and off % 8 == 0 and k in nxt and ins_list[nxt[k]].size == 8 and promotable(i):
            parts = i.text.split(None, 1); i.text = parts[0] + '_e64 ' + parts[1]; i.size = 8
        if i.size == 8 and off % 8 == 4:
            run = 0; kk = k; hasm = False
            while kk is not None and ins_list[kk].size == 8 and run < 12:
                hasm |= ins_list[kk].kind == 'mfma'; run += 1; kk = nxt.get(kk)
            prevm = out and out[-1].kind == 'mfma'
            if (run >= minrun and not hasm) or (run >= minrun_m and prevm and i.kind in ('valu', 'trans', 'mfma')):
                n = Ins('s_nop 0'); n.size = 4; out.append(n); off += 4
        if i.size == 8 and off % 8 == 4: mis += 1
        out.append(i); off += i.size
    for p, s in stubs:
        if p < stub_every: s.text = 's_cbranch_execz L_tdone'
        elif p + stub_every >= page: s.text = 's_cbranch_execz L_tdone2'
    for p in range(page, minpages):
        out += [Ins(f'L_stub{p}:'), Ins('s_branch L_tdone2' if p >= stub_every else 's_branch L_tdone')]
    return out, page, off, mis

def render(ins_list):
    return '\n'.join((i.text if i.kind in ('label', 'dir') else '    ' + i.text) for i in ins_list) + '\n'
```

```python
from fw import *
from gen import *

ACCK = [128, 96]; ACCH = [144, 112]; ACCS = 160
RING = [40, 44, 48, 52, 56, 60]
RECV = 64
GT = 72
PK = 76
BX = 84
WXK, WXH = 88, 92
vK1, vK3, vI2 = 'v7', 'v8', 'v9'
vST = 10
vTR, vTR2, vEW, vER, vHX, vHY, vSR = 'v12', 'v13', 'v14', 'v16', 'v17', 'v18', 'v19'
IC2 = 20
M32 = 'v_mfma_f32_32x32x16_bf16'; M16 = 'v_mfma_f32_16x16x32_bf16'
def r16(b): return f'v[{b}:{b+15}]'
def w2reg(ct, ks):
    k = ct*12 + ks
    if k < 20: b = 176 + 4*k; return f'v[{b}:{b+3}]'
    if k < 24: b = 240 + 4*(k - 20); return f'a[{b}:{b+3}]'
    b = 48 + 4*(k - 24); return f'a[{b}:{b+3}]'
def tokreg(stage, ks):
    if stage in (0, 3): b = 4*ks; return f'a[{b}:{b+3}]'
    if stage == 1: b = 192 + 4*ks; return f'a[{b}:{b+3}]'
    b = 128 + 4*ks; return f'v[{b}:{b+3}]'

def gemms(g, S):
    o = g.o
    S.emit(f'''
    v_bfe_u32 v12, v2, 2, 2
    v_lshrrev_b32 v13, 5, v2
    v_lshl_add_u32 v14, v13, 3, v12
    v_lshrrev_b32 v12, 1, v12
    v_lshl_or_b32 v12, v13, 1, v12
    v_bfe_u32 v13, v2, 4, 1
    v_bfe_u32 v16, v2, 1, 1
    v_lshl_or_b32 v13, v13, 1, v16
    v_xor_b32 v12, v12, v13
    v_lshlrev_b32 v12, 4, v12
    v_lshl_add_u32 v12, v14, 6, v12
    v_and_b32 v13, 1, v2
    v_lshl_add_u32 v12, v13, 3, v12
    s_and_b32 s33, s3, 1
    s_mul_i32 s58, s33, 20480
    v_add_u32 v12, s58, v12
    ''')
    S.emit(g.barrier(['tile0']))
    S.emit(g.stamp('g1'))
    setupA = L(f'''
    v_add_u32 v13, {L_SLOT[2]}, v12
    s_lshr_b32 s32, s3, 1
    s_lshl_b32 s58, {sSIG}, 1
    s_add_u32 s58, s58, s33
    s_lshr_b32 s59, s58, 3
    s_and_b32 s58, s58, 7
    s_lshl_b32 s58, s58, 1
    v_bfe_u32 v0, v2, 1, 1
    v_bfe_u32 v10, v2, 3, 1
    v_lshl_or_b32 v0, v10, 1, v0
    v_xor_b32 v0, s59, v0
    v_lshlrev_b32 v0, 4, v0
    v_lshl_add_u32 v0, v2, 6, v0
    v_add_u32 v0, s58, v0
    s_lshl_b32 s37, {sR}, 13
    s_add_u32 s37, s37, {WS_ST2}
    s_lshl_b32 s58, {sSIG}, 7
    s_lshl_b32 s59, s33, 3
    s_add_u32 s38, s58, s59
    s_add_u32 s38, s38, s37
    ''')
    def stats_step(kind):
        T = 68; a = 'v11'; x = lambda i: f'v{T + (i & 3)}'
        it = []
        if kind < 2:
            it.append(L(f'v_add_u32 {a}, {L_SLOT[kind]}, v0'))
            it.append(L(f's_cmp_eq_u32 s32, 0\ns_cselect_b32 s39, s38, {OOB}\ns_add_u32 s39, s39, {2048*kind}'))
        else:
            it.append(L(f's_cmp_eq_u32 s32, 0\ns_cselect_b32 s39, {L_SLOT[2]}, {L_SLOT[3]}\nv_add_u32 {a}, s39, v0'))
            it.append(L(f's_lshl_b32 s39, s32, 11\ns_add_u32 s39, s39, s38\ns_add_u32 s39, s39, 4096'))
        rd = lambda i: L(f'ds_read_u16_d16_hi v{32+i if i < 8 else 66+i-8}, {a} offset:{4096*i}')
        xr = lambda i: f'v{32+i if i < 8 else 66+i-8}'
        for i in range(10): it.append(rd(i))
        for i in range(10):
            if i == 0: it += [L(f'v_mul_f32 v64, {xr(0)}, v{IC2}'), L('v_mul_f32 v65, v64, v64')]
            else: it += [L(f'v_mul_f32 {xr(i)}, {xr(i)}, v{IC2+i}'), L(f'v_add_f32 v64, v64, {xr(i)}'), L(f'v_fmac_f32 v65, {xr(i)}, {xr(i)}')]
        it.append(L(f'v_mov_b32 v33, {OOB}'))
        for k in ('row_ror:8 row_mask:0xf', 'row_ror:4 row_mask:0xf', 'row_ror:2 row_mask:0xf', 'row_ror:1 row_mask:0xf', 'row_bcast:15 row_mask:0xa', 'row_bcast:31 row_mask:0xc'):
            it.append(L(f'v_add_f32_dpp v64, v64, v64 {k} bank_mask:0xf\nv_add_f32_dpp v65, v65, v65 {k} bank_mask:0xf\ns_nop 0'))
        it += [[i] for i in g.finish_stats('v64', 'v65', 'v64')]
        it.append(L(f'v_writelane_b32 v33, s39, 63\nv_mov_b32 v65, v1'))
        it.append(L(f'buffer_store_dwordx2 v[64:65], v33, {sWS}, 0 offen sc1'))
        return it
    setupB = L(f'''
    s_mul_i32 s58, s3, 6144
    s_add_u32 s58, s58, {L_EX}
    v_add_u32 v14, s58, v3
    s_xor_b32 s59, s3, 1
    s_mul_i32 s59, s59, 6144
    s_add_u32 s59, s59, {L_EX}
    v_add_u32 v16, s59, v3
    v_bfe_u32 v17, v2, 4, 1
    v_mul_u32_u24 v17, 49152, v17
    v_and_b32 v18, 15, v2
    v_lshl_add_u32 v18, v18, 4, v17
    v_lshrrev_b32 v19, 5, v2
    v_lshl_add_u32 v17, v19, 8, v18
    s_mul_i32 s40, {sR}, 98304
    s_mul_i32 s58, {sSIG}, 3072
    s_add_u32 s40, s40, s58
    s_add_u32 s40, s40, {WS_HH}
    s_lshl_b32 s58, s3, 9
    v_add_u32 v17, s58, v17
    s_lshl_b32 s58, s3, 8
    s_add_u32 s58, s58, 2048
    v_add_u32 v18, s58, v18
    v_mul_u32_u24 v19, 0x7f, v19
    v_lshl_or_b32 v18, v19, 24, v18
    v_bfe_u32 v19, v2, 1, 4
    v_lshlrev_b32 v19, 7, v19
    v_and_b32 v84, 1, v2
    v_lshl_add_u32 v19, v84, 3, v19
    v_mov_b32 v86, 0
    v_mov_b32 v87, 0
    s_lshl_b32 s41, {sR}, 4
    s_add_u32 s41, s41, {sSIG}
    s_lshl_b32 s41, s41, 7
    s_add_u32 s41, s41, {WS_FLH}
    s_mov_b32 s42, 0x01000100
    s_mov_b32 s43, 0x03020302
    s_and_b32 s34, {sJ}, 7
    s_lshl_b32 s35, {sXC}, 1
    s_lshr_b32 s58, {sJ}, 4
    s_add_u32 s35, s35, s58
    s_bfe_u32 s36, {sJ}, 0x10003
    s_mul_i32 s44, s34, {5*49152}
    s_mul_i32 s58, s3, 12288
    s_add_u32 s44, s44, s58
    s_add_u32 s44, s44, {WS_W2P}
    s_lshl_b32 s45, s35, 1
    s_add_u32 s45, s45, s36
    s_mul_i32 s45, s45, 49152
    s_add_u32 s45, s45, s58
    s_add_u32 s45, s45, {WS_HH}
    ''')
    wxld_pre = L(f'''
    s_mul_i32 s58, s32, 3
    s_mul_i32 s59, {sSIG}, 6
    s_add_u32 s58, s58, s59
    s_lshl_b32 s58, s58, 10
    s_add_u32 s49, s58, {WS_WX + 2048}
    s_lshl_b32 s59, s33, 10
    s_add_u32 s46, s58, s59
    s_add_u32 s46, s46, {WS_WX}
    ''')
    wxld = L(f'buffer_load_dwordx4 v[{WXK}:{WXK+3}], v3, {sWS}, s46 offen sc1\nbuffer_load_dwordx4 v[{WXH}:{WXH+3}], v5, {sWS}, s49 offen sc1')
    wxfix = [g.check(wxld, [f'v{WXK+3}', f'v{WXH+3}'], f'v{GT}')] + [[i] for i in L(f'''
    v_mov_b32 v{WXK+3}, 0
    v_mov_b32 v{WXH+3}, 0
    v_bfe_i32 v{GT}, v2, 3, 1
    v_bfi_b32 v{WXH}, v{GT}, 0, v{WXH}
    v_bfi_b32 v{WXH+1}, v{GT}, 0, v{WXH+1}
    ''')]
    def w2_loads(k0, k1):
        items = []
        for k in range(k0, k1):
            ct, ks = divmod(k, 12); it = []
            if ks % 4 == 0 or k == k0: it += L(f's_add_u32 s67, s44, {ct*49152 + 4096*(ks//4)}')
            it += L(f'buffer_load_dwordx4 {w2reg(ct, ks)}, v3, {sWS}, s67 offen offset:{1024*(ks%4)} sc1')
            items.append(it)
        return items
    def tok_loads(stage):
        items = []
        for ks in range(12):
            it = []
            if ks % 4 == 0: it += L(f's_add_u32 s68, s45, {stage*32*49152 + 1024*ks}')
            it += L(f'buffer_load_dwordx4 {tokreg(stage, ks)}, v3, {sWS}, s68 offen offset:{1024*(ks%4)} sc1')
            items.append(it)
        return items
    def flagH(stage, waits=()):
        return L(f's_add_u32 s63, s41, {stage*32768}') + g.barrier([f'hh{stage}'] + list(waits)) + L(f'buffer_store_dword v1, v30, {sWS}, s63 offen sc1')
    setupC = L(f'''
    s_cmp_eq_u32 s3, 0
    s_cselect_b32 s58, 0, {OOB}
    v_or_b32 v30, s58, v31
    ''')
    setupD = L(f'''
    s_lshl_b32 s58, s35, 4
    s_lshl_b32 s59, s3, 2
    s_add_u32 s58, s58, s59
    v_and_b32 v4, 3, v2
    v_add_u32 v4, s58, v4
    v_lshlrev_b32 v4, 7, v4
    v_add_u32 v4, {WS_FLH}, v4
    ''')
    def pollH(stage, dst): return L(f's_mov_b32 s63, {stage*32768}\nbuffer_load_dword {dst}, v4, {sWS}, s63 offen sc1')
    w2p_pre = L(f'''
    s_mul_i32 s58, s34, 5
    s_add_u32 s59, s58, 4
    s_lshr_b32 s58, s58, 2
    s_lshr_b32 s59, s59, 2
    s_sub_u32 s59, s59, s58
    s_mul_i32 s69, s3, 30
    s_add_u32 s58, s58, s69
    v_and_b32 v15, 3, v2
    v_min_u32 v15, 2, v15
    v_mul_u32_u24 v15, 10, v15
    v_bfe_u32 v{GT+1}, v2, 2, 1
    v_mad_u32_u24 v15, v{GT+1}, s59, v15
    v_add_u32 v15, s58, v15
    v_lshlrev_b32 v15, 7, v15
    v_add_u32 v15, {WS_FLW2}, v15
    ''')
    w2p = L(f'buffer_load_dwordx4 v[{PK}:{PK+3}], v15, {sWS}, 0 offen sc1')
    w2chk = g.check(w2p, [f'v{PK+k}' for k in range(4)], f'v{GT+1}')
    cst_pre = L(f'''
    s_mul_i32 s58, s34, 80
    s_mul_i32 s59, s3, 24
    s_add_u32 s58, s58, s59
    v_and_b32 v15, 31, v2
    v_add_u32 v15, s58, v15
    v_min_u32 v15, 639, v15
    v_lshrrev_b32 v{GT+2}, 5, v2
    v_mul_u32_u24 v{GT+2}, 3840, v{GT+2}
    v_add_lshl_u32 v15, v15, v{GT+2}, 3
    s_mov_b32 s47, {WS_MODP + 4*640*8}
    s_mov_b32 s48, {WS_MODP + 5*640*8}
    ''')
    cstld = L(f'buffer_load_dwordx2 v[{PK+4}:{PK+5}], v15, {sWS}, s47 offen sc1\nbuffer_load_dwordx2 v[{PK+6}:{PK+7}], v15, {sWS}, s48 offen sc1')
    a_, b_, c_, d_ = (f'v{PK+4+k}' for k in range(4))
    cstfin = [g.check(cstld, [b_, d_], f'v{GT+2}')] + [[i] for i in L(f'''
    v_mov_b32 {b_}, {a_}
    v_mov_b32 {d_}, {c_}
    s_lshl_b32 s58, s3, 8
    s_add_u32 s58, s58, {L_CST}
    v_permlane32_swap_b32 {a_}, {b_}
    v_permlane32_swap_b32 {c_}, {d_}
    v_add_f32 {a_}, {a_}, {b_}
    v_add_f32 {c_}, {c_}, {d_}
    v_cvt_pk_bf16_f32 {a_}, 0, {a_}
    v_cvt_pk_bf16_f32 {c_}, 0, {c_}
    v_add_f32 {a_}, 1.0, {a_}
    v_cvt_pk_bf16_f32 {a_}, 0, {a_}
    v_mov_b32 {b_}, 0x21800000
    ''')] + [L(f'''
    v_cmp_eq_f32 vcc, 0, {a_}
    v_and_b32 {d_}, 31, v2
    v_lshl_add_u32 {d_}, {d_}, 2, s58
    v_cndmask_b32 {a_}, {a_}, {b_}, vcc
    ''')] + [[i] for i in L(f'''
    v_rcp_f32 {a_}, {a_}
    ds_write_b32 {d_}, {c_}
    ds_write_b32 {d_}, {a_} offset:128
    ''')]
    res_dma = [L(f'''
    s_lshl_b32 s58, s3, 4
    s_add_u32 s58, s58, s35
    s_mul_i32 s58, s58, 40960
    s_mul_i32 s59, s34, 5120
    s_add_u32 s58, s58, s59
    s_add_u32 s62, s58, {WS_X1S}
    s_mul_i32 s59, s3, 5120
    s_add_u32 m0, s59, {L_RES}
    ''')] + [L(f'buffer_load_dwordx4 v3, {sWS}, s62 offen offset:{1024*i} sc1 lds', tag='res') for i in range(4)] + [
        L(f's_add_u32 m0, m0, 4096\ns_add_u32 s62, s62, 4096') + L(f'buffer_load_dwordx4 v3, {sWS}, s62 offen sc1 lds', tag='res')]
    def sendS(j): return [L(f'ds_write_b128 {vEW}, v[{ACCS+4*q}:{ACCS+4*q+3}] offset:{1024*q}', tag=f'snd{j}') for q in range(4)]
    def sendH(j): return [L(f'ds_write_b128 {vEW}, v[{ACCH[j&1]+4+8*q}:{ACCH[j&1]+7+8*q}] offset:{4096+1024*q}', tag=f'snd{j}') for q in range(2)]
    def recv(j):
        dst = [ACCK[j&1] + 4*q for q in range(4)] + [ACCH[j&1], ACCH[j&1] + 8]
        rd = lambda q: L(f'ds_read_b128 v[{RECV+4*(q&1)}:{RECV+4*(q&1)+3}], {vER} offset:{1024*q}')
        it = [rd(0), rd(1)]
        for q in range(6):
            it += [L(f'v_add_f32 v{dst[q]+b}, v{dst[q]+b}, v{RECV+4*(q&1)+b}') for b in range(4)]
            if q + 2 < 6: it.append(rd(q + 2))
        return it
    def statld(j): return L(f's_add_u32 s63, s37, {2048*j}\nbuffer_load_dwordx2 v[{vST}:{vST+1}], {vSR}, {sWS}, s63 offen sc1')
    def statuse(j, ld):
        return [g.check(ld, [f'v{vST+1}'], None)] + [[i] for i in L(f'''
        v_and_b32 {vI2}, 0xffff0000, v{vST}
        v_rcp_f32 {vK1}, {vI2}
        v_perm_b32 v{BX}, v{vST}, v{vST}, s42
        v_perm_b32 v{BX+1}, v{vST}, v{vST}, s43
        v_mul_f32 {vI2}, {vI2}, {vI2}
        v_mul_f32 {vK3}, {vK1}, {vK1}
        v_mul_f32 {vK1}, 0xc0135761, {vK1}
        v_mul_f32 {vK3}, 0x3d372713, {vK3}
        v_mul_f32 {vK3}, {vK3}, {vK1}
        ''')]
    def fold(j): return [(r16(ACCK[j&1]), f'v[{WXK}:{WXK+3}]', f'v[{BX}:{BX+3}]', r16(ACCK[j&1])), (r16(ACCH[j&1]), f'v[{WXH}:{WXH+3}]', f'v[{BX}:{BX+3}]', r16(ACCH[j&1]))]
    def gelu(j):
        prs = [(ACCK[j&1] + b, PK + (b >> 1)) for b in range(0, 8, 2)] + [(ACCH[j&1] + b, PK + 4 + (b >> 1)) for b in (0, 2)]
        it = []
        for n, (a, p) in enumerate(prs):
            t0, t1 = GT + 2*(n & 1), GT + 1 + 2*(n & 1)
            it += [[i] for i in L(f'''
            v_mul_f32 v{t0}, v{a}, v{a}
            v_mul_f32 v{t1}, v{a+1}, v{a+1}
            v_fma_f32 v{t0}, v{t0}, {vK3}, {vK1}
            v_fma_f32 v{t1}, v{t1}, {vK3}, {vK1}
            v_mul_f32 v{t0}, v{t0}, v{a}
            v_mul_f32 v{t1}, v{t1}, v{a+1}
            v_exp_f32 v{t0}, v{t0}
            v_mul_f32 v{a}, v{a}, v{a+8}
            v_exp_f32 v{t1}, v{t1}
            v_mul_f32 v{a+1}, v{a+1}, v{a+9}
            v_fma_f32 v{t0}, v{t0}, {vI2}, {vI2}
            v_fma_f32 v{t1}, v{t1}, {vI2}, {vI2}
            v_rcp_f32 v{t0}, v{t0}
            v_rcp_f32 v{t1}, v{t1}
            v_mul_f32 v{a}, v{a}, v{t0}
            v_mul_f32 v{a+1}, v{a+1}, v{t1}
            v_cvt_pk_bf16_f32 v{p}, v{a}, v{a+1}
            ''')]
            if n == 3: it.append(L(f's_add_u32 s69, s40, {j*32*49152}') + L(f'buffer_store_dwordx4 v[{PK}:{PK+3}], {vHX}, {sWS}, s69 offen sc1', tag=f'hh{j}'))
        it.append(L(f'v_permlane32_swap_b32 v{PK+4}, v{PK+6}'))
        it.append(L(f'v_permlane32_swap_b32 v{PK+5}, v{PK+7}'))
        it.append(L(f'buffer_store_dwordx4 v[{PK+4}:{PK+7}], {vHY}, {sWS}, s69 offen sc1', tag=f'hh{j}'))
        return it
    FP = o('foldpos', 17)
    seq = []; T0 = []; freeat = {}
    for j in range(4):
        order = [(2, 0), (1, 0), (2, 1), (1, 1), (2, 2), (1, 2), (0, 0), (0, 1), (0, 2)]
        for s in range(3, 17): order += [(2, s), (1, s), (0, s)]
        order += [(ro, s) for ro in (0, 1, 2) for s in (17, 18, 19)]
        T0.append(len(seq))
        for n, (ro, s) in enumerate(order):
            if j > 0 and n == FP: seq += fold(j - 1)
            d = r16([ACCS, ACCH[j&1], ACCK[j&1]][ro]); a = 12*s + 4*ro
            seq.append((d, f'a[{a}:{a+3}]', ('t', j, s), '0' if s == 0 else d))
            if j == 3: freeat[a] = len(seq) - 1
    T0.append(len(seq))
    B2 = [T0[j+1] - o('b2back', 11) for j in range(4)]
    def tload(f, dst):
        _, j, s = f
        a, base = (vTR2, 0) if j == 2 else (vTR, L_SLOT[j])
        return [Ins(f'ds_read_b64_tr_b16 v[{dst+2*e}:{dst+2*e+1}], {a} offset:{base + 1024*s + 256*e}') for e in range(2)]
    bb, pinned, head = alloc_frags(seq, M32, RING, tload, lead=o('lead1', 5), maxper=1, notbefore=lambda f: B2[f[1]-1] + 1 if f[1] > 0 else -1)
    S.emit(head)
    F = []
    one = lambda items, gp, prio=5: Fill([items], gp, gp, prio=prio, hard=True)
    t0, t1, t2, t3, t4 = T0
    pB = g.pollC(1, f'v{GT+3}')
    F.append(Fill([pB] + [[i] for i in g.epi(2, 's47', 'pC') + g.epi(3, 's48', 'pC')] + [[i] for i in setupA] + stats_step(0), 0, o('st0end', 20), prio=4))
    F.append(Fill(g.w1_loads(g.nw1, 60), 1, 8, prio=3))
    gB = o('gchkB', 17)
    F.append(Fill([g.stamp('_b0') + g.check(pB, [f'v{GT+3}'], None) + g.stamp('_b1')] + g.tile_dma(1), gB, gB + 12, prio=5))
    gC = o('gflC', 30)
    F.append(one(g.flagC(2, 'pC'), gC))
    F.append(Fill([[i] for i in setupB] + [wxld_pre] + [[i] for i in wxld] + [setupC] + [[i] for i in w2p_pre] + [w2p], 23, 42, prio=2))
    sl0 = statld(0)
    F.append(Fill([w2chk] + [[i] for i in cst_pre] + [[i] for i in cstld] + wxfix, 47, t1 - 6, prio=2))
    F.append(Fill([g.stamp('_t1w') + g.barrier(['tile1']) + g.stamp('_t1b')] + stats_step(1), B2[0], t1 + 2, prio=4, hard=True))
    for j in range(3):
        b = T0[j+1]
        F.append(Fill(sendS(j), b - 5, b - 2, prio=6, hard=True))
        F.append(Fill(sendH(j), b - 0, b + 1, prio=6, hard=True))
        bar = g.barrier([f'snd{j}']) if j == 0 else flagH(j - 1, [f'snd{j}'] + (['tile3'] if j == 1 else []))
        F.append(Fill([bar] + recv(j), b + 4, b + FP - 4, prio=5, hard=True))
        ld = statld(j)
        F.append(one(ld, b + (o('gst0', 3) if j == 0 else -8)))
        F.append(Fill([g.stamp(f'_s{j}a') + statuse(j, ld)[0] + g.stamp(f'_s{j}b')] + statuse_rest(statuse, j, ld, g), b + FP - 4, b + FP - 2, prio=5, hard=True))
        F.append(Fill(gelu(j), b + FP + 4, b + o('gelend', 44), prio=3))
        if j > 0: F.append(one(g.barrier([f'tile{j+1}'] if j == 1 else []), B2[j]))
    F.append(one(g.barrier([]), B2[3]))
    F.append(Fill(sendS(3), t4 - 5, t4 - 2, prio=6, hard=True))
    pC = g.pollC(2, 'v32')
    F.append(one(pC, t1 + o('gpC', 5)))
    F.append(Fill(cstfin, t1 + 5, t1 + 16, prio=2))
    gk = t1 + o('gchkC', 22)
    F.append(Fill([g.stamp('_c0') + g.check(pC, ['v32'], None) + g.stamp('_c1')] + g.tile_dma(2) + g.tile_dma(3) + [[i] for i in setupD], gk, gk + 26, prio=5))
    F.append(Fill(w2_loads(0, 8), t1 + 7, gk - 2, prio=1))
    F.append(Fill(stats_step(2), t2 + FP - 3, t2 + o('st2end', 40), prio=4))
    F.append(Fill(w2_loads(8, 24) + res_dma, t2 - 6, t3 - 14, prio=1))
    pH0 = pollH(0, 'v32')
    F.append(one(pH0, t3 - 12))
    lateld = [g.check(pH0, ['v32'], None)] + tok_loads(0) + w2_loads(24, 60)
    f3 = Fill(lateld, t3 + 6, t4 + o('late_over', 12), prio=2)
    for k, it in enumerate(f3.items):
        for i in it:
            for r in i.defs:
                if isinstance(r, tuple) and r[0] == 'a' and r[1] in freeat: f3.want[k] = max(f3.want[k], freeat[r[1]])
    for k in range(1, len(f3.want)): f3.want[k] = max(f3.want[k], f3.want[k-1])
    nin = sum(1 for w in f3.want if w <= t4 - 1)
    late_rest = f3.items[nin:]; f3.items = f3.items[:nin]; f3.want = f3.want[:nin]
    F.append(f3)
    sl3 = statld(3); F.append(one(sl3, t4 - 10))
    pH1 = pollH(1, 'v33'); F.append(one(pH1, t4 - 8))
    if isinstance(g.stamps, list):
        for nm in g.stamps:
            if nm.startswith('_G'): F.append(one(g.stamp(nm), int(nm[2:]), prio=9))
    S.emit(interleave(bb, F, pinned, report='g1'))
    S.emit(g.stamp('g1end'))
    g2set = L(f'''
    v_lshrrev_b32 v40, 4, v2
    v_and_b32 v41, 15, v2
    s_mul_i32 s58, s3, 3
    v_min_u32 v42, 2, v40
    v_add_u32 v43, s58, v42
    v_cmp_lt_u32 vcc, 9, v43
    v_cmp_eq_u32 s[46:47], 3, v40
    v_min_u32 v43, 9, v43
    s_or_b64 vcc, vcc, s[46:47]
    v_lshlrev_b32 v44, 9, v43
    v_lshl_add_u32 v12, v41, 4, v44
    v_add_u32 v12, {L_PART}, v12
    s_mul_i32 s58, s3, 5120
    s_add_u32 s58, s58, {L_PART}
    v_add_u32 v13, s58, v3
    v_bfe_u32 v45, v2, 2, 2
    v_lshl_add_u32 v44, v45, 6, v44
    v_and_b32 v45, 3, v2
    v_lshl_add_u32 v44, v45, 3, v44
    s_lshl_b32 s58, s36, 5
    s_add_u32 s58, s58, {L_RES}
    v_add_u32 v5, s58, v44
    s_lshl_b32 s58, s3, 8
    s_add_u32 s58, s58, {L_CST}
    v_lshl_add_u32 v42, v42, 5, s58
    s_lshr_b32 s58, s35, 3
    s_lshl_b32 s58, s58, 8
    s_bfe_u32 s59, s35, 0x20001
    s_lshl_b32 s59, s59, 6
    s_add_u32 s58, s58, s59
    s_and_b32 s59, s35, 1
    s_lshl_b32 s59, s59, 3
    s_add_u32 s58, s58, s59
    s_lshl_b32 s59, s36, 5
    s_add_u32 s58, s58, s59
    v_and_b32 v44, 8, v41
    v_add3_u32 v44, v44, v41, s58
    v_mul_u32_u24 v44, 1280, v44
    v_lshl_add_u32 v44, v43, 4, v44
    s_mul_i32 s58, s34, 160
    v_add_u32 v44, s58, v44
    v_mov_b32 v45, {OOB}
    v_cndmask_b32 v6, v44, v45, vcc
    ds_read_b128 v[20:23], v42
    ds_read_b128 v[24:27], v42 offset:16
    ds_read_b128 v[32:35], v42 offset:128
    ds_read_b128 v[36:39], v42 offset:144
    ''')
    lr = list(late_rest)
    def drip(n):
        out = []
        for _ in range(n):
            if lr: out += lr.pop(0)
        return out
    S.emit(flat(statuse(3, sl3)))
    S.emit(flat(sendH(3)))
    S.emit(g.check(pH1, ['v33'], None))
    lr += tok_loads(1)
    S.emit(drip(2))
    S.emit(flagH(2, ['snd3', 'res']))
    rc = recv(3)
    S.emit(flat(rc[:2])); S.emit(drip(2)); S.emit(flat(rc[2:]))
    for d, a, b, c in fold(3): S.emit(f'{M32} {d}, {a}, {b}, {c}')
    S.emit(drip(2)); S.emit(g2set[:12])
    gl = gelu(3); step = o('dripstep', 9)
    for k in range(0, len(gl), step):
        S.emit(flat(gl[k:k+step])); S.emit(drip(1))
    S.emit(g.stamp('epi3'))
    S.emit(g2set[12:])
    if g.stop == 'g1':
        return
    ACC = [40, 60]; FT = 80
    bb = []
    for st in range(4):
        for ct in range(5):
            d = f'v[{ACC[st&1]+4*ct}:{ACC[st&1]+4*ct+3}]'
            for ks in range(12): bb.append(Ins(f'{M16} {d}, {w2reg(ct, ks)}, {tokreg(st, ks)}, {"0" if ks == 0 else d}'))
    def pwrite(st, ct): return L(f'ds_write_b128 v13, v[{ACC[st&1]+4*ct}:{ACC[st&1]+4*ct+3}] offset:{20480*(st&1) + 1024*ct}', tag=f'pw{st}')
    def final(st):
        it = []
        for w in range(4):
            for h in range(2): it.append(L(f'ds_read_b128 v[{FT+8*w+4*h}:{FT+8*w+4*h+3}], v12 offset:{20480*(st&1) + 5120*w + 256*h}'))
        X = FT + 32
        for e in range(2): it.append(L(f'ds_read_b64_tr_b16 v[{X+2*e}:{X+2*e+1}], v5 offset:{5120*st + 256*e}'))
        for c in range(8):
            it += [L(f'v_add_f32 v{FT+c}, v{FT+c}, v{FT+8+c}'), L(f'v_add_f32 v{FT+16+c}, v{FT+16+c}, v{FT+24+c}')]
        for c in range(8):
            u = f'v_lshlrev_b32 v{FT+8+c}, 16, v{X+(c>>1)}' if c % 2 == 0 else f'v_and_b32 v{FT+8+c}, 0xffff0000, v{X+(c>>1)}'
            it += [L(f'v_add_f32 v{FT+c}, v{FT+c}, v{FT+16+c}'), L(u), L(f'v_mul_f32 v{FT+c}, v{FT+c}, v{20+c}'), L(f'v_fmac_f32 v{FT+c}, v{FT+8+c}, v{32+c}')]
            if c % 2 == 1: it.append(L(f'v_cvt_pk_bf16_f32 v{X+4+(c>>1)}, v{FT+c-1}, v{FT+c}'))
        it.append(L(f's_mov_b32 s69, {st*512*1280}\nbuffer_store_dwordx4 v[{X+4}:{X+7}], v6, {sOUT}, s69 offen'))
        return it
    F = []
    F.append(Fill(lr, 0, max(1, 4*len(lr)), prio=3))
    nl = 4*len(lr)
    for st in range(4):
        b = 60*st
        for ct in range(5):
            gp = b + 12*ct + 16
            if gp < 240: F.append(one(pwrite(st, ct), gp))
        if st < 3:
            F.append(Fill([g.barrier([f'pw{st}'])] + final(st), b + 68, b + 112, prio=2))
    g3 = o('gfl3', 44)
    F.append(one(flagH(3), g3))
    pH2 = pollH(2, 'v7'); gp2 = o('gpH2', 20)
    F.append(one(pH2, gp2))
    g2c = max(o('gcH2', 56), nl + 3)
    F.append(Fill([g.stamp('_h2a') + g.check(pH2, ['v7'], None) + g.stamp('_h2b')] + tok_loads(2), g2c, g2c + 44, prio=4))
    pH3 = pollH(3, 'v8'); gp3 = max(o('gpH3', 100), g2c + 47)
    F.append(one(pH3, gp3))
    g3c = o('gcH3', 135)
    F.append(Fill([g.stamp('_h3a') + g.check(pH3, ['v8'], None) + g.stamp('_h3b')] + tok_loads(3), g3c, g3c + 24, prio=4))
    if isinstance(g.stamps, list):
        for nm in g.stamps:
            if nm.startswith('_H'): F.append(one(g.stamp(nm), int(nm[2:]), prio=9))
    S.emit(interleave(bb, F, report='g2'))
    S.emit(g.stamp('g2m'))
    S.emit(pwrite(3, 4)); S.emit(g.barrier(['pw3'])); S.emit(flat(final(3)))

def statuse_rest(statuse, j, ld, g):
    n, sl = g.npoll, len(g.slow)
    r = statuse(j, ld)[1:]
    g.npoll = n; del g.slow[sl:]
    return r
```

```python
import sys
from fw import *

NAME = 'adaLN_cond__ssm_conv_s4__glu_gated_geglu__prompt_kernel'
WS_E = 0; WS_STAT = 0x1000; WS_FLW2 = 0x10000; WS_IC2 = 0x1E000
WS_MODP = 0x20000; WS_WX = 0x40000; WS_FLH = 0x60000; WS_DBG = 0x80000
WS_XT = 0x100000; WS_X1S = 0x400000; WS_W1P = 0x700000; WS_W2P = 0xB20000; WS_HH = 0xD00000
WS_FLA = 0x1300000; WS_FLC = 0x1340000; WS_ST2 = 0x13C0000; WS_SIZE = 0x1400000
FS = 32
FLC_REP = 160*FS; FLC_STG = 8*FLC_REP; FLA_REP = 256*FS; FLW_OFF = 8*FLA_REP
OOB = 0x7F000000
L_TAB = 0; L_STG = 65536
L_KC = 81920; KC_PITCH = 4736; KC1 = 2236; KCD = 4384
L_LN = 81920 + 4 * KC_PITCH
L_VEC = L_LN + 10240
L_H = 122880; H_PITCH = 4608
L_X = L_H + 4 * H_PITCH
L_SLOT = [0, 40960, 81920, 0]
L_EX = 122880
L_CST = 159744
L_RES = 40960; L_PART = 81920
LDS_BYTES = 163840
TP = 272
P2 = 2*1056
sWS, sX, sOUT, sWG, sWU, sWD, sWM = 's[4:7]', 's[8:11]', 's[12:15]', 's[16:19]', 's[20:23]', 's[24:27]', 's[28:31]'
sN, sXC, sJ, sSIG, sR, sBUD = 's50', 's51', 's52', 's53', 's54', 's55'
sCH, sCB4 = 's56', 's57'
BUD = 40000
def cp(l): return [Ins(i.text, tag=i.tag, waitfor=i.waitfor) for i in l]
def flat(items): return [x for it in items for x in (it if isinstance(it, list) else [it])]

class Gen:
    def __init__(self, stop=None, stamps=False, probe=None, **opt):
        self.stop = stop; self.stamps = stamps; self.opt = opt; self.probe = probe
        if probe: self.stamps = [probe]
        self.slow = []; self.npoll = 0; self.stamp_names = []
    def o(self, k, d): return self.opt.get(k, d)
    def stamp(self, name):
        if not self.stamps: return []
        if self.stamps is not True and name not in self.stamps and name not in ('start', 'end'): return []
        if self.stamps is True and name.startswith('_'): return []
        if name not in self.stamp_names: self.stamp_names.append(name)
        k = self.stamp_names.index(name); assert k < 14
        i = Ins(f's_{"memtime" if self.o("cyc", 0) else "memrealtime"} s[{74+2*k}:{75+2*k}]'); i.note = 'stamp'
        return [i]
    def check(self, loads, tagregs, tmp, sleep=4):
        k = self.npoll; self.npoll += 1
        def cmp():
            if len(tagregs) == 1: return L(f'v_cmp_ne_u32 vcc, {sN}, {tagregs[0]}')
            t = list(tagregs)
            o = L(f'v_xor_b32 {tmp}, {t[0]}, {t[1]}')
            for r in t[2:]: o += L(f'v_sad_u32 {tmp}, {t[0]}, {r}, {tmp} clamp')
            return o + L(f'v_sad_u32 {tmp}, {t[0]}, {sN}, {tmp} clamp\nv_cmp_ne_u32 vcc, 0, {tmp}')
        fast = cmp() + L(f's_cbranch_vccnz L_slow{k}\nL_back{k}:')
        dd = set()
        for i in loads:
            fast[-2].xuses |= (i.uses - dd); dd |= i.defs
        fast[-2].xdefs = set(r for r in dd if not isv(r)) | {'scc'}
        s = Stream()
        s.emit(f'L_slow{k}:\ns_sub_u32 {sBUD}, {sBUD}, 1\ns_cbranch_scc1 L_giveup{k}\ns_sleep {sleep}')
        s.emit([Ins(i.text) for i in loads]); s.wait_all(); s.emit(cmp())
        s.emit(f's_cbranch_vccnz L_slow{k}\ns_branch L_back{k}\nL_giveup{k}:\ns_mov_b32 {sBUD}, 0\ns_branch L_back{k}')
        self.slow += s.out
        return fast
    def barrier(self, waitfor=None): return [Ins('s_barrier', waitfor=waitfor)]
    def touch(self, first):
        return L(f'''
        s_mov_b64 exec, 0
        s_cmp_eq_u32 s3, 0
        s_cbranch_scc1 L_stub{first}
        s_cmp_eq_u32 s3, 1
        s_cbranch_scc1 L_stub{first+1}
        s_cmp_eq_u32 s3, 2
        s_cbranch_scc1 L_stub{first+2}
        s_branch L_stub{first+3}
        ''')
    def prologue(self, S):
        S.emit(self.stamp('start'))
        S.emit(f'''
        s_cmp_ge_u32 s2, 256
        s_cbranch_scc1 L_exit
        s_load_dwordx2 s[8:9], s[0:1], 0
        s_load_dwordx16 s[16:31], s[0:1], 80
        s_load_dwordx16 s[32:47], s[0:1], 8
        v_lshrrev_b32 v1, 6, v0
        s_lshr_b32 {sJ}, s2, 3
        v_and_b32 v2, 63, v0
        v_readfirstlane_b32 s3, v1
        s_lshl_b32 s60, {sJ}, 2
        s_getpc_b64 s[58:59]
        s_add_u32 s60, s60, s3
        s_mul_i32 s61, s60, {(65536 + 17)//18}
        s_lshr_b32 s61, s61, 16
        s_mul_i32 s61, s61, 18
        s_sub_u32 s61, s60, s61
        s_lshl_b32 s61, s61, 3
        s_load_dwordx2 s[72:73], s[0:1], s61
        s_mul_i32 s60, s60, 384
        s_min_u32 s60, s60, @CODEMAX@
        s_add_u32 s58, s58, s60
        s_addc_u32 s59, s59, 0
        ''')
        S.emit(f'''
        v_lshlrev_b32 v3, 4, v2
        s_mov_b32 s10, 2621440
        s_mov_b32 s11, 0x20000
        s_mul_i32 s60, s2, 10240
        s_mul_i32 s62, s3, 2560
        s_add_u32 s60, s60, s62
        s_add_u32 s61, s62, {L_LN}
        s_mov_b32 m0, s61
        s_and_b32 {sXC}, s2, 7
        s_mul_i32 {sCB4}, {sXC}, 20
        s_add_u32 {sCB4}, {sCB4}, {sJ}
        s_lshl_b32 {sCH}, {sCB4}, 2
        s_add_u32 {sCH}, {sCH}, s3
        s_mul_hi_u32 s62, s2, {(2**32 + 9)//10}
        s_mul_i32 s63, s62, 10
        s_sub_u32 s63, s2, s63
        s_lshl_b32 s63, s63, 2
        s_add_u32 s63, s63, s3
        v_lshrrev_b32 v104, 3, v2
        v_bfe_u32 v105, v2, 4, 1
        v_lshlrev_b32 v105, 1, v105
        v_and_b32 v106, 7, v2
        v_xor_b32 v105, v105, v106
        v_lshlrev_b32 v105, 4, v105
        v_xor_b32 v106, 64, v105
        s_movk_i32 s64, 3072
        v_mad_u32_u24 v107, v104, s64, v105
        v_mad_u32_u24 v108, v104, s64, v106
        s_movk_i32 s64, 7680
        v_mad_u32_u24 v110, v104, s64, v105
        v_mad_u32_u24 v111, v104, s64, v106
        s_mul_i32 s64, s63, {16*3072}
        s_lshl_b32 s65, s62, 7
        s_add_u32 s64, s64, s65
        s_add_u32 s65, s64, {8*3072}
        s_lshl_b32 s66, s3, 12
        s_add_u32 s66, s66, {L_STG}
        s_lshr_b32 s71, {sCH}, 1
        s_lshl_b32 s71, s71, 2
        s_min_u32 s71, s71, 1276
        s_waitcnt lgkmcnt(0)
        ''')
        S.emit(self.stamp('_karg'))
        S.emit(L('\n'.join(f'buffer_load_dwordx4 v3, {sX}, s60 offen offset:{o} nt lds' for o in (0, 1024, 1536)), tag='lndma'))
        if self.o('stouch', 1): S.emit('s_load_dword s55, s[72:73], 0')
        S.emit('''
        s_mov_b64 s[4:5], s[30:31]
        s_load_dword s68, s[44:45], s71
        s_load_dword s69, s[46:47], s71
        s_load_dword s67, s[4:5], 0
        ''')
        if self.o('codepf', 1): S.emit('v_min_u32 v4, 2, v2\nv_lshlrev_b32 v4, 7, v4\nglobal_load_dword v252, v4, s[58:59]')
        S.emit(f'''
        s_mov_b64 s[12:13], s[26:27]
        s_mov_b64 s[28:29], s[24:25]
        s_mov_b64 s[48:49], s[22:23]
        s_mov_b64 s[24:25], s[20:21]
        s_mov_b64 s[20:21], s[18:19]
        s_mov_b32 s6, {WS_SIZE}
        s_mov_b32 s7, s11
        s_mov_b32 s14, s10
        s_mov_b32 s15, s11
        s_mov_b32 s18, 1966080
        s_mov_b32 s19, s11
        s_mov_b32 s22, s18
        s_mov_b32 s23, s11
        s_mov_b32 s26, s18
        s_mov_b32 s27, s11
        s_mov_b32 s30, 4915200
        s_mov_b32 s31, s11
        s_cmp_ge_u32 {sJ}, 20
        s_cselect_b32 s0, 1, 0
        s_cmp_eq_u32 s0, 1
        s_cbranch_scc1 L_sp_pro
        ''')
        st0 = S.state()
        self.conv_consts(S)
        S.emit(self.stamp('_cst'))
        S.emit(f'''
        s_mul_i32 s58, {sCH}, 384
        v_mul_u32_u24 v109, 6, v2
        v_and_b32 v109, 0x1fc, v109
        v_add_u32 v109, s58, v109
        ''')
        S.emit('\n'.join(f'global_load_dwordx2 v[{206+2*k}:{207+2*k}], v109, s[{32+2*k}:{33+2*k}] nt' for k in range(6)))
        S.emit(self.w1_dma())
        S.emit('s_branch L_pro_join')
        stc = S.state()
        S.set_state(st0)
        S.emit(f'''
        L_sp_pro:
        s_mul_i32 s70, {sXC}, 12
        s_add_u32 s70, s70, {sJ}
        s_sub_u32 s70, s70, 20
        v_min_u32 v12, 159, v0
        v_lshlrev_b32 v12, 3, v12
        ''')
        md = self.mod_dma('s70'); ne = self.o('modearly', 4)
        S.emit(md[0]); S.emit(flat(md[1][:ne])); self.mod_late = flat(md[1][ne:])
        S.emit('global_load_dwordx2 v[200:201], v12, s[48:49]')
        sts = S.state()
        S.emit('L_pro_join:')
        nb = max(k for k, x in enumerate(st0[0]) if x.tag == 'lndma') + 1
        self.extra_c = stc[0][nb:]; self.extra_s = sts[0][nb:]
        S.set_state(([], stc[1], list(st0[2])))
        S.emit(self.stamp('_issued'))
        S.emit(self.touch(0)); S.emit('L_tdone:\ns_mov_b64 exec, -1')
        S.emit(self.stamp('_touched'))
        S.emit(self.common_consts())
        self.ln_w1(S)
        S.emit(self.stamp('ln'))
        self.st_conv = (self.extra_c + list(S.vm), list(S.lg), []); self.st_spare = (self.extra_s + list(S.vm), list(S.lg), [])
        S.emit(f'''
        s_cmp_eq_u32 s0, 1
        s_cbranch_scc1 L_spare
        s_branch L_main
        L_tdone2:
        s_mov_b64 exec, -1
        s_cmp_eq_u32 s0, 1
        s_cbranch_scc1 L_sp_t2
        s_branch L_cv_t2
        L_exit:
        s_endpgm
        ''')
    def mod_dma(self, su, scol='s71', lbase=0, tag='moddma'):
        o = L(f'''
        s_lshr_b32 s58, {su}, 1
        s_mul_hi_u32 s59, s58, {(2**32 + 9)//10}
        s_mul_i32 {scol}, s59, 10
        s_sub_u32 s58, s58, {scol}
        s_lshl_b32 s59, s59, 2
        s_lshr_b32 s59, 0x534201, s59
        s_and_b32 s59, s59, 15
        s_mul_i32 {scol}, s59, 640
        s_lshl_b32 s58, s58, 6
        s_add_u32 {scol}, {scol}, s58
        s_and_b32 s58, {su}, 1
        s_mul_i32 s58, s58, {320*7680}
        s_mul_i32 s59, s3, {80*7680}
        s_add_u32 s72, s58, s59
        s_lshl_b32 s58, {scol}, 1
        s_add_u32 s72, s72, s58
        s_mul_i32 s73, s3, 10240
        ''')
        items = []
        for d in range(10):
            it = L(f's_add_u32 m0, s73, {lbase + 1024*d}')
            it += L('s_nop 0') if d == 0 else L(f's_add_u32 s72, s72, {8*7680}')
            it += L(f'buffer_load_dwordx4 v{110+(d&1)}, {sWM}, s72 offen nt lds', tag=tag)
            items.append(it)
        return o, items
    def common_consts(self):
        return L(f'''
        v_lshrrev_b32 v112, 4, v2
        v_bfe_u32 v113, v2, 2, 2
        v_lshlrev_b32 v114, 10, v112
        v_lshl_add_u32 v114, v113, 7, v114
        v_and_b32 v112, 1, v112
        v_lshrrev_b32 v113, 1, v113
        v_lshl_or_b32 v112, v112, 1, v113
        v_lshl_add_u32 v114, v112, 5, v114
        v_and_b32 v112, 3, v2
        v_lshl_add_u32 v112, v112, 3, v114
        v_add_u32 v112, s66, v112
        v_xor_b32 v113, 32, v112
        v_xor_b32 v114, 64, v112
        v_xor_b32 v115, 96, v112
        v_mov_b32 v31, {OOB}
        s_mul_i32 s58, s3, {2*FLA_REP}
        s_mul_i32 s59, s2, {FS}
        s_add_u32 s58, s58, s59
        s_add_u32 s58, s58, {WS_FLA}
        v_mov_b32 v127, v31
        s_add_u32 s59, s58, {FLA_REP}
        v_writelane_b32 v127, s58, 0
        v_writelane_b32 v127, s59, 1
        v_writelane_b32 v31, 0, 0
        s_mul_i32 s1, {sXC}, {FLA_REP}
        s_add_u32 s1, s1, {WS_FLA}
        v_mul_u32_u24 v28, {FS}, v0
        v_add_u32 v28, s1, v28
        ''')
    def late_consts(self):
        return L(f'''
        s_mov_b32 {sBUD}, {BUD}
        s_and_b32 s58, {sXC}, 3
        s_lshl_b32 s58, s58, 2
        s_and_b32 s59, {sJ}, 3
        s_add_u32 {sSIG}, s58, s59
        s_lshr_b32 s58, {sXC}, 2
        s_lshl_b32 s58, s58, 3
        s_lshr_b32 s59, {sJ}, 2
        s_add_u32 {sR}, s58, s59
        s_mul_i32 {sN}, s67, 1664525
        s_add_u32 {sN}, {sN}, 1013904223
        v_mov_b32 v1, {sN}
        s_lshl_b32 s59, s68, 16
        s_and_b32 s68, s68, 0xffff0000
        s_lshl_b32 s67, s69, 16
        s_and_b32 s69, s69, 0xffff0000
        s_and_b32 s58, {sCH}, 1
        s_cselect_b32 s68, s68, s59
        s_cselect_b32 s69, s69, s67
        v_mov_b32 v226, s68
        v_mul_f32 v226, 0x3fb8aa3b, v226
        v_exp_f32 v226, v226
        v_mov_b32 v245, 0
        v_writelane_b32 v245, s69, 0
        v_cvt_pk_bf16_f32 v226, 0, v226
        v_mul_f32 v220, 0x3fb8aa3b, v226
        v_mul_f32 v223, 0.15915494, v226
        v_mul_f32 v221, 0x41000000, v220
        v_mul_f32 v224, 0x41000000, v223
        v_mul_f32 v222, 0x43800000, v220
        v_mul_f32 v225, 0x43800000, v223
        ''')
    def ln_w1(self, S):
        S.emit(f'''
        v_lshrrev_b32 v120, 5, v2
        v_and_b32 v121, 31, v2
        v_mul_u32_u24 v120, 1280, v120
        v_add_u32 v120, s61, v120
        v_lshl_add_u32 v122, v121, 3, v120
        v_lshl_add_u32 v120, v121, 4, v120
        v_bfe_u32 v121, v2, 2, 2
        v_mul_u32_u24 v121, 1280, v121
        v_lshrrev_b32 v123, 4, v2
        v_lshl_add_u32 v121, v123, 5, v121
        v_and_b32 v123, 3, v2
        v_lshl_add_u32 v121, v123, 3, v121
        s_mul_i32 s58, s3, 320
        s_add_u32 s58, s58, {L_LN}
        v_add_u32 v121, s58, v121
        v_lshrrev_b32 v124, 2, v2
        v_lshlrev_b32 v124, 14, v124
        v_lshl_add_u32 v124, v123, 4, v124
        v_mov_b32 v125, {OOB}
        v_mov_b32 v126, v125
        v_cmp_gt_u32 vcc, 32, v2
        s_lshl_b32 s58, s3, 12
        s_lshl_b32 s59, s2, 4
        s_add_u32 s58, s58, s59
        s_add_u32 s58, s58, {WS_STAT}
        v_cndmask_b32 v125, v125, v124, vcc
        v_writelane_b32 v126, s58, 31
        s_mul_i32 s60, s62, 160
        s_add_u32 s60, s60, s63
        s_lshl_b32 s60, s60, 10
        s_add_u32 s60, s60, {WS_W1P}
        ''')
        S.emit(self.late_consts())
        S.emit(f'''
        s_mul_i32 s58, s3, {40*16384}
        s_lshl_b32 s59, s2, 6
        s_add_u32 s58, s58, s59
        s_add_u32 s58, s58, {WS_XT}
        s_mov_b32 s59, 0x3f803f80
        ''')
        S.emit(self.stamp('_preln'))
        nc, ns = len(self.extra_c), len(self.extra_s)
        S.out += L(f's_waitcnt vmcnt({max(nc, ns)})\ns_cmp_eq_u32 s0, {0 if nc > ns else 1}\ns_cbranch_scc1 L_lnok\ns_waitcnt vmcnt({min(nc, ns)})\nL_lnok:')
        S.emit(self.stamp('_lndma'))
        S.emit('''
        ds_read_b128 v[32:35], v120
        ds_read_b128 v[36:39], v120 offset:512
        ds_read_b64 v[40:41], v122 offset:1024
        s_barrier
        ''')
        for p in range(3):
            S.emit(f'ds_read_b64_tr_b16 v[{44+4*p}:{45+4*p}], v121 offset:{128*p}\nds_read_b64_tr_b16 v[{46+4*p}:{47+4*p}], v121 offset:{128*p+5120}')
        S.emit('v_dot2_f32_bf16 v116, v32, s59, 0\nv_dot2_f32_bf16 v117, v32, v32, 0')
        for r in range(33, 36): S.emit(f'v_dot2_f32_bf16 v116, v{r}, s59, v116\nv_dot2_f32_bf16 v117, v{r}, v{r}, v117')
        for p in range(3):
            S.emit(L(f'buffer_store_dwordx4 v[{44+4*p}:{47+4*p}], v{124 if p < 2 else 125}, {sWS}, s58 offen sc1', tag='pa'))
            if p < 2: S.emit(f's_add_u32 s58, s58, {16*16384}')
        for r in range(36, 42): S.emit(f'v_dot2_f32_bf16 v116, v{r}, s59, v116\nv_dot2_f32_bf16 v117, v{r}, v{r}, v117')
        for k in (8, 4, 2, 1):
            S.emit(f'v_add_f32_dpp v116, v116, v116 row_ror:{k} row_mask:0xf bank_mask:0xf\nv_add_f32_dpp v117, v117, v117 row_ror:{k} row_mask:0xf bank_mask:0xf')
        S.emit('v_add_f32_dpp v116, v116, v116 row_bcast:15 row_mask:0xa bank_mask:0xf\nv_add_f32_dpp v117, v117, v117 row_bcast:15 row_mask:0xa bank_mask:0xf')
        S.emit(self.finish_stats('v116', 'v117', 'v118'))
        S.emit(f'''
        v_and_b32 v116, 0xffff0000, v118
        v_rcp_f32 v116, v116
        v_lshlrev_b32 v118, 16, v118
        v_mul_f32 v118, -v118, v116
        v_permlane32_swap_b32 v116, v117
        v_permlane32_swap_b32 v118, v119
        ''')
        S.emit(L(f'buffer_store_dwordx4 v[116:119], v126, {sWS}, 0 offen sc1', tag='pa'))
    def finish_stats(self, s1, s2, out):
        return L(f'''
        v_mul_f32 {s1}, 0x3acccccd, {s1}
        v_mul_f32 {s2}, 0x3acccccd, {s2}
        v_fma_f32 {s2}, -{s1}, {s1}, {s2}
        v_max_f32 {s2}, 0, {s2}
        v_cvt_pk_bf16_f32 {s2}, 0, {s2}
        v_add_f32 {s2}, 0x3727c5ac, {s2}
        v_cvt_pk_bf16_f32 {s2}, 0, {s2}
        v_sqrt_f32 {s2}, {s2}
        v_cvt_pk_bf16_f32 {out}, {s1}, {s2}
        ''')
    def prep_task(self, dmatag, sdst, stride, sttag, tmp, loff=0):
        o = []
        for t in range(4):
            o += L(f'ds_read_b64_tr_b16 v[{tmp+4*t}:{tmp+4*t+1}], v{112+t} offset:{loff}\nds_read_b64_tr_b16 v[{tmp+4*t+2}:{tmp+4*t+3}], v{112+t} offset:{loff+512}', waitfor=[dmatag])
        for t in range(4):
            o += L(f'buffer_store_dwordx4 v[{tmp+4*t}:{tmp+4*t+3}], v3, {sWS}, {sdst} offen sc1', tag=sttag)
            if t < 3: o += L(f's_add_u32 {sdst}, {sdst}, {stride}')
        return o
    def w1_dma(self):
        o = []
        for d in range(4):
            o += L(f's_add_u32 m0, s66, {1024*d}\ns_nop 0')
            o += L(f'buffer_load_dwordx4 v{107+(d&1)}, {sWU if d&1 else sWG}, s{64+(d>>1)} offen nt lds', tag='w1dma')
        return o
    def w1_task(self): return self.prep_task('w1dma', 's60', 40960, 'pw', tmp=32)
    def flagW(self):
        return L(f's_mov_b32 s63, {FLW_OFF}') + self.barrier(['pw']) + L(f'buffer_store_dword v1, v127, {sWS}, s63 offen sc1')
    def pollW(self): return L(f'buffer_load_dword v95, v94, {sWS}, 0 offen sc1')
    def flagA(self):
        return self.barrier(['pa']) + L(f'buffer_store_dword v1, v127, {sWS}, 0 offen sc1')
    def g_setup(self):
        return L(f'''
        s_lshr_b32 s58, s3, 1
        s_mul_i32 s58, s58, 3
        s_mul_i32 s59, {sSIG}, 6
        s_add_u32 s58, s58, s59
        s_and_b32 s59, s3, 1
        s_lshr_b32 s60, s58, 2
        s_add_u32 s61, s58, 2
        s_lshr_b32 s61, s61, 2
        s_sub_u32 s61, s61, s60
        s_mul_i32 s61, s61, 10
        s_mul_i32 s60, s60, 10
        s_mul_i32 s62, s59, 5
        s_add_u32 s60, s60, s62
        v_and_b32 v94, 7, v2
        v_min_u32 v94, 4, v94
        v_bfe_u32 v5, v2, 3, 1
        v_mad_u32_u24 v94, v5, s61, v94
        v_add_u32 v94, s60, v94
        v_mul_u32_u24 v94, {FS}, v94
        s_add_u32 s60, s1, {FLW_OFF}
        v_add_u32 v94, s60, v94
        s_lshl_b32 s60, s59, 7
        v_xor_b32 v5, s60, v3
        s_mul_i32 s58, s58, 40960
        s_mul_i32 s60, s59, 20480
        s_add_u32 s58, s58, s60
        s_add_u32 s58, s58, {WS_W1P}
        s_mul_i32 s60, s59, 40960
        s_add_u32 s66, s58, s60
        s_sub_u32 s64, s58, s60
        s_add_u32 s64, s64, 40960
        s_add_u32 s65, s58, 81920
        s_mul_i32 s61, s3, 10240
        s_mul_i32 s60, {sR}, 40960
        s_add_u32 s60, s60, s61
        s_add_u32 s60, s60, {WS_X1S}
        ''')
    def tile_consts(self):
        return L(f'''
        v_bfe_u32 v4, v2, 3, 1
        v_lshrrev_b32 v6, 5, v2
        v_lshl_or_b32 v4, v6, 1, v4
        v_lshlrev_b32 v4, 4, v4
        v_xor_b32 v6, v4, v3
        s_mul_i32 s58, s3, 40
        s_mul_i32 s59, {sXC}, 160
        s_add_u32 s58, s58, s59
        v_min_u32 v4, 39, v2
        v_add_u32 v4, s58, v4
        v_mul_u32_u24 v4, {FS}, v4
        v_add_u32 v4, {WS_FLC}, v4
        ''')
    def w1_loads(self, k0=0, k1=60, first=None):
        ks = list(range(k0, k1))
        if first is not None: ks = [k for k in ks if k % 3 == first] + [k for k in ks if k % 3 != first]
        items = []; cur = {}
        for k in ks:
            s, role = divmod(k, 3); a = 4*k
            if cur.get(role) != s//4: items.append(L(f's_add_u32 s{67+role}, s{64+role}, {4096*(s//4)}')); cur[role] = s//4
            items.append(L(f'buffer_load_dwordx4 a[{a}:{a+3}], {"v5" if role == 1 else "v3"}, {sWS}, s{67+role} offen offset:{1024*(s%4)} sc1'))
        return items
    def w1_touch(self):
        if not self.o('w1touch', 1): return []
        return L(f'''
        s_and_b32 s58, {sR}, 7
        s_lshl_b32 s58, s58, 2
        s_add_u32 s58, s58, s3
        s_mul_i32 s58, s58, 7680
        s_mul_i32 s59, {sSIG}, 245760
        s_add_u32 s58, s58, s59
        s_add_u32 s58, s58, {WS_W1P}
        v_min_u32 v95, 59, v2
        v_lshlrev_b32 v95, 7, v95
        buffer_load_dword v95, v95, {sWS}, s58 offen sc1
        ''')
    def tile_dma(self, j):
        items = []
        for i in range(10):
            it = []
            if i % 4 == 0:
                it += L(f's_add_u32 m0, s61, {L_SLOT[j] + 1024*i}\ns_add_u32 s62, s60, {j*16*40960 + 1024*i}')
            it += L(f'buffer_load_dwordx4 v6, {sWS}, s62 offen offset:{1024*(i%4)} sc1 lds', tag=f'tile{j}')
            items.append(it)
        return items
    def pollC(self, stage, dst):
        return L(f's_mov_b32 s63, {stage*FLC_STG}\nbuffer_load_dword {dst}, v4, {sWS}, s63 offen sc1')
    def ic2_loads(self):
        return [L(f's_mov_b32 s63, {WS_IC2}\nbuffer_load_dwordx4 v[20:23], v3, {sWS}, s63 offen sc1'),
                L(f'buffer_load_dwordx4 v[24:27], v3, {sWS}, s63 offen offset:1024 sc1'),
                L(f'v_lshlrev_b32 v28, 3, v2\nbuffer_load_dwordx2 v[28:29], v28, {sWS}, s63 offen offset:2048 sc1')]
    def cmul(self, out, z, e, t):
        return L(f'''
        v_pk_mul_f32 v[{t}:{t+1}], v[{z}:{z+1}], v[{e}:{e+1}] op_sel:[0,0] op_sel_hi:[1,0]
        v_pk_fma_f32 v[{out}:{out+1}], v[{z}:{z+1}], v[{e}:{e+1}], v[{t}:{t+1}] op_sel:[1,1,0] op_sel_hi:[0,1,1] neg_lo:[1,0,0]
        ''')
    ALPHA = {}
    for _h in range(2):
        for _r in range(5): ALPHA[(_h, _r)] = 4*_h + _r
        for _k in range(3): ALPHA[(_h, 5+_k)] = 256 + 4*_h + 2*_k; ALPHA[(_h, 8+_k)] = 512 + 256*_h + 4*_k
        ALPHA[(_h, 11)] = 1032 + 256*_h; ALPHA[(_h, 12)] = 1544 + 256*_h
    def alpha_rows(self):
        di = lambda h, r: 8*(r >> 2) + 4*h + (r & 3)
        row = {}; fixes = {}
        for (h, r), al in sorted(self.ALPHA.items(), key=lambda x: di(*x[0])):
            i = di(h, r)
            if al in row: fixes[i] = row[al]
            else: row[al] = i
        free = sorted(fixes.keys())
        for al, i in list(row.items()):
            if i >= 24: row[al] = free.pop(0); fixes[i] = row[al]
        assert max(row.values()) < 24 and len(set(row.values())) == 24
        return row, fixes
    def kgen_setup(self, slot):
        P = 200; o = L('\n'.join(f'v_perm_b32 v{P+k}, v{207+2*k}, v{206+2*k}, v{194+slot}' for k in range(6)))
        for k in range(3): o += L(f'v_mul_f32 v{66+k}, v{P}, v{220+k}\nv_mul_f32 v{61+2*k}, v{P+1}, v{223+k}')
        for k in range(3): o += L(f'v_exp_f32 v{66+k}, v{66+k}\nv_fract_f32 v{61+2*k}, v{61+2*k}')
        for k in range(3): o += L(f'v_cos_f32 v{60+2*k}, v{61+2*k}\nv_sin_f32 v{61+2*k}, v{61+2*k}')
        for k in range(3): o += L(f'v_mul_f32 v{60+2*k}, v{60+2*k}, v{66+k}\nv_mul_f32 v{61+2*k}, v{61+2*k}, v{66+k}')
        o += L(f'v_mul_f32 v{P+2}, v{P+2}, v226\nv_mul_f32 v{P+3}, v{P+3}, v226')
        return o
    def kgen_chains(self, slot):
        P = 200; E1, E8, E256 = 60, 62, 64; T = 70
        row, _ = self.alpha_rows()
        U = lambda k: 76 + 2*k
        pts = []
        pts.append((self.cmul(U(0), P+4, P+2, T), U(0), 32+row[0], True))
        for k in range(1, 9): pts.append((self.cmul(U(k), U(k-1), E1, T), U(k), 32+row[k], True))
        for e in (0, 2, 4, 6, 8): pts.append((self.cmul(U(e), U(e), E256, T), U(e), 32+row[256+e], True))
        for b in (512, 768):
            for e in (0, 4, 8): pts.append((self.cmul(U(e), U(e), E256, T), U(e), 32+row[b+e], True))
        for b in range(4): pts.append((self.cmul(U(8), U(8), E256, T), U(8), 32+row[1032+256*b], True))
        pts.append(([], E8, 1, False))
        pts.append((self.cmul(74, E8, E8, T), 74, 2, False))
        for j in range(3, 32): pts.append((self.cmul(74, 74, E8, T), 74, j, False))
        B = self.o('kbatch', 11); out = []
        for i in range(0, len(pts), B):
            o = []; w = []
            for k, (c, z, r, neg) in enumerate(pts[i:i+B]):
                o += c + L(f'v_cvt_pk_bf16_f32 v{230+k}, v{z}, {"-" if neg else ""}v{z+1}')
                w += L(f'ds_write_addtid_b32 v{230+k} offset:{r*TP}')
            out.append(o + w)
        ard = [L(f'ds_read_b128 v[{128+8*k}:{131+8*k}], v227 offset:{32*k}')[0] for k in range(8)]
        first = -(-24 // B) - 1
        out[first] += ard[:3]; out[first+1] += ard[3:]
        return out
    def kgen_mfma(self, slot, fillers):
        o = []
        for k in range(8):
            o += L(f'ds_read_b128 v[{132+8*k}:{135+8*k}], v228 offset:{32*k}')
        bb = [Ins(f'v_mfma_f32_32x32x16_bf16 v[96:111], v[{128+8*k}:{131+8*k}], v[{132+8*k}:{135+8*k}], {"0" if slot == 0 and k == 0 else "v[96:111]"}') for k in range(8)]
        return o + interleave(bb, [Fill(fillers, 0, 6, ahead=8)])
    def conv_consts(self, S):
        row, fixes = self.alpha_rows()
        S.emit(f'''
        v_and_b32 v228, 31, v2
        v_min_u32 v227, 23, v228
        s_lshl_b32 s70, s3, 14
        s_mul_i32 s71, s3, {KC_PITCH}
        s_add_u32 s71, s71, {L_KC}
        s_mul_i32 s72, s3, {H_PITCH}
        s_add_u32 s72, s72, {L_H}
        ''')
        for i, rr in fixes.items():
            S.emit(f'v_writelane_b32 v227, {rr}, {i}\nv_writelane_b32 v227, {rr}, {i+32}')
        S.emit(f'''
        v_lshrrev_b32 v229, 5, v2
        v_lshlrev_b32 v243, 4, v228
        v_lshl_add_u32 v242, v229, 3, v243
        v_sub_u32 v242, s71, v242
        v_lshl_add_u32 v243, v229, 9, v243
        v_sub_u32 v243, s71, v243
        v_lshlrev_b32 v244, 1, v2
        v_sub_u32 v244, s71, v244
        v_mov_b32 v246, s71
        v_lshl_add_u32 v229, v229, 4, s70
        s_movk_i32 s58, {TP}
        v_add_u32 v227, 32, v227
        v_mad_u32_u24 v227, v227, s58, v229
        v_mad_u32_u24 v228, v228, s58, v229
        s_mov_b32 m0, s70
        v_mov_b32 v72, 0x00003f80
        v_mov_b32 v32, 0
        v_mov_b32 v33, 0
        v_lshl_add_u32 v34, v2, 3, s72
        v_and_b32 v7, 15, v2
        v_lshl_add_u32 v35, v7, 2, s71
        ds_write_addtid_b32 v72
        ds_write_b64 v34, v[32:33]
        ds_write_b32 v35, v32
        ds_write_b32 v35, v32 offset:{2112}
        ds_write_b32 v35, v32 offset:{KC1}
        ds_write_b32 v35, v32 offset:{KC1 + 2116}
        ds_write_b32 v35, v32 offset:{KCD + 256}
        v_bfe_u32 v247, v0, 2, 2
        v_lshlrev_b32 v247, 4, v247
        v_lshl_add_u32 v247, v0, 6, v247
        v_add_u32 v247, {L_X}, v247
        v_xor_b32 v248, 16, v247
        v_xor_b32 v249, 32, v247
        v_xor_b32 v250, 48, v247
        v_lshlrev_b32 v251, 4, v0
        v_add_u32 v192, {WS_STAT}, v251
        v_add_u32 v251, {L_H + 512}, v251
        v_lshrrev_b32 v8, 4, v2
        v_lshlrev_b32 v193, 4, v8
        v_lshlrev_b32 v9, 5, v7
        v_add3_u32 v9, v9, v193, s72
        v_and_b32 v10, 1, v7
        v_mul_u32_u24 v10, {KC1}, v10
        v_add3_u32 v10, v10, v193, s71
        v_xor_b32 v193, v193, v3
        v_lshrrev_b32 v11, 1, v7
        v_lshlrev_b32 v11, 2, v11
        v_sub_u32 v10, v10, v11
        v_add_u32 v11, {P2 - 32 - 2048}, v10
        v_add_u32 v12, {P2 - 32 - 1024 - 960}, v10
        v_add_u32 v10, {P2 - 32 - 960}, v10
        v_bfe_u32 v13, v7, 1, 2
        v_xor_b32 v13, s3, v13
        v_lshlrev_b32 v13, 4, v13
        v_lshl_add_u32 v13, v7, 7, v13
        v_and_b32 v14, 1, v8
        v_lshl_add_u32 v13, v14, 6, v13
        v_add_u32 v13, {L_X}, v13
        v_lshlrev_b32 v15, 3, v14
        v_lshrrev_b32 v29, 2, v7
        v_lshl_add_u32 v15, v29, 1, v15
        v_lshrrev_b32 v30, 1, v8
        v_add_u32 v15, v15, v30
        v_mul_u32_u24 v15, 40960, v15
        v_and_b32 v30, 3, v7
        v_lshl_add_u32 v15, v30, 4, v15
        s_lshl_b32 s58, {sCH}, 6
        s_add_u32 s58, s58, {WS_X1S}
        v_add_u32 v15, s58, v15
        v_lshrrev_b32 v16, 1, v29
        v_and_b32 v16, v16, v29
        v_add_u32 v29, v29, v16
        v_mul_u32_u24 v29, 640, v29
        v_mul_u32_u24 v14, 3840, v14
        v_add3_u32 v29, v29, v14, v30
        s_lshl_b32 s58, {sCB4}, 5
        s_add_u32 s58, s58, {WS_MODP}
        v_lshl_add_u32 v29, v29, 3, s58
        v_lshlrev_b32 v14, 2, v8
        v_sub_u32 v14, v14, v7
        v_lshl_add_u32 v14, v14, 2, s71
        v_add_u32 v14, {KCD + 60}, v14
        s_mul_i32 s58, s3, {2*FLC_REP}
        s_mul_i32 s59, {sCB4}, {FS}
        s_add_u32 s58, s58, s59
        s_add_u32 s58, s58, {WS_FLC}
        s_add_u32 s59, s58, {FLC_REP}
        v_mov_b32 v30, {OOB}
        v_writelane_b32 v30, s58, 0
        v_writelane_b32 v30, s59, 1
        ''')
        S.emit(f'''
        v_lshlrev_b32 v8, 3, v8
        v_lshlrev_b32 v32, v7, 1
        v_lshrrev_b32 v32, v8, v32
        s_movk_i32 s58, 0x1ff0
        v_lshlrev_b32 v33, v7, s58
        v_lshrrev_b32 v33, v8, v33
        s_movk_i32 s58, 0x0fe0
        v_lshlrev_b32 v34, v7, s58
        v_lshrrev_b32 v34, v8, v34
        s_mov_b32 s58, 0xffff
        s_mov_b32 s59, 0x3f803f80
        ''')
        for dw in range(4):
            for dst, m in ((16, 32), (20, 33), (24, 34)):
                S.emit(f'''
                v_bfe_i32 v36, v{m}, {2*dw}, 1
                v_bfe_i32 v37, v{m}, {2*dw+1}, 1
                v_bfi_b32 v{dst+dw}, s58, v36, v37
                ''')
                if dst != 16: S.emit(f'v_and_b32 v{dst+dw}, s59, v{dst+dw}')
        S.emit(self.tile_consts())
        S.emit(f'''
        s_and_b32 s58, {sCH}, 63
        s_lshr_b32 s59, {sCH}, 6
        s_lshl_b32 s73, s58, 2
        s_and_b32 s60, s59, 3
        s_add_u32 s73, s73, s60
        s_and_b32 s60, s59, 4
        s_lshl_b32 s60, s60, 6
        s_add_u32 s73, s73, s60
        s_lshl_b32 s58, s58, 1
        s_add_u32 s58, s58, s59
        s_add_u32 s58, s58, 504
        s_cmp_ge_u32 s59, 8
        s_cselect_b32 s73, s58, s73
        s_lshl_b32 s73, s73, 2
        s_add_u32 s73, s73, {WS_IC2}
        v_and_b32 v194, 1, v2
        v_mul_u32_u24 v194, 0x0202, v194
        v_lshlrev_b32 v194, 16, v194
        v_add_u32 v194, 0x01000c0c, v194
        v_add_u32 v195, 0x02020000, v194
        v_add_u32 v196, 0x02020000, v195
        ''')
    def conv_path(self, S):
        S.set_state(self.st_conv)
        S.emit('L_main:\ns_mov_b32 m0, s70')
        pollA = L(f'buffer_load_dword v50, v28, {sWS}, 0 offen sc1')
        modld = L(f'buffer_load_dwordx2 v[48:49], v29, {sWS}, 0 offen sc1')
        pollW = self.pollW()
        xld = (L('s_mov_b32 m0, s43') + L('\n'.join(f'buffer_load_dwordx4 v[{32+4*g}:{35+4*g}], v192, {sWS}, {so} offen sc1' for g, so in enumerate(('0', 's44', 's45', 's49'))))
               + L('\n'.join(f'buffer_load_dwordx4 v193, {sWS}, s42 offen offset:{1024*i} sc1 lds' for i in range(4)), tag='xdma') + L('s_mov_b32 m0, s70'))
        set0 = L(f'''
        s_lshl_b32 s42, {sCB4}, 14
        s_lshl_b32 s43, s3, 12
        s_add_u32 s42, s42, s43
        s_add_u32 s42, s42, {WS_XT}
        s_add_u32 s43, s43, {L_X}
        s_movk_i32 s44, 0x1000
        s_movk_i32 s45, 0x2000
        s_movk_i32 s49, 0x3000
        s_mov_b32 s46, {16*40960}
        s_mov_b32 s47, {32*40960}
        s_mov_b32 s48, {48*40960}
        ''')
        modv = self.stamp('_mod0') + self.check(modld, ['v49'], None) + self.stamp('_modok') + L(f'''
        v_mov_b32 v49, v48
        v_bfe_u32 v52, v2, 2, 1
        v_cvt_f32_u32 v52, v52
        v_permlane16_swap_b32 v48, v49
        v_add_f32 v48, v48, v49
        v_cvt_pk_bf16_f32 v48, 0, v48
        v_add_f32 v48, v48, v52
        v_cvt_pk_bf16_f32 v48, 0, v48
        s_add_u32 s58, s3, 8
        s_add_u32 s59, s3, 12
        v_readlane_b32 s40, v48, s58
        v_readlane_b32 s41, v48, s59
        ''')
        for c in range(4): modv += L(f'v_readlane_b32 s{32+2*c}, v48, {4+c}\nv_readlane_b32 s{33+2*c}, v48, {c}')
        modv += L(f'''
        s_and_b32 s58, s41, 0x7fffffff
        s_cselect_b32 s41, s41, 0x21800000
        v_mov_b32 v52, s41
        v_mul_f32 v51, s40, v52
        v_rcp_f32 v52, v52
        s_lshr_b32 s58, s41, 16
        s_or_b32 s58, s58, s41
        v_and_b32 v16, s58, v16
        v_and_b32 v17, s58, v17
        v_and_b32 v18, s58, v18
        v_and_b32 v19, s58, v19
        buffer_store_dword v52, v31, {sWS}, s73 offen sc1
        ''')
        segs = []
        for slot in range(3):
            segs += self.kgen_chains(slot)
            segs.append(self.kgen_mfma(slot, [self.kgen_setup(1) + set0, self.kgen_setup(2) + self.g_setup(), modv][slot]) + self.stamp(f'slot{slot}'))
        ns = len(segs)//3
        pos = lambda name, slot, frac: min(len(segs) - 1, int(round(ns*(self.o(name, int(100*(slot + frac)))/100.0))) - 1)
        ev = {}
        def at(p, code): ev.setdefault(p, []).extend(code)
        pfa, pw1, pfw = pos('e_fla', 0, .70), pos('e_w1', 1, 0), pos('e_flw', 1, .84)
        ppa, pca, pmo, ppw = pos('e_pa', 1, .84), pos('e_ca', 2, .5), pos('e_mo', 2, .34), pos('e_pw', 2, .84)
        assert pfa <= pw1 < 2*ns - 1 and pw1 >= pfa and ppw >= 2*ns - 1 and pca >= max(ppa, ns - 1, pw1) and pmo < 3*ns - 1 and pfw >= pw1
        at(pfa, self.stamp('_ch0') + self.flagA() + self.stamp('_fla'))
        at(pw1, self.w1_task())
        at(pfw, self.stamp('_fw0') + self.flagW() + self.stamp('_fw1'))
        at(ppa, pollA); at(pmo, modld)
        at(pca, self.stamp('_a0') + self.check(pollA, ['v50'], None) + self.stamp('_aok') + xld)
        at(ppw, pollW)
        S.emit(self.kgen_setup(0))
        for k, sg in enumerate(segs):
            S.emit(sg); S.emit(ev.get(k, []))
        S.emit(self.touch(4)); S.emit('L_cv_t2:\ns_nop 3')
        S.emit(self.stamp('_t2'))
        S.emit('v_add_f32 v96, v96, v245')
        for r in range(13): S.emit(f'v_mul_f32 v{96+r}, v{96+r}, v51')
        cv = lambda d, a, b: f'v_cvt_pk_bf16_f32 v{d}, v{96+a}, v{96+b}\n'
        S.emit(cv(64, 4, 3) + cv(65, 2, 1) + cv(66, 3, 2) + cv(67, 1, 0) + cv(68, 7, 7) + cv(69, 6, 5) + cv(70, 7, 6) + cv(71, 5, 5) +
               cv(72, 10, 10) + cv(73, 10, 9) + cv(74, 9, 9) + cv(75, 8, 8) + cv(76, 10, 10) + cv(77, 9, 9) + cv(78, 9, 8) + cv(79, 8, 8) +
               cv(80, 11, 12) + cv(82, 10, 10) + cv(83, 10, 10) + f'''
        ds_write_b64 v242, v[64:65] offset:{P2 - 8}
        ds_write_b64 v242, v[66:67] offset:{KC1 + P2 - 4}
        ds_write_b64 v242, v[68:69] offset:{P2 - 8 - 512}
        ds_write_b64 v242, v[70:71] offset:{KC1 + P2 - 4 - 512}
        ds_write_b128 v243, v[72:75] offset:{P2 - 16 - 1024}
        ds_write_b128 v243, v[76:79] offset:{KC1 + P2 - 12 - 1024}
        ds_write_b16 v244, v80 offset:{KCD + 254}
        ds_write_b16_d16_hi v244, v80 offset:{KCD + 254 - 128}
        s_mov_b64 exec, 1
        ds_write_b16_d16_hi v246, v67 offset:{P2}
        s_mov_b32 exec_hi, 0x80000000
        s_mov_b32 exec_lo, 0
        ds_write_b64 v246, v[82:83] offset:56
        ds_write_b16 v246, v82 offset:{KC1 + 58}
        ds_write_b64 v246, v[82:83] offset:{KC1 + 60}
        s_mov_b64 exec, -1
        ''')
        S.emit(self.stamp('kexp'))
        def kread(G, dst):
            if G == 32: a, o = 'v11', 0
            else: a, o = ('v10', 16*(15 - G)) if G < 16 else ('v12', 16*(31 - G))
            return [Ins(f'ds_read2_b32 v[{dst}:{dst+1}], {a} offset0:{o} offset1:{o+1}'), Ins(f'ds_read2_b32 v[{dst+2}:{dst+3}], {a} offset0:{o+2} offset1:{o+3}')]
        KF = lambda p, r: 128 + 64*(p >> 1) + 8*r + 4*(p & 1)
        kreads = [x for pp in (0, 2) for r in range(8) for p in (pp, pp+1) for x in kread(8*p + r, KF(p, r))]
        npre = self.o('npre', 32); assert npre <= 32
        S.emit(L('\n'.join(f'ds_read_b128 v[{64+4*c}:{67+4*c}], v{247+c}' for c in range(4)), waitfor=['xdma']))
        S.emit(self.stamp('_xin'))
        S.emit(kreads[:npre//4])
        S.emit(self.check(pollW, ['v95'], None))
        S.emit(self.stamp('_wok'))
        n2 = self.o('w1pre', 3); npre_w1 = n2
        S.emit(flat(self.w1_loads(0, n2)))
        for c in range(4):
            x = 64 + 4*c; o = []
            for g in range(4):
                t = 80 + 2*(g & 1); b = 32 + 4*g
                o += L(f'''
                v_lshlrev_b32 v{t}, 16, v{x+g}
                v_and_b32 v{t+1}, 0xffff0000, v{x+g}
                v_pk_fma_f32 v[{t}:{t+1}], v[{t}:{t+1}], v[{b}:{b+1}], v[{b+2}:{b+3}]
                v_pk_fma_f32 v[{t}:{t+1}], v[{t}:{t+1}], s[{32+2*c}:{33+2*c}], s[{32+2*c}:{33+2*c}] op_sel:[0,0,1] op_sel_hi:[1,0,1]
                v_cvt_pk_bf16_f32 v{x+g}, v{t}, v{t+1}
                ''')
            o += L(f'ds_write_b128 v251, v[{x}:{x+3}] offset:{H_PITCH*c}', tag='hw')
            S.emit(o)
            if c < 3:
                S.emit(kreads[(c+1)*npre//4:(c+2)*npre//4])
                n2 = self.o('w1pre2', 1)
                S.emit(flat(self.w1_loads(npre_w1, npre_w1 + n2))); npre_w1 += n2
        S.emit(self.barrier(['hw']))
        S.emit(self.stamp('prep'))
        epoch = [L(f's_or_b32 s58, s2, s3\ns_cselect_b32 s58, {OOB}, 0'), L('v_or_b32 v28, s58, v31'), L(f'buffer_store_dword v1, v28, {sWS}, 0 offen sc1')]
        acc = lambda q: f'v[{96+4*q}:{99+4*q}]'
        seq = []; started = set()
        def mm(q, A, B):
            C = acc(q) if q in started else '0'; started.add(q); seq.append((acc(q), A, B, C))
        def box(u):
            d = 112 + 8*(u & 1)
            seq.append((f'v[{d}:{d+3}]', ('h9', u), 'v[20:23]', '0')); seq.append((f'v[{d+4}:{d+7}]', ('h', 3, 0, u), 'v[24:27]', '0'))
        kf = lambda p, r: f'v[{KF(p, r)}:{KF(p, r)+3}]'
        for r in range(8):
            for q in range(2):
                if r == 7: mm(q, 'v[16:19]', ('x', q))
                for p in range(q + 1): mm(q, kf(p, r), ('h', 0, r, q - p))
        nA = len(seq)
        for r in range(8):
            if r == 3: a1 = len(seq); box(0); box(1)
            if r == 6: a2 = len(seq); box(2); box(3)
            for q in range(2, 4):
                if r == 7: mm(q, 'v[16:19]', ('x', q))
                for p in range(q + 1): mm(q, kf(p, r), ('h', 1, r, q - p))
        nB = len(seq)
        for r in range(8):
            for q in range(4, 8):
                if r == 0: mm(q, ('k32',), ('h', 2, 0, q - 4))
                if r == 2: mm(q, 'v[16:19]', ('x', q))
                for p in range(4): mm(q, kf(p, r), ('h', 2, r, q - p))
                if r == 1:
                    for u in range(q - 3): mm(q, f'v[{40+4*u}:{43+4*u}]', f'a[{240+4*(q-u-4)}:{243+4*(q-u-4)}]')
        def fragload(f, dst):
            if f[0] == 'h': return [Ins(f'ds_read_b128 v[{dst}:{dst+3}], v9 offset:{512 + 512*f[3] - 64*f[2] - 32}')]
            if f[0] == 'h9': return [Ins(f'ds_read_b128 v[{dst}:{dst+3}], v9 offset:{512 + 512*f[1] - 48}')]
            if f[0] == 'x': return [Ins(f'ds_read_b128 v[{dst}:{dst+3}], v13 offset:{2048*f[1]}')]
            if f[0] == 'k32': return kread(32, dst)
        bb, pinned, head = alloc_frags(seq, 'v_mfma_f32_16x16x32_bf16', list(range(56, 96, 4)), fragload, lead=self.o('lead', 7))
        S.emit(head)
        def cvts(us):
            o = []
            for u in us:
                d = 112 + 8*(u & 1)
                o += L('\n'.join(f'v_cvt_pk_bf16_f32 v{40+4*u+r}, v{d+r}, v{d+4+r}' for r in range(4)))
            return o
        farld = []
        for dl in range(4):
            o = 16*(3 - dl)
            farld += [Ins(f'ds_read2_b32 a[{240+4*dl}:{241+4*dl}], v14 offset0:{o} offset1:{o+1}'), Ins(f'ds_read2_b32 a[{242+4*dl}:{243+4*dl}], v14 offset0:{o+2} offset1:{o+3}')]
        N = len(bb)
        dr = self.o('drain', 55)
        gfA = nA + 10 + dr; gfB = nB + 10 + dr
        g_poll = self.o('g_poll', 155); g_chk = self.o('g_chk', 200)
        nA1 = self.o('w1a', 48); nA2 = self.o('w1b', 54); self.nw1 = self.o('nw1', 57)
        pc = self.pollC(0, 'v128')
        fills = [
            Fill(kreads[npre:], 0, 70, prio=3, hard=True),
            Fill(cvts((0, 1)), a1 + 8, a1 + 15, prio=2, hard=True),
            Fill(cvts((2, 3)), a2 + 8, a2 + 15, prio=2, hard=True),
            Fill(farld, nB, nB + 14, prio=2, hard=True),
            Fill(self.epi(0, '0', 'pA'), nA + 3, nA + 10, prio=3),
            Fill(self.epi(1, 's46', 'pB'), nB + 3, nB + 10, prio=3),
            Fill(self.w1_loads(npre_w1, nA1), 2, g_poll - 1, prio=1),
            Fill(self.w1_loads(nA1, nA2), g_poll + 3, g_chk - 4, prio=1),
            Fill([self.stamp('_fa0') + self.flagC(0, 'pA') + self.stamp('_fa1')], gfA, gfA, prio=4, hard=True),
            Fill([self.stamp('_fb0') + self.flagC(1, 'pB') + self.stamp('_fb1')], gfB, gfB, prio=4, hard=True),
            Fill([pc], g_poll, g_poll, prio=4, hard=True),
            Fill(epoch, 110, 116, prio=1),
            Fill([self.stamp('_chk0') + self.check(pc, ['v128'], None) + self.stamp('_chk1')] + self.tile_dma(0) + [self.barrier()] + self.ic2_loads()
                 + self.w1_loads(nA2, self.nw1), g_chk, N - 4, prio=4),
        ]
        if isinstance(self.stamps, list):
            for nm in self.stamps:
                if nm.startswith('_C'): fills.append(Fill([self.stamp(nm)], int(nm[2:]), int(nm[2:]), prio=9, hard=True))
        S.emit(interleave(bb, fills, pinned, report='conv'))
        S.emit(self.stamp('conv'))
    def flagC(self, stage, tag):
        return L(f's_mov_b32 s63, {stage*FLC_STG}') + self.barrier([tag]) + L(f'buffer_store_dword v1, v30, {sWS}, s63 offen sc1')
    def epi(self, j, soff, tag):
        t = 32 + 4*(j & 1); qa, qb = 96 + 8*j, 100 + 8*j
        return L(f'''
        v_cvt_pk_bf16_f32 v{t}, v{qa}, v{qa+1}
        v_cvt_pk_bf16_f32 v{t+2}, v{qb}, v{qb+1}
        v_cvt_pk_bf16_f32 v{t+1}, v{qa+2}, v{qa+3}
        v_cvt_pk_bf16_f32 v{t+3}, v{qb+2}, v{qb+3}
        v_permlane16_swap_b32 v{t}, v{t+2}
        v_permlane16_swap_b32 v{t+1}, v{t+3}
        ''') + L(f'buffer_store_dwordx4 v[{t}:{t+3}], v15, {sWS}, {soff} offen sc1', tag=tag)
    def mod_unit(self, S, su, scol='s71', va='v57', tag='moddma'):
        S.emit(f's_and_b32 s58, {su}, 1\ns_mul_i32 s58, s58, 640\nv_add_u32 v58, s58, v51')
        S.wait_tags([tag]); S.emit('s_waitcnt lgkmcnt(0)\ns_barrier')
        for b in range(10):
            S.emit(f'''
            ds_read_b64_tr_b16 v[{128+8*b}:{129+8*b}], {va} offset:{4096*b}
            ds_read_b64_tr_b16 v[{130+8*b}:{131+8*b}], {va} offset:{4096*b+512}
            ds_read_b128 v[{132+8*b}:{135+8*b}], v58 offset:{64*b}
            ''')
        for b in range(10):
            S.emit(f'v_mfma_f32_16x16x32_bf16 v[52:55], v[{132+8*b}:{135+8*b}], v[{128+8*b}:{131+8*b}], {"0" if b == 0 else "v[52:55]"}')
        S.emit(f'''
        s_and_b32 s58, {su}, 1
        s_mul_i32 s58, s58, 3840
        s_add_u32 s58, s58, {scol}
        s_lshl_b32 s59, s3, 4
        s_add_u32 s58, s58, s59
        s_lshl_b32 s58, s58, 3
        s_add_u32 s58, s58, {WS_MODP}
        v_mov_b32 v53, {sN}
        buffer_store_dwordx2 v[52:53], v59, {sWS}, s58 offen sc1
        ''')
    def w2_dma(self, sT):
        o = L(f'''
        s_mul_hi_u32 s40, {sT}, {(2**32 + 9)//10}
        s_mul_i32 s58, s40, 10
        s_sub_u32 s41, {sT}, s58
        s_lshl_b32 s40, s40, 2
        s_add_u32 s40, s40, s3
        s_mul_hi_u32 s58, s40, {(2**32 + 2)//3}
        s_mul_i32 s59, s58, 3
        s_sub_u32 s59, s40, s59
        s_mul_i32 s58, s58, 96
        s_mul_i32 s42, s59, 48
        s_cmp_eq_u32 s59, 2
        s_cselect_b32 s42, 32, s42
        s_cselect_b32 s43, 8, 4
        s_cselect_b32 s44, 48, 16
        s_cselect_b32 s45, 0, 4
        s_mul_i32 s43, s43, 1280
        s_mul_i32 s44, s44, 1280
        s_add_u32 s58, s58, s42
        s_mul_i32 s58, s58, 1280
        s_lshl_b32 s59, s41, 7
        s_add_u32 s42, s58, s59
        s_add_u32 s43, s42, s43
        v_and_b32 v12, s45, v104
        v_add_u32 v12, v12, v104
        v_mul_u32_u24 v12, 1280, v12
        v_add_u32 v13, v12, v106
        v_add_u32 v12, v12, v105
        ''')
        for d in range(4):
            if d == 2: o += L('s_add_u32 s42, s42, s44\ns_add_u32 s43, s43, s44')
            o += L(f's_add_u32 m0, s66, {1024*d}\ns_nop 0')
            o += L(f'buffer_load_dwordx4 v{12+(d&1)}, {sWD}, s{42+(d&1)} offen nt lds', tag='w2dma')
            o += L(f's_add_u32 m0, s66, {57344 + 1024*d - 128}\ns_nop 0')
            o += L(f'buffer_load_dwordx4 v{12+(d&1)}, {sWD}, s{42+(d&1)} offen offset:128 nt lds', tag='w2dma')
        return o
    def w2_finish(self):
        return L(f'''
        s_mul_i32 s58, s41, 192
        s_add_u32 s58, s58, s40
        s_lshl_b32 s58, s58, 10
        s_add_u32 s58, s58, {WS_W2P}
        ''') + self.prep_task('w2dma', 's58', 49152, 'w2st', tmp=60) + L('s_add_u32 s58, s58, 49152') + self.prep_task('w2dma', 's58', 49152, 'w2st', tmp=76, loff=57344)
    def spare_path(self, S):
        S.set_state(self.st_spare)
        S.emit('L_spare:'); S.emit(self.mod_late); S.emit(self.w1_dma())
        S.emit(f'''
        s_lshl_b32 s58, s3, 5
        v_subrev_u32 v57, s66, v112
        v_xor_b32 v57, s58, v57
        v_add_u32 v56, {L_H}, v57
        v_lshrrev_b32 v58, 4, v2
        v_lshlrev_b32 v58, 4, v58
        v_add_u32 v51, {L_VEC}, v58
        v_lshlrev_b32 v59, 3, v2
        v_mov_b32 v43, {OOB}
        v_cmp_gt_u32 vcc, 16, v2
        v_add_u32 v42, {L_VEC}, v12
        v_mov_b32 v29, v43
        v_cndmask_b32 v59, v43, v59, vcc
        ''')
        S.emit(self.flagA()); S.emit(self.stamp('_fla'))
        for k in range(4): S.emit(f'v_lshlrev_b32 v{32+k}, 16, v{200+(k>>1)}' if k % 2 == 0 else f'v_and_b32 v{32+k}, 0xffff0000, v{200+(k>>1)}')
        for op in ('v_mul_f32 T, 0xbfb8aa3b, X', 'v_exp_f32 T, T', 'v_add_f32 T, 1.0, T', 'v_rcp_f32 T, T', 'v_mul_f32 X, X, T'):
            for k in range(4): S.emit(op.replace('T', f'v{36+k}').replace('X', f'v{32+k}'))
        S.emit('v_cvt_pk_bf16_f32 v32, v32, v33\nv_cvt_pk_bf16_f32 v33, v34, v35\nds_write_b64 v42, v[32:33]')
        self.mod_unit(S, 's70'); S.emit(self.stamp('slot0'))
        S.emit(self.w1_task())
        S.emit(f'''
        s_sub_u32 s46, {sJ}, 23
        s_lshl_b32 s46, s46, 3
        s_add_u32 s46, s46, {sXC}
        s_cmp_lt_u32 {sJ}, 23
        s_cbranch_scc1 L_sp_m2
        s_cmp_lt_u32 s46, 60
        s_cbranch_scc1 L_sp_w2
        ''')
        st = S.state()
        S.emit(self.flagW()); S.emit(self.stamp('_fw1'))
        S.emit('s_branch L_sp_b2done')
        S.set_state(st)
        S.emit('L_sp_m2:\ns_add_u32 s46, s46, 120')
        md = self.mod_dma('s46', 's47', L_H, 'mod2'); S.emit(md[0]); S.emit(flat(md[1][:6]))
        S.emit(self.flagW()); S.emit(self.stamp('_fw1'))
        S.emit(flat(md[1][6:]))
        self.mod_unit(S, 's46', 's47', 'v56', 'mod2')
        S.emit('s_branch L_sp_b2done')
        S.set_state(st)
        S.emit('L_sp_w2:\ns_lshl_b32 s46, s46, 1')
        S.emit(self.w2_dma('s46'))
        S.emit(self.flagW()); S.emit(self.stamp('_fw1'))
        S.emit(self.w2_finish())
        S.emit(f'''
        s_lshl_b32 s58, s46, 7
        s_lshl_b32 s59, s3, 2
        s_add_u32 s58, s58, s59
        s_add_u32 s58, s58, {WS_FLW2}
        s_add_u32 s59, s58, 128
        v_writelane_b32 v29, s58, 0
        v_writelane_b32 v29, s59, 1
        L_sp_b2done:
        ''')
        S.emit(self.stamp('slot1'))
        S.emit(self.touch(4)); S.emit('L_sp_t2:')
        S.emit(self.g_setup()); S.emit(self.tile_consts())
        pw = self.pollW()
        S.emit(pw); S.emit(self.check(pw, ['v95'], None, sleep=8))
        S.emit(f'buffer_store_dword v1, v29, {sWS}, 0 offen sc1')
        S.emit(self.stamp('slot2'))
        S.emit(f'''
        s_cmp_lt_u32 {sJ}, 24
        s_cbranch_scc1 L_sp_v0
        s_cmp_ge_u32 {sJ}, 28
        s_cbranch_scc1 L_sp_v2
        s_sub_u32 s58, {sXC}, 2
        s_cmp_lt_u32 s58, 4
        s_cbranch_scc1 L_sp_wx
        ''')
        st = S.state()
        for v in (1, 0, 2):
            S.set_state(st)
            if v != 1: S.emit(f'L_sp_v{v}:')
            S.emit(flat(self.w1_loads(0, 60, first=v)))
            S.emit('s_branch L_sp_wxdone')
        S.set_state(st)
        S.emit('L_sp_wx:')
        S.emit(f'''
        v_min_u32 v56, 159, v0
        v_lshlrev_b32 v57, 5, v56
        v_add_u32 v57, {WS_MODP + 3*640*8}, v57
        v_add_u32 v58, {640*8}, v57
        s_mov_b32 s59, {3840*8}
        ''')
        wl = self.w1_loads(0, 60, first=1)
        S.emit(flat(wl[:40]))
        gl = []
        for k, (a, so) in enumerate((('v58', '0'), ('v58', 's59'), ('v57', '0'), ('v57', 's59'))):
            gl += L(f'buffer_load_dwordx4 v[{64+8*k}:{67+8*k}], {a}, {sWS}, {so} offen sc1\nbuffer_load_dwordx4 v[{68+8*k}:{71+8*k}], {a}, {sWS}, {so} offen offset:16 sc1')
        S.emit(gl)
        S.emit(flat(wl[40:]))
        S.emit(self.check(gl, [f'v{65+2*k}' for k in range(16)], 'v50', sleep=8))
        for k in range(4):
            S.emit(f'''
            v_add_f32 v{64+2*k}, v{64+2*k}, v{72+2*k}
            v_add_f32 v{80+2*k}, v{80+2*k}, v{88+2*k}
            v_cvt_pk_bf16_f32 v{64+2*k}, 0, v{64+2*k}
            v_add_f32 v{64+2*k}, 1.0, v{64+2*k}
            ''')
        S.emit(f'''
        v_cvt_pk_bf16_f32 v72, v64, v66
        v_cvt_pk_bf16_f32 v73, v68, v70
        v_cvt_pk_bf16_f32 v74, v80, v82
        v_cvt_pk_bf16_f32 v75, v84, v86
        v_lshlrev_b32 v56, 3, v56
        v_add_u32 v56, {L_VEC + 1536}, v56
        ds_write_b64 v56, v[72:73]
        ds_write_b64 v56, v[74:75] offset:1280
        v_and_b32 v57, 1, v2
        v_mul_u32_u24 v57, 1280, v57
        v_lshrrev_b32 v58, 5, v2
        v_lshl_add_u32 v57, v58, 4, v57
        s_and_b32 s59, s3, 1
        s_mul_i32 s58, s59, 640
        s_add_u32 s58, s58, {L_VEC + 1536}
        v_add_u32 v57, s58, v57
        s_waitcnt lgkmcnt(0)
        s_barrier
        ''')
        for s in range(20): S.emit(f'ds_read_b128 v[{128+4*s}:{131+4*s}], v57 offset:{32*s}')
        for s in range(20):
            for role in range(3):
                a = 12*s + 4*role; d = f'v[{64+16*role}:{79+16*role}]'
                S.emit(f'v_mfma_f32_32x32x16_bf16 {d}, v[{128+4*s}:{131+4*s}], a[{a}:{a+3}], {"0" if s == 0 else d}')
        S.emit(f'''
        s_lshr_b32 s58, s3, 1
        s_mul_i32 s58, s58, 3
        s_mul_i32 s43, {sSIG}, 6
        s_add_u32 s58, s58, s43
        s_lshl_b32 s58, s58, 10
        s_lshl_b32 s43, s59, 9
        s_add_u32 s58, s58, s43
        s_add_u32 s58, s58, {WS_WX}
        s_lshl_b32 s43, s59, 10
        s_add_u32 s42, s58, s43
        s_sub_u32 s40, s58, s43
        s_add_u32 s40, s40, 1024
        s_add_u32 s41, s58, 2048
        v_mov_b32 v58, {OOB}
        v_cmp_gt_u32 vcc, 32, v2
        s_nop 1
        v_cndmask_b32 v56, v58, v3, vcc
        v_cndmask_b32 v57, v58, v5, vcc
        ''')
        for role in range(3):
            d = 64 + 16*role
            S.emit(f'''
            v_cvt_pk_bf16_f32 v{d+2}, 0, v{d}
            v_cvt_pk_bf16_f32 v{d+3}, 0, v{d+1}
            v_sub_f32 v{d}, v{d}, v{d+2}
            v_sub_f32 v{d+1}, v{d+1}, v{d+3}
            v_cvt_pk_bf16_f32 v{d}, -v{d+2}, -v{d}
            v_cvt_pk_bf16_f32 v{d+1}, v{d+3}, v{d+1}
            v_mov_b32 v{d+2}, 0
            v_mov_b32 v{d+3}, {sN}
            buffer_store_dwordx4 v[{d}:{d+3}], v{57 if role == 1 else 56}, {sWS}, s{40+role} offen sc1
            ''')
        S.emit('L_sp_wxdone:')
        S.emit(f'''
        v_mov_b32 v15, {OOB}
        v_mov_b32 v30, {OOB}
        s_mov_b32 s47, 0
        s_mov_b32 s48, 0
        ''')
        S.vm = [Ins('buffer_load_dword v255, v3, s[4:7], 0 offen')] * 64
        S.wait_all()
        S.emit('s_barrier')
        S.emit(self.stamp('kexp'))
        pc = self.pollC(0, 'v128')
        S.emit(pc); S.emit(self.check(pc, ['v128'], None, sleep=8))
        S.emit(self.stamp('_chk1'))
        S.emit(flat(self.tile_dma(0))); S.emit('s_barrier'); S.emit(flat(self.ic2_loads()))
        S.wait_all()
        S.emit(self.stamp('conv'))
        S.emit('s_branch L_g1')
    def finish(self, S):
        if self.probe:
            S.emit(self.stamp('end'))
            S.wait_all(); S.out.append(Ins('s_waitcnt vmcnt(0) lgkmcnt(0)'))
            k = self.stamp_names.index(self.probe)
            role = self.o('prole', 2)
            S.emit(f's_sub_u32 s58, s{74+2*k}, s74')
            if role < 2: S.emit(f's_cmp_eq_u32 s0, {role}\ns_cselect_b32 s58, s58, 0')
            if self.o('pwg', -1) >= 0: S.emit(f's_cmp_eq_u32 s2, {self.o("pwg", 0)}\ns_cselect_b32 s58, s58, 0')
            S.emit('s_min_u32 s58, s58, 20000\ns_add_u32 s58, s58, 6000')
            if self.o('ponly', -1) >= 0: S.emit(f's_cmp_eq_u32 s2, {self.o("ponly", 0)}\ns_cselect_b32 s58, s58, 0')
            S.emit('L_spin:')
            S.out += L('s_memrealtime s[60:61]\ns_waitcnt lgkmcnt(0)\ns_sub_u32 s60, s60, s74\ns_cmp_lt_u32 s60, s58\ns_cbranch_scc1 L_spin')
        elif self.stamps:
            S.emit(self.stamp('end'))
            S.wait_all()
            S.out.append(Ins('s_waitcnt vmcnt(0) lgkmcnt(0)'))
            S.emit(f'''
            s_lshl_b32 s58, s2, 2
            s_add_u32 s58, s58, s3
            s_lshl_b32 s58, s58, 8
            s_add_u32 s58, s58, {WS_DBG}
            v_mov_b32 v31, {OOB}
            v_writelane_b32 v31, 0, 0
            ''')
            for k in range(len(self.stamp_names)):
                S.emit(f'v_mov_b32 v1, s{74+2*k}\nbuffer_store_dword v1, v31, {sWS}, s58 offen offset:{4*k}')
            S.emit(f'v_mov_b32 v1, {sBUD}\nbuffer_store_dword v1, v31, {sWS}, s58 offen offset:60')
        S.emit('s_endpgm')
    def build(self):
        P = Stream(); self.prologue(P)
        S = Stream(); self.conv_path(S)
        S.emit('L_g1:')
        if self.stop == 'conv':
            S.emit('s_nop 7')
            S.emit(self.epi(2, 's47', 'p2') + self.epi(3, 's48', 'p2'))
        else:
            import gen2
            gen2.gemms(self, S)
        self.finish(S)
        Q = Stream(); self.spare_path(Q)
        body = S.out + Q.out + self.slow
        body, npages, nbytes, mis = layout(body, minpages=8)
        for i in P.out: i.text = i.text.replace('@CODEMAX@', str(nbytes // 128 * 128))
        pro, _, pbytes, _ = layout(P.out, stubs=False)
        self.info = dict(pages=npages, bytes=nbytes, pro=pbytes, misaligned=mis, nops=S.nops, waits=S.nwait, n=len(S.out))
        self.log = P.log + S.log + Q.log
        txt = f'; @launch grid=(256,1,1) block=(256,1,1) lds={LDS_BYTES}\n.amdgcn_target "amdgcn-amd-amdhsa--gfx950"\n.text\n.p2align 12\n.globl {NAME}\n.p2align 8\n.type {NAME},@function\n{NAME}:\n'
        txt += render(pro)
        txt += '.p2align 12\n' + render(body)
        txt += f'''.section .rodata,"a"
.p2align 6
.amdhsa_kernel {NAME}
  .amdhsa_next_free_vgpr 512
  .amdhsa_next_free_sgpr 102
  .amdhsa_accum_offset 256
  .amdhsa_group_segment_fixed_size 0
  .amdhsa_kernarg_size 144
  .amdhsa_user_sgpr_count 2
  .amdhsa_user_sgpr_kernarg_segment_ptr 1
  .amdhsa_system_sgpr_workgroup_id_x 1
  .amdhsa_float_denorm_mode_32 3
.end_amdhsa_kernel
'''
        return txt

def alloc_frags(seq, mn, pool, loader, lead, maxper=1, notbefore=None):
    first = {}; last = {}
    for k, (D, A, B, C) in enumerate(seq):
        for f in (A, B):
            if isinstance(f, tuple): first.setdefault(f, k); last[f] = k
    order = sorted(first, key=lambda f: first[f])
    freeat = {r: -1 for r in pool}
    used = {}; pinned = {}; head = []; reg = {}
    for f in order:
        r = min(freeat, key=lambda x: freeat[x])
        lds = loader(f, r)
        want = first[f] - 1 - lead
        lo = max(freeat[r], notbefore(f) if notbefore else -1)
        for i in lds:
            g = max(want, lo)
            if g >= 0:
                c = g
                while c > max(lo, 0) and used.get(c, 0) >= maxper and c > g - 4: c -= 1
                if used.get(c, 0) >= maxper:
                    c = g
                    while used.get(c, 0) >= maxper and c < first[f] - 3: c += 1
                g = c
            assert g < first[f], (f, g, first[f])
            if g < 0: head.append(i)
            else: pinned.setdefault(g, []).append(i); used[g] = used.get(g, 0) + 1
        reg[f] = r; freeat[r] = last[f]
    R = lambda f: f'v[{reg[f]}:{reg[f]+3}]' if isinstance(f, tuple) else f
    bb = [Ins(f'{mn} {D}, {R(A)}, {R(B)}, {C}') for D, A, B, C in seq]
    return bb, pinned, head

if __name__ == '__main__':
    import argparse
    ap = argparse.ArgumentParser(); ap.add_argument('-o', default='k.s'); ap.add_argument('--stop'); ap.add_argument('--stamps', action='store_true'); ap.add_argument('--log', action='store_true')
    ap.add_argument('--opt', default=''); ap.add_argument('--audit', action='store_true'); ap.add_argument('--probe')
    a = ap.parse_args()
    opt = {k: int(v) for k, v in (x.split('=') for x in a.opt.split(',') if x)}
    g = Gen(stop=a.stop, stamps=a.stamps, probe=a.probe, **opt)
    t = g.build(); open(a.o, 'w').write(t)
    print(g.info, g.stamp_names)
    if a.log: print('\n'.join(g.log))
    import fw
    print('\n'.join(x for x in fw.AUDIT if a.audit or x.startswith('CONFLICT') or x.startswith('sched') or (a.log and 'place' in x)))
```

```python
import re, subprocess, os, tempfile

REG = re.compile(r'^(-|abs\()?([vas])(?:(\d+)|\[(\d+):(\d+)\])\)?$')
TRANS = ('v_exp_f32', 'v_log_f32', 'v_rcp_f32', 'v_rsq_f32', 'v_sqrt_f32', 'v_sin_f32', 'v_cos_f32')
NODEF_S = ('s_cmp', 's_cbranch', 's_waitcnt', 's_barrier', 's_nop', 's_branch', 's_setprio', 's_sleep', 's_endpgm', 's_bitcmp')

def regs_of(op):
    op = op.strip()
    if op in ('vcc', 'exec', 'm0'): return [op]
    if op in ('vcc_lo', 'vcc_hi'): return ['vcc']
    if op in ('exec_lo', 'exec_hi'): return ['exec']
    m = REG.match(op)
    if not m: return []
    k = m.group(2)
    if m.group(3) is not None: return [(k, int(m.group(3)))]
    return [(k, i) for i in range(int(m.group(4)), int(m.group(5)) + 1)]

class Ins:
    __slots__ = ('text', 'mn', 'kind', 'defs', 'uses', 'ops', 'tag', 'waitfor', 'size', 'srcc', 'srcab', 'passes', 'wide', 'lanesel', 'note', 'src', 'xuses', 'xdefs', 'lines')
    def __init__(self, text, tag=None, waitfor=None):
        self.text = text.strip(); self.tag = tag; self.waitfor = waitfor or []
        self.size = None; self.srcc = []; self.srcab = []; self.passes = 0; self.wide = False; self.lanesel = []; self.note = None; self.src = None; self.xuses = set(); self.xdefs = set(); self.lines = None
        t = self.text
        if t.endswith(':') or t.startswith('.') or t.startswith(';') or t == '':
            self.mn = ''; self.kind = 'label' if t.endswith(':') else 'dir'; self.defs = set(); self.uses = set(); self.ops = []; return
        parts = t.split(None, 1)
        mn = parts[0]; rest = parts[1] if len(parts) > 1 else ''
        ops = []; cur = ''; depth = 0
        for ch in rest:
            if ch == '[': depth += 1
            if ch == ']': depth -= 1
            if ch == ',' and depth == 0: ops.append(cur.strip()); cur = ''
            else: cur += ch
        mods = ''
        if cur.strip():
            sp = cur.strip().split(None, 1); ops.append(sp[0]); mods = sp[1] if len(sp) > 1 else ''
        self.mn = mn; self.ops = ops
        base = re.sub(r'_(e32|e64|dpp|sdwa)$', '', mn)
        R = [regs_of(o) for o in ops]
        flat = lambda L: set(x for l in L for x in l)
        d = set(); u = set()
        if mn.startswith('v_mfma'):
            self.kind = 'mfma'; d = set(R[0]); u = flat(R[1:]); self.srcc = R[3]; self.srcab = R[1] + R[2]
            self.passes = 8 if '32x32' in mn else 4
        elif mn.startswith('v_'):
            self.kind = 'trans' if base in TRANS else 'valu'
            if 'permlane' in mn: d = flat(R); u = flat(R)
            elif base in ('v_add_co_u32', 'v_sub_co_u32', 'v_addc_co_u32'): d = flat(R[:2]); u = flat(R[2:])
            else:
                d = set(R[0]); u = flat(R[1:])
                if base in ('v_fmac_f32', 'v_dot2c_f32_bf16', 'v_writelane_b32') or mn.endswith('_dpp'): u |= d
                if base == 'v_cndmask_b32' and len(ops) == 3: u.add('vcc')
                if base in ('v_readlane_b32', 'v_writelane_b32'): self.lanesel = R[2]
            u.add('exec')
        elif mn.startswith('ds_'):
            self.kind = 'ds'
            if mn.startswith('ds_read') or '_rtn_' in mn or mn.startswith('ds_bperm') or mn.startswith('ds_swizzle'):
                d = set(R[0]); u = flat(R[1:])
                if 'd16' in mn: u |= d
            else:
                u = flat(R)
            if 'addtid' in mn: u.add('m0')
        elif mn.startswith('buffer_') or mn.startswith('global_'):
            self.kind = 'vmem'
            lds = ' lds' in (' ' + mods) or '_lds_' in mn
            if 'load' in mn and not lds:
                d = set(R[0]); u = flat(R[1:])
                if 'd16' in mn: u |= d
            else:
                u = flat(R)
                if lds: u.add('m0')
                if 'store' in mn and ('x3' in mn or 'x4' in mn):
                    self.wide = set(R[0] if mn.startswith('buffer_') else R[1])
        elif mn.startswith('s_atomic'):
            self.kind = 'smem'; u = flat(R); self.note = 'async'
        elif mn.startswith('s_load') or mn.startswith('s_memtime') or mn.startswith('s_memrealtime'):
            self.kind = 'smem'; d = set(R[0]); u = flat(R[1:])
        elif mn.startswith('s_'):
            self.kind = 'salu'
            if any(mn.startswith(p) for p in NODEF_S): u = flat(R)
            else: d = set(R[0]); u = flat(R[1:])
            if re.match(r's_(cmp|add|sub|and|or|xor|lshl|lshr|ashr|bfe|min|max|not|bitcmp)', mn): d.add('scc')
            if re.match(r's_(cselect|cbranch_scc|addc|subb)', mn): u.add('scc')
            if mn.startswith('s_cbranch_vcc'): u.add('vcc')
        else:
            raise ValueError('unknown instruction ' + t)
        self.defs = d; self.uses = u
    def states(self):
        if self.kind in ('label', 'dir'): return 0
        if self.mn == 's_nop': return int(self.ops[0], 0) + 1
        return 1
    def __repr__(self): return self.text

def L(text, **kw):
    out = []
    for l in text.strip('\n').split('\n'):
        l = l.split(';')[0].strip() if not l.strip().startswith(';') else ''
        if l: out.append(Ins(l, **kw))
    return out

def isv(r): return isinstance(r, tuple) and r[0] in 'va'
def iss(r): return r == 'vcc' or (isinstance(r, tuple) and r[0] == 's')

def need_states(p, c):
    n = 0
    pv = p.kind in ('valu', 'trans'); cv = c.kind in ('valu', 'trans')
    if pv:
        dv = set(r for r in p.defs if isv(r)); dsg = set(r for r in p.defs if iss(r))
        if c.kind == 'mfma' and dv & c.uses: n = max(n, 2)
        if cv and dv & c.uses:
            if c.mn.endswith('_dpp') or 'permlane' in c.mn: n = max(n, 2)
            if 'readlane' in c.mn or 'readfirstlane' in c.mn: n = max(n, 1)
            if p.kind == 'trans' and c.kind != 'trans': n = max(n, 1)
        if p.mn.startswith('v_dot2') and (dv & (c.uses | c.defs)):
            same_c = c.mn == p.mn and not (dv & set(regs_of(c.ops[1]) + regs_of(c.ops[2])))
            if not same_c: n = max(n, 3)
        if dsg:
            if cv and dsg & c.uses: n = max(n, 2)
            if cv and dsg & set(c.lanesel): n = max(n, 4)
            if c.kind == 'vmem' and dsg & c.uses: n = max(n, 5)
            if c.kind in ('salu', 'smem') and dsg & c.uses and not c.mn.startswith('s_cbranch'): n = max(n, 1)
    if p.kind == 'mfma':
        big = 12 if p.passes == 8 else 8
        if c.kind == 'mfma':
            if p.defs & set(c.srcab): n = max(n, big)
            if p.defs & set(c.srcc):
                if not (set(c.srcc) == p.defs and c.passes == p.passes): n = max(n, big - 2)
            elif p.defs & c.defs: n = max(n, big)
        elif c.kind in ('valu', 'trans', 'ds', 'vmem'):
            if p.defs & (c.uses | c.defs): n = max(n, big)
            if set(r for r in p.srcc if isv(r)) & c.defs: n = max(n, 7 if p.passes == 8 else 3)
    if p.wide and (p.wide & c.defs): n = max(n, 2 if cv else 1)
    if p.kind == 'salu' and 'm0' in p.defs and 'm0' in c.uses and c.kind in ('ds', 'vmem'): n = max(n, 1)
    return n

class Stream:
    def __init__(self):
        self.out = []
        self.vm = []
        self.lg = []
        self.sm = []
        self.nops = 0; self.nwait = 0
        self.t = 0; self.tm = -99; self.shadow = []; self.dummy = None; self.shadow_len = 1400; self.ndummy = 0
        self.log = []
    def state(self): return (list(self.vm), list(self.lg), list(self.sm))
    def set_state(self, st): self.vm, self.lg, self.sm = list(st[0]), list(st[1]), list(st[2])
    def _raw(self, ins):
        if ins.kind not in ('label', 'dir'):
            dist = 0; need = 0; who = None; tm = None
            for p in reversed(self.out):
                if dist >= 12: break
                if p.kind in ('label', 'dir'): continue
                d = dist
                if p.kind == 'mfma':
                    if tm is None: tm = dist
                    else: tm += p.passes; d = max(dist, tm - 1)
                k = need_states(p, ins) - d
                if k > need: need = k; who = p
                dist += p.states()
            if need > 0:
                self.nops += need
                self.log.append(f'pad {need}: [{who}] -> [{ins}]')
                self.out.append(Ins(f's_nop {need-1}'))
        self.out.append(ins)
        if ins.kind == 'mfma':
            self.t = max(self.t, self.tm); self.tm = self.t + 4*ins.passes; self.t += 8
        else: self.t += cost(ins)
    def _wait(self, vm=None, lg=None):
        parts = []
        self.shadow = [x for x in self.shadow if x[0] > self.t]
        k = sum(x[1] for x in self.shadow)
        if lg is not None and lg < len(self.lg) and lg < k and self.dummy:
            for _ in range(k - lg):
                di = Ins(self.dummy); di.defs = set(); self._raw(di); self.lg.append(di); lg += 1; self.ndummy += 1
        if vm is not None and vm < len(self.vm):
            vm = min(vm, 63); parts.append(f'vmcnt({vm})'); self.vm = self.vm[len(self.vm)-vm:] if vm else []
        if lg is not None and (lg < len(self.lg) or (lg == 0 and self.sm)):
            lg = min(lg, 15); parts.append(f'lgkmcnt({lg})'); self.lg = self.lg[len(self.lg)-lg:] if lg else []
            if lg == 0: self.sm = []
        if parts:
            self.nwait += 1
            self._raw(Ins('s_waitcnt ' + ' '.join(parts)))
    def wait_tags(self, tags):
        vm = lg = None
        for i, o in enumerate(self.vm):
            if o.tag in tags: vm = len(self.vm) - 1 - i
        for i, o in enumerate(self.lg):
            if o.tag in tags: lg = len(self.lg) - 1 - i
        self._wait(vm, lg)
    def wait_all(self): self._wait(0, 0)
    def needs(self, ins):
        touch = ins.uses | ins.defs
        vm = lg = None
        for i, o in enumerate(self.vm):
            if (o.defs & touch) or (o.tag is not None and o.tag in ins.waitfor): vm = len(self.vm) - 1 - i
        for i, o in enumerate(self.lg):
            if (o.defs & touch) or (o.tag is not None and o.tag in ins.waitfor): lg = len(self.lg) - 1 - i
        for o in self.sm:
            if (o.defs & touch) and o.note != 'stamp': lg = 0
        return vm, lg
    def emit(self, x):
        if isinstance(x, str): x = L(x)
        if isinstance(x, (list, tuple)):
            for k, i in enumerate(x):
                self.emit(i)
                if isinstance(i, Ins) and i.note == 'gap':
                    grp = []
                    for y in x[k+1:]:
                        grp.append(y)
                        if y.note == 'gap': break
                    vm = lg = None
                    for y in grp:
                        v, l = self.needs(y)
                        if v is not None: vm = v if vm is None else min(vm, v)
                        if l is not None: lg = l if lg is None else min(lg, l)
                    self._wait(vm, lg)
            return
        ins = x
        if ins.mn == 's_waitcnt':
            m = re.search(r'vmcnt\((\d+)\)', ins.text); m2 = re.search(r'lgkmcnt\((\d+)\)', ins.text)
            self._wait(int(m.group(1)) if m else None, int(m2.group(1)) if m2 else None)
            return
        self._wait(*self.needs(ins))
        self._raw(ins)
        if ins.kind == 'vmem': self.vm.append(ins)
        elif ins.kind == 'ds': self.lg.append(ins)
        elif ins.kind == 'smem' and ins.note == 'async': self.shadow.append((self.t + self.shadow_len, 2 if 'load_dwordx' in ins.mn else 1))
        elif ins.kind == 'smem' and ins.note != 'stamp': self.sm.append(ins)

def ismem(i): return i.kind in ('ds', 'vmem')
def cost(ins):
    k = ins.kind
    if k in ('label', 'dir'): return 0
    if k == 'ds':
        if 'write' in ins.mn: return 20 if 'b128' in ins.mn else (12 if 'b64' in ins.mn else 8)
        return 4
    if k == 'trans': return 8
    if k == 'vmem': return (20 if 'x4' in ins.mn else 12) if 'store' in ins.mn else 8
    if k == 'mfma': return 4 * ins.passes
    if ins.mn == 's_barrier': return 8
    if ins.mn == 's_nop': return 4 * ins.states()
    return 4

class Fill:
    def __init__(self, items, g0, g1, prio=1, hard=False, name=None, ahead=0, slack=None, burst=False, after=(), asap=False, carry=False):
        self.items = [i if isinstance(i, list) else [i] for i in items if not (isinstance(i, list) and not i)]
        self.g0 = g0; self.g1 = g1; self.prio = prio; self.hard = hard; self.k = 0; self.name = name
        self.ahead = ahead; self.slack = slack; self.burst = burst; self.after = list(after); self.asap = asap; self.carry = carry
        w = [max(1, sum(cost(x) for x in it)) for it in self.items]
        tot = max(sum(w) - (w[-1] if w else 0), 1); acc = 0; self.want = []
        for c in w:
            self.want.append(g0 + (g1 - g0) * acc / tot); acc += c
        self.lo = [g0] * len(self.items)
        self.dl = [g1 if asap else 10**9] * len(self.items)
        if asap: self.want = [g0] * len(self.items)
        self.placed = []

class Pipe:
    def __init__(self, sv=80, st=350, win=450): self.sv = sv; self.st = st; self.win = win; self.busy = 0; self.hw = win + 300
    def service(self, i):
        if 'store' in i.mn: return self.st if ('x4' in i.mn and 'sc1' in i.text) else 120
        if i.lines is not None: return max(64, self.sv * i.lines // 8)
        return self.sv

def interleave(backbone, fills, pinned=None, slack=3.0, vgap=66, dlat=None, report=None, pipe=None, quiet=()):
    pinned = pinned or {}
    out = []; est = 0; lastv = -10**9; ready = {}; over = []; idle = 0; blog = []; pipe_extra = 2; stall = []
    N = len(backbone)
    for g, m in enumerate(backbone):
        span = 4 * m.passes
        dl = dlat if dlat is not None else (3 if m.passes == 8 else 5)
        hz = 3 if m.passes == 8 else 4
        for r in m.defs: ready[r] = g + hz
        mem = list(pinned.get(g, [])); alu = []; front = []
        budget = span - 8 - sum(cost(x) for x in mem)
        nxt = backbone[g+1] if g + 1 < N else None
        freeS = not (nxt is not None and any(ready.get(r, -99) > g - 6 and r not in nxt.srcc for r in nxt.srcab))
        for x in mem:
            for r in x.defs: ready[r] = g + dl
        last = g == N - 1
        usedalu = set()
        while True:
            best = None
            for f in fills:
                if f.k >= len(f.items): continue
                it = f.items[f.k]; late = g - f.want[f.k]
                if any(d.k < len(d.items) or (d.placed and d.placed[-1] >= g and not last) for d in f.after): continue
                fin = last and not f.carry
                if not fin and (g < f.lo[f.k] or late < -f.ahead): continue
                sl = f.slack if f.slack is not None else slack
                force = fin or (late >= 0 and f.hard) or (late >= sl and not f.asap) or g >= f.dl[f.k]
                real = [x for x in it if x.kind not in ('label', 'dir')]
                memitem = any(ismem(x) for x in real) and all(ismem(x) or x.kind in ('salu', 'smem') for x in real) and not any(x.mn == 's_barrier' or x.mn.startswith('s_cbranch') for x in real)
                sonly = len(real) == 1 and real[0].kind in ('salu', 'smem') and real[0].mn not in ('s_barrier', 's_nop') and not real[0].mn.startswith('s_cbranch')
                if any(ready.get(r, -99) > g for x in real for r in (x.uses | x.defs)) and not (fin or (late >= sl + 3 and not f.asap) or (f.hard and late >= 0)): continue
                c = sum(cost(x) for x in real); where = 'alu'
                if sonly and freeS and id(f) not in usedalu and not any(x.src is f for x in mem): c = 0; where = 'front'
                elif memitem:
                    if id(f) in usedalu:
                        if not force: continue
                        c += 8
                    else: where = 'mem'
                    if any(x.kind == 'vmem' for x in real) and not force:
                        if f.asap:
                            if pipe.busy > pipe.win or any(x.kind == 'vmem' for x in mem): continue
                            if any(q >= g and pipe.busy + pipe.sv + qx > (q - g)*(span + 2) for q, qx in quiet): continue
                        elif not f.burst and est - lastv < vgap: continue
                else:
                    c += 8 * sum(1 for a_, b_ in zip([None] + real, real) if ismem(b_) and not (a_ is not None and ismem(a_)))
                starve = f.asap and pipe.busy < pipe.win // 2 and c <= budget + 8
                if c > budget and not force and not starve and not (not mem and not alu and late >= 0): continue
                key = (0 if (force and (f.hard or c <= budget)) else 1, 0 if c <= budget else 1, -f.prio, -late)
                if best is None or key < best[0]: best = (key, f, it, c, where)
            if best is None: break
            _, f, it, c, where = best
            for x in it: x.src = f
            if where == 'front': front += it; freeS = False
            elif where == 'mem': mem += it
            else: alu += it; usedalu.add(id(f))
            for x in it:
                if x.kind == 'ds':
                    for r in x.defs: ready[r] = g + dl
                elif x.kind == 'vmem':
                    lastv = est
                    if pipe: pipe.busy += pipe.service(x)
            budget -= c; f.k += 1; f.placed.append(g)
        m.note = 'gap'
        out += [m] + front + mem + alu
        est += span + max(0, -budget); over.append(max(0, -budget))
        if pipe:
            if pipe.busy > pipe.hw: stall.append(pipe.busy - pipe.hw); pipe.busy = pipe.hw
            else: stall.append(0)
            pipe.busy -= span + max(0, -budget) + pipe_extra
            if pipe.busy < 0: idle -= pipe.busy; pipe.busy = 0
            blog.append(pipe.busy)
    for n, f in enumerate(fills):
        assert f.k == len(f.items) or f.carry, (f.name, f.k)
        f.rest = f.items[f.k:]
        for it in f.items[:f.k]:
            for x in it: x.src = f.name or f'F{n}'
    if report:
        AUDIT.append(f'sched {report}: gaps {N} est {est} over ' + ' '.join(str(sum(over[k:k+10])) for k in range(0, N, 10)))
        if pipe: AUDIT.append(f'sched {report} pipe: idle {idle} stall {sum(stall)}: ' + ' '.join(str(sum(stall[k:k+10])) for k in range(0, N, 10)))
        for n, f in enumerate(fills):
            if f.placed: AUDIT.append(f'   place {f.name or "F%d" % n}: [{f.g0},{f.g1}] -> {f.placed[0]}..{f.placed[-1]} n={len(f.placed)}')
    audit(out)
    return out

AUDIT = []
def audit(seq):
    last = {}; own = {}; cross = {}
    g = -1
    for i in seq:
        if i.kind == 'mfma' and i.src is None: g += 1
        me = i.src or 'bb'
        for r in (i.uses | i.xuses) - {'exec'}:
            if r in last and last[r][0] != me:
                if (me, r) in own and me != 'bb' and last[r][0] != 'bb' and 'permlane32' not in i.mn:
                    AUDIT.append(f'CONFLICT gap {g}: {me} [{i}] reads {r} last written by {last[r][0]} [{last[r][1]}]')
                cross.setdefault((last[r][0], me), {}).setdefault(r, g)
        for r in i.defs | i.xdefs:
            last[r] = (me, i); own[(me, r)] = i
    def fmt(d):
        return ' '.join((f'{r[0]}{r[1]}' if isinstance(r, tuple) else r) + f'@{g}' for r, g in sorted(d.items(), key=str))
    for (a, b), d in cross.items():
        AUDIT.append(f'flow {a} -> {b}: {fmt(d)}')

CLANG = 'clang'; OBJDUMP = 'llvm-objdump'
def measure_sizes(ins_list):
    real = [i for i in ins_list if i.kind not in ('label', 'dir')]
    txt = '.amdgcn_target "amdgcn-amd-amdhsa--gfx950"\n.text\n' + '\n'.join(
        (i.text if not (i.mn.startswith('s_cbranch') or i.mn == 's_branch') else 's_nop 0') for i in real) + '\n'
    with tempfile.TemporaryDirectory() as td:
        open(td + '/a.s', 'w').write(txt)
        r = subprocess.run([CLANG, '-x', 'assembler', '-target', 'amdgcn-amd-amdhsa', '-mcpu=gfx950', '-c', td + '/a.s', '-o', td + '/a.o'], capture_output=True, text=True)
        if r.returncode: raise RuntimeError(r.stderr[:3000])
        o = subprocess.run([OBJDUMP, '-d', td + '/a.o'], capture_output=True, text=True).stdout
    sz = [len(m.group(1).split()) * 4 for m in re.finditer(r'// [0-9A-F]+: ([0-9A-F ]+)$', o, re.M)]
    assert len(sz) == len(real), (len(sz), len(real))
    for i, s in zip(real, sz): i.size = s

NOPROMO = ('v_readfirstlane', 'v_accvgpr', 'v_permlane', 'v_dot2c', 'v_nop')
def promotable(i):
    return i.kind in ('valu', 'trans') and i.size == 4 and not any(i.mn.startswith(p) for p in NOPROMO) and not re.search(r'_(e32|e64|dpp|sdwa)$', i.mn)

def layout(ins_list, stub_every=4, minrun=6, minrun_m=3, minpages=0, stubs=True):
    measure_sizes(ins_list)
    real_idx = [k for k, i in enumerate(ins_list) if i.kind not in ('label', 'dir')]
    nxt = {a: b for a, b in zip(real_idx, real_idx[1:])}
    out = []; off = 0; page = 0; dostub = stubs; stubs = []; mis = 0
    def stub(p):
        s = Ins(f's_cbranch_execz L_stub{p + stub_every}'); s.size = 4; stubs.append((p, s))
        return [Ins(f'L_stub{p}:'), s]
    for k, i in enumerate(ins_list):
        if i.kind in ('label', 'dir'): out.append(i); continue
        if dostub and off >= page * 4096:
            out += stub(page); off += 4; page += 1
        if i.size == 4 and off % 8 == 0 and k in nxt and ins_list[nxt[k]].size == 8 and promotable(i):
            parts = i.text.split(None, 1); i.text = parts[0] + '_e64 ' + parts[1]; i.size = 8
        if i.size == 8 and off % 8 == 4:
            run = 0; kk = k; hasm = False
            while kk is not None and ins_list[kk].size == 8 and run < 12:
                hasm |= ins_list[kk].kind == 'mfma'; run += 1; kk = nxt.get(kk)
            prevm = out and out[-1].kind == 'mfma'
            if (run >= minrun and not hasm) or (run >= minrun_m and prevm and i.kind in ('valu', 'trans', 'mfma')):
                n = Ins('s_nop 0'); n.size = 4; out.append(n); off += 4
        if i.size == 8 and off % 8 == 4: mis += 1
        out.append(i); off += i.size
    if dostub:
        pos = {id(x): k for k, x in enumerate(out)}
        ksp = [k for k, x in enumerate(out) if x.text == 'L_spare:'][0]
        sp = [p for p, x in stubs if pos[id(x)] > ksp]
        nmain = page - len(sp)
        for p, x in stubs:
            if p in sp: x.text = 's_cbranch_execz L_s0'
            elif p < stub_every: x.text = 's_cbranch_execz L_tdone'
            elif p + stub_every >= nmain: x.text = 's_cbranch_execz L_tdone2'
        for k in range(4):
            out += [Ins(f'.set L_gp{k}, ' + (f'L_stub{4+k}' if 4 + k < nmain else 'L_tdone2'))]
        for k in range(3):
            out += [Ins(f'.set L_s{k+1}, ' + (f'L_stub{sp[k]}' if k < len(sp) else 'L_s0'))]
    return out, page, off, mis

def render(ins_list):
    return '\n'.join((i.text if i.kind in ('label', 'dir') else '    ' + i.text) for i in ins_list) + '\n'
```

```python
import sys
from fw import *

NAME = 'adaLN_cond__ssm_conv_s4__glu_gated_geglu__prompt_kernel'
WS_E = 0; WS_STAT = 0x1000; WS_FLW2 = 0x10000; WS_IC2 = 0x1E000
WS_MODP = 0x20000; WS_WX = 0x40000; WS_FLH = 0x60000; WS_DBG = 0x80000
WS_XT = 0x100000; WS_X1S = 0x400000; WS_W1P = 0x700000; WS_W2P = 0xB20000; WS_HH = 0xD00000
WS_FLA = 0x1300000; WS_FLC = 0x1340000; WS_ST2 = 0x13C0000; WS_SIZE = 0x1400000
FLW_OFF = 0x20000
OOB = 0x7F000000
L_TAB = 0; L_STG = 65536
L_KC = 81920; KC_PITCH = 4736; KC1 = 2236; KCD = 4384
L_LN = 81920 + 4 * KC_PITCH; LNP = 5152
L_VEC = L_LN + 10240
L_H = 122880; H_PITCH = 4608
L_X = L_H + 4 * H_PITCH
L_SLOT = [0, 40960, 81920, 0]
L_EX = 122880
L_CST = 159744
L_RES = 40960; L_PART = 81920
LDS_BYTES = 163840
TP = 272
P2 = 2*1056
sWS, sX, sOUT, sWG, sWU, sWD, sWM = 's[4:7]', 's[8:11]', 's[12:15]', 's[16:19]', 's[20:23]', 's[24:27]', 's[28:31]'
sN, sXC, sJ, sSIG, sR, sBUD = 's50', 's51', 's52', 's53', 's54', 's55'
sCH, sCB4 = 's56', 's57'
BUD = 40000
def cp(l): return [Ins(i.text, tag=i.tag, waitfor=i.waitfor) for i in l]
def flat(items): return [x for it in items for x in (it if isinstance(it, list) else [it])]

class Gen:
    def __init__(self, stop=None, stamps=False, probe=None, **opt):
        self.stop = stop; self.stamps = stamps; self.opt = opt; self.probe = probe
        if probe: self.stamps = [probe]
        self.slow = []; self.npoll = 0; self.stamp_names = []
        self.XP = 16384 + opt.get('xpad', 0); self.TPI = 40960 + opt.get('tpad', 0)
        assert 160*self.XP <= WS_X1S - WS_XT and 64*self.TPI <= WS_W1P - WS_X1S
        self.RA = opt.get('ra', 2); self.FS = opt.get('fs', 32); self.AREP = 256*self.FS
        self.RC = opt.get('rc', 4); self.FC = opt.get('fc', 32); self.CREP = 160*self.FC; self.CSTG = self.RC*self.CREP
        assert 4*self.CSTG <= WS_ST2 - WS_FLC
    def o(self, k, d): return self.opt.get(k, d)
    def stamp(self, name):
        if not self.stamps: return []
        if self.stamps is not True and name not in self.stamps and name not in ('start', 'end'): return []
        if self.stamps is True and name.startswith('_'): return []
        if name not in self.stamp_names: self.stamp_names.append(name)
        k = self.stamp_names.index(name); assert k < 12
        i = Ins(f's_{"memtime" if self.o("cyc", 0) else "memrealtime"} s[{78+2*k}:{79+2*k}]'); i.note = 'stamp'
        return [i]
    def check(self, loads, tagregs, tmp, sleep=4):
        k = self.npoll; self.npoll += 1
        def cmp():
            if len(tagregs) == 1: return L(f'v_cmp_ne_u32 vcc, {sN}, {tagregs[0]}')
            t = list(tagregs)
            o = L(f'v_xor_b32 {tmp}, {t[0]}, {t[1]}')
            for r in t[2:]: o += L(f'v_sad_u32 {tmp}, {t[0]}, {r}, {tmp} clamp')
            return o + L(f'v_sad_u32 {tmp}, {t[0]}, {sN}, {tmp} clamp\nv_cmp_ne_u32 vcc, 0, {tmp}')
        fast = cmp() + L(f's_cbranch_vccnz L_slow{k}\nL_back{k}:')
        if self.o('nocheck', 0) and (sleep == 4 or (sleep == 9 and (self.o('static', 0) or self.o('drop', 0) & 10))) and k >= self.o('nocheck', 0) - 1: fast[-2] = Ins('s_nop 0')
        dd = set()
        for i in loads:
            fast[-2].xuses |= (i.uses - dd); dd |= i.defs
        fast[-2].xdefs = set(r for r in dd if not isv(r)) | {'scc'}
        s = Stream()
        s.emit(f'L_slow{k}:\ns_sub_u32 {sBUD}, {sBUD}, 1\ns_cbranch_scc1 L_giveup{k}\ns_sleep {sleep if sleep != 4 else self.o("slp", 2)}')
        s.emit([Ins(i.text) for i in loads]); s.wait_all(); s.emit(cmp())
        s.emit(f's_cbranch_vccnz L_slow{k}\ns_branch L_back{k}\nL_giveup{k}:\ns_mov_b32 {sBUD}, 0\ns_branch L_back{k}')
        self.slow += s.out
        return fast
    def spoll(self, base, soff, off):
        k = self.npoll; self.npoll += 1
        ld = f's_load_dwordx4 s[{base}:{base+3}], s[4:5], {soff} offset:{off} glc'
        test = lambda lab: f's_cmp_lg_u64 s[{base}:{base+1}], s[8:9]\ns_cbranch_scc1 {lab}\ns_cmp_lg_u64 s[{base+2}:{base+3}], s[8:9]\ns_cbranch_scc1 {lab}'
        issue = L(ld); issue[0].note = 'async'
        fast = L(test(f'L_slow{k}') + f'\nL_back{k}:')
        if self.o('nocheck', 0): fast = L(test(f'L_back{k}') + f'\nL_back{k}:')
        self.slow += L(f'''
        L_again{k}:
        s_sub_u32 {sBUD}, {sBUD}, 1
        s_cbranch_scc1 L_giveup{k}
        {ld}
        L_slow{k}:
        s_waitcnt lgkmcnt(0)
        {test(f'L_again{k}')}
        s_branch L_back{k}
        L_giveup{k}:
        s_mov_b32 {sBUD}, 0
        s_branch L_back{k}
        ''')
        return issue, fast
    def barrier(self, waitfor=None): return [Ins('s_barrier', waitfor=waitfor)]
    def touch(self, pre):
        return L(f'''
        s_mov_b64 exec, 0
        s_cmp_eq_u32 s3, 0
        s_cbranch_scc1 {pre}0
        s_cmp_eq_u32 s3, 1
        s_cbranch_scc1 {pre}1
        s_cmp_eq_u32 s3, 2
        s_cbranch_scc1 {pre}2
        s_branch {pre}3
        ''')
    def prologue(self, S):
        S.emit(self.stamp('start'))
        S.emit(f'''
        s_cmp_ge_u32 s2, 256
        s_cbranch_scc1 L_exit
        s_load_dwordx2 s[8:9], s[0:1], 0
        s_load_dwordx16 s[16:31], s[0:1], 80
        s_load_dwordx16 s[32:47], s[0:1], 8
        v_lshrrev_b32 v1, 6, v0
        s_lshr_b32 {sJ}, s2, 3
        v_and_b32 v2, 63, v0
        v_readfirstlane_b32 s3, v1
        s_lshl_b32 s60, {sJ}, 2
        s_getpc_b64 s[76:77]
        s_add_u32 s60, s60, s3
        s_mul_i32 s60, s60, 384
        s_min_u32 s60, s60, @CODEMAX@
        s_add_u32 s76, s76, s60
        s_addc_u32 s77, s77, 0
        ''')
        S.emit(f'''
        v_lshlrev_b32 v3, 4, v2
        s_mov_b32 s10, 2621440
        s_mov_b32 s11, 0x20000
        s_and_b32 s63, s2, 127
        s_mul_i32 s60, s63, 20480
        s_mul_i32 s62, s3, 5120
        s_add_u32 s60, s60, s62
        s_add_u32 s65, s60, 4096
        s_mul_i32 s61, s3, {LNP}
        s_add_u32 s61, s61, {L_LN}
        s_mov_b32 m0, s61
        s_cmp_lt_u32 s2, 128
        s_cselect_b32 s62, 0, {OOB}
        v_or_b32 v125, s62, v3
        s_and_b32 {sXC}, s2, 7
        s_mul_i32 {sCB4}, {sXC}, 20
        s_add_u32 {sCB4}, {sCB4}, {sJ}
        s_lshl_b32 {sCH}, {sCB4}, 2
        s_add_u32 {sCH}, {sCH}, s3
        v_lshrrev_b32 v104, 3, v2
        v_bfe_u32 v105, v2, 4, 1
        v_lshlrev_b32 v105, 1, v105
        v_and_b32 v106, 7, v2
        v_xor_b32 v105, v105, v106
        v_lshlrev_b32 v105, 4, v105
        v_xor_b32 v106, 64, v105
        s_movk_i32 s64, 3072
        v_mad_u32_u24 v107, v104, s64, v105
        v_mad_u32_u24 v108, v104, s64, v106
        s_movk_i32 s64, 7680
        v_mad_u32_u24 v110, v104, s64, v105
        v_mad_u32_u24 v111, v104, s64, v106
        s_lshl_b32 s66, s3, 12
        s_add_u32 s66, s66, {L_STG}
        s_lshr_b32 s71, {sCH}, 1
        s_lshl_b32 s71, s71, 2
        s_min_u32 s71, s71, 1276
        s_mul_i32 s70, {sCH}, 384
        v_mul_u32_u24 v109, 6, v2
        v_and_b32 v109, 0x1fc, v109
        v_add_u32 v109, s70, v109
        v_min_u32 v4, 2, v2
        v_lshlrev_b32 v4, 7, v4
        s_and_b32 s70, {sXC}, 3
        s_lshl_b32 s70, s70, 2
        s_and_b32 {sSIG}, {sJ}, 3
        s_add_u32 {sSIG}, {sSIG}, s70
        s_lshr_b32 s70, {sXC}, 2
        s_lshl_b32 s70, s70, 3
        s_lshr_b32 {sR}, {sJ}, 2
        s_add_u32 {sR}, {sR}, s70
        s_mov_b32 {sBUD}, {BUD}
        s_cmp_ge_u32 {sJ}, 20
        s_cbranch_scc1 L_sp_pro
        s_waitcnt lgkmcnt(0)
        ''')
        srd = lambda: L(f'''
        s_mov_b64 s[12:13], s[26:27]
        s_mov_b64 s[28:29], s[24:25]
        s_mov_b64 s[48:49], s[22:23]
        s_mov_b64 s[24:25], s[20:21]
        s_mov_b64 s[20:21], s[18:19]
        s_mov_b32 s30, 4915200
        s_mov_b32 s31, s11
        s_mov_b32 s6, {WS_SIZE}
        s_mov_b32 s7, s11
        s_mov_b32 s14, s10
        s_mov_b32 s15, s11
        s_mov_b32 s18, 1966080
        s_mov_b32 s19, s11
        s_mov_b32 s22, s18
        s_mov_b32 s23, s11
        s_mov_b32 s26, s18
        s_mov_b32 s27, s11
        ''')
        pf = lambda: L('global_load_dword v252, v4, s[76:77]') if self.o('codepf', 1) else []
        S.emit(self.stamp('_karg'))
        S.emit(L('\n'.join(f'buffer_load_dwordx4 v125, {sX}, s60 offen offset:{o} nt lds' for o in (0, 1024, 2048, 3072)), tag='lndma'))
        S.emit('s_add_u32 m0, s61, 4096\ns_mov_b64 s[4:5], s[30:31]')
        S.emit(L(f'buffer_load_dwordx4 v125, {sX}, s65 offen nt lds', tag='lndma'))
        S.emit('s_mov_b32 s0, 0\ns_load_dword s68, s[44:45], s71\ns_load_dword s69, s[46:47], s71\ns_load_dword s67, s[4:5], 0')
        S.emit(pf())
        S.emit('\n'.join(f'global_load_dwordx2 v[{206+2*k}:{207+2*k}], v109, s[{32+2*k}:{33+2*k}] nt' for k in range(6)))
        S.emit(srd())
        cc = self.conv_consts(); nsh = max(2, min(len(cc), self.o('nshadow', 4)))
        S.emit(flat(cc[:nsh])); self.cc_late = flat(cc[nsh:])
        S.emit(self.stamp('_cst'))
        S.emit(self.common_consts())
        self.ln_w1(S)
        S.emit(self.stamp('ln'))
        self.st_conv = (list(S.vm), list(S.lg), [])
        S.emit('s_branch L_main')
        S.set_state(([], [], []))
        S.emit(f'''
        L_sp_pro:
        s_mul_i32 s70, {sXC}, 12
        s_add_u32 s70, s70, {sJ}
        s_sub_u32 s70, s70, 20
        v_min_u32 v12, 159, v0
        v_lshlrev_b32 v12, 3, v12
        ''')
        md = self.mod_dma('s70')
        S.emit(md[0]); S.out += L('s_waitcnt lgkmcnt(0)')
        S.emit('s_mov_b64 s[4:5], s[30:31]'); sr = srd(); S.emit(sr[:7])
        S.emit('global_load_dwordx2 v[200:201], v12, s[48:49]'); S.emit(pf())
        S.emit(flat(md[1])); S.emit('s_mov_b32 s0, 1\ns_load_dword s67, s[4:5], 0'); S.emit(sr[7:])
        self.st_spare = S.state()
        S.emit(f'''
        s_branch L_spare
        L_tdone2:
        s_mov_b64 exec, -1
        s_cmp_eq_u32 s0, 1
        s_cbranch_scc1 L_sp_t2
        s_branch L_cv_t2
        L_exit:
        s_endpgm
        ''')
    def mod_dma(self, su, scol='s71', lbase=0, tag='moddma'):
        o = L(f'''
        s_lshr_b32 s58, {su}, 1
        s_mul_hi_u32 s59, s58, {(2**32 + 9)//10}
        s_mul_i32 {scol}, s59, 10
        s_sub_u32 s58, s58, {scol}
        s_lshl_b32 s59, s59, 2
        s_lshr_b32 s59, 0x534210, s59
        s_and_b32 s59, s59, 15
        s_mul_i32 {scol}, s59, 640
        s_lshl_b32 s58, s58, 6
        s_add_u32 {scol}, {scol}, s58
        s_and_b32 s58, {su}, 1
        s_mul_i32 s58, s58, {320*7680}
        s_mul_i32 s59, s3, {80*7680}
        s_add_u32 s72, s58, s59
        s_lshl_b32 s58, {scol}, 1
        s_add_u32 s72, s72, s58
        s_mul_i32 s73, s3, 10240
        ''')
        items = []
        for d in range(10):
            it = L(f's_add_u32 m0, s73, {lbase + 1024*d}')
            it += L('s_nop 0') if d == 0 else L(f's_add_u32 s72, s72, {8*7680}')
            it += L(f'buffer_load_dwordx4 v{110+(d&1)}, {sWM}, s72 offen nt lds', tag=tag)
            items.append(it)
        return o, items
    def common_consts(self):
        return L(f'''
        v_lshrrev_b32 v112, 4, v2
        v_bfe_u32 v113, v2, 2, 2
        v_lshlrev_b32 v114, 10, v112
        v_lshl_add_u32 v114, v113, 7, v114
        v_and_b32 v112, 1, v112
        v_lshrrev_b32 v113, 1, v113
        v_lshl_or_b32 v112, v112, 1, v113
        v_lshl_add_u32 v114, v112, 5, v114
        v_and_b32 v112, 3, v2
        v_lshl_add_u32 v112, v112, 3, v114
        v_add_u32 v112, s66, v112
        v_xor_b32 v113, 32, v112
        v_xor_b32 v114, 64, v112
        v_xor_b32 v115, 96, v112
        s_mul_i32 s65, s2, {self.FS}
        s_add_u32 s65, s65, {WS_FLA}
        s_and_b32 s58, {sXC}, {self.RA - 1}
        s_mul_i32 s58, s58, {self.AREP}
        s_add_u32 s58, s58, {WS_FLA}
        v_lshrrev_b32 v28, 1, v0
        v_mul_u32_u24 v28, {self.FS}, v28
        v_add_u32 v28, s58, v28
        ''')
    def late_consts(self):
        return L(f'''
        s_mul_i32 {sN}, s67, 1664525
        s_add_u32 {sN}, {sN}, 1013904223
        s_lshl_b32 s59, s68, 16
        s_and_b32 s68, s68, 0xffff0000
        s_lshl_b32 s67, s69, 16
        s_and_b32 s69, s69, 0xffff0000
        s_and_b32 s58, {sCH}, 1
        s_cselect_b32 s68, s68, s59
        s_cselect_b32 s69, s69, s67
        v_mov_b32 v226, s68
        v_mul_f32 v226, 0x3fb8aa3b, v226
        v_exp_f32 v226, v226
        v_mov_b32 v245, 0
        v_writelane_b32 v245, s69, 0
        v_cvt_pk_bf16_f32 v226, 0, v226
        v_mul_f32 v220, 0x3fb8aa3b, v226
        v_mul_f32 v223, 0.15915494, v226
        v_mul_f32 v221, 0x41000000, v220
        v_mul_f32 v224, 0x41000000, v223
        v_mul_f32 v222, 0x43800000, v220
        v_mul_f32 v225, 0x43800000, v223
        ''')
    def ln_w1(self, S):
        S.emit(f'''
        v_lshrrev_b32 v123, 4, v2
        v_mul_u32_u24 v120, {1280 - 256}, v123
        v_add3_u32 v120, v120, v3, s61
        v_bfe_u32 v121, v2, 2, 2
        v_mul_u32_u24 v121, 1280, v121
        v_lshl_add_u32 v121, v123, 4, v121
        v_and_b32 v122, 1, v2
        v_mul_u32_u24 v122, {2*LNP}, v122
        v_and_b32 v123, 2, v2
        v_lshl_add_u32 v121, v123, 2, v121
        s_mul_i32 s58, s3, 320
        s_add_u32 s58, s58, {L_LN}
        v_add3_u32 v121, v121, v122, s58
        v_mul_u32_u24 v124, {self.XP - 128}, v104
        v_add_u32 v124, v124, v125
        v_mov_b32 v126, {OOB}
        s_and_b32 s58, s3, 1
        s_lshl_b32 s58, s58, 13
        s_lshl_b32 s59, s63, 1
        s_lshr_b32 s60, s3, 1
        s_add_u32 s59, s59, s60
        s_lshl_b32 s59, s59, 4
        s_add_u32 s58, s58, s59
        s_add_u32 s58, s58, {WS_STAT}
        s_or_b32 s58, s58, s62
        s_add_u32 s59, s58, 4096
        v_writelane_b32 v126, s58, 0
        v_writelane_b32 v126, s59, 32
        ''')
        S.emit(self.touch('L_stub')); S.emit('L_tdone:\ns_mov_b64 exec, -1')
        S.emit(self.stamp('_touched'))
        S.emit(self.late_consts())
        S.emit(f'''
        s_mul_i32 s58, s3, {40*self.XP}
        s_lshl_b32 s59, s63, 7
        s_add_u32 s58, s58, s59
        s_add_u32 s60, s58, {WS_XT}
        s_mov_b32 s59, 0x3f803f80
        ''')
        S.emit(self.stamp('_preln'))
        S.wait_tags(['lndma'])
        S.emit(self.stamp('_lndma'))
        S.emit('\n'.join(f'ds_read_b128 v[{128+4*i}:{131+4*i}], v120 offset:{256*i}' for i in range(5)) + '\ns_barrier')
        for p in range(5):
            S.emit(f'ds_read_b64_tr_b16 v[{32+4*p}:{33+4*p}], v121 offset:{64*p}\nds_read_b64_tr_b16 v[{34+4*p}:{35+4*p}], v121 offset:{64*p+LNP}')
        xst = [L(f'buffer_store_dwordx4 v[{32+4*p}:{35+4*p}], v124, {sWS}, s60 offen sc1', tag='pa') + (L(f's_add_u32 s60, s60, {8*self.XP}') if p < 4 else []) for p in range(5)]
        self.xst = xst
        for r in range(128, 148):
            c1, c2 = ('0', '0') if r == 128 else ('v116', 'v117')
            S.emit(f'v_dot2_f32_bf16 v116, v{r}, s59, {c1}\nv_dot2_f32_bf16 v117, v{r}, v{r}, {c2}')
            if r == 131: S.emit(xst[0])
        S.emit(xst[1])
        for k in (8, 4, 2, 1):
            S.emit(f'v_add_f32_dpp v116, v116, v116 row_ror:{k} row_mask:0xf bank_mask:0xf\nv_add_f32_dpp v117, v117, v117 row_ror:{k} row_mask:0xf bank_mask:0xf')
        S.emit(self.finish_stats('v116', 'v117', 'v118'))
        S.emit(f'''
        v_and_b32 v116, 0xffff0000, v118
        v_rcp_f32 v116, v116
        v_lshlrev_b32 v118, 16, v118
        v_mul_f32 v118, -v118, v116
        v_permlane16_swap_b32 v116, v117
        v_permlane16_swap_b32 v118, v119
        ''')
        S.emit(L(f'buffer_store_dwordx4 v[116:119], v126, {sWS}, 0 offen sc1', tag='pa'))
        S.emit(xst[2])
    def finish_stats(self, s1, s2, out):
        return L(f'''
        v_mul_f32 {s1}, 0x3acccccd, {s1}
        v_mul_f32 {s2}, 0x3acccccd, {s2}
        v_fma_f32 {s2}, -{s1}, {s1}, {s2}
        v_max_f32 {s2}, 0, {s2}
        v_cvt_pk_bf16_f32 {s2}, 0, {s2}
        v_add_f32 {s2}, 0x3727c5ac, {s2}
        v_cvt_pk_bf16_f32 {s2}, 0, {s2}
        v_sqrt_f32 {s2}, {s2}
        v_cvt_pk_bf16_f32 {out}, {s1}, {s2}
        ''')
    def prep_task(self, dmatag, sdst, stride, sttag, tmp, loff=0, va='v3'):
        o = []
        for t in range(4):
            o += L(f'ds_read_b64_tr_b16 v[{tmp+4*t}:{tmp+4*t+1}], v{112+t} offset:{loff}\nds_read_b64_tr_b16 v[{tmp+4*t+2}:{tmp+4*t+3}], v{112+t} offset:{loff+512}', waitfor=[dmatag])
        for t in range(4):
            o += L(f'buffer_store_dwordx4 v[{tmp+4*t}:{tmp+4*t+3}], {va}, {sWS}, {sdst} offen sc1', tag=sttag)
            if t < 3: o += L(f's_add_u32 {sdst}, {sdst}, {stride}')
        return o
    def w1_setup(self):
        return L(f'''
        s_mul_hi_u32 s58, s2, {(2**32 + 19)//20}
        s_mul_i32 s59, s58, 20
        s_sub_u32 s59, s2, s59
        s_lshl_b32 s59, s59, 1
        s_and_b32 s36, s3, 1
        s_add_u32 s59, s59, s36
        s_lshr_b32 s37, s3, 1
        s_mul_i32 s34, s59, {16*3072}
        s_mul_i32 s32, s58, 384
        s_add_u32 s34, s34, s32
        s_lshl_b32 s32, s37, 7
        s_add_u32 s32, s32, s34
        s_add_u32 s33, s32, {8*3072}
        s_mul_i32 s35, s37, {8*3072}
        s_add_u32 s34, s34, s35
        s_add_u32 s34, s34, 256
        s_mul_i32 s58, s58, 480
        s_add_u32 s58, s58, s59
        s_lshl_b32 s58, s58, 10
        s_add_u32 s58, s58, {WS_W1P}
        s_mul_i32 s35, s37, 163840
        s_add_u32 s35, s35, s58
        s_lshl_b32 s36, s37, 9
        s_add_u32 s36, s36, s58
        s_add_u32 s36, s36, 327680
        s_add_u32 s37, s66, {L_X - L_STG}
        v_lshrrev_b32 v199, 5, v2
        v_mul_u32_u24 v199, {40960 - 512}, v199
        v_add_u32 v199, v199, v3
        ''')
    def w1_dma(self):
        o = []
        for d in range(6):
            o += L(f's_add_u32 m0, {"s66" if d < 4 else "s37"}, {1024*(d & 3)}')
            o += L(['v_cmp_gt_u32 vcc, 32, v2', 'v_add_u32 v197, -2048, v113', 's_sub_u32 s58, s37, s66', 'v_cndmask_b32 v197, v197, v112, vcc', 'v_add_u32 v197, s58, v197', 'v_xor_b32 v198, 64, v197'][d])
            o += L(f'buffer_load_dwordx4 v{107+(d&1)}, {sWU if d&1 else sWG}, s{32+(d>>1)} offen nt lds', tag='w1dma')
        return o
    def w1_task(self):
        o = self.prep_task('w1dma', 's35', 40960, 'pw', tmp=32)
        h = []
        for t in range(2):
            h += L(f'ds_read_b64_tr_b16 v[{48+4*t}:{49+4*t}], v{197+t}\nds_read_b64_tr_b16 v[{50+4*t}:{51+4*t}], v{197+t} offset:512')
        o = o[:8] + h + o[8:]
        o += L(f'buffer_store_dwordx4 v[48:51], v199, {sWS}, s36 offen sc1', tag='pw') + L('s_add_u32 s36, s36, 81920')
        o += L(f'buffer_store_dwordx4 v[52:55], v199, {sWS}, s36 offen sc1', tag='pw')
        return o
    def flagW(self): return self.barrier(['pw']) + L(f's_atomic_swap {sN}, s[4:5], s64 offset:{FLW_OFF}')
    def arrive(self, k, tag):
        return L('s_mov_b64 exec, 1') + L(f'ds_add_rtn_u32 v59, v254, v255 offset:{4*k}', waitfor=[tag]) + L('s_mov_b64 exec, -1')
    def publish(self, k):
        R = self.RA
        return L(f'v_readfirstlane_b32 s58, v59\ns_nop 0\ns_cmp_lg_u32 s58, 3\ns_cbranch_scc1 L_nopub{k}\n'
                 + '\n'.join(f's_atomic_swap {sN}, s[4:5], s65 offset:{k*FLW_OFF + r*self.AREP}' for r in range(R)) + f'\nL_nopub{k}:')
    def pollW(self): return L(f'buffer_load_dword v4, v6, {sWS}, 0 offen sc1')
    def flagA(self):
        self.nfa = getattr(self, 'nfa', 0) + 1
        return self.barrier(['pa']) + L(f's_cmp_ge_u32 s3, {self.RA}\ns_cbranch_scc1 L_nfa{self.nfa}\ns_atomic_swap {sN}, s[4:5], s64\nL_nfa{self.nfa}:')
    def g_setup(self):
        return L(f'''
        s_lshr_b32 s58, s3, 1
        s_mul_i32 s58, s58, 3
        s_mul_i32 s59, {sSIG}, 6
        s_add_u32 s58, s58, s59
        s_and_b32 s59, s3, 1
        s_lshr_b32 s74, {sSIG}, 1
        s_mul_i32 s74, s74, 20
        s_mul_i32 s76, s59, 10
        s_add_u32 s74, s74, s76
        s_and_b32 s76, {sXC}, {self.RA - 1}
        s_lshl_b32 s76, s76, 8
        s_add_u32 s74, s74, s76
        v_min_u32 v6, 9, v2
        v_add_u32 v6, s74, v6
        v_mul_u32_u24 v6, {self.FS}, v6
        v_add_u32 v6, {WS_FLA + FLW_OFF}, v6
        s_lshl_b32 s74, s59, 7
        v_xor_b32 v5, s74, v3
        s_mul_i32 s58, s58, 40960
        s_mul_i32 s74, s59, 20480
        s_add_u32 s58, s58, s74
        s_add_u32 s58, s58, {WS_W1P}
        s_mul_i32 s59, s59, 40960
        s_add_u32 s76, s58, s59
        s_sub_u32 s74, s58, s59
        s_add_u32 s74, s74, 40960
        s_add_u32 s75, s58, 81920
        ''')
    def tile_consts(self):
        return L(f'''
        v_bfe_u32 v4, v2, 3, 1
        v_lshrrev_b32 v6, 5, v2
        v_lshl_or_b32 v4, v6, 1, v4
        v_lshlrev_b32 v4, 4, v4
        v_xor_b32 v6, v4, v3
        s_mul_i32 s58, s3, 40
        s_and_b32 s59, {sXC}, {self.RC - 1}
        s_mul_i32 s59, s59, 160
        s_add_u32 s58, s58, s59
        v_min_u32 v4, 39, v2
        v_add_u32 v4, s58, v4
        v_mul_u32_u24 v4, {self.FC}, v4
        v_add_u32 v4, {WS_FLC}, v4
        s_mul_i32 s61, s3, 10240
        s_mul_i32 s60, {sR}, {self.TPI}
        s_add_u32 s60, s60, s61
        s_add_u32 s60, s60, {WS_X1S}
        ''')
    def w1_loads(self, k0=0, k1=60, only=None, skip=None):
        ks = list(range(k0, k1))
        ks = [k for k in ks if (only is None or k % 3 == only) and k % 3 != skip]
        items = []; cur = {}
        for k in ks:
            s, role = divmod(k, 3); a = 4*k
            if cur.get(role) != s//4: items.append(L(f's_add_u32 s{67+role}, s{74+role}, {4096*(s//4)}')); cur[role] = s//4
            items.append(L(f'buffer_load_dwordx4 a[{a}:{a+3}], {"v5" if role == 1 else "v3"}, {sWS}, s{67+role} offen offset:{1024*(s%4)} sc1'))
        return items
    def w1_touch(self):
        if not self.o('w1touch', 1): return []
        return L(f'''
        s_and_b32 s58, {sR}, 7
        s_lshl_b32 s58, s58, 2
        s_add_u32 s58, s58, s3
        s_mul_i32 s58, s58, 7680
        s_mul_i32 s59, {sSIG}, 245760
        s_add_u32 s58, s58, s59
        s_add_u32 s58, s58, {WS_W1P}
        v_min_u32 v95, 59, v2
        v_lshlrev_b32 v95, 7, v95
        buffer_load_dword v95, v95, {sWS}, s58 offen sc1
        ''')
    def tile_dma(self, j):
        items = []
        for i in range(10):
            it = []
            if i % 4 == 0:
                items += [L(f's_add_u32 m0, s61, {L_SLOT[j] + 1024*i}'), L(f's_add_u32 s62, s60, {j*16*self.TPI + 1024*i}')]
            it += L(f'buffer_load_dwordx4 v6, {sWS}, s62 offen offset:{1024*(i%4)} sc1 lds', tag=f'tile{j}')
            items.append(it)
        return items
    def pollC(self, stage, dst):
        o = L(f's_mov_b32 s63, {stage*self.CSTG}\nbuffer_load_dword {dst}, v4, {sWS}, s63 offen sc1'); o[1].lines = 40*self.FC//128
        return o
    def ic2_loads(self):
        return [L(f's_mov_b32 s62, {WS_IC2}'), L('v_lshlrev_b32 v28, 3, v2'), L(f'buffer_load_dwordx4 v[20:23], v3, {sWS}, s62 offen sc1'),
                L(f'buffer_load_dwordx4 v[24:27], v3, {sWS}, s62 offen offset:1024 sc1'),
                L(f'buffer_load_dwordx2 v[28:29], v28, {sWS}, s62 offen offset:2048 sc1')]
    def cmul(self, out, z, e, t):
        return L(f'''
        v_pk_mul_f32 v[{t}:{t+1}], v[{z}:{z+1}], v[{e}:{e+1}] op_sel:[0,0] op_sel_hi:[1,0]
        v_pk_fma_f32 v[{out}:{out+1}], v[{z}:{z+1}], v[{e}:{e+1}], v[{t}:{t+1}] op_sel:[1,1,0] op_sel_hi:[0,1,1] neg_lo:[1,0,0]
        ''')
    ALPHA = {}
    for _h in range(2):
        for _r in range(5): ALPHA[(_h, _r)] = 4*_h + _r
        for _k in range(3): ALPHA[(_h, 5+_k)] = 256 + 4*_h + 2*_k; ALPHA[(_h, 8+_k)] = 512 + 256*_h + 4*_k
        ALPHA[(_h, 11)] = 1032 + 256*_h; ALPHA[(_h, 12)] = 1544 + 256*_h
    def alpha_rows(self):
        di = lambda h, r: 8*(r >> 2) + 4*h + (r & 3)
        row = {}; fixes = {}
        for (h, r), al in sorted(self.ALPHA.items(), key=lambda x: di(*x[0])):
            i = di(h, r)
            if al in row: fixes[i] = row[al]
            else: row[al] = i
        free = sorted(fixes.keys())
        for al, i in list(row.items()):
            if i >= 24: row[al] = free.pop(0); fixes[i] = row[al]
        assert max(row.values()) < 24 and len(set(row.values())) == 24
        return row, fixes
    def kgen_setup(self, slot):
        P = 200; o = L('\n'.join(f'v_perm_b32 v{P+k}, v{207+2*k}, v{206+2*k}, v{194+slot}' for k in range(6)))
        for k in range(3): o += L(f'v_mul_f32 v{66+k}, v{P}, v{220+k}\nv_mul_f32 v{61+2*k}, v{P+1}, v{223+k}')
        for k in range(3): o += L(f'v_exp_f32 v{66+k}, v{66+k}\nv_fract_f32 v{61+2*k}, v{61+2*k}')
        for k in range(3): o += L(f'v_cos_f32 v{60+2*k}, v{61+2*k}\nv_sin_f32 v{61+2*k}, v{61+2*k}')
        for k in range(3): o += L(f'v_mul_f32 v{60+2*k}, v{60+2*k}, v{66+k}\nv_mul_f32 v{61+2*k}, v{61+2*k}, v{66+k}')
        o += L(f'v_mul_f32 v{P+2}, v{P+2}, v226\nv_mul_f32 v{P+3}, v{P+3}, v226')
        return o
    def kgen_chains(self, slot):
        P = 200; E1, E8, E256 = 60, 62, 64; T = 70
        row, _ = self.alpha_rows()
        U = lambda k: 76 + 2*k
        pts = []
        pts.append((self.cmul(U(0), P+4, P+2, T), U(0), 32+row[0], True))
        for k in range(1, 9): pts.append((self.cmul(U(k), U(k-1), E1, T), U(k), 32+row[k], True))
        for e in (0, 2, 4, 6, 8): pts.append((self.cmul(U(e), U(e), E256, T), U(e), 32+row[256+e], True))
        for b in (512, 768):
            for e in (0, 4, 8): pts.append((self.cmul(U(e), U(e), E256, T), U(e), 32+row[b+e], True))
        for b in range(4): pts.append((self.cmul(U(8), U(8), E256, T), U(8), 32+row[1032+256*b], True))
        pts.append(([], E8, 1, False))
        pts.append((self.cmul(74, E8, E8, T), 74, 2, False))
        for j in range(3, 32): pts.append((self.cmul(74, 74, E8, T), 74, j, False))
        B = self.o('kbatch', 11); out = []
        for i in range(0, len(pts), B):
            o = []; w = []
            for k, (c, z, r, neg) in enumerate(pts[i:i+B]):
                o += c + L(f'v_cvt_pk_bf16_f32 v{230+k}, v{z}, {"-" if neg else ""}v{z+1}')
                if not self.o('nowr', 0): w += L(f'ds_write_addtid_b32 v{230+k} offset:{r*TP}')
            out.append(o + w)
        ard = [L(f'ds_read_b128 v[{128+8*k}:{131+8*k}], v227 offset:{32*k}')[0] for k in range(8)]
        first = -(-24 // B) - 1
        out[first] += ard[:3]; out[first+1] += ard[3:]
        return out
    def kgen_mfma(self, slot, fillers, sfill):
        o = []
        for k in range(8):
            o += L(f'ds_read_b128 v[{132+8*k}:{135+8*k}], v228 offset:{32*k}')
        npre = self.o('kpre', 12)
        bb = [Ins(f'v_mfma_f32_32x32x16_bf16 v[96:111], v[{128+8*k}:{131+8*k}], v[{132+8*k}:{135+8*k}], {"0" if slot == 0 and k == 0 else "v[96:111]"}') for k in range(8)]
        return o + fillers[:npre] + interleave(bb, [Fill(fillers[npre:], 0, 6, ahead=8, prio=2), Fill(sfill, 0, 6, ahead=8)])
    def conv_consts(self):
        row, fixes = self.alpha_rows()
        b0 = L(f'''
        v_and_b32 v194, 1, v2
        v_mul_u32_u24 v194, 0x0202, v194
        v_lshlrev_b32 v194, 16, v194
        v_add_u32 v194, 0x01000c0c, v194
        v_add_u32 v195, 0x02020000, v194
        v_add_u32 v196, 0x02020000, v195
        v_and_b32 v228, 31, v2
        v_min_u32 v227, 23, v228
        s_lshl_b32 s70, s3, 14
        s_mul_i32 s71, s3, {KC_PITCH}
        s_add_u32 s71, s71, {L_KC}
        s_mul_i32 s72, s3, {H_PITCH}
        s_add_u32 s72, s72, {L_H}
        ''')
        for i, rr in fixes.items():
            b0 += L(f'v_writelane_b32 v227, {rr}, {i}\nv_writelane_b32 v227, {rr}, {i+32}')
        b0 += L(f'''
        v_lshrrev_b32 v229, 5, v2
        v_lshlrev_b32 v243, 4, v228
        v_lshl_add_u32 v242, v229, 3, v243
        v_sub_u32 v242, s71, v242
        v_lshl_add_u32 v243, v229, 9, v243
        v_sub_u32 v243, s71, v243
        v_lshlrev_b32 v244, 1, v2
        v_sub_u32 v244, s71, v244
        v_mov_b32 v246, s71
        v_lshl_add_u32 v229, v229, 4, s70
        s_movk_i32 s58, {TP}
        v_add_u32 v227, 32, v227
        v_mad_u32_u24 v227, v227, s58, v229
        v_mad_u32_u24 v228, v228, s58, v229
        v_mov_b32 v72, 0x00003f80
        v_mov_b32 v56, 0
        v_mov_b32 v57, 0
        v_lshl_add_u32 v58, v2, 3, s72
        v_and_b32 v7, 15, v2
        v_lshl_add_u32 v59, v7, 2, s71
        v_lshl_add_u32 v73, v2, 2, s70
        ds_write_b32 v73, v72
        ds_write_b64 v58, v[56:57]
        ds_write_b32 v59, v56
        ds_write_b32 v59, v56 offset:{2112}
        ds_write_b32 v59, v56 offset:{KC1}
        ds_write_b32 v59, v56 offset:{KC1 + 2116}
        ds_write_b32 v59, v56 offset:{KCD + 256}
        v_mov_b32 v254, {L_CST}
        v_mov_b32 v255, 1
        ds_write_b64 v254, v[56:57]
        ''')
        b1 = L(f'''
        v_bfe_u32 v247, v0, 2, 2
        v_lshlrev_b32 v247, 4, v247
        v_lshl_add_u32 v247, v0, 6, v247
        v_add_u32 v247, {L_X}, v247
        v_xor_b32 v248, 16, v247
        v_xor_b32 v249, 32, v247
        v_xor_b32 v250, 48, v247
        v_lshlrev_b32 v192, 4, v0
        v_add_u32 v251, {L_H + 512}, v192
        v_lshrrev_b32 v8, 4, v2
        v_lshlrev_b32 v193, 4, v8
        v_lshlrev_b32 v9, 5, v7
        v_add3_u32 v9, v9, v193, s72
        v_and_b32 v10, 1, v7
        v_mul_u32_u24 v10, {KC1 + 2}, v10
        v_add3_u32 v10, v10, v193, s71
        v_xor_b32 v193, v193, v3
        v_lshlrev_b32 v11, 1, v7
        v_sub_u32 v10, v10, v11
        v_add_u32 v12, {P2 - 32 - 1024 - 960}, v10
        v_add_u32 v10, {P2 - 32 - 960}, v10
        v_lshrrev_b32 v29, 2, v7
        v_lshrrev_b32 v16, 1, v29
        v_and_b32 v16, v16, v29
        v_add_u32 v29, v29, v16
        v_and_b32 v14, 1, v8
        v_mad_u32_u24 v29, v14, 6, v29
        v_mul_u32_u24 v29, 640, v29
        v_and_b32 v16, 3, v7
        s_lshl_b32 s58, {sCB4}, 2
        s_add_u32 s58, s58, {WS_MODP//8}
        v_add3_u32 v29, v29, v16, s58
        v_lshlrev_b32 v29, 3, v29
        ''')
        return [self.w1_setup(), b0, b1, self.g_setup()]
    def conv_late(self):
        c0 = L(f'''
        v_bfe_u32 v13, v7, 1, 2
        v_xor_b32 v13, s3, v13
        v_lshlrev_b32 v13, 4, v13
        v_lshl_add_u32 v13, v7, 7, v13
        v_lshl_add_u32 v13, v14, 6, v13
        v_add_u32 v13, {L_X}, v13
        ''')
        c1 = L(f'''
        v_lshlrev_b32 v15, 3, v14
        v_lshrrev_b32 v28, 2, v7
        v_lshl_add_u32 v15, v28, 1, v15
        v_lshrrev_b32 v28, 1, v8
        v_add_u32 v15, v15, v28
        v_mul_u32_u24 v15, {self.TPI}, v15
        v_and_b32 v28, 3, v7
        v_lshl_add_u32 v15, v28, 4, v15
        s_lshl_b32 s32, {sCH}, 6
        s_add_u32 s32, s32, {WS_X1S}
        v_add_u32 v15, s32, v15
        ''')
        c2 = L(f'''
        s_movk_i32 s33, 0x1ff0
        v_lshlrev_b32 v28, 3, v8
        v_lshlrev_b32 v29, v7, s33
        s_movk_i32 s33, 0x0fe0
        v_lshrrev_b32 v29, v28, v29
        v_lshlrev_b32 v30, v7, s33
        s_mov_b32 s33, 0x8001
        v_lshrrev_b32 v30, v28, v30
        s_mov_b32 s34, 0x10001
        ''')
        for dst, m in ((20, 29), (24, 30)):
            for dw in range(4):
                c2 += L(f'''
                v_bfe_u32 v{dst+dw}, v{m}, {2*dw}, 2
                v_mul_u32_u24 v{dst+dw}, s33, v{dst+dw}
                v_and_b32 v{dst+dw}, s34, v{dst+dw}
                v_mul_u32_u24 v{dst+dw}, 0x3f80, v{dst+dw}
                ''')
        c3 = L(f'''
        v_add_u32 v11, {-1088}, v10
        v_lshlrev_b32 v14, 2, v8
        v_sub_u32 v14, v14, v7
        v_lshl_add_u32 v14, v14, 2, s71
        v_add_u32 v14, {KCD + 60}, v14
        s_mul_i32 s66, s3, {self.RC//4*self.CREP}
        s_mul_i32 s33, {sCB4}, {self.FC}
        s_add_u32 s66, s66, s33
        s_add_u32 s66, s66, {WS_FLC}
        ''')
        return c0, c1, c2, c3
    def conv_path(self, S):
        S.set_state(self.st_conv)
        S.emit('L_main:'); S.dummy = 'ds_read_b32 v1, v3'
        S.emit(self.cc_late); S.emit('s_mov_b32 m0, s70')
        pollA = L(f'buffer_load_dword v58, v28, {sWS}, 0 offen sc1')
        modld = L(f'buffer_load_dwordx2 v[56:57], v29, {sWS}, 0 offen sc1')
        pollW = self.pollW()
        xld = (L('s_mov_b32 m0, s43') + L('\n'.join(f'buffer_load_dwordx4 v[{32+4*g}:{35+4*g}], v192, {sWS}, {so} offen sc1' for g, so in enumerate(('s44', 's45', 's49', 's77'))))
               + L('\n'.join(f'buffer_load_dwordx4 v193, {sWS}, s42 offen offset:{1024*i} sc1 lds' for i in range(4)), tag='xdma') + L('s_mov_b32 m0, s70'))
        set0 = L(f'''
        s_mul_i32 s42, {sCB4}, {self.XP}
        s_lshl_b32 s43, s3, 12
        s_add_u32 s42, s42, s43
        s_add_u32 s42, s42, {WS_XT}
        s_add_u32 s43, s43, {L_X}
        s_movk_i32 s44, {WS_STAT}
        s_movk_i32 s45, {WS_STAT + 0x1000}
        s_movk_i32 s49, {WS_STAT + 0x2000}
        s_movk_i32 s77, {WS_STAT + 0x3000}
        ''')
        set1 = L(f's_lshl_b32 s73, s2, 4\ns_add_u32 s73, s73, {WS_IC2}\ns_and_b32 s62, s2, 3')
        modv = self.stamp('_mod0') + self.check(modld, ['v57'], None) + self.stamp('_modok') + L(f'''
        v_mov_b32 v57, v56
        v_bfe_u32 v52, v2, 2, 1
        v_cvt_f32_u32 v52, v52
        v_permlane16_swap_b32 v56, v57
        v_add_f32 v48, v56, v57
        v_cvt_pk_bf16_f32 v48, 0, v48
        v_add_f32 v48, v48, v52
        v_cvt_pk_bf16_f32 v48, 0, v48
        s_add_u32 s58, s3, 8
        s_add_u32 s59, s3, 12
        v_readlane_b32 s40, v48, s58
        v_readlane_b32 s41, v48, s59
        ''')
        for c in range(4): modv += L(f'v_readlane_b32 s{32+2*c}, v48, {4+c}\nv_readlane_b32 s{33+2*c}, v48, {c}')
        modv += L(f'''
        s_and_b32 s58, s41, 0x7fffffff
        s_cselect_b32 s41, s41, 0x21800000
        v_mov_b32 v51, s41
        v_mul_f32 v51, s40, v51
        v_mov_b32 v52, 0x21800000
        v_cmp_eq_f32 vcc, 0, v48
        v_add_u32 v54, -12, v0
        v_xor_b32 v55, s62, v54
        v_lshl_add_u32 v55, v55, 2, s73
        v_cndmask_b32 v52, v48, v52, vcc
        v_cmp_gt_u32 vcc, 4, v54
        v_rcp_f32 v127, v52
        v_mov_b32 v126, {OOB}
        v_cndmask_b32 v126, v126, v55, vcc
        v_lshlrev_b32 v53, 4, v2
        v_alignbit_b32 v53, s41, s41, v53
        v_alignbit_b32 v53, v53, v53, 16
        v_lshrrev_b32 v54, 1, v7
        v_lshlrev_b32 v55, 2, v8
        v_sub_u32 v54, v54, v55
        v_cmp_eq_u32 vcc, 0, v54
        v_cmp_eq_u32 s[58:59], 1, v54
        v_cmp_eq_u32 s[62:63], 2, v54
        v_cmp_eq_u32 s[64:65], 3, v54
        v_cndmask_b32 v16, 0, v53, vcc
        v_cndmask_b32 v17, 0, v53, s[58:59]
        v_cndmask_b32 v18, 0, v53, s[62:63]
        v_cndmask_b32 v19, 0, v53, s[64:65]
        ''')
        segs = []
        for slot in range(3):
            segs += self.kgen_chains(slot)
            segs.append(self.kgen_mfma(slot, [self.kgen_setup(1), self.kgen_setup(2), modv][slot], [set0, set1, []][slot]) + self.stamp(f'slot{slot}'))
        ns = len(segs)//3
        pos = lambda name, slot, frac: min(len(segs) - 1, int(round(ns*(self.o(name, int(100*(slot + frac)))/100.0))) - 1)
        ev = {}
        def at(p, code): ev.setdefault(p, []).extend(code)
        pfa, pw1, pfw = pos('e_fla', 1, 0), pos('e_w1', 1, .17), pos('e_flw', 2, .34)
        ppa, pca, pmo, ppw = pos('e_pa', 2, 0), pos('e_ca', 2, .67), pos('e_mo', 2, .34), pos('e_pw', 3, 0)
        assert pfa <= pw1 and pfw < 3*ns - 1 and pca >= max(ppa, ns - 1, pw1) and pmo < 3*ns - 1 and pfw >= pw1
        at(pfa, self.stamp('_ch0') + self.arrive(0, 'pa') + self.stamp('_fla'))
        at(pfa + 1, self.publish(0))
        at(pos('e_t2', 2, .5), self.stamp('_ta') + self.touch('L_gp') + L('L_cv_t2:') + self.stamp('_tb'))
        pwd = pos('e_wd', 0, .17); assert pwd < min(pw1, ns - 1)
        at(pwd, self.w1_dma() + L('s_mov_b32 m0, s70'))
        wt = self.w1_task(); rd, st_ = wt[:12], wt[12:]
        groups = []
        for i in st_:
            if i.kind == 'vmem': groups.append([i])
            else: groups[-1].append(i)
        per = self.o('wsper', 2); at(pw1, rd); plast = pw1
        for k in range(0, 6, per):
            plast = pw1 + 1 + k//per; at(plast, flat(groups[k:k+per]))
        assert pfw >= plast and pca >= pw1 + 1 + 3//per
        at(pfw, self.stamp('_fw0') + self.arrive(1, 'pw') + self.stamp('_fw1')); at(pfw + 1, self.publish(1)); assert pfw + 1 < 3*ns - 1
        at(ppa, pollA)
        at(pmo, modld)
        at(pca, self.stamp('_a0') + self.check(pollA, ['v58'], None) + self.stamp('_aok') + xld)
        if self.o('e_cw', 402) < 500: at(ppw, pollW)
        ecw = self.o('e_cw', 402); nearly = self.o('w1e', 5); npre_w1 = 0
        wchk = self.stamp('_w0') + self.check(pollW, ['v4'], None) + self.stamp('_wok')
        if ecw <= 300:
            pcw = pos('e_cw', 3, 0); assert pcw >= ppw
            at(pcw, wchk)
            for k in range(pcw, len(segs)):
                at(k, flat(self.w1_loads(npre_w1, npre_w1 + nearly))); npre_w1 += nearly
        S.emit(ev.get(-1, []))
        S.emit(self.kgen_setup(0)); S.emit(self.xst[3]); ev[0] = self.xst[4] + ev.get(0, [])
        for k, sg in enumerate(segs):
            S.emit(sg); S.emit(self.stamp(f'_K{k}')); S.emit(ev.get(k, [])); S.emit(self.stamp(f'_E{k}'))
        S.emit(self.stamp('_t2'))
        S.emit('v_add_f32 v96, v96, v245')
        for r in range(0, 14, 2): S.emit(f'v_pk_mul_f32 v[{96+r}:{97+r}], v[{96+r}:{97+r}], v[50:51] op_sel:[0,1] op_sel_hi:[1,1]')
        cv = lambda d, a, b: f'v_cvt_pk_bf16_f32 v{d}, v{96+a}, v{96+b}\n'
        S.emit(cv(64, 4, 3) + cv(65, 2, 1) + cv(66, 3, 2) + cv(67, 1, 0) + cv(68, 7, 7) + cv(69, 6, 5) + cv(70, 7, 6) + cv(71, 5, 5) +
               cv(72, 10, 10) + cv(73, 10, 9) + cv(74, 9, 9) + cv(75, 8, 8) + cv(76, 10, 10) + cv(77, 9, 9) + cv(78, 9, 8) + cv(79, 8, 8) +
               cv(80, 11, 12) + cv(82, 10, 10) + cv(83, 10, 10) + f'''
        ds_write_b64 v242, v[64:65] offset:{P2 - 8}
        ds_write_b64 v242, v[66:67] offset:{KC1 + P2 - 4}
        ds_write_b64 v242, v[68:69] offset:{P2 - 8 - 512}
        ds_write_b64 v242, v[70:71] offset:{KC1 + P2 - 4 - 512}
        ds_write_b128 v243, v[72:75] offset:{P2 - 16 - 1024}
        ds_write_b128 v243, v[76:79] offset:{KC1 + P2 - 12 - 1024}
        ds_write_b16 v244, v80 offset:{KCD + 254}
        ds_write_b16_d16_hi v244, v80 offset:{KCD + 254 - 128}
        s_mov_b64 exec, 1
        ds_write_b16_d16_hi v246, v67 offset:{P2}
        s_mov_b32 exec_hi, 0x80000000
        s_mov_b32 exec_lo, 0
        ds_write_b64 v246, v[82:83] offset:56
        ds_write_b16 v246, v82 offset:{KC1 + 58}
        ds_write_b64 v246, v[82:83] offset:{KC1 + 60}
        s_mov_b64 exec, -1
        ''')
        S.emit(self.stamp('kexp'))
        def kread(G, dst):
            if G == 32: a, o = 'v11', 0
            else: a, o = ('v10', 16*(15 - G)) if G < 16 else ('v12', 16*(31 - G))
            return [Ins(f'ds_read2_b32 v[{dst}:{dst+1}], {a} offset0:{o} offset1:{o+1}'), Ins(f'ds_read2_b32 v[{dst+2}:{dst+3}], {a} offset0:{o+2} offset1:{o+3}')]
        KF = lambda p, r: 128 + 64*(p >> 1) + 8*r + 4*(p & 1)
        kreads = [x for pp in (0, 2) for r in range(8) for p in (pp, pp+1) for x in kread(8*p + r, KF(p, r))]
        npre = self.o('npre', 32); assert npre <= 32
        S.emit(L('\n'.join(f'ds_read_b128 v[{64+4*c}:{67+4*c}], v{247+c}' for c in range(4)), waitfor=['xdma']))
        S.emit(self.stamp('_xin'))
        S.emit(kreads[:npre//4])
        n2 = self.o('w1pre', 4)
        if ecw == 400: S.emit(wchk)
        if ecw <= 400: S.emit(flat(self.w1_loads(npre_w1, npre_w1 + n2))); npre_w1 += n2
        for c in range(4):
            x = 64 + 4*c; o = []
            for g in range(4):
                t = 80 + 2*(g & 1); b = 32 + 4*g
                o += L(f'''
                v_lshlrev_b32 v{t}, 16, v{x+g}
                v_and_b32 v{t+1}, 0xffff0000, v{x+g}
                v_pk_fma_f32 v[{t}:{t+1}], v[{t}:{t+1}], v[{b}:{b+1}], v[{b+2}:{b+3}]
                v_pk_fma_f32 v[{t}:{t+1}], v[{t}:{t+1}], s[{32+2*c}:{33+2*c}], s[{32+2*c}:{33+2*c}] op_sel:[0,0,1] op_sel_hi:[1,0,1]
                v_cvt_pk_bf16_f32 v{x+g}, v{t}, v{t+1}
                ''')
            o += L(f'ds_write_b128 v251, v[{x}:{x+3}] offset:{H_PITCH*c}', tag='hw')
            S.emit(o)
            if c < 3:
                S.emit(kreads[(c+1)*npre//4:(c+2)*npre//4])
            if ecw >= 500 and c == self.o('pwc', 1): S.emit(pollW)
            if ecw == 401 + c: S.emit(wchk)
            if ecw <= 401 + c:
                n2 = self.o('w1pre2', 2)
                S.emit(flat(self.w1_loads(npre_w1, npre_w1 + n2))); npre_w1 += n2
        S.emit(self.barrier(['hw']))
        S.emit(self.stamp('prep'))
        S.dummy = 'ds_read_b32 v1, v3'
        epoch = []
        acc = lambda q: f'v[{96+4*q}:{99+4*q}]'
        seq = []; started = set()
        def mm(q, A, B):
            C = acc(q) if q in started else '0'; started.add(q); seq.append((acc(q), A, B, C))
        def box(u):
            d = 112 + 8*(u & 1)
            seq.append((f'v[{d}:{d+3}]', ('h9', u), 'v[20:23]', '0')); seq.append((f'v[{d+4}:{d+7}]', ('h', 3, 0, u), 'v[24:27]', '0'))
        kf = lambda p, r: f'v[{KF(p, r)}:{KF(p, r)+3}]'
        for r in range(8):
            for q in range(2):
                if r == 7: mm(q, 'v[16:19]', ('x', q))
                for p in range(q + 1): mm(q, kf(p, r), ('h', 0, r, q - p))
        nA = len(seq)
        for r in range(8):
            if r == 4: a1 = len(seq); box(0); box(1)
            if r == 6: a2 = len(seq); box(2); box(3)
            for q in range(2, 4):
                if r == 7: mm(q, 'v[16:19]', ('x', q))
                for p in range(q + 1): mm(q, kf(p, r), ('h', 1, r, q - p))
        nB = len(seq)
        for ps, q0 in ((2, 4), (4, 6)):
            for r in range(8):
                for q in (q0, q0 + 1):
                    if r == 0: mm(q, 'v[116:119]' if False else ('k32', ps), ('h', ps, 0, q - 4))
                    if r == 2: mm(q, 'v[16:19]', ('x', q)); xlast = len(seq) - 1
                    for p in range(4): mm(q, kf(p, r), ('h', ps, r, q - p))
                    if r == 1:
                        for u in range(q - 3): mm(q, f'v[{40+4*u}:{43+4*u}]', f'a[{240+4*(q-u-4)}:{243+4*(q-u-4)}]')
            if ps == 2: nC = len(seq)
        def fragload(f, dst):
            if f[0] == 'h': return [Ins(f'ds_read_b128 v[{dst}:{dst+3}], v9 offset:{512 + 512*f[3] - 64*f[2] - 32}')]
            if f[0] == 'h9': return [Ins(f'ds_read_b128 v[{dst}:{dst+3}], v9 offset:{512 + 512*f[1] - 48}')]
            if f[0] == 'x': return [Ins(f'ds_read_b128 v[{dst}:{dst+3}], v13 offset:{2048*f[1]}')]
            if f[0] == 'k32': return kread(32, dst)
        bb, pinned, head = alloc_frags(seq, 'v_mfma_f32_16x16x32_bf16', list(range(56, 96, 4)), fragload, lead=self.o('lead', 7))
        S.emit(head)
        def cvts(us):
            o = []
            for u in us:
                d = 112 + 8*(u & 1)
                o += L('\n'.join(f'v_cvt_pk_bf16_f32 v{40+4*u+r}, v{d+r}, v{d+4+r}' for r in range(4)))
            return o
        farld = []
        for dl in range(4):
            o = 16*(3 - dl)
            farld += [Ins(f'ds_read2_b32 a[{240+4*dl}:{241+4*dl}], v14 offset0:{o} offset1:{o+1}'), Ins(f'ds_read2_b32 a[{242+4*dl}:{243+4*dl}], v14 offset0:{o+2} offset1:{o+3}')]
        N = len(bb)
        dr = self.o('drain', 40)
        gfA = nA + 10 + dr; gfB = nB + 10 + dr; gfC = nC + 10 + self.o('drainc', 48)
        g_poll = self.o('g_poll', 130); g_chk = self.o('g_chk', 165)
        pc = self.pollC(0, 'v31')
        c0, c1, c2, c3 = self.conv_late()
        self.pB = self.pollC(1, 'v192')
        self.pipe = Pipe(self.o('sv', 68), self.o('svst', 280), self.o('win', 480))
        wck = Fill([wchk] if ecw >= 500 else [], max(0, ecw - 500), max(0, ecw - 500), prio=5, hard=True, name='w1')
        w1f = Fill(self.w1_loads(npre_w1, 60), 0, 10**9, prio=1, name='w1', asap=True, carry=True, after=[wck]); self.w1f = w1f
        lf = Fill(c0 + c1 + c2 + c3, 0, 1, prio=2, name='late', slack=1)
        marks = [(0, 0), (len(c0), 7), (len(c0 + c1), 18), (len(c0 + c1 + c2), a1 - 4), (len(c0 + c1 + c2 + c3), 66)]
        for (k0, g0), (k1, g1) in zip(marks, marks[1:]):
            for k in range(k0, k1): lf.want[k] = g0 + (g1 - g0)*(k - k0)/(k1 - k0)
        tc = Fill(L(f's_mov_b32 s46, {16*self.TPI}\ns_mov_b32 s47, {32*self.TPI}\ns_mov_b32 s48, {48*self.TPI}') + self.tile_consts() + self.g1_pre[0], 68, 165, prio=1, name='g1pre', ahead=10, after=[lf])
        ck = Fill([self.stamp('_chk0') + self.check(pc, ['v31'], None) + self.stamp('_chk1')], g_chk, g_chk, prio=5, hard=True, name='tail')
        tail = Fill(self.tile_dma(0) + [self.barrier()] + self.ic2_loads(), g_chk, N - 3, prio=4, asap=True, after=[ck], name='tail')
        fpb = Fill([self.pB], N - self.o('gpB', 14), N - self.o('gpB', 14), prio=5, hard=True, name='tail')
        g1v = Fill(self.g1_pre[1], xlast + 2, N - 8, prio=1, name='g1pre', ahead=30, after=[tc])
        for k, it in enumerate(g1v.items):
            if ('v', 31) in it[0].defs: break
        for kk in range(k, len(g1v.items)): g1v.lo[kk] = g_chk + 4
        fills = [
            Fill(kreads[npre:], 0, 70, prio=3, hard=True),
            Fill(cvts((0, 1)), a1 + 8, a1 + 15, prio=2, hard=True),
            Fill(cvts((2, 3)), a2 + 8, a2 + 15, prio=2, hard=True),
            Fill(farld[:4], nB - 4, nB + 4, prio=2, hard=True, after=[lf]), Fill(farld[4:], nB + 30, nB + 50, prio=2),
            Fill(self.epi(0, '0', 'pA') + L(f'buffer_store_dword v127, v126, {sWS}, 0 offen sc1', tag='pA'), nA + 3, nA + 10, prio=3, burst=True),
            Fill(self.epi(1, 's46', 'pB'), nB + 3, nB + 10, prio=3, burst=True),
            Fill(self.epi(2, 's47', 'pC'), nC + 3, nC + 10, prio=3, burst=True),
            wck, w1f, lf, tc, g1v, ck, tail, fpb,
            Fill([self.stamp('_fa0') + self.flagC(0, 'pA') + self.stamp('_fa1')], gfA, gfA, prio=4, hard=True, after=[lf]),
            Fill([self.stamp('_fb0') + self.flagC(1, 'pB') + self.stamp('_fb1')], gfB, gfB, prio=4, hard=True),
            Fill([self.flagC(2, 'pC')], gfC, gfC, prio=4, hard=True),
            Fill([pc], g_poll, g_poll, prio=4, hard=True, name='tail'),
        ]
        if isinstance(self.stamps, list):
            for nm in self.stamps:
                if nm.startswith('_C'): fills.append(Fill([self.stamp(nm)], int(nm[2:]), int(nm[2:]), prio=9, hard=True))
        merged = interleave(bb, fills, pinned, report='conv', pipe=self.pipe,
                            quiet=[(q, self.o('qx', 0)) for b_, q in ((1, nA + 10), (2, nB + 10), (4, g_poll), (8, nC + 10)) if self.o('quiet', 0) & b_])
        S.emit(merged)
        k0 = max(k for k, i in enumerate(merged) if i in ck.items[0])
        self.mirror = [i for i in merged[k0+1:] if i.src in ('tail', 'w1') or i.kind == 'vmem']
        done = [i for i in merged[:k0] if i.src == 'w1' and i.kind == 'vmem' and i.defs]
        self.nA2 = npre_w1 + len(done)
        self.w1cur = {r: [i for i in merged[:k0] if i.src == 'w1' and ('s', 67 + r) in i.defs][-1] for r in range(3)}
        S.emit(self.stamp('conv'))
    def flagC(self, stage, tag, skip=False):
        o = self.barrier([tag])
        if skip: o += L('s_cmp_eq_u32 s0, 1\ns_cbranch_scc1 L_noflc')
        for r in range(self.RC//4): o += L(f's_atomic_swap {sN}, s[4:5], s66 offset:{stage*self.CSTG + r*self.CREP}')
        if skip: o += L('L_noflc:')
        return o
    def epi(self, j, soff, tag, t=None):
        t = t or 32 + 4*(j & 1); qa, qb = 96 + 8*j, 100 + 8*j
        return L(f'''
        v_cvt_pk_bf16_f32 v{t}, v{qa}, v{qa+1}
        v_cvt_pk_bf16_f32 v{t+2}, v{qb}, v{qb+1}
        v_cvt_pk_bf16_f32 v{t+1}, v{qa+2}, v{qa+3}
        v_cvt_pk_bf16_f32 v{t+3}, v{qb+2}, v{qb+3}
        v_permlane16_swap_b32 v{t}, v{t+2}
        v_permlane16_swap_b32 v{t+1}, v{t+3}
        ''') + L(f'buffer_store_dwordx4 v[{t}:{t+3}], v15, {sWS}, {soff} offen sc1', tag=tag)
    def mod_unit(self, S, su, scol='s71', va='v57', tag='moddma', mid=(), also=()):
        S.emit(f's_and_b32 s58, {su}, 1\ns_mul_i32 s58, s58, 640\nv_add_u32 v58, s58, v51')
        S.wait_tags([tag] + list(also)); S.emit('s_waitcnt lgkmcnt(0)\ns_barrier'); S.emit(list(mid))
        for b in range(10):
            S.emit(f'''
            ds_read_b64_tr_b16 v[{128+8*b}:{129+8*b}], {va} offset:{4096*b}
            ds_read_b64_tr_b16 v[{130+8*b}:{131+8*b}], {va} offset:{4096*b+512}
            ds_read_b128 v[{132+8*b}:{135+8*b}], v58 offset:{64*b}
            ''')
        for b in range(10):
            S.emit(f'v_mfma_f32_16x16x32_bf16 v[52:55], v[{132+8*b}:{135+8*b}], v[{128+8*b}:{131+8*b}], {"0" if b == 0 else "v[52:55]"}')
        S.emit(f'''
        s_and_b32 s58, {su}, 1
        s_mul_i32 s58, s58, 3840
        s_add_u32 s58, s58, {scol}
        s_lshl_b32 s59, s3, 4
        s_add_u32 s58, s58, s59
        s_lshl_b32 s58, s58, 3
        s_add_u32 s58, s58, {WS_MODP}
        v_mov_b32 v53, {sN}
        buffer_store_dwordx2 v[52:53], v59, {sWS}, s58 offen sc1
        ''')
    def w2_dma(self, sT):
        o = L(f'''
        s_mul_hi_u32 s40, {sT}, {(2**32 + 9)//10}
        s_mul_i32 s58, s40, 10
        s_sub_u32 s41, {sT}, s58
        s_lshl_b32 s40, s40, 2
        s_add_u32 s40, s40, s3
        s_mul_hi_u32 s58, s40, {(2**32 + 2)//3}
        s_mul_i32 s59, s58, 3
        s_sub_u32 s59, s40, s59
        s_mul_i32 s58, s58, 96
        s_mul_i32 s42, s59, 48
        s_cmp_eq_u32 s59, 2
        s_cselect_b32 s42, 32, s42
        s_cselect_b32 s43, 8, 4
        s_cselect_b32 s44, 48, 16
        s_cselect_b32 s45, 0, 4
        s_mul_i32 s43, s43, 1280
        s_mul_i32 s44, s44, 1280
        s_add_u32 s58, s58, s42
        s_mul_i32 s58, s58, 1280
        s_lshl_b32 s59, s41, 7
        s_add_u32 s42, s58, s59
        s_add_u32 s43, s42, s43
        v_and_b32 v12, s45, v104
        v_add_u32 v12, v12, v104
        v_mul_u32_u24 v12, 1280, v12
        v_add_u32 v13, v12, v106
        v_add_u32 v12, v12, v105
        ''')
        for d in range(4):
            if d == 2: o += L('s_add_u32 s42, s42, s44\ns_add_u32 s43, s43, s44')
            o += L(f's_add_u32 m0, s66, {1024*d}\ns_nop 0')
            o += L(f'buffer_load_dwordx4 v{12+(d&1)}, {sWD}, s{42+(d&1)} offen nt lds', tag='w2dma')
            o += L(f's_add_u32 m0, s66, {57344 + 1024*d - 128}\ns_nop 0')
            o += L(f'buffer_load_dwordx4 v{12+(d&1)}, {sWD}, s{42+(d&1)} offen offset:128 nt lds', tag='w2dma')
        return o
    def w2_finish(self):
        return L(f'''
        s_mul_i32 s58, s41, 192
        s_add_u32 s58, s58, s40
        s_lshl_b32 s58, s58, 10
        s_add_u32 s58, s58, {WS_W2P}
        ''') + self.prep_task('w2dma', 's58', 49152, 'w2st', tmp=208) + L('s_add_u32 s58, s58, 49152') + self.prep_task('w2dma', 's58', 49152, 'w2st', tmp=224, loff=57344)
    def spare_path(self, S):
        S.set_state(self.st_spare)
        S.emit('L_spare:'); S.dummy = 'ds_read_b32 v1, v3'; S.emit(self.touch('L_s')); S.emit('L_s0:\ns_mov_b64 exec, -1'); S.emit(self.common_consts()[:14]); S.emit(self.late_consts()[:2])
        S.emit(f'''
        s_lshl_b32 s58, s3, 5
        v_subrev_u32 v57, s66, v112
        v_xor_b32 v57, s58, v57
        v_add_u32 v56, {L_H}, v57
        v_lshrrev_b32 v58, 4, v2
        v_lshlrev_b32 v58, 4, v58
        v_add_u32 v51, {L_VEC}, v58
        v_lshlrev_b32 v59, 3, v2
        v_mov_b32 v43, {OOB}
        v_cmp_gt_u32 vcc, 16, v2
        v_add_u32 v42, {L_VEC}, v12
        s_mov_b32 s65, -1
        v_cndmask_b32 v59, v43, v59, vcc
        ''')
        for k in range(4): S.emit(f'v_lshlrev_b32 v{32+k}, 16, v{200+(k>>1)}' if k % 2 == 0 else f'v_and_b32 v{32+k}, 0xffff0000, v{200+(k>>1)}')
        for op in ('v_mul_f32 T, 0xbfb8aa3b, X', 'v_exp_f32 T, T', 'v_add_f32 T, 1.0, T', 'v_rcp_f32 T, T', 'v_mul_f32 X, X, T'):
            for k in range(4): S.emit(op.replace('T', f'v{36+k}').replace('X', f'v{32+k}'))
        S.emit('v_cvt_pk_bf16_f32 v32, v32, v33\nv_cvt_pk_bf16_f32 v33, v34, v35\nds_write_b64 v42, v[32:33]')
        self.mod_unit(S, 's70'); S.emit(self.stamp('slot0'))
        gate = self.o('gate', 0)
        if gate:
            S.emit(f's_sub_u32 s58, s2, 160\ns_mul_i32 s58, s58, {self.FS}\ns_add_u32 s58, s58, {WS_FLA + (gate - 1)*FLW_OFF}')
            S.out += L(f'''
            L_gate:
            s_load_dword s59, s[4:5], s58 glc
            s_sub_u32 {sBUD}, {sBUD}, 1
            s_cbranch_scc1 L_gatex
            s_waitcnt lgkmcnt(0)
            s_cmp_lg_u32 s59, {sN}
            s_cbranch_scc1 L_gate
            s_branch L_gated
            L_gatex:
            s_waitcnt lgkmcnt(0)
            s_mov_b32 {sBUD}, 0
            L_gated:
            ''')
            S.emit(self.stamp('_fla'))
        S.emit(f'''
        s_sub_u32 s46, s2, 184
        s_cmp_lt_u32 {sJ}, 23
        s_cbranch_scc1 L_sp_a
        s_cmp_lt_u32 s46, 60
        s_cbranch_scc1 L_sp_c
        s_branch L_sp_b2done
        ''')
        st = S.state()
        S.emit('L_sp_a:\ns_add_u32 s46, s46, 120')
        md = self.mod_dma('s46', 's47', L_H, 'mod2')
        S.emit(md[0]); S.emit(flat(md[1]))
        self.mod_unit(S, 's46', 's47', 'v56', 'mod2')
        S.emit('s_branch L_sp_b2done')
        S.set_state(st)
        S.emit('L_sp_c:\ns_lshl_b32 s46, s46, 1')
        S.emit(self.w2_dma('s46'))
        w2late = self.o('w2late', 0)
        if not w2late: S.emit(self.w2_finish())
        S.emit(f'''
        s_lshl_b32 s58, s46, 6
        s_lshl_b32 s59, s3, 2
        s_add_u32 s65, s58, s59
        L_sp_b2done:
        ''')
        S.emit(self.stamp('slot1'))
        S.emit(self.touch('L_gp')); S.emit('L_sp_t2:')
        S.emit(self.g_setup())
        pw = self.pollW()
        S.emit(pw); S.emit(self.check(pw, ['v4'], None, sleep=8))
        S.emit(self.stamp('slot2')); S.emit(self.tile_consts())
        def pick(tag):
            S.emit(f's_cmp_lt_u32 {sJ}, 24\ns_cbranch_scc1 L_sp_{tag}0\ns_cmp_lt_u32 {sJ}, 28\ns_cbranch_scc1 L_sp_{tag}1')
        S.emit(f'''
        v_min_u32 v56, 159, v0
        v_lshlrev_b32 v57, 5, v56
        v_add_u32 v57, {WS_MODP + 3*640*8}, v57
        v_add_u32 v58, {640*8}, v57
        s_mov_b32 s59, {3840*8}
        ''')
        gl = []
        for k, (a, so) in enumerate((('v58', '0'), ('v58', 's59'), ('v57', '0'), ('v57', 's59'))):
            gl += L(f'buffer_load_dwordx4 v[{64+8*k}:{67+8*k}], {a}, {sWS}, {so} offen sc1\nbuffer_load_dwordx4 v[{68+8*k}:{71+8*k}], {a}, {sWS}, {so} offen offset:16 sc1')
        S.emit(f's_cmp_ge_u32 {sXC}, 4\ns_cselect_b32 s1, 1, 0')
        ng = self.o('gat', 0); ng2 = ng + 12; ng3 = ng2 + 12; assert ng3 <= self.nA2
        def seg(tag, body):
            pick(tag); st = S.state()
            for v in (2, 0, 1):
                S.set_state(st)
                if v != 2: S.emit(f'L_sp_{tag}{v}:')
                body(v)
                if v != 1: S.emit(f's_branch L_sp_{tag}j')
            S.emit(f'L_sp_{tag}j:')
        seg('p', lambda v: S.emit(flat(self.w1_loads(0, 60, only=v) + self.w1_loads(0, ng, skip=v))))
        if w2late:
            S.emit('s_cmp_eq_u32 s65, -1\ns_cbranch_scc1 L_sp_nw1'); S.emit(self.w2_finish()); S.emit('L_sp_nw1:')
        S.emit('s_cmp_eq_u32 s1, 1\ns_cbranch_scc1 L_sp_nogl'); S.emit(gl); S.emit('L_sp_nogl:')
        seg('q', lambda v: S.emit(flat(self.w1_loads(ng, ng2, skip=v))))
        S.emit('s_cmp_eq_u32 s1, 1\ns_cbranch_scc1 L_sp_nog')
        S.emit(self.check(gl, [f'v{65+2*k}' for k in range(16)], 'v50', sleep=8))
        for k in range(4):
            S.emit(f'''
            v_add_f32 v{64+2*k}, v{64+2*k}, v{72+2*k}
            v_add_f32 v{80+2*k}, v{80+2*k}, v{88+2*k}
            v_cvt_pk_bf16_f32 v{64+2*k}, 0, v{64+2*k}
            v_add_f32 v{64+2*k}, 1.0, v{64+2*k}
            ''')
        S.emit(f'''
        v_cvt_pk_bf16_f32 v72, v64, v66
        v_cvt_pk_bf16_f32 v73, v68, v70
        v_cvt_pk_bf16_f32 v74, v80, v82
        v_cvt_pk_bf16_f32 v75, v84, v86
        v_lshlrev_b32 v56, 3, v56
        v_add_u32 v56, {L_VEC + 1536}, v56
        ds_write_b64 v56, v[72:73]
        ds_write_b64 v56, v[74:75] offset:1280
        v_and_b32 v57, 1, v2
        v_mul_u32_u24 v57, 1280, v57
        v_lshrrev_b32 v58, 5, v2
        v_lshl_add_u32 v57, v58, 4, v57
        s_and_b32 s59, s3, 1
        s_mul_i32 s58, s59, 640
        s_add_u32 s58, s58, {L_VEC + 1536}
        v_add_u32 v57, s58, v57
        s_waitcnt lgkmcnt(0)
        s_barrier
        ''')
        for s in range(20): S.emit(f'ds_read_b128 v[{128+4*s}:{131+4*s}], v57 offset:{32*s}')
        S.emit(f'''
        s_lshr_b32 s58, s3, 1
        s_mul_i32 s58, s58, 3
        s_mul_i32 s43, {sSIG}, 6
        s_add_u32 s58, s58, s43
        s_lshl_b32 s58, s58, 10
        s_lshl_b32 s43, s59, 9
        s_add_u32 s58, s58, s43
        s_add_u32 s58, s58, {WS_WX}
        s_lshl_b32 s43, s59, 10
        s_add_u32 s42, s58, s43
        s_sub_u32 s40, s58, s43
        s_add_u32 s40, s40, 1024
        s_add_u32 s41, s58, 2048
        v_mov_b32 v58, {OOB}
        v_cmp_gt_u32 vcc, 32, v2
        s_nop 1
        v_cndmask_b32 v56, v58, v3, vcc
        v_cndmask_b32 v57, v58, v5, vcc
        ''')
        S.emit('L_sp_nog:')
        S.emit(self.stamp('_xin'))
        def last(v):
            S.vm = []
            S.emit(flat(self.w1_loads(ng2, ng3, skip=v)))
            S.emit(f's_cmp_eq_u32 s1, 1\ns_cbranch_scc1 L_sp_x{v}')
            for k in range(20): S.emit(f'v_mfma_f32_32x32x16_bf16 v[64:79], v[{128+4*k}:{131+4*k}], a[{12*k+4*v}:{12*k+4*v+3}], {"0" if k == 0 else "v[64:79]"}')
            d = 64
            S.emit(f'''
            v_cvt_pk_bf16_f32 v{d+2}, 0, v{d}
            v_cvt_pk_bf16_f32 v{d+3}, 0, v{d+1}
            v_sub_f32 v{d}, v{d}, v{d+2}
            v_sub_f32 v{d+1}, v{d+1}, v{d+3}
            v_cvt_pk_bf16_f32 v{d}, -v{d+2}, -v{d}
            v_cvt_pk_bf16_f32 v{d+1}, v{d+3}, v{d+1}
            v_mov_b32 v{d+2}, 0
            v_mov_b32 v{d+3}, {sN}
            buffer_store_dwordx4 v[{d}:{d+3}], v{57 if v == 1 else 56}, {sWS}, s{40+v} offen sc1
            ''')
            S.emit(f'L_sp_x{v}:')
            S.emit(self.stamp('_wok'))
            S.emit(flat(self.w1_loads(ng3, self.nA2, skip=v)))
        seg('r', last)
        pc = self.pollC(0, 'v128')
        S.emit('s_waitcnt lgkmcnt(0)'); S.emit(pc)
        S.emit(f'''
        v_mov_b32 v15, {OOB}
        s_mov_b32 s47, 0
        s_mov_b32 s48, 0
        ''')
        S.emit(cp(flat(self.g1_pre[0]) + flat(self.g1_pre[1])))
        S.emit('s_barrier')
        S.emit(self.stamp('kexp'))
        S.emit('s_waitcnt vmcnt(0)')
        S.emit(f's_cmp_eq_u32 s65, -1\ns_cbranch_scc1 L_sp_nw2\ns_atomic_swap {sN}, s[4:5], s65 offset:{WS_FLW2}\nL_sp_nw2:')
        S.emit(self.check(pc, ['v128'], None, sleep=9))
        S.emit(self.stamp('_chk1'))
        S.emit(cp(list(self.w1cur.values()))); S.emit(cp(self.mirror))
        tail = [i.text for i in S.vm]
        assert tail == [i.text for i in self.join_vm[-len(tail):]] or [i.text for i in self.join_vm] == tail[-len(self.join_vm):], (tail, self.join_vm)
        S.emit(self.stamp('conv'))
        S.emit('s_branch L_g1')
    def finish(self, S):
        if self.probe:
            S.emit(self.stamp('end'))
            S.wait_all(); S.out.append(Ins('s_waitcnt vmcnt(0) lgkmcnt(0)'))
            k = self.stamp_names.index(self.probe)
            role = self.o('prole', 2)
            S.emit(f's_sub_u32 s58, s{78+2*k}, s78')
            if role < 2: S.emit(f's_cmp_eq_u32 s0, {role}\ns_cselect_b32 s58, s58, 0')
            if self.o('pwg', -1) >= 0: S.emit(f's_cmp_eq_u32 s2, {self.o("pwg", 0)}\ns_cselect_b32 s58, s58, 0')
            S.emit('s_min_u32 s58, s58, 20000\ns_add_u32 s58, s58, 6000')
            if self.o('ponly', -1) >= 0: S.emit(f's_cmp_eq_u32 s2, {self.o("ponly", 0)}\ns_cselect_b32 s58, s58, 0')
            S.emit('L_spin:')
            S.out += L('s_memrealtime s[60:61]\ns_waitcnt lgkmcnt(0)\ns_sub_u32 s60, s60, s78\ns_cmp_lt_u32 s60, s58\ns_cbranch_scc1 L_spin')
        elif self.stamps:
            S.emit(self.stamp('end'))
            S.wait_all()
            S.out.append(Ins('s_waitcnt vmcnt(0) lgkmcnt(0)'))
            S.emit(f'''
            s_lshl_b32 s58, s2, 2
            s_add_u32 s58, s58, s3
            s_lshl_b32 s58, s58, 8
            s_add_u32 s58, s58, {WS_DBG}
            v_mov_b32 v31, {OOB}
            v_writelane_b32 v31, 0, 0
            ''')
            for k in range(len(self.stamp_names)):
                S.emit(f'v_mov_b32 v1, s{78+2*k}\nbuffer_store_dword v1, v31, {sWS}, s58 offen offset:{4*k}')
            S.emit(f'v_mov_b32 v1, {sBUD}\nbuffer_store_dword v1, v31, {sWS}, s58 offen offset:60')
        S.emit('s_endpgm')
    def build(self):
        import gen2
        self.g1_pre = gen2.g1_pre(self)
        P = Stream(); self.prologue(P)
        S = Stream(); self.conv_path(S)
        S.emit('L_g1:'); self.join_vm = list(S.vm)
        if self.stop == 'conv':
            S.emit('s_nop 7')
            S.emit(self.epi(2, 's47', 'p2') + self.epi(3, 's48', 'p2'))
        else:
            import gen2
            gen2.gemms(self, S)
        if self.o('wsite', -1) >= 0:
            k0 = self.o('wsite', 0); start = max(k for k, i in enumerate(S.out) if 'hw' in i.waitfor) + 1
            sites = []; gap = 0
            for k in range(start, len(S.out)):
                i = S.out[k]
                if i.kind == 'mfma': gap += 1
                if (i.mn == 's_waitcnt' and 'vmcnt' in i.text) or i.mn == 's_barrier' or i.mn == 's_cbranch_vccnz' or (i.mn == 's_cmp_lg_u64' and S.out[k+2].mn == 's_cmp_lg_u64'): sites.append((k, gap, i))
            self.nsites = len(sites); self.stamps = True
            ins = []
            for n, (k, gp, i) in enumerate(sites[k0:k0+5]):
                ph = f'C{gp}' if gp <= 238 else (f'G{gp-238}' if gp <= 484 else f'H{gp-484}')
                nm = ph + {'s_waitcnt': 'w' + i.text.split('(')[1].split(')')[0] if i.mn == 's_waitcnt' else '', 's_barrier': 'bar', 's_cbranch_vccnz': 'chk', 's_cmp_lg_u64': 'schk'}[i.mn]
                ins.append((k, self.stamp(f'.{n}'), self.stamp(nm + '.' * n), {'s_cbranch_vccnz': 2, 's_cmp_lg_u64': 5}.get(i.mn, 1)))
            for k, a_, b_, w in reversed(ins): S.out[k:k+w] = a_ + S.out[k:k+w] + b_
            self.stamps = ['none']
        self.finish(S)
        slow1 = self.slow; self.slow = []
        Q = Stream(); self.spare_path(Q)
        if self.o('static', 0):
            k0 = max(k for k, i in enumerate(S.out) if 'hw' in i.waitfor); k1 = max(k for k, i in enumerate(S.out) if 'pw3' in i.waitfor)
            for k in range(k0, k1):
                i = S.out[k]
                if i.kind == 'vmem' and self.o('static', 0) == 2 and 'store' not in i.mn:
                    continue
                if i.kind == 'vmem' or i.note == 'async': S.out[k] = Ins('s_mov_b32 vcc_hi, 0x12345')
        dm = self.o('drop', 0)
        if dm:
            import re
            pats = {1: r'buffer_load_dwordx4 a\[\d+:\d+\], v[35], s\[4:7\], s6[789]',
                    2: r'buffer_load_dword v\d+, v4,', 4: r'buffer_store_dwordx4 v\[\d+:\d+\], v1[578],', 8: r'buffer_store_dword v1, v30',
                    16: r'buffer_load_dwordx4 v6, .* lds', 32: r'buffer_load_dwordx4 v\[\d+:\d+\], v3, s\[4:7\], s6[78]', 64: r'buffer_(load|store)_dwordx2 v\[(10:11|32:33)\]'}
            pats[256] = r'(buffer_load_dwordx4 v1[23], s\[24:27\]|buffer_store_dwordx4 v\[\d+:\d+\], v3, s\[4:7\], s58)'
            pats[512] = r'buffer_store_dwordx4 v\[\d+:\d+\], v(3|199), s\[4:7\], s3[56]'
            lists = [S.out] + ([Q.out] if dm & 128 else [])
            for lst in lists:
                for k, i in enumerate(lst):
                    if any(dm & b and re.match(p, i.text) for b, p in pats.items()): lst[k] = Ins('s_mov_b32 vcc_hi, 0x12345')
        body = S.out + slow1 + Q.out + self.slow
        body, npages, nbytes, mis = layout(body, minpages=8)
        for i in P.out: i.text = i.text.replace('@CODEMAX@', str(nbytes // 128 * 128))
        pro, _, pbytes, _ = layout(P.out, stubs=False)
        self.info = dict(pages=npages, bytes=nbytes, pro=pbytes, misaligned=mis, nops=S.nops, waits=S.nwait, dummy=S.ndummy, n=len(S.out))
        self.log = P.log + S.log + Q.log
        txt = f'; @launch grid=(256,1,1) block=(256,1,1) lds={LDS_BYTES}\n.amdgcn_target "amdgcn-amd-amdhsa--gfx950"\n.text\n.p2align 12\n.globl {NAME}\n.p2align 8\n.type {NAME},@function\n{NAME}:\n'
        txt += render(pro)
        txt += '.p2align 12\n' + render(body)
        if not self.o('nt', 1): txt = txt.replace(' nt lds', ' lds').replace(' nt\n', '\n')
        txt += f'''.section .rodata,"a"
.p2align 6
.amdhsa_kernel {NAME}
  .amdhsa_next_free_vgpr 512
  .amdhsa_next_free_sgpr 102
  .amdhsa_accum_offset 256
  .amdhsa_group_segment_fixed_size 0
  .amdhsa_kernarg_size 144
  .amdhsa_user_sgpr_count 2
  .amdhsa_user_sgpr_kernarg_segment_ptr 1
  .amdhsa_system_sgpr_workgroup_id_x 1
  .amdhsa_float_denorm_mode_32 {self.o('denorm', 3)}
.end_amdhsa_kernel
'''
        return txt

def alloc_frags(seq, mn, pool, loader, lead, maxper=1, notbefore=None):
    first = {}; last = {}
    for k, (D, A, B, C) in enumerate(seq):
        for f in (A, B):
            if isinstance(f, tuple): first.setdefault(f, k); last[f] = k
    order = sorted(first, key=lambda f: first[f])
    freeat = {r: -1 for r in pool}
    used = {}; pinned = {}; head = []; reg = {}
    for f in order:
        r = min(freeat, key=lambda x: freeat[x])
        lds = loader(f, r)
        want = first[f] - 1 - lead
        lo = max(freeat[r], notbefore(f) if notbefore else -1)
        for i in lds:
            g = max(want, lo)
            if g >= 0:
                c = g
                while c > max(lo, 0) and used.get(c, 0) >= maxper and c > g - 4: c -= 1
                if used.get(c, 0) >= maxper:
                    c = g
                    while used.get(c, 0) >= maxper and c < first[f] - 3: c += 1
                g = c
            assert g < first[f], (f, g, first[f])
            if g < 0: head.append(i)
            else: pinned.setdefault(g, []).append(i); used[g] = used.get(g, 0) + 1
        reg[f] = r; freeat[r] = last[f]
    R = lambda f: f'v[{reg[f]}:{reg[f]+3}]' if isinstance(f, tuple) else f
    bb = [Ins(f'{mn} {D}, {R(A)}, {R(B)}, {C}') for D, A, B, C in seq]
    return bb, pinned, head

if __name__ == '__main__':
    import argparse
    ap = argparse.ArgumentParser(); ap.add_argument('-o', default='k.s'); ap.add_argument('--stop'); ap.add_argument('--stamps', action='store_true'); ap.add_argument('--log', action='store_true')
    ap.add_argument('--opt', default=''); ap.add_argument('--audit', action='store_true'); ap.add_argument('--probe')
    a = ap.parse_args()
    opt = {k: int(v) for k, v in (x.split('=') for x in a.opt.split(',') if x)}
    g = Gen(stop=a.stop, stamps=a.stamps, probe=a.probe, **opt)
    t = g.build(); open(a.o, 'w').write(t)
    print(g.info, g.stamp_names)
    if a.log: print('\n'.join(g.log))
    import fw
    print('\n'.join(x for x in fw.AUDIT if a.audit or x.startswith('CONFLICT') or x.startswith('sched') or (a.log and 'place' in x)))
```

```python
from fw import *
from gen import *

ACCK = [128, 96]; ACCH = [144, 112]; ACCS = 160
RING = [40, 44, 48, 52, 56, 60]
RECV = 64
GT = 72
PK = 76
MT = 224; MP = 228
BX = 84
WXK, WXH = 88, 92
vK1, vK3, vI2 = 'v7', 'v8', 'v9'
vST = 10
vTR, vTR2, vEW, vER, vHX, vHY, vSR = 'v12', 'v13', 'v14', 'v16', 'v17', 'v18', 'v19'
IC2 = 20
M32 = 'v_mfma_f32_32x32x16_bf16'; M16 = 'v_mfma_f32_16x16x32_bf16'
def r16(b): return f'v[{b}:{b+15}]'
def w2reg(ct, ks):
    k = ct*12 + ks
    if k < 16: b = 176 + 4*k; return f'v[{b}:{b+3}]'
    if k < 20: b = 240 + 4*(k - 16); return f'a[{b}:{b+3}]'
    if k < 24: b = [20, 24, 32, 36][k - 20]; return f'v[{b}:{b+3}]'
    b = 4*(k - 24) if k < 36 else 96 + 4*(k - 36); return f'a[{b}:{b+3}]'
def tokreg(stage, ks):
    if stage in (0, 3): b = 48 + 4*ks; return f'a[{b}:{b+3}]'
    if stage == 1: b = 192 + 4*ks; return f'a[{b}:{b+3}]'
    b = 128 + 4*ks; return f'v[{b}:{b+3}]'
L_SA = 40960; L_SB = 147456; RES = 240
CG = [8, 9, 10, 11, 16, 17, 18, 19]; CI = [116, 117, 118, 119, 124, 125, 126, 127]

def g1_pre(g):
    sc = L(f'''
    s_and_b32 s33, s3, 1
    s_lshr_b32 s32, s3, 1
    s_lshl_b32 s37, {sR}, 14
    s_add_u32 s37, s37, {WS_ST2}
    s_and_b32 s58, {sSIG}, 3
    s_lshl_b32 s41, s58, 2
    s_lshl_b32 s58, s58, 8
    s_lshl_b32 s59, s33, 7
    s_add_u32 s38, s58, s59
    s_lshr_b32 s58, {sSIG}, 2
    s_lshl_b32 s59, s58, 7
    s_add_u32 s41, s41, s59
    s_lshl_b32 s58, s58, {g.o('stsh', 5)}
    s_add_u32 s38, s38, s58
    s_add_u32 s38, s38, s37
    s_lshl_b32 s58, {sR}, 9
    s_add_u32 s41, s41, s58
    s_add_u32 s41, s41, {WS_FLH}
    s_mul_i32 s40, {sR}, 98304
    s_mul_i32 s58, {sSIG}, 3072
    s_add_u32 s40, s40, s58
    s_add_u32 s40, s40, {WS_HH}
    s_mov_b32 s42, 0x01000100
    s_mov_b32 s43, 0x03020302
    s_lshr_b32 s34, {sSIG}, 3
    s_lshl_b32 s34, s34, 2
    s_and_b32 s58, {sSIG}, 3
    s_add_u32 s34, s34, s58
    s_mov_b32 s35, {sR}
    s_bfe_u32 s36, {sSIG}, 0x10002
    s_lshl_b32 s39, s35, 2
    s_add_u32 s39, s39, s3
    s_lshl_b32 s39, s39, 7
    s_add_u32 s39, s39, {WS_FLH}
    s_mul_i32 s44, s34, {5*49152}
    s_mul_i32 s58, s3, 12288
    s_add_u32 s44, s44, s58
    s_add_u32 s44, s44, {WS_W2P}
    s_lshl_b32 s45, s35, 1
    s_add_u32 s45, s45, s36
    s_mul_i32 s45, s45, 49152
    s_add_u32 s45, s45, s58
    s_add_u32 s45, s45, {WS_HH}
    s_mul_i32 s58, s32, 3
    s_mul_i32 s59, {sSIG}, 6
    s_add_u32 s58, s58, s59
    s_lshl_b32 s58, s58, 10
    s_add_u32 s49, s58, {WS_WX + 2048}
    s_lshl_b32 s59, s33, 10
    s_add_u32 s77, s58, s59
    s_add_u32 s77, s77, {WS_WX}
    s_mov_b32 s8, {sN}
    s_mov_b32 s9, {sN}
    v_bfe_u32 v12, v2, 2, 2
    v_lshrrev_b32 v7, 5, v2
    v_lshl_add_u32 v8, v7, 3, v12
    v_lshrrev_b32 v12, 1, v12
    v_lshl_or_b32 v12, v7, 1, v12
    v_bfe_u32 v7, v2, 4, 1
    v_bfe_u32 v10, v2, 1, 1
    v_lshl_or_b32 v10, v7, 1, v10
    v_xor_b32 v12, v12, v10
    v_lshlrev_b32 v12, 4, v12
    v_lshl_add_u32 v12, v8, 6, v12
    v_and_b32 v10, 1, v2
    v_lshl_add_u32 v12, v10, 3, v12
    s_mul_i32 s58, s33, 20480
    v_add_u32 v12, s58, v12
    v_and_b32 v0, 7, v2
    v_mul_u32_u24 v0, 20, v0
    v_lshrrev_b32 v10, 3, v2
    v_add_lshl_u32 v0, v0, v10, 2
    v_and_or_b32 v0, v2, 3, v0
    v_bfe_u32 v30, v2, 1, 3
    v_mul_u32_u24 v8, 20, v30
    v_lshrrev_b32 v10, 4, v2
    v_add_lshl_u32 v8, v8, v10, 2
    v_lshlrev_b32 v10, 1, v2
    v_xor_b32 v30, v30, v10
    v_and_or_b32 v30, v30, 3, v8
    s_lshl_b32 s58, {sSIG}, 1
    s_add_u32 s58, s58, s33
    s_lshr_b32 s59, s58, 3
    s_and_b32 s58, s58, 7
    s_lshl_b32 s58, s58, 1
    ''' + ''.join(f'''    v_bfe_u32 v10, {r}, 1, 1
    v_lshrrev_b32 v8, 2, {r}
    v_and_or_b32 v10, v8, 2, v10
    v_xor_b32 v10, s59, v10
    v_lshl_add_u32 v10, v10, 4, s58
    v_lshl_add_u32 {r}, {r}, 6, v10
    ''' for r in ('v0', 'v30')))
    ve = L(f'''
    v_add_u32 v13, {L_SLOT[2]}, v12
    s_mul_i32 s58, s3, 6144
    s_add_u32 s58, s58, {L_EX}
    v_add_u32 v14, s58, v3
    s_xor_b32 s59, s3, 1
    s_mul_i32 s59, s59, 6144
    s_add_u32 s59, s59, {L_EX}
    v_add_u32 v16, s59, v3
    v_mul_u32_u24 v17, 49152, v7
    v_and_b32 v18, 15, v2
    v_lshl_add_u32 v18, v18, 4, v17
    v_lshrrev_b32 v19, 5, v2
    v_lshl_add_u32 v17, v19, 8, v18
    s_lshl_b32 s58, s3, 9
    v_add_u32 v17, s58, v17
    s_lshl_b32 s58, s3, 8
    s_add_u32 s58, s58, 2048
    v_add_u32 v18, s58, v18
    v_mul_u32_u24 v19, 0x7f, v19
    v_lshl_or_b32 v18, v19, 24, v18
    v_and_b32 v19, 7, v2
    v_lshlrev_b32 v19, 7, v19
    v_bfe_u32 v10, v2, 3, 2
    v_lshl_add_u32 v19, v10, {g.o('stsh', 5)}, v19
    v_lshrrev_b32 v8, 4, v2
    v_min_u32 v8, 2, v8
    s_mul_i32 s58, s3, 3
    v_add_u32 v8, s58, v8
    v_min_u32 v8, 9, v8
    v_xor_b32 v10, s36, v8
    v_lshrrev_b32 v7, 2, v2
    v_xor_b32 v7, v7, v2
    v_bfe_u32 v7, v7, 1, 1
    v_lshl_or_b32 v10, v10, 1, v7
    v_and_b32 v10, 3, v10
    v_bfe_u32 v7, v2, 2, 2
    v_lshl_add_u32 v8, v8, 3, v7
    v_lshl_add_u32 v8, v8, 2, v10
    v_and_b32 v10, 1, v2
    v_lshl_add_u32 v8, v8, 1, v10
    s_mul_i32 s58, s34, 5120
    v_lshl_add_u32 v31, v8, 3, s58
    ''')
    return sc, ve

def gemms(g, S):
    o = g.o
    S.emit(g.barrier(['tile0']))
    S.emit(g.stamp('g1'))
    def stats_step(kind):
        it = []
        if kind == 1: it += [L(f'v_add_u32 v0, {L_SLOT[1]}, v0'), L(f'v_add_u32 v30, {L_SLOT[1]}, v30')]
        if kind == 2:
            it += [L(f's_mul_i32 s72, s32, {L_SLOT[3] - L_SLOT[2]}'), L(f's_add_u32 s72, s72, {L_SLOT[2] - L_SLOT[1]}'), L('v_add_u32 v0, s72, v0'), L('v_add_u32 v30, s72, v30')]
            it += [L('s_lshl_b32 s72, s32, 12'), L('s_add_u32 s38, s38, s72')]
        dsr = lambda d, a, off: L(f'ds_read_u16_d16_hi v{d}, {a} offset:{off}')
        def pair(p, r):
            if p == 0: return [dsr(r, 'v0', 0), dsr(r + 1, 'v0', 2048)]
            if p == 4: return [dsr(r, 'v30', 4096), dsr(r + 1, f'v{r+1}', 4096)]
            return [dsr(r, f'v{r+1}', 0), dsr(r + 1, f'v{r+1}', 2048)]
        adr = lambda p, r: L(f'v_xor_b32 v{r+1}, {64*p + 16*(p >> 1)}, v0') if p < 4 else L(f'v_xor_b32 v{r+1}, 64, v30')
        def use(p, r):
            o_ = []
            for h in range(2):
                x = f'v{r+h}'; ic = IC2 + (p + 4*h if p < 4 else 8 + h)
                if p == 0 and h == 0: o_ += [L(f'v_mul_f32 v32, {x}, v{ic}'), L('v_mul_f32 v33, v32, v32')]
                else: o_ += [L(f'v_mul_f32 {x}, {x}, v{ic}'), L(f'v_add_f32 v32, v32, {x}'), L(f'v_fmac_f32 v33, {x}, {x}')]
            return o_
        it += [adr(1, 36), adr(2, 38)] + pair(0, 34) + pair(1, 36) + pair(2, 38)
        it += use(0, 34) + [adr(3, 34)] + pair(3, 34) + use(1, 36) + [adr(4, 36)] + pair(4, 36) + use(2, 38) + use(3, 34) + use(4, 36)
        for k in ('row_ror:8 row_mask:0xf', 'row_ror:4 row_mask:0xf', 'row_ror:2 row_mask:0xf', 'row_ror:1 row_mask:0xf', 'row_bcast:15 row_mask:0xa', 'row_bcast:31 row_mask:0xc'):
            it.append(L(f'v_add_f32_dpp v32, v32, v32 {k} bank_mask:0xf\nv_add_f32_dpp v33, v33, v33 {k} bank_mask:0xf'))
        fs = g.finish_stats('v32', 'v33', 'v32')
        it += [[i] for i in fs[:-1] + L(f's_mov_b32 s71, {sN}') + fs[-1:]]
        it.append(L('v_readlane_b32 s70, v32, 63'))
        at = f's_atomic_swap_x2 s[70:71], s[4:5], s38 offset:{4096*kind}'
        it.append(L(at) if kind == 2 else L(f's_cmp_lg_u32 s32, 0\ns_cbranch_scc1 L_nost{kind}\n{at}\nL_nost{kind}:'))
        return it
    wxld = L(f'buffer_load_dwordx4 v[{WXK}:{WXK+3}], v3, {sWS}, s77 offen sc1\nbuffer_load_dwordx4 v[{WXH}:{WXH+3}], v5, {sWS}, s49 offen sc1')
    wxfix = [g.check(wxld, [f'v{WXK+3}', f'v{WXH+3}'], f'v{MT}')] + [[i] for i in L(f'''
    v_mov_b32 v86, 0
    v_mov_b32 v87, 0
    v_mov_b32 v{WXK+3}, 0
    v_mov_b32 v{WXH+3}, 0
    v_bfe_i32 v{MT}, v2, 3, 1
    v_bfi_b32 v{WXH}, v{MT}, 0, v{WXH}
    v_bfi_b32 v{WXH+1}, v{MT}, 0, v{WXH+1}
    ''')]
    def w2_loads(k0, k1):
        items = []
        for k in range(k0, k1):
            ct, ks = divmod(k, 12); it = []
            if ks % 4 == 0 or k == k0: items.append(L(f's_add_u32 s67, s44, {ct*49152 + 4096*(ks//4)}'))
            it += L(f'buffer_load_dwordx4 {w2reg(ct, ks)}, v3, {sWS}, s67 offen offset:{1024*(ks%4)} sc1')
            items.append(it)
        return items
    def stage(ks0, n, base, pitch):
        it = [L(f's_mul_i32 s73, s3, {pitch}')]
        for i in range(n):
            x = L(f'buffer_load_dwordx4 v3, {sWS}, s67 offen offset:{1024*(i%4)} sc1 lds', tag='stg')
            if i % 4 == 0: it.append(L(f's_add_u32 s67, s44, {2*49152 + 1024*(ks0 + i)}')); it.append(L(f's_add_u32 m0, s73, {base + 1024*i}'))
            it.append(x)
        return it
    stageB = stage(0, 3, L_SB, 3072); stageA = stage(3, 9, L_SA, 9216)
    unstage = [[i] for i in L(f'''
    s_mul_i32 s72, s3, 3072
    s_add_u32 s72, s72, {L_SB}
    v_add_u32 v0, s72, v3
    s_mul_i32 s72, s3, 9216
    s_add_u32 s72, s72, {L_SA}
    v_add_u32 v30, s72, v3
    ''')] + [L(f'ds_read_b128 {w2reg(2, i)}, {"v0" if i < 3 else "v30"} offset:{1024*(i if i < 3 else i - 3)}', waitfor=['stg']) for i in range(12)]
    def resread(j):
        d = RES + 4*j
        if j == 2: return [L(f'v_add_u32 v{d+2}, {L_SLOT[2]}, v31'), L(f'ds_read_b64_tr_b16 v[{d}:{d+1}], v{d+2}'), L(f'ds_read_b64_tr_b16 v[{d+2}:{d+3}], v{d+2} offset:256')]
        return [L(f'ds_read_b64_tr_b16 v[{d+2*e}:{d+2*e+1}], v31 offset:{L_SLOT[j] + 256*e}') for e in range(2)]
    def tok_loads(stage):
        items = []
        for ks in range(12):
            it = []
            if ks % 4 == 0: items.append(L(f's_add_u32 s68, s45, {stage*32*49152 + 1024*ks}'))
            it += L(f'buffer_load_dwordx4 {tokreg(stage, ks)}, v3, {sWS}, s68 offen offset:{1024*(ks%4)} sc1')
            items.append(it)
        return items
    def flagH(stage, waits=()):
        return g.barrier([f'hh{stage}'] + list(waits)) + L(f's_cmp_lg_u32 s3, {stage}\ns_cbranch_scc1 L_nofh{stage}\ns_atomic_swap {sN}, s[4:5], s41 offset:{stage*32768}\nL_nofh{stage}:')
    PH = [g.spoll(16 + 4*st, 's39', st*32768) for st in range(4)]
    w2p_pre = L(f'''
    s_mul_i32 s58, s34, 5
    s_add_u32 s59, s58, 4
    s_lshr_b32 s58, s58, 2
    s_lshr_b32 s59, s59, 2
    s_sub_u32 s59, s59, s58
    s_mul_i32 s46, s3, 30
    s_add_u32 s58, s58, s46
    v_and_b32 v236, 3, v2
    v_min_u32 v236, 2, v236
    v_mul_u32_u24 v236, 10, v236
    v_bfe_u32 v{MT+1}, v2, 2, 1
    v_mad_u32_u24 v236, v{MT+1}, s59, v236
    v_add_u32 v236, s58, v236
    v_lshrrev_b32 v236, 1, v236
    v_lshlrev_b32 v236, 7, v236
    v_add_u32 v236, {WS_FLW2}, v236
    ''')
    w2p = L(f'buffer_load_dwordx4 v[{MP}:{MP+3}], v236, {sWS}, 0 offen sc1')
    w2chk = g.check(w2p, [f'v{MP+k}' for k in range(4)], f'v{MT+1}')
    cst_pre = L(f'''
    s_mul_i32 s58, s34, 80
    s_mul_i32 s59, s3, 24
    s_add_u32 s58, s58, s59
    v_and_b32 v{MT+3}, 31, v2
    v_add_u32 v{MT+3}, s58, v{MT+3}
    v_min_u32 v{MT+3}, 639, v{MT+3}
    v_lshrrev_b32 v{MT+2}, 5, v2
    v_mul_u32_u24 v{MT+2}, 3840, v{MT+2}
    v_add_lshl_u32 v{MT+3}, v{MT+3}, v{MT+2}, 3
    s_mov_b32 s64, {WS_MODP + 4*640*8}
    s_mov_b32 s65, {WS_MODP + 5*640*8}
    ''')
    cstld = L(f'buffer_load_dwordx2 v[{MP+4}:{MP+5}], v{MT+3}, {sWS}, s64 offen sc1\nbuffer_load_dwordx2 v[{MP+6}:{MP+7}], v{MT+3}, {sWS}, s65 offen sc1')
    a_, b_, c_, d_ = (f'v{MP+4+k}' for k in range(4))
    cstfin = [g.check(cstld, [b_, d_], f'v{MT+2}')] + [[i] for i in L(f'''
    v_mov_b32 {b_}, {a_}
    v_mov_b32 {d_}, {c_}
    s_lshl_b32 s58, s3, 8
    s_add_u32 s58, s58, {L_CST}
    v_permlane32_swap_b32 {a_}, {b_}
    v_permlane32_swap_b32 {c_}, {d_}
    v_add_f32 {a_}, {a_}, {b_}
    v_add_f32 {c_}, {c_}, {d_}
    v_cvt_pk_bf16_f32 {a_}, 0, {a_}
    v_cvt_pk_bf16_f32 {c_}, 0, {c_}
    v_add_f32 {a_}, 1.0, {a_}
    v_cvt_pk_bf16_f32 {a_}, 0, {a_}
    v_mov_b32 {b_}, 0x21800000
    ''')] + [L(f'''
    v_cmp_eq_f32 vcc, 0, {a_}
    v_and_b32 {d_}, 31, v2
    v_lshl_add_u32 {d_}, {d_}, 2, s58
    v_cndmask_b32 {a_}, {a_}, {b_}, vcc
    ''')] + [[i] for i in L(f'''
    v_rcp_f32 {a_}, {a_}
    ds_write_b32 {d_}, {c_}
    ds_write_b32 {d_}, {a_} offset:128
    ''')]
    def sendS(j): return [L(f'ds_write_b128 {vEW}, v[{ACCS+4*q}:{ACCS+4*q+3}] offset:{1024*q}', tag=f'snd{j}') for q in range(4)]
    def sendH(j): return [L(f'ds_write_b128 {vEW}, v[{ACCH[j&1]+4+8*q}:{ACCH[j&1]+7+8*q}] offset:{4096+1024*q}', tag=f'snd{j}') for q in range(2)]
    def recv(j):
        dst = [ACCK[j&1] + 4*q for q in range(4)] + [ACCH[j&1], ACCH[j&1] + 8]
        rd = lambda q: L(f'ds_read_b128 v[{RECV+4*(q%5)}:{RECV+4*(q%5)+3}], {vER} offset:{1024*q}')
        it = [rd(q) for q in range(5)]
        for q in range(6):
            it += [L(f'v_add_f32 v{dst[q]+b}, v{dst[q]+b}, v{RECV+4*(q%5)+b}') for b in range(4)]
            if q == 0: it.append(rd(5))
        return it
    def statld(j): return L(f's_add_u32 s63, s37, {4096*j}\nbuffer_load_dwordx2 v[{vST}:{vST+1}], {vSR}, {sWS}, s63 offen sc1')
    def statuse(j, ld):
        return [g.check(ld, [f'v{vST+1}'], None)] + [[i] for i in L(f'''
        v_and_b32 {vI2}, 0xffff0000, v{vST}
        v_rcp_f32 {vK1}, {vI2}
        v_perm_b32 v{BX}, v{vST}, v{vST}, s42
        v_perm_b32 v{BX+1}, v{vST}, v{vST}, s43
        v_mul_f32 {vI2}, {vI2}, {vI2}
        v_mul_f32 {vK3}, {vK1}, {vK1}
        v_mul_f32 {vK1}, 0xc0135761, {vK1}
        v_mul_f32 {vK3}, 0x3d372713, {vK3}
        v_mul_f32 {vK3}, {vK3}, {vK1}
        ''')]
    def fold(j): return [(r16(ACCK[j&1]), f'v[{WXK}:{WXK+3}]', f'v[{BX}:{BX+3}]', r16(ACCK[j&1])), (r16(ACCH[j&1]), f'v[{WXH}:{WXH+3}]', f'v[{BX}:{BX+3}]', r16(ACCH[j&1]))]
    def gelu(j):
        prs = [(ACCK[j&1] + b, PK + (b >> 1)) for b in range(0, 8, 2)] + [(ACCH[j&1] + b, PK + 4 + (b >> 1)) for b in (0, 2)]
        it = []
        for n, (a, p) in enumerate(prs):
            t0, t1 = GT + 2*(n & 1), GT + 1 + 2*(n & 1)
            it += [[i] for i in L(f'''
            v_mul_f32 v{t0}, v{a}, v{a}
            v_mul_f32 v{t1}, v{a+1}, v{a+1}
            v_fma_f32 v{t0}, v{t0}, {vK3}, {vK1}
            v_fma_f32 v{t1}, v{t1}, {vK3}, {vK1}
            v_mul_f32 v{t0}, v{t0}, v{a}
            v_mul_f32 v{t1}, v{t1}, v{a+1}
            v_exp_f32 v{t0}, v{t0}
            v_mul_f32 v{a}, v{a}, v{a+8}
            v_exp_f32 v{t1}, v{t1}
            v_mul_f32 v{a+1}, v{a+1}, v{a+9}
            v_fma_f32 v{t0}, v{t0}, {vI2}, {vI2}
            v_fma_f32 v{t1}, v{t1}, {vI2}, {vI2}
            v_rcp_f32 v{t0}, v{t0}
            v_rcp_f32 v{t1}, v{t1}
            v_mul_f32 v{a}, v{a}, v{t0}
            v_mul_f32 v{a+1}, v{a+1}, v{t1}
            v_cvt_pk_bf16_f32 v{p}, v{a}, v{a+1}
            ''')]
            if n == 2: it.append(L(f's_add_u32 s69, s40, {j*32*49152}'))
        it.append(L(f'v_permlane32_swap_b32 v{PK+4}, v{PK+6}'))
        it.append(L(f'v_permlane32_swap_b32 v{PK+5}, v{PK+7}'))
        it.append(L(f'buffer_store_dwordx4 v[{PK}:{PK+3}], {vHX}, {sWS}, s69 offen sc1', tag=f'hh{j}'))
        it.append(L(f'buffer_store_dwordx4 v[{PK+4}:{PK+7}], {vHY}, {sWS}, s69 offen sc1', tag=f'hh{j}'))
        return it
    FP = [o('fp0', 22), o('fp1', 16), o('fp2', 16)]
    seq = []; T0 = []; freeat = {}
    for j in range(4):
        order = [(2, 0), (1, 0), (2, 1), (1, 1), (2, 2), (1, 2), (0, 0), (0, 1), (0, 2)]
        for s in range(3, 17): order += [(2, s), (1, s), (0, s)]
        order += [(ro, s) for ro in (0, 1, 2) for s in (17, 18, 19)]
        T0.append(len(seq))
        for n, (ro, s) in enumerate(order):
            if j > 0 and n == FP[j-1]: seq += fold(j - 1)
            d = r16([ACCS, ACCH[j&1], ACCK[j&1]][ro]); a = 12*s + 4*ro
            seq.append((d, f'a[{a}:{a+3}]', ('t', j, s), '0' if s == 0 else d))
            if j == 3: freeat[a] = len(seq) - 1
    T0.append(len(seq))
    B2 = [T0[j+1] - o('b2back', 9) for j in range(4)]
    def tload(f, dst):
        _, j, s = f
        a, base = (vTR2, 0) if j == 2 else (vTR, L_SLOT[j])
        return [Ins(f'ds_read_b64_tr_b16 v[{dst+2*e}:{dst+2*e+1}], {a} offset:{base + 1024*s + 256*e}') for e in range(2)]
    bb, pinned, head = alloc_frags(seq, M32, RING, tload, lead=o('lead1', 9), maxper=2, notbefore=lambda f: B2[f[1]-1] + 1 if f[1] > 0 else -1)
    S.emit(head)
    F = []
    one = lambda items, gp, prio=5, name=None: Fill([items], gp, gp, prio=prio, hard=True, name=name)
    sing = lambda l: [[i] for i in l]
    t0, t1, t2, t3, t4 = T0
    LAT = o('lat', 16)
    use0 = {}
    for k, (D, A, B, C) in enumerate(seq[:t1]): use0[A] = k
    w1r = Fill(g.w1f.rest, 0, 10**9, prio=4, name='w1', asap=True); F.append(w1r)
    for k in range(len(w1r.items) - 1, -1, -1):
        i = w1r.items[k][0]
        w1r.dl[k] = max(0, use0[i.ops[0]] - LAT) if i.kind == 'vmem' else 10**9
        if k + 1 < len(w1r.items): w1r.dl[k] = min(w1r.dl[k], w1r.dl[k+1])
    def dma(j, chk, pre, gchk, dl):
        c = one(g.stamp(f'_{pre}0') + g.check(chk, ['v192'], None) + g.stamp(f'_{pre}1'), gchk, name='dma')
        d = Fill(g.tile_dma(j), gchk, dl, prio=3, name='dma', asap=True, after=[c])
        n = len(d.items)
        for k in range(n): d.dl[k] = dl - (n - 1 - k)*0.6
        F.extend([c, d]); return c, d
    F.append(Fill(stats_step(0), 0, o('st0end', 16), prio=4, ahead=4, name='st0'))
    c1, d1 = dma(1, g.pB, 'b', o('gchkB', 8), B2[0] - o('lat2', 20))
    pC = g.pollC(2, 'v192')
    fpc = one(pC, o('gpC', 40), name='dma'); fpc.after = [c1]; F.append(fpc)
    gD = o('gstD', 4)
    F.append(Fill(sing(g.epi(3, 's48', 'pD', t=PK)), gD - 3, gD, prio=5, slack=1, name='epiD', burst=True))
    F.append(one(g.flagC(3, 'pD', skip=True), gD + o('gflD', 40)))
    c2, d2 = dma(2, pC, 'c', o('gchkC', 62), B2[1] - o('lat2', 20)); c2.after = [fpc]; d2.after.append(d1)
    gq = o('gq', 36)
    m1 = Fill(sing(w2p_pre) + sing(cst_pre), 20, gq - 2, prio=2, ahead=3, name='misc'); F.append(m1)
    m2 = Fill([w2p] + sing(cstld) + sing(wxld), gq, o('gwx', 52), prio=2, name='misc', asap=True, after=[m1]); F.append(m2)
    m2.lo[-1] = m2.lo[-2] = o('gwx', 52) - 4
    w2c = one(w2chk, t1 + 3, name='misc'); w2c.after = [m2]; F.append(w2c)
    mf = Fill(cstfin + wxfix, t1 + 6, t1 + FP[0] - 5, prio=3, ahead=3, slack=1, name='misc', after=[m2]); F.append(mf)
    F.append(one(g.stamp('_t1w') + g.barrier(['tile1']) + g.stamp('_t1b'), B2[0]))
    for j in range(4): F.append(Fill(resread(j), T0[j] + 30, T0[j] + 32, prio=1, name='res'))
    GE = [o('gelend', 55), o('gelend', 55), o('gelend2', 48)]; gprev = []
    for j in range(3):
        b = T0[j+1]; fp = FP[j]
        F.append(Fill(sendS(j) + sendH(j), b - 5, b + o('sndend', 3), prio=6, hard=True, name='send'))
        b1 = b + o('sndend', 3) + 2
        F.append(one(g.barrier([f'snd{j}'] + (['tile3'] if j == 1 else [])), b1))
        rc = Fill(recv(j), b1 + 1, b + fp - 2, prio=5, slack=1, ahead=3, name='recv', after=gprev); F.append(rc)
        ld = statld(j)
        F.append(one(ld, b + (o('gst0', 0) if j == 0 else o('gst', -10)), name=f'stat{j}'))
        su = statuse(j, ld)
        F.append(Fill([g.stamp(f'_s{j}a') + su[0] + g.stamp(f'_s{j}b')] + su[1:], b + fp - 4, b + fp - 2, prio=5, hard=True, name=f'stat{j}', after=gprev))
        gprev = [Fill(gelu(j), b + fp + 3, b + GE[j], prio=3, ahead=o('gelah', 3), name='gelu', after=[rc], burst=True)]; F += gprev
        if j > 0:
            F.append(one(g.barrier([f'tile{j+1}'] if j == 1 else []), B2[j]))
            F.append(one(flagH(j - 1), b + o('gflH', 30)))
        if j == 1: bt3 = b1
    F.append(one(g.barrier([]), B2[3]))
    F.append(Fill(sendS(3), t4 - 5, t4 - 2, prio=6, hard=True, name='send'))
    F.append(Fill(stats_step(1), B2[0] + 1, t1 + o('st1end', 24), prio=2, ahead=6, name='st1'))
    pD = g.pollC(3, 'v192')
    fpd = one(pD, t1 + o('gpD', 10), name='dma'); fpd.after = [c2]; F.append(fpd)
    c3, d3 = dma(3, pD, 'd', t1 + o('gchkD', 32), bt3 - o('lat2', 20)); c3.after = [fpd]; d3.after.append(d2)
    s2 = Fill(stats_step(2), bt3 + 1, t2 + o('st2end', 26), prio=4, ahead=6, name='st2'); F.append(s2)
    wa = Fill(w2_loads(0, 4) + w2_loads(5, 12) + w2_loads(16, 20), t1, t3, prio=1, name='w2', asap=True, after=[w2c, w1r]); F.append(wa)
    wb = Fill(w2_loads(12, 16) + w2_loads(4, 5) + stageB + stageA, t1, t3 + 4, prio=1, name='w2', asap=True, after=[wa, mf, d3]); F.append(wb)
    nb = len(wb.items) - len(stageA)
    for kk in range(nb, len(wb.items)): wb.lo[kk] = bt3 + 1
    wc = Fill(w2_loads(20, 24), t2, t3 + 6, prio=1, name='w2', asap=True, after=[s2, wb]); F.append(wc)
    F.append(one(PH[0][0], t3 + o('gpH0', -8), name='late'))
    def bind(f):
        for k, it in enumerate(f.items):
            for i in it:
                for r in i.defs:
                    if isinstance(r, tuple) and r[0] == 'a' and r[1] in freeat: f.lo[k] = max(f.lo[k], freeat[r[1]]); f.want[k] = max(f.want[k], f.lo[k])
    fu = Fill(unstage, t3 + 24, t3 + 44, prio=2, name='unstage', after=[s2, wb]); bind(fu); F.append(fu)
    ch0 = one(PH[0][1], t3 + o('late0', 12), name='late'); F.append(ch0)
    f3 = Fill(tok_loads(0) + w2_loads(36, 60), t3, 10**9, prio=2, name='late', asap=True, carry=True, after=[ch0, wc]); bind(f3); F.append(f3)
    for k in range(len(tok_loads(0))): f3.dl[k] = t4 - LAT - (14 - k)*0.6
    sl3 = statld(3); F.append(one(sl3, t4 - 24, name='stat3'))
    su3 = statuse(3, sl3)
    F.append(one(PH[1][0], t4 - o('gpH1', 8)))
    if isinstance(g.stamps, list):
        for nm in g.stamps:
            if nm.startswith('_G'): F.append(one(g.stamp(nm), int(nm[2:]), prio=9))
    S.emit(interleave(bb, F, pinned, report='g1', pipe=g.pipe))
    late_rest = f3.rest
    S.emit(g.stamp('g1end'))
    g2a = L(f'''
    s_mul_i32 s58, s3, 5120
    s_add_u32 s58, s58, {L_PART}
    v_add_u32 v13, s58, v3
    ''')
    g2b = L(f'''
    v_lshrrev_b32 v84, 4, v2
    v_and_b32 v85, 15, v2
    s_mul_i32 s58, s3, 3
    v_min_u32 v86, 2, v84
    v_add_u32 v87, s58, v86
    v_cmp_lt_u32 s[48:49], 9, v87
    v_cmp_eq_u32 s[46:47], 3, v84
    v_min_u32 v87, 9, v87
    s_or_b64 s[48:49], s[48:49], s[46:47]
    v_lshlrev_b32 v88, 9, v87
    v_lshl_add_u32 v12, v85, 4, v88
    v_add_u32 v12, {L_PART}, v12
    s_lshl_b32 s58, s3, 8
    s_add_u32 s58, s58, {L_CST}
    v_lshl_add_u32 v86, v86, 5, s58
    s_lshr_b32 s58, s35, 3
    s_lshl_b32 s58, s58, 8
    s_bfe_u32 s59, s35, 0x20001
    s_lshl_b32 s59, s59, 6
    s_add_u32 s58, s58, s59
    s_and_b32 s59, s35, 1
    s_lshl_b32 s59, s59, 3
    s_add_u32 s58, s58, s59
    s_lshl_b32 s59, s36, 5
    s_add_u32 s58, s58, s59
    v_and_b32 v88, 8, v85
    v_add3_u32 v88, v88, v85, s58
    v_mul_u32_u24 v88, 1280, v88
    v_lshl_add_u32 v88, v87, 4, v88
    s_mul_i32 s58, s34, 160
    v_add_u32 v88, s58, v88
    v_mov_b32 v89, {OOB}
    v_cndmask_b32 v6, v88, v89, s[48:49]
    ds_read_b128 v[8:11], v86
    ds_read_b128 v[16:19], v86 offset:16
    ds_read_b128 v[116:119], v86 offset:128
    ds_read_b128 v[124:127], v86 offset:144
    ''')
    ACC = [40, 60]; FT = 80
    FQ = o('fq', 12)
    bb = []; done = {}
    KM = [0, o('km1', 8), o('km2', 8), o('km3', 8)]
    for st in range(4):
        order = [(ct, ks) for ks in range(KM[st]) for ct in range(5)] + [(ct, ks) for ct in range(5) for ks in range(KM[st], 12)]
        for ct, ks in order:
            d = f'v[{ACC[st&1]+4*ct}:{ACC[st&1]+4*ct+3}]'
            if len(bb) == FQ: bb += [Ins(f'{M32} {x[0]}, {x[1]}, {x[2]}, {x[3]}') for x in fold(3)]
            bb.append(Ins(f'{M16} {d}, {w2reg(ct, ks)}, {tokreg(st, ks)}, {"0" if ks == 0 else d}')); done[st, ct] = len(bb) - 1
    def pwrite(st, ct): return L(f'ds_write_b128 v13, v[{ACC[st&1]+4*ct}:{ACC[st&1]+4*ct+3}] offset:{20480*(st&1) + 1024*ct}', tag=f'pw{st}')
    def final(st):
        it = []
        for w in range(4):
            for h in range(2): it.append(L(f'ds_read_b128 v[{FT+8*w+4*h}:{FT+8*w+4*h+3}], v12 offset:{20480*(st&1) + 5120*w + 256*h}'))
        X = RES + 4*st; Y = FT + 32
        for c in range(8):
            it += [L(f'v_add_f32 v{FT+c}, v{FT+c}, v{FT+8+c}'), L(f'v_add_f32 v{FT+16+c}, v{FT+16+c}, v{FT+24+c}')]
        for c in range(8):
            u = f'v_lshlrev_b32 v{FT+8+c}, 16, v{X+(c>>1)}' if c % 2 == 0 else f'v_and_b32 v{FT+8+c}, 0xffff0000, v{X+(c>>1)}'
            it += [L(f'v_add_f32 v{FT+c}, v{FT+c}, v{FT+16+c}'), L(u), L(f'v_mul_f32 v{FT+c}, v{FT+c}, v{CG[c]}'), L(f'v_fmac_f32 v{FT+c}, v{FT+8+c}, v{CI[c]}')]
            if c % 2 == 1: it.append(L(f'v_cvt_pk_bf16_f32 v{Y+(c>>1)}, v{FT+c-1}, v{FT+c}'))
        it.append(L(f's_mov_b32 s69, {st*512*1280}\nbuffer_store_dwordx4 v[{Y}:{Y+3}], v6, {sOUT}, s69 offen {["", "sc1", "nt", "sc0 sc1"][o("outf", 0)]}'))
        return it
    F = []
    S.emit(flat(sendH(3))); S.emit(flat(su3))
    ge3 = o('gel3', 32)
    F.append(one(g.barrier(['snd3']), 0))
    rc = Fill(recv(3), 1, FQ - 2, prio=5, slack=0, name='recv'); F.append(rc)
    g3f = Fill(gelu(3), FQ + 3, ge3, prio=5, slack=0, name='gelu', after=[rc], burst=True); F.append(g3f)
    F.append(one(flagH(2), o('gfl2', 12)))
    F.append(Fill(sing(g2a), 2, 10, prio=4, hard=True, name='g2set'))
    F.append(Fill([g2b[:9]] + sing(g2b[9:]), ge3 + 1, 66, prio=4, slack=0, name='g2set', after=[g3f]))
    use = {}
    for k, i in enumerate(bb):
        for op in i.ops[1:3]: use.setdefault((op, k//60 if op in [tokreg(0, q) for q in range(12)] and k > 100 else 0), k)
    def dls(f, lat, key=0):
        for k in range(len(f.items) - 1, -1, -1):
            i = f.items[k][0]
            f.dl[k] = max(0, use[i.ops[0], key] - lat) if i.kind == 'vmem' else 10**9
            if k + 1 < len(f.items): f.dl[k] = min(f.dl[k], f.dl[k+1])
    L2 = o('lat3', 28)
    flw = Fill(late_rest, 0, 10**9, prio=4, name='late', asap=True); dls(flw, L2); F.append(flw)
    ch1 = one(PH[1][1], o('gcH1', 6), name='h1'); F.append(ch1)
    flr = Fill(tok_loads(1), 0, 10**9, prio=3, name='tok', asap=True, after=[ch1]); dls(flr, L2); F.append(flr)
    for st in range(4):
        b = 60*st + 2
        for ct in range(5):
            gp = done[st, ct] + 3
            if gp < 242: F.append(one(pwrite(st, ct), gp))
        if st < 3:
            F.append(one(g.barrier([f'pw{st}']), b + 67))
            F.append(Fill(final(st), b + 68, b + 116, prio=2, ahead=6, name='final'))
    F.append(one(flagH(3), ge3 + o('gfl3', 44)))
    gp2 = o('gpH2', 44); g2c = o('gcH2', 76)
    F.append(one(PH[2][0], gp2, name='h2'))
    ch2 = one(g.stamp('_h2a') + PH[2][1] + g.stamp('_h2b'), g2c, name='h2'); F.append(ch2)
    h2 = Fill(tok_loads(2), g2c, 10**9, prio=4, name='tok', asap=True, after=[flr, ch2]); dls(h2, L2); F.append(h2)
    gp3 = o('gpH3', 116); g3c = o('gcH3', 146)
    F.append(one(PH[3][0], gp3, name='h3'))
    ch3 = one(g.stamp('_h3a') + PH[3][1] + g.stamp('_h3b'), g3c, name='h3'); F.append(ch3)
    h3 = Fill(tok_loads(3), g3c, 10**9, prio=4, name='tok', asap=True, after=[h2, ch3]); dls(h3, L2, 3); F.append(h3)
    if isinstance(g.stamps, list):
        for nm in g.stamps:
            if nm.startswith('_H'): F.append(one(g.stamp(nm), int(nm[2:]), prio=9))
    S.emit(interleave(bb, F, report='g2', pipe=g.pipe))
    S.emit(g.stamp('g2m'))
    S.emit(pwrite(3, 4)); S.emit(g.barrier(['pw3'])); S.emit(flat(final(3)))
    S.emit(f's_or_b32 s58, s2, s3\ns_cbranch_scc1 L_noep\ns_atomic_swap {sN}, s[4:5], 0\nL_noep:')
```

```python
import re, subprocess, os, tempfile

REG = re.compile(r'^(-|abs\()?([vas])(?:(\d+)|\[(\d+):(\d+)\])\)?$')
TRANS = ('v_exp_f32', 'v_log_f32', 'v_rcp_f32', 'v_rsq_f32', 'v_sqrt_f32', 'v_sin_f32', 'v_cos_f32')
NODEF_S = ('s_cmp', 's_cbranch', 's_waitcnt', 's_barrier', 's_nop', 's_branch', 's_setprio', 's_sleep', 's_endpgm', 's_bitcmp')

def regs_of(op):
    op = op.strip()
    if op in ('vcc', 'exec', 'm0'): return [op]
    if op in ('vcc_lo', 'vcc_hi'): return ['vcc']
    if op in ('exec_lo', 'exec_hi'): return ['exec']
    m = REG.match(op)
    if not m: return []
    k = m.group(2)
    if m.group(3) is not None: return [(k, int(m.group(3)))]
    return [(k, i) for i in range(int(m.group(4)), int(m.group(5)) + 1)]

class Ins:
    __slots__ = ('text', 'mn', 'kind', 'defs', 'uses', 'ops', 'tag', 'waitfor', 'size', 'srcc', 'srcab', 'passes', 'wide', 'lanesel', 'note', 'src', 'xuses', 'xdefs', 'lines')
    def __init__(self, text, tag=None, waitfor=None):
        self.text = text.strip(); self.tag = tag; self.waitfor = waitfor or []
        self.size = None; self.srcc = []; self.srcab = []; self.passes = 0; self.wide = False; self.lanesel = []; self.note = None; self.src = None; self.xuses = set(); self.xdefs = set(); self.lines = None
        t = self.text
        if t.endswith(':') or t.startswith('.') or t.startswith(';') or t == '':
            self.mn = ''; self.kind = 'label' if t.endswith(':') else 'dir'; self.defs = set(); self.uses = set(); self.ops = []; return
        parts = t.split(None, 1)
        mn = parts[0]; rest = parts[1] if len(parts) > 1 else ''
        ops = []; cur = ''; depth = 0
        for ch in rest:
            if ch == '[': depth += 1
            if ch == ']': depth -= 1
            if ch == ',' and depth == 0: ops.append(cur.strip()); cur = ''
            else: cur += ch
        mods = ''
        if cur.strip():
            sp = cur.strip().split(None, 1); ops.append(sp[0]); mods = sp[1] if len(sp) > 1 else ''
        self.mn = mn; self.ops = ops
        base = re.sub(r'_(e32|e64|dpp|sdwa)$', '', mn)
        R = [regs_of(o) for o in ops]
        flat = lambda L: set(x for l in L for x in l)
        d = set(); u = set()
        if mn.startswith('v_mfma'):
            self.kind = 'mfma'; d = set(R[0]); u = flat(R[1:]); self.srcc = R[3]; self.srcab = R[1] + R[2]
            self.passes = 8 if '32x32' in mn else 4
        elif mn.startswith('v_'):
            self.kind = 'trans' if base in TRANS else 'valu'
            if 'permlane' in mn: d = flat(R); u = flat(R)
            elif base in ('v_add_co_u32', 'v_sub_co_u32', 'v_addc_co_u32'): d = flat(R[:2]); u = flat(R[2:])
            else:
                d = set(R[0]); u = flat(R[1:])
                if base in ('v_fmac_f32', 'v_dot2c_f32_bf16', 'v_writelane_b32') or mn.endswith('_dpp'): u |= d
                if base == 'v_cndmask_b32' and len(ops) == 3: u.add('vcc')
                if base in ('v_readlane_b32', 'v_writelane_b32'): self.lanesel = R[2]
            u.add('exec')
        elif mn.startswith('ds_'):
            self.kind = 'ds'
            if mn.startswith('ds_read') or '_rtn_' in mn or mn.startswith('ds_bperm') or mn.startswith('ds_swizzle'):
                d = set(R[0]); u = flat(R[1:])
                if 'd16' in mn: u |= d
            else:
                u = flat(R)
            if 'addtid' in mn: u.add('m0')
        elif mn.startswith('buffer_') or mn.startswith('global_'):
            self.kind = 'vmem'
            lds = ' lds' in (' ' + mods) or '_lds_' in mn
            if 'load' in mn and not lds:
                d = set(R[0]); u = flat(R[1:])
                if 'd16' in mn: u |= d
            else:
                u = flat(R)
                if lds: u.add('m0')
                if 'store' in mn and ('x3' in mn or 'x4' in mn):
                    self.wide = set(R[0] if mn.startswith('buffer_') else R[1])
        elif mn.startswith('s_atomic'):
            self.kind = 'smem'; u = flat(R); self.note = 'async'
        elif mn.startswith('s_load') or mn.startswith('s_memtime') or mn.startswith('s_memrealtime'):
            self.kind = 'smem'; d = set(R[0]); u = flat(R[1:])
        elif mn.startswith('s_'):
            self.kind = 'salu'
            if any(mn.startswith(p) for p in NODEF_S): u = flat(R)
            else: d = set(R[0]); u = flat(R[1:])
            if re.match(r's_(cmp|add|sub|and|or|xor|lshl|lshr|ashr|bfe|min|max|not|bitcmp)', mn): d.add('scc')
            if re.match(r's_(cselect|cbranch_scc|addc|subb)', mn): u.add('scc')
            if mn.startswith('s_cbranch_vcc'): u.add('vcc')
        else:
            raise ValueError('unknown instruction ' + t)
        self.defs = d; self.uses = u
    def states(self):
        if self.kind in ('label', 'dir'): return 0
        if self.mn == 's_nop': return int(self.ops[0], 0) + 1
        return 1
    def __repr__(self): return self.text

def L(text, **kw):
    out = []
    for l in text.strip('\n').split('\n'):
        l = l.split(';')[0].strip() if not l.strip().startswith(';') else ''
        if l: out.append(Ins(l, **kw))
    return out

def isv(r): return isinstance(r, tuple) and r[0] in 'va'
def iss(r): return r == 'vcc' or (isinstance(r, tuple) and r[0] == 's')

def need_states(p, c):
    n = 0
    pv = p.kind in ('valu', 'trans'); cv = c.kind in ('valu', 'trans')
    if pv:
        dv = set(r for r in p.defs if isv(r)); dsg = set(r for r in p.defs if iss(r))
        if c.kind == 'mfma' and dv & c.uses: n = max(n, 2)
        if cv and dv & c.uses:
            if c.mn.endswith('_dpp') or 'permlane' in c.mn: n = max(n, 2)
            if 'readlane' in c.mn or 'readfirstlane' in c.mn: n = max(n, 1)
            if p.kind == 'trans' and c.kind != 'trans': n = max(n, 1)
        if p.mn.startswith('v_dot2') and (dv & (c.uses | c.defs)):
            same_c = c.mn == p.mn and not (dv & set(regs_of(c.ops[1]) + regs_of(c.ops[2])))
            if not same_c: n = max(n, 3)
        if dsg:
            if cv and dsg & c.uses: n = max(n, 2)
            if cv and dsg & set(c.lanesel): n = max(n, 4)
            if c.kind == 'vmem' and dsg & c.uses: n = max(n, 5)
            if c.kind in ('salu', 'smem') and dsg & c.uses and not c.mn.startswith('s_cbranch'): n = max(n, 1)
    if p.kind == 'mfma':
        big = 12 if p.passes == 8 else 8
        if c.kind == 'mfma':
            if p.defs & set(c.srcab): n = max(n, big)
            if p.defs & set(c.srcc):
                if not (set(c.srcc) == p.defs and c.passes == p.passes): n = max(n, big - 2)
            elif p.defs & c.defs: n = max(n, big)
        elif c.kind in ('valu', 'trans', 'ds', 'vmem'):
            if p.defs & (c.uses | c.defs): n = max(n, big)
            if set(r for r in p.srcc if isv(r)) & c.defs: n = max(n, 7 if p.passes == 8 else 3)
    if p.wide and (p.wide & c.defs): n = max(n, 2 if cv else 1)
    if p.kind == 'salu' and 'm0' in p.defs and 'm0' in c.uses and c.kind in ('ds', 'vmem'): n = max(n, 1)
    return n

class Stream:
    def __init__(self):
        self.out = []
        self.vm = []
        self.lg = []
        self.sm = []
        self.nops = 0; self.nwait = 0
        self.t = 0; self.tm = -99; self.shadow = []; self.dummy = None; self.shadow_len = 1400; self.ndummy = 0
        self.log = []
    def state(self): return (list(self.vm), list(self.lg), list(self.sm))
    def set_state(self, st): self.vm, self.lg, self.sm = list(st[0]), list(st[1]), list(st[2])
    def _raw(self, ins):
        if ins.kind not in ('label', 'dir'):
            dist = 0; need = 0; who = None; tm = None
            for p in reversed(self.out):
                if dist >= 12: break
                if p.kind in ('label', 'dir'): continue
                d = dist
                if p.kind == 'mfma':
                    if tm is None: tm = dist
                    else: tm += p.passes; d = max(dist, tm - 1)
                k = need_states(p, ins) - d
                if k > need: need = k; who = p
                dist += p.states()
            if need > 0:
                self.nops += need
                self.log.append(f'pad {need}: [{who}] -> [{ins}]')
                self.out.append(Ins(f's_nop {need-1}'))
        self.out.append(ins)
        if ins.kind == 'mfma':
            self.t = max(self.t, self.tm); self.tm = self.t + 4*ins.passes; self.t += 8
        else: self.t += cost(ins)
    def _wait(self, vm=None, lg=None):
        parts = []
        self.shadow = [x for x in self.shadow if x[0] > self.t]
        k = sum(x[1] for x in self.shadow)
        if lg is not None and lg < len(self.lg) and lg < k and self.dummy:
            for _ in range(k - lg):
                di = Ins(self.dummy); di.defs = set(); self._raw(di); self.lg.append(di); lg += 1; self.ndummy += 1
        if vm is not None and vm < len(self.vm):
            vm = min(vm, 63); parts.append(f'vmcnt({vm})'); self.vm = self.vm[len(self.vm)-vm:] if vm else []
        if lg is not None and (lg < len(self.lg) or (lg == 0 and self.sm)):
            lg = min(lg, 15); parts.append(f'lgkmcnt({lg})'); self.lg = self.lg[len(self.lg)-lg:] if lg else []
            if lg == 0: self.sm = []
        if parts:
            self.nwait += 1
            self._raw(Ins('s_waitcnt ' + ' '.join(parts)))
    def wait_tags(self, tags):
        vm = lg = None
        for i, o in enumerate(self.vm):
            if o.tag in tags: vm = len(self.vm) - 1 - i
        for i, o in enumerate(self.lg):
            if o.tag in tags: lg = len(self.lg) - 1 - i
        self._wait(vm, lg)
    def wait_all(self): self._wait(0, 0)
    def needs(self, ins):
        touch = ins.uses | ins.defs
        vm = lg = None
        for i, o in enumerate(self.vm):
            if (o.defs & touch) or (o.tag is not None and o.tag in ins.waitfor): vm = len(self.vm) - 1 - i
        for i, o in enumerate(self.lg):
            if (o.defs & touch) or (o.tag is not None and o.tag in ins.waitfor): lg = len(self.lg) - 1 - i
        for o in self.sm:
            if (o.defs & touch) and o.note != 'stamp': lg = 0
        return vm, lg
    def emit(self, x):
        if isinstance(x, str): x = L(x)
        if isinstance(x, (list, tuple)):
            for k, i in enumerate(x):
                self.emit(i)
                if isinstance(i, Ins) and i.note == 'gap':
                    grp = []
                    for y in x[k+1:]:
                        grp.append(y)
                        if y.note == 'gap': break
                    vm = lg = None
                    for y in grp:
                        v, l = self.needs(y)
                        if v is not None: vm = v if vm is None else min(vm, v)
                        if l is not None: lg = l if lg is None else min(lg, l)
                    self._wait(vm, lg)
            return
        ins = x
        if ins.mn == 's_waitcnt':
            m = re.search(r'vmcnt\((\d+)\)', ins.text); m2 = re.search(r'lgkmcnt\((\d+)\)', ins.text)
            self._wait(int(m.group(1)) if m else None, int(m2.group(1)) if m2 else None)
            return
        self._wait(*self.needs(ins))
        self._raw(ins)
        if ins.kind == 'vmem': self.vm.append(ins)
        elif ins.kind == 'ds': self.lg.append(ins)
        elif ins.kind == 'smem' and ins.note == 'async': self.shadow.append((self.t + self.shadow_len, 2 if 'load_dwordx' in ins.mn else 1))
        elif ins.kind == 'smem' and ins.note != 'stamp': self.sm.append(ins)

def ismem(i): return i.kind in ('ds', 'vmem')
def cost(ins):
    k = ins.kind
    if k in ('label', 'dir'): return 0
    if k == 'ds':
        if 'write' in ins.mn: return 20 if 'b128' in ins.mn else (12 if 'b64' in ins.mn else 8)
        return 4
    if k == 'trans': return 8
    if k == 'vmem': return (20 if 'x4' in ins.mn else 12) if 'store' in ins.mn else 8
    if k == 'mfma': return 4 * ins.passes
    if ins.mn == 's_barrier': return 8
    if ins.mn == 's_nop': return 4 * ins.states()
    return 4

class Fill:
    def __init__(self, items, g0, g1, prio=1, hard=False, name=None, ahead=0, slack=None, burst=False, after=(), asap=False, carry=False):
        self.items = [i if isinstance(i, list) else [i] for i in items if not (isinstance(i, list) and not i)]
        self.g0 = g0; self.g1 = g1; self.prio = prio; self.hard = hard; self.k = 0; self.name = name
        self.ahead = ahead; self.slack = slack; self.burst = burst; self.after = list(after); self.asap = asap; self.carry = carry
        w = [max(1, sum(cost(x) for x in it)) for it in self.items]
        tot = max(sum(w) - (w[-1] if w else 0), 1); acc = 0; self.want = []
        for c in w:
            self.want.append(g0 + (g1 - g0) * acc / tot); acc += c
        self.lo = [g0] * len(self.items)
        self.dl = [g1 if asap else 10**9] * len(self.items)
        if asap: self.want = [g0] * len(self.items)
        self.placed = []

class Pipe:
    def __init__(self, sv=80, st=350, win=450): self.sv = sv; self.st = st; self.win = win; self.busy = 0; self.hw = win + 300
    def service(self, i):
        if 'store' in i.mn: return self.st if ('x4' in i.mn and 'sc1' in i.text) else 120
        if i.lines is not None: return max(64, self.sv * i.lines // 8)
        return self.sv

def interleave(backbone, fills, pinned=None, slack=3.0, vgap=66, dlat=None, report=None, pipe=None):
    pinned = pinned or {}
    out = []; est = 0; lastv = -10**9; ready = {}; over = []; idle = 0; blog = []; pipe_extra = 2; stall = []
    N = len(backbone)
    for g, m in enumerate(backbone):
        span = 4 * m.passes
        dl = dlat if dlat is not None else (3 if m.passes == 8 else 5)
        hz = 3 if m.passes == 8 else 4
        for r in m.defs: ready[r] = g + hz
        mem = list(pinned.get(g, [])); alu = []; front = []
        budget = span - 8 - sum(cost(x) for x in mem)
        nxt = backbone[g+1] if g + 1 < N else None
        freeS = not (nxt is not None and any(ready.get(r, -99) > g - 6 and r not in nxt.srcc for r in nxt.srcab))
        for x in mem:
            for r in x.defs: ready[r] = g + dl
        last = g == N - 1
        usedalu = set()
        while True:
            best = None
            for f in fills:
                if f.k >= len(f.items): continue
                it = f.items[f.k]; late = g - f.want[f.k]
                if any(d.k < len(d.items) or (d.placed and d.placed[-1] >= g and not last) for d in f.after): continue
                fin = last and not f.carry
                if not fin and (g < f.lo[f.k] or late < -f.ahead): continue
                sl = f.slack if f.slack is not None else slack
                force = fin or (late >= 0 and f.hard) or (late >= sl and not f.asap) or g >= f.dl[f.k]
                real = [x for x in it if x.kind not in ('label', 'dir')]
                memitem = any(ismem(x) for x in real) and all(ismem(x) or x.kind in ('salu', 'smem') for x in real) and not any(x.mn == 's_barrier' or x.mn.startswith('s_cbranch') for x in real)
                sonly = len(real) == 1 and real[0].kind in ('salu', 'smem') and real[0].mn not in ('s_barrier', 's_nop') and not real[0].mn.startswith('s_cbranch')
                if any(ready.get(r, -99) > g for x in real for r in (x.uses | x.defs)) and not (fin or (late >= sl + 3 and not f.asap) or (f.hard and late >= 0)): continue
                c = sum(cost(x) for x in real); where = 'alu'
                if sonly and freeS and id(f) not in usedalu and not any(x.src is f for x in mem): c = 0; where = 'front'
                elif memitem:
                    if id(f) in usedalu:
                        if not force: continue
                        c += 8
                    else: where = 'mem'
                    if any(x.kind == 'vmem' for x in real) and not force:
                        if f.asap:
                            if pipe.busy > pipe.win or any(x.kind == 'vmem' for x in mem): continue
                        elif not f.burst and est - lastv < vgap: continue
                else:
                    c += 8 * sum(1 for a_, b_ in zip([None] + real, real) if ismem(b_) and not (a_ is not None and ismem(a_)))
                starve = f.asap and pipe.busy < pipe.win // 2 and c <= budget + 8
                if c > budget and not force and not starve and not (not mem and not alu and late >= 0): continue
                key = (0 if (force and (f.hard or c <= budget)) else 1, 0 if c <= budget else 1, -f.prio, -late)
                if best is None or key < best[0]: best = (key, f, it, c, where)
            if best is None: break
            _, f, it, c, where = best
            for x in it: x.src = f
            if where == 'front': front += it; freeS = False
            elif where == 'mem': mem += it
            else: alu += it; usedalu.add(id(f))
            for x in it:
                if x.kind == 'ds':
                    for r in x.defs: ready[r] = g + dl
                elif x.kind == 'vmem':
                    lastv = est
                    if pipe: pipe.busy += pipe.service(x)
            budget -= c; f.k += 1; f.placed.append(g)
        m.note = 'gap'
        out += [m] + front + mem + alu
        est += span + max(0, -budget); over.append(max(0, -budget))
        if pipe:
            if pipe.busy > pipe.hw: stall.append(pipe.busy - pipe.hw); pipe.busy = pipe.hw
            else: stall.append(0)
            pipe.busy -= span + max(0, -budget) + pipe_extra
            if pipe.busy < 0: idle -= pipe.busy; pipe.busy = 0
            blog.append(pipe.busy)
    for n, f in enumerate(fills):
        assert f.k == len(f.items) or f.carry, (f.name, f.k)
        f.rest = f.items[f.k:]
        for it in f.items[:f.k]:
            for x in it: x.src = f.name or f'F{n}'
    if report:
        AUDIT.append(f'sched {report}: gaps {N} est {est} over ' + ' '.join(str(sum(over[k:k+10])) for k in range(0, N, 10)))
        if pipe: AUDIT.append(f'sched {report} pipe: idle {idle} stall {sum(stall)}: ' + ' '.join(str(sum(stall[k:k+10])) for k in range(0, N, 10)))
        for n, f in enumerate(fills):
            if f.placed: AUDIT.append(f'   place {f.name or "F%d" % n}: [{f.g0},{f.g1}] -> {f.placed[0]}..{f.placed[-1]} n={len(f.placed)}')
    audit(out)
    return out

AUDIT = []
def audit(seq):
    last = {}; own = {}; cross = {}
    g = -1
    for i in seq:
        if i.kind == 'mfma' and i.src is None: g += 1
        me = i.src or 'bb'
        for r in (i.uses | i.xuses) - {'exec'}:
            if r in last and last[r][0] != me:
                if (me, r) in own and me != 'bb' and last[r][0] != 'bb' and 'permlane32' not in i.mn:
                    AUDIT.append(f'CONFLICT gap {g}: {me} [{i}] reads {r} last written by {last[r][0]} [{last[r][1]}]')
                cross.setdefault((last[r][0], me), {}).setdefault(r, g)
        for r in i.defs | i.xdefs:
            last[r] = (me, i); own[(me, r)] = i
    def fmt(d):
        return ' '.join((f'{r[0]}{r[1]}' if isinstance(r, tuple) else r) + f'@{g}' for r, g in sorted(d.items(), key=str))
    for (a, b), d in cross.items():
        AUDIT.append(f'flow {a} -> {b}: {fmt(d)}')

CLANG = 'clang'; OBJDUMP = 'llvm-objdump'
def measure_sizes(ins_list):
    real = [i for i in ins_list if i.kind not in ('label', 'dir')]
    txt = '.amdgcn_target "amdgcn-amd-amdhsa--gfx950"\n.text\n' + '\n'.join(
        (i.text if not (i.mn.startswith('s_cbranch') or i.mn == 's_branch') else 's_nop 0') for i in real) + '\n'
    with tempfile.TemporaryDirectory() as td:
        open(td + '/a.s', 'w').write(txt)
        r = subprocess.run([CLANG, '-x', 'assembler', '-target', 'amdgcn-amd-amdhsa', '-mcpu=gfx950', '-c', td + '/a.s', '-o', td + '/a.o'], capture_output=True, text=True)
        if r.returncode: raise RuntimeError(r.stderr[:3000])
        o = subprocess.run([OBJDUMP, '-d', td + '/a.o'], capture_output=True, text=True).stdout
    sz = [len(m.group(1).split()) * 4 for m in re.finditer(r'// [0-9A-F]+: ([0-9A-F ]+)$', o, re.M)]
    assert len(sz) == len(real), (len(sz), len(real))
    for i, s in zip(real, sz): i.size = s

NOPROMO = ('v_readfirstlane', 'v_accvgpr', 'v_permlane', 'v_dot2c', 'v_nop')
def promotable(i):
    return i.kind in ('valu', 'trans') and i.size == 4 and not any(i.mn.startswith(p) for p in NOPROMO) and not re.search(r'_(e32|e64|dpp|sdwa)$', i.mn)

def layout(ins_list, stub_every=4, minrun=6, minrun_m=3, minpages=0, stubs=True):
    measure_sizes(ins_list)
    real_idx = [k for k, i in enumerate(ins_list) if i.kind not in ('label', 'dir')]
    nxt = {a: b for a, b in zip(real_idx, real_idx[1:])}
    out = []; off = 0; page = 0; dostub = stubs; stubs = []; mis = 0
    def stub(p):
        s = Ins(f's_cbranch_execz L_stub{p + stub_every}'); s.size = 4; stubs.append((p, s))
        return [Ins(f'L_stub{p}:'), s]
    for k, i in enumerate(ins_list):
        if i.kind in ('label', 'dir'): out.append(i); continue
        if dostub and off >= page * 4096:
            out += stub(page); off += 4; page += 1
        if i.size == 4 and off % 8 == 0 and k in nxt and ins_list[nxt[k]].size == 8 and promotable(i):
            parts = i.text.split(None, 1); i.text = parts[0] + '_e64 ' + parts[1]; i.size = 8
        if i.size == 8 and off % 8 == 4:
            run = 0; kk = k; hasm = False
            while kk is not None and ins_list[kk].size == 8 and run < 12:
                hasm |= ins_list[kk].kind == 'mfma'; run += 1; kk = nxt.get(kk)
            prevm = out and out[-1].kind == 'mfma'
            if (run >= minrun and not hasm) or (run >= minrun_m and prevm and i.kind in ('valu', 'trans', 'mfma')):
                n = Ins('s_nop 0'); n.size = 4; out.append(n); off += 4
        if i.size == 8 and off % 8 == 4: mis += 1
        out.append(i); off += i.size
    if dostub:
        pos = {id(x): k for k, x in enumerate(out)}
        ksp = [k for k, x in enumerate(out) if x.text == 'L_spare:'][0]
        sp = [p for p, x in stubs if pos[id(x)] > ksp]
        nmain = page - len(sp)
        for p, x in stubs:
            if p in sp: x.text = 's_cbranch_execz L_s0'
            elif p < stub_every: x.text = 's_cbranch_execz L_tdone'
            elif p + stub_every >= nmain: x.text = 's_cbranch_execz L_tdone2'
        for k in range(4):
            out += [Ins(f'.set L_gp{k}, ' + (f'L_stub{4+k}' if 4 + k < nmain else 'L_tdone2'))]
        for k in range(3):
            out += [Ins(f'.set L_s{k+1}, ' + (f'L_stub{sp[k]}' if k < len(sp) else 'L_s0'))]
    return out, page, off, mis

def render(ins_list):
    return '\n'.join((i.text if i.kind in ('label', 'dir') else '    ' + i.text) for i in ins_list) + '\n'
```

```python
import sys
from fw import *

NAME = 'adaLN_cond__ssm_conv_s4__glu_gated_geglu__prompt_kernel'
WS_E = 0; WS_STAT = 0x1000; WS_FLW2 = 0x10000; WS_IC2 = 0x1E000
WS_MODP = 0x20000; WS_WX = 0x40000; WS_FLH = 0x60000; WS_DBG = 0x80000
WS_XT = 0x100000; WS_X1S = 0x400000; WS_W1P = 0x700000; WS_W2P = 0xB20000; WS_HH = 0xD00000
WS_FLA = 0x1300000; WS_FLC = 0x1340000; WS_ST2 = 0x13C0000; WS_SIZE = 0x1400000
FLW_OFF = 0x20000
OOB = 0x7F000000
L_TAB = 0; L_STG = 65536
L_KC = 81920; KC_PITCH = 4736; KC1 = 2236; KCD = 4384
L_LN = 81920 + 4 * KC_PITCH
L_VEC = L_LN + 10240
L_H = 122880; H_PITCH = 4608
L_X = L_H + 4 * H_PITCH
L_SLOT = [0, 40960, 81920, 0]
L_EX = 122880
L_CST = 159744
L_RES = 40960; L_PART = 81920
LDS_BYTES = 163840
TP = 272
P2 = 2*1056
sWS, sX, sOUT, sWG, sWU, sWD, sWM = 's[4:7]', 's[8:11]', 's[12:15]', 's[16:19]', 's[20:23]', 's[24:27]', 's[28:31]'
sN, sXC, sJ, sSIG, sR, sBUD = 's50', 's51', 's52', 's53', 's54', 's55'
sCH, sCB4 = 's56', 's57'
BUD = 40000
def cp(l): return [Ins(i.text, tag=i.tag, waitfor=i.waitfor) for i in l]
def flat(items): return [x for it in items for x in (it if isinstance(it, list) else [it])]

class Gen:
    def __init__(self, stop=None, stamps=False, probe=None, **opt):
        self.stop = stop; self.stamps = stamps; self.opt = opt; self.probe = probe
        if probe: self.stamps = [probe]
        self.slow = []; self.npoll = 0; self.stamp_names = []
        self.XP = 16384 + opt.get('xpad', 0); self.TPI = 40960 + opt.get('tpad', 0)
        assert 160*self.XP <= WS_X1S - WS_XT and 64*self.TPI <= WS_W1P - WS_X1S
        self.RA = opt.get('ra', 2); self.FS = opt.get('fs', 64); self.AREP = 256*self.FS
        self.RC = opt.get('rc', 4); self.FC = opt.get('fc', 64); self.CREP = 160*self.FC; self.CSTG = self.RC*self.CREP
        assert 4*self.CSTG <= WS_ST2 - WS_FLC
    def o(self, k, d): return self.opt.get(k, d)
    def stamp(self, name):
        if not self.stamps: return []
        if self.stamps is not True and name not in self.stamps and name not in ('start', 'end'): return []
        if self.stamps is True and name.startswith('_'): return []
        if name not in self.stamp_names: self.stamp_names.append(name)
        k = self.stamp_names.index(name); assert k < 12
        i = Ins(f's_{"memtime" if self.o("cyc", 0) else "memrealtime"} s[{78+2*k}:{79+2*k}]'); i.note = 'stamp'
        return [i]
    def check(self, loads, tagregs, tmp, sleep=4):
        k = self.npoll; self.npoll += 1
        def cmp():
            if len(tagregs) == 1: return L(f'v_cmp_ne_u32 vcc, {sN}, {tagregs[0]}')
            t = list(tagregs)
            o = L(f'v_xor_b32 {tmp}, {t[0]}, {t[1]}')
            for r in t[2:]: o += L(f'v_sad_u32 {tmp}, {t[0]}, {r}, {tmp} clamp')
            return o + L(f'v_sad_u32 {tmp}, {t[0]}, {sN}, {tmp} clamp\nv_cmp_ne_u32 vcc, 0, {tmp}')
        fast = cmp() + L(f's_cbranch_vccnz L_slow{k}\nL_back{k}:')
        if self.o('nocheck', 0) and (sleep == 4 or (k == 18 and self.o('drop', 0) & 10)) and k >= self.o('nocheck', 0) - 1: fast[-2] = Ins('s_nop 0')
        dd = set()
        for i in loads:
            fast[-2].xuses |= (i.uses - dd); dd |= i.defs
        fast[-2].xdefs = set(r for r in dd if not isv(r)) | {'scc'}
        s = Stream()
        s.emit(f'L_slow{k}:\ns_sub_u32 {sBUD}, {sBUD}, 1\ns_cbranch_scc1 L_giveup{k}\ns_sleep {sleep if sleep != 4 else self.o("slp", 2)}')
        s.emit([Ins(i.text) for i in loads]); s.wait_all(); s.emit(cmp())
        s.emit(f's_cbranch_vccnz L_slow{k}\ns_branch L_back{k}\nL_giveup{k}:\ns_mov_b32 {sBUD}, 0\ns_branch L_back{k}')
        self.slow += s.out
        return fast
    def spoll(self, base, soff, off):
        k = self.npoll; self.npoll += 1
        ld = f's_load_dwordx4 s[{base}:{base+3}], s[4:5], {soff} offset:{off} glc'
        test = lambda lab: f's_cmp_lg_u64 s[{base}:{base+1}], s[8:9]\ns_cbranch_scc1 {lab}\ns_cmp_lg_u64 s[{base+2}:{base+3}], s[8:9]\ns_cbranch_scc1 {lab}'
        issue = L(ld); issue[0].note = 'async'
        fast = L(test(f'L_slow{k}') + f'\nL_back{k}:')
        if self.o('nocheck', 0): fast = L(test(f'L_back{k}') + f'\nL_back{k}:')
        self.slow += L(f'''
        L_again{k}:
        s_sub_u32 {sBUD}, {sBUD}, 1
        s_cbranch_scc1 L_giveup{k}
        {ld}
        L_slow{k}:
        s_waitcnt lgkmcnt(0)
        {test(f'L_again{k}')}
        s_branch L_back{k}
        L_giveup{k}:
        s_mov_b32 {sBUD}, 0
        s_branch L_back{k}
        ''')
        return issue, fast
    def barrier(self, waitfor=None): return [Ins('s_barrier', waitfor=waitfor)]
    def touch(self, pre):
        return L(f'''
        s_mov_b64 exec, 0
        s_cmp_eq_u32 s3, 0
        s_cbranch_scc1 {pre}0
        s_cmp_eq_u32 s3, 1
        s_cbranch_scc1 {pre}1
        s_cmp_eq_u32 s3, 2
        s_cbranch_scc1 {pre}2
        s_branch {pre}3
        ''')
    def prologue(self, S):
        S.emit(self.stamp('start'))
        S.emit(f'''
        s_cmp_ge_u32 s2, 256
        s_cbranch_scc1 L_exit
        s_load_dwordx2 s[8:9], s[0:1], 0
        s_load_dwordx16 s[16:31], s[0:1], 80
        s_load_dwordx16 s[32:47], s[0:1], 8
        v_lshrrev_b32 v1, 6, v0
        s_lshr_b32 {sJ}, s2, 3
        v_and_b32 v2, 63, v0
        v_readfirstlane_b32 s3, v1
        s_lshl_b32 s60, {sJ}, 2
        s_getpc_b64 s[58:59]
        s_add_u32 s60, s60, s3
        s_mul_i32 s60, s60, 384
        s_min_u32 s60, s60, @CODEMAX@
        s_add_u32 s58, s58, s60
        s_addc_u32 s59, s59, 0
        ''')
        S.emit(f'''
        v_lshlrev_b32 v3, 4, v2
        s_mov_b32 s10, 2621440
        s_mov_b32 s11, 0x20000
        s_mul_i32 s60, s2, 10240
        s_mul_i32 s62, s3, 2560
        s_add_u32 s60, s60, s62
        s_add_u32 s61, s62, {L_LN}
        s_mov_b32 m0, s61
        s_and_b32 {sXC}, s2, 7
        s_mul_i32 {sCB4}, {sXC}, 20
        s_add_u32 {sCB4}, {sCB4}, {sJ}
        s_lshl_b32 {sCH}, {sCB4}, 2
        s_add_u32 {sCH}, {sCH}, s3
        v_lshrrev_b32 v104, 3, v2
        v_bfe_u32 v105, v2, 4, 1
        v_lshlrev_b32 v105, 1, v105
        v_and_b32 v106, 7, v2
        v_xor_b32 v105, v105, v106
        v_lshlrev_b32 v105, 4, v105
        v_xor_b32 v106, 64, v105
        s_movk_i32 s64, 3072
        v_mad_u32_u24 v107, v104, s64, v105
        v_mad_u32_u24 v108, v104, s64, v106
        s_movk_i32 s64, 7680
        v_mad_u32_u24 v110, v104, s64, v105
        v_mad_u32_u24 v111, v104, s64, v106
        s_lshl_b32 s66, s3, 12
        s_add_u32 s66, s66, {L_STG}
        s_lshr_b32 s71, {sCH}, 1
        s_lshl_b32 s71, s71, 2
        s_min_u32 s71, s71, 1276
        s_mul_i32 s70, {sCH}, 384
        v_mul_u32_u24 v109, 6, v2
        v_and_b32 v109, 0x1fc, v109
        v_add_u32 v109, s70, v109
        v_min_u32 v4, 2, v2
        v_lshlrev_b32 v4, 7, v4
        s_and_b32 s70, {sXC}, 3
        s_lshl_b32 s70, s70, 2
        s_and_b32 {sSIG}, {sJ}, 3
        s_add_u32 {sSIG}, {sSIG}, s70
        s_lshr_b32 s70, {sXC}, 2
        s_lshl_b32 s70, s70, 3
        s_lshr_b32 {sR}, {sJ}, 2
        s_add_u32 {sR}, {sR}, s70
        s_mov_b32 {sBUD}, {BUD}
        s_waitcnt lgkmcnt(0)
        ''')
        S.emit(self.stamp('_karg'))
        S.emit(L('\n'.join(f'buffer_load_dwordx4 v3, {sX}, s60 offen offset:{o} nt lds' for o in (0, 1024)), tag='lndma'))
        S.emit('s_mov_b32 exec_hi, 0'); S.emit(L(f'buffer_load_dwordx4 v3, {sX}, s60 offen offset:2048 nt lds', tag='lndma')); S.emit('s_mov_b32 exec_hi, -1')
        S.emit(f'''
        s_add_u32 s4, s30, {self.o('wsoff', 0) << 20}
        s_addc_u32 s5, s31, 0
        s_load_dword s68, s[44:45], s71
        s_load_dword s69, s[46:47], s71
        s_load_dword s67, s[4:5], 0
        ''')
        if self.o('codepf', 1): S.emit('global_load_dword v252, v4, s[58:59]')
        S.emit(f'''
        s_mov_b64 s[12:13], s[26:27]
        s_mov_b64 s[28:29], s[24:25]
        s_mov_b64 s[48:49], s[22:23]
        s_mov_b64 s[24:25], s[20:21]
        s_mov_b64 s[20:21], s[18:19]
        s_mov_b32 s6, {WS_SIZE}
        s_mov_b32 s7, s11
        s_mov_b32 s14, s10
        s_mov_b32 s15, s11
        s_mov_b32 s18, 1966080
        s_mov_b32 s19, s11
        s_mov_b32 s22, s18
        s_mov_b32 s23, s11
        s_mov_b32 s26, s18
        s_mov_b32 s27, s11
        s_mov_b32 s30, 4915200
        s_mov_b32 s31, s11
        s_cmp_ge_u32 {sJ}, 20
        s_cselect_b32 s0, 1, 0
        s_cmp_eq_u32 s0, 1
        s_cbranch_scc1 L_sp_pro
        ''')
        st0 = S.state()
        S.emit('\n'.join(f'global_load_dwordx2 v[{206+2*k}:{207+2*k}], v109, s[{32+2*k}:{33+2*k}] nt' for k in range(6)))
        nt_ = self.o('mtouch', 0)
        if nt_:
            rows = 8*nt_//10; assert rows*10 == 8*nt_ and rows in (4, 8)
            S.emit(f'''
            s_lshl_b32 s58, {sJ}, 2
            s_add_u32 s58, s58, s3
            s_mul_i32 s59, s58, 6554
            s_lshr_b32 s59, s59, 16
            s_mul_i32 s59, s59, {80 - 10*rows}
            s_mul_i32 s58, s58, {rows}
            s_add_u32 s58, s58, s59
            s_add_u32 s58, s58, {80 - 10*rows}
            s_mul_i32 s58, s58, 7680
            s_mul_i32 s59, {sXC}, 6
            v_lshrrev_b32 v6, {rows.bit_length() - 1}, v2
            v_min_u32 v6, 5, v6
            v_add_u32 v6, s59, v6
            v_cmp_lt_u32 vcc, 29, v6
            v_cmp_lt_u32 s[62:63], 39, v6
            v_and_b32 v253, {rows - 1}, v2
            v_cndmask_b32 v5, 0, 10, vcc
            v_cndmask_b32 v5, v5, -10, s[62:63]
            v_mad_u32_u24 v253, v253, 60, v6
            v_add_lshl_u32 v253, v253, v5, 7
            buffer_load_dword v253, v253, {sWM}, s58 offen nt
            ''')
        cc = self.conv_consts(); nsh = max(2, min(len(cc), self.o('nshadow', 4)))
        S.emit(flat(cc[:nsh])); self.cc_late = flat(cc[nsh:])
        S.emit(self.stamp('_cst'))
        S.emit('s_branch L_pro_join')
        stc = S.state()
        S.set_state(st0)
        S.emit(f'''
        L_sp_pro:
        s_mul_i32 s70, {sXC}, 12
        s_add_u32 s70, s70, {sJ}
        s_sub_u32 s70, s70, 20
        v_min_u32 v12, 159, v0
        v_lshlrev_b32 v12, 3, v12
        ''')
        md = self.mod_dma('s70'); ne = self.o('modearly', 5)
        S.emit(md[0]); S.emit(flat(md[1][:ne])); self.mod_late = flat(md[1][ne:])
        S.emit('global_load_dwordx2 v[200:201], v12, s[48:49]')
        sts = S.state()
        S.emit('L_pro_join:')
        nb = max(k for k, x in enumerate(st0[0]) if x.tag == 'lndma') + 1
        self.extra_c = stc[0][nb:]; self.extra_s = sts[0][nb:]
        S.set_state(([], stc[1], list(st0[2])))
        S.emit(self.stamp('_issued'))
        S.emit(self.common_consts())
        self.ln_w1(S)
        S.emit(self.stamp('ln'))
        self.st_conv = (self.extra_c + list(S.vm), list(S.lg), []); self.st_spare = (self.extra_s + list(S.vm), list(S.lg), [])
        S.emit(f'''
        s_cmp_eq_u32 s0, 1
        s_cbranch_scc1 L_spare
        s_branch L_main
        L_tdone2:
        s_mov_b64 exec, -1
        s_cmp_eq_u32 s0, 1
        s_cbranch_scc1 L_sp_t2
        s_branch L_cv_t2
        L_exit:
        s_endpgm
        ''')
    def mod_dma(self, su, scol='s71', lbase=0, tag='moddma'):
        o = L(f'''
        s_lshr_b32 s58, {su}, 1
        s_mul_hi_u32 s59, s58, {(2**32 + 9)//10}
        s_mul_i32 {scol}, s59, 10
        s_sub_u32 s58, s58, {scol}
        s_lshl_b32 s59, s59, 2
        s_lshr_b32 s59, 0x534210, s59
        s_and_b32 s59, s59, 15
        s_mul_i32 {scol}, s59, 640
        s_lshl_b32 s58, s58, 6
        s_add_u32 {scol}, {scol}, s58
        s_and_b32 s58, {su}, 1
        s_mul_i32 s58, s58, {320*7680}
        s_mul_i32 s59, s3, {80*7680}
        s_add_u32 s72, s58, s59
        s_lshl_b32 s58, {scol}, 1
        s_add_u32 s72, s72, s58
        s_mul_i32 s73, s3, 10240
        ''')
        items = []
        for d in range(10):
            it = L(f's_add_u32 m0, s73, {lbase + 1024*d}')
            it += L('s_nop 0') if d == 0 else L(f's_add_u32 s72, s72, {8*7680}')
            it += L(f'buffer_load_dwordx4 v{110+(d&1)}, {sWM}, s72 offen nt lds', tag=tag)
            items.append(it)
        return o, items
    def common_consts(self):
        return L(f'''
        v_lshrrev_b32 v112, 4, v2
        v_bfe_u32 v113, v2, 2, 2
        v_lshlrev_b32 v114, 10, v112
        v_lshl_add_u32 v114, v113, 7, v114
        v_and_b32 v112, 1, v112
        v_lshrrev_b32 v113, 1, v113
        v_lshl_or_b32 v112, v112, 1, v113
        v_lshl_add_u32 v114, v112, 5, v114
        v_and_b32 v112, 3, v2
        v_lshl_add_u32 v112, v112, 3, v114
        v_add_u32 v112, s66, v112
        v_xor_b32 v113, 32, v112
        v_xor_b32 v114, 64, v112
        v_xor_b32 v115, 96, v112
        s_mul_i32 s64, s3, {self.AREP}
        s_mul_i32 s65, s2, {self.FS}
        s_add_u32 s65, s65, {WS_FLA}
        s_add_u32 s64, s64, s65
        s_and_b32 s58, {sXC}, {self.RA - 1}
        s_mul_i32 s58, s58, {self.AREP}
        s_add_u32 s58, s58, {WS_FLA}
        v_mul_u32_u24 v28, {self.FS}, v0
        v_add_u32 v28, s58, v28
        ''')
    def late_consts(self):
        return L(f'''
        s_mul_i32 {sN}, s67, 1664525
        s_add_u32 {sN}, {sN}, 1013904223
        s_lshl_b32 s59, s68, 16
        s_and_b32 s68, s68, 0xffff0000
        s_lshl_b32 s67, s69, 16
        s_and_b32 s69, s69, 0xffff0000
        s_and_b32 s58, {sCH}, 1
        s_cselect_b32 s68, s68, s59
        s_cselect_b32 s69, s69, s67
        v_mov_b32 v226, s68
        v_mul_f32 v226, 0x3fb8aa3b, v226
        v_exp_f32 v226, v226
        v_mov_b32 v245, 0
        v_writelane_b32 v245, s69, 0
        v_cvt_pk_bf16_f32 v226, 0, v226
        v_mul_f32 v220, 0x3fb8aa3b, v226
        v_mul_f32 v223, 0.15915494, v226
        v_mul_f32 v221, 0x41000000, v220
        v_mul_f32 v224, 0x41000000, v223
        v_mul_f32 v222, 0x43800000, v220
        v_mul_f32 v225, 0x43800000, v223
        ''')
    def ln_w1(self, S):
        S.emit(f'''
        v_lshrrev_b32 v120, 5, v2
        v_and_b32 v121, 31, v2
        v_mul_u32_u24 v120, 1280, v120
        v_add_u32 v120, s61, v120
        v_lshl_add_u32 v122, v121, 3, v120
        v_lshl_add_u32 v120, v121, 4, v120
        v_bfe_u32 v121, v2, 2, 2
        v_mul_u32_u24 v121, 1280, v121
        v_lshrrev_b32 v123, 4, v2
        v_lshl_add_u32 v121, v123, 5, v121
        v_and_b32 v123, 3, v2
        v_lshl_add_u32 v121, v123, 3, v121
        s_mul_i32 s58, s3, 320
        s_add_u32 s58, s58, {L_LN}
        v_add_u32 v121, s58, v121
        v_lshrrev_b32 v124, 2, v2
        v_mul_u32_u24 v124, {self.XP}, v124
        v_lshl_add_u32 v124, v123, 4, v124
        v_mov_b32 v125, {OOB}
        v_mov_b32 v126, v125
        v_cmp_gt_u32 vcc, 32, v2
        s_lshl_b32 s58, s3, 12
        s_lshl_b32 s59, s2, 4
        s_add_u32 s58, s58, s59
        s_add_u32 s58, s58, {WS_STAT}
        v_cndmask_b32 v125, v125, v124, vcc
        v_writelane_b32 v126, s58, 31
        ''')
        S.emit('s_cmp_eq_u32 s0, 1\ns_cbranch_scc1 L_tdone'); S.emit(self.touch('L_stub')); S.emit('L_tdone:\ns_mov_b64 exec, -1')
        S.emit(self.stamp('_touched'))
        S.emit(self.late_consts())
        S.emit(f'''
        s_mul_i32 s58, s3, {40*self.XP}
        s_lshl_b32 s59, s2, 6
        s_add_u32 s58, s58, s59
        s_add_u32 s58, s58, {WS_XT}
        s_mov_b32 s59, 0x3f803f80
        ''')
        S.emit(self.stamp('_preln'))
        nc, ns = len(self.extra_c), len(self.extra_s)
        S.out += L(f's_waitcnt vmcnt({max(nc, ns)})\ns_cmp_eq_u32 s0, {0 if nc > ns else 1}\ns_cbranch_scc1 L_lnok\ns_waitcnt vmcnt({min(nc, ns)})\nL_lnok:')
        S.emit(self.stamp('_lndma'))
        S.emit('''
        ds_read_b128 v[32:35], v120
        ds_read_b128 v[36:39], v120 offset:512
        ds_read_b64 v[40:41], v122 offset:1024
        s_barrier
        ''')
        for p in range(3):
            S.emit(f'ds_read_b64_tr_b16 v[{44+4*p}:{45+4*p}], v121 offset:{128*p}\nds_read_b64_tr_b16 v[{46+4*p}:{47+4*p}], v121 offset:{128*p+5120}')
        S.emit('v_dot2_f32_bf16 v116, v32, s59, 0\nv_dot2_f32_bf16 v117, v32, v32, 0')
        for r in range(33, 36): S.emit(f'v_dot2_f32_bf16 v116, v{r}, s59, v116\nv_dot2_f32_bf16 v117, v{r}, v{r}, v117')
        for p in range(3):
            S.emit(L(f'buffer_store_dwordx4 v[{44+4*p}:{47+4*p}], v{124 if p < 2 else 125}, {sWS}, s58 offen sc1', tag='pa'))
            if p < 2: S.emit(f's_add_u32 s58, s58, {16*self.XP}')
        for r in range(36, 42): S.emit(f'v_dot2_f32_bf16 v116, v{r}, s59, v116\nv_dot2_f32_bf16 v117, v{r}, v{r}, v117')
        for k in (8, 4, 2, 1):
            S.emit(f'v_add_f32_dpp v116, v116, v116 row_ror:{k} row_mask:0xf bank_mask:0xf\nv_add_f32_dpp v117, v117, v117 row_ror:{k} row_mask:0xf bank_mask:0xf')
        S.emit('v_add_f32_dpp v116, v116, v116 row_bcast:15 row_mask:0xa bank_mask:0xf\nv_add_f32_dpp v117, v117, v117 row_bcast:15 row_mask:0xa bank_mask:0xf')
        S.emit(self.finish_stats('v116', 'v117', 'v118'))
        S.emit(f'''
        v_and_b32 v116, 0xffff0000, v118
        v_rcp_f32 v116, v116
        v_lshlrev_b32 v118, 16, v118
        v_mul_f32 v118, -v118, v116
        v_permlane32_swap_b32 v116, v117
        v_permlane32_swap_b32 v118, v119
        ''')
        S.emit(L(f'buffer_store_dwordx4 v[116:119], v126, {sWS}, 0 offen sc1', tag='pa'))
    def finish_stats(self, s1, s2, out):
        return L(f'''
        v_mul_f32 {s1}, 0x3acccccd, {s1}
        v_mul_f32 {s2}, 0x3acccccd, {s2}
        v_fma_f32 {s2}, -{s1}, {s1}, {s2}
        v_max_f32 {s2}, 0, {s2}
        v_cvt_pk_bf16_f32 {s2}, 0, {s2}
        v_add_f32 {s2}, 0x3727c5ac, {s2}
        v_cvt_pk_bf16_f32 {s2}, 0, {s2}
        v_sqrt_f32 {s2}, {s2}
        v_cvt_pk_bf16_f32 {out}, {s1}, {s2}
        ''')
    def prep_task(self, dmatag, sdst, stride, sttag, tmp, loff=0, va='v3'):
        o = []
        for t in range(4):
            o += L(f'ds_read_b64_tr_b16 v[{tmp+4*t}:{tmp+4*t+1}], v{112+t} offset:{loff}\nds_read_b64_tr_b16 v[{tmp+4*t+2}:{tmp+4*t+3}], v{112+t} offset:{loff+512}', waitfor=[dmatag])
        for t in range(4):
            o += L(f'buffer_store_dwordx4 v[{tmp+4*t}:{tmp+4*t+3}], {va}, {sWS}, {sdst} offen sc1', tag=sttag)
            if t < 3: o += L(f's_add_u32 {sdst}, {sdst}, {stride}')
        return o
    def w1_setup(self):
        return L(f'''
        s_mul_hi_u32 s58, s2, {(2**32 + 19)//20}
        s_mul_i32 s59, s58, 20
        s_sub_u32 s59, s2, s59
        s_lshl_b32 s59, s59, 1
        s_and_b32 s36, s3, 1
        s_add_u32 s59, s59, s36
        s_lshr_b32 s37, s3, 1
        s_mul_i32 s34, s59, {16*3072}
        s_mul_i32 s32, s58, 384
        s_add_u32 s34, s34, s32
        s_lshl_b32 s32, s37, 7
        s_add_u32 s32, s32, s34
        s_add_u32 s33, s32, {8*3072}
        s_mul_i32 s35, s37, {8*3072}
        s_add_u32 s34, s34, s35
        s_add_u32 s34, s34, 256
        s_mul_i32 s58, s58, 480
        s_add_u32 s58, s58, s59
        s_lshl_b32 s58, s58, 10
        s_add_u32 s58, s58, {WS_W1P}
        s_mul_i32 s35, s37, 163840
        s_add_u32 s35, s35, s58
        s_lshl_b32 s36, s37, 9
        s_add_u32 s36, s36, s58
        s_add_u32 s36, s36, 327680
        s_lshl_b32 s37, s3, 11
        s_add_u32 s37, s37, {L_VEC}
        v_lshrrev_b32 v199, 5, v2
        v_mul_u32_u24 v199, {40960 - 512}, v199
        v_add_u32 v199, v199, v3
        ''')
    def w1_dma(self):
        o = []
        for d in range(6):
            o += L(f's_add_u32 m0, {"s66" if d < 4 else "s37"}, {1024*(d & 3)}')
            o += L(['v_cmp_gt_u32 vcc, 32, v2', 'v_add_u32 v197, -2048, v113', 's_sub_u32 s58, s37, s66', 'v_cndmask_b32 v197, v197, v112, vcc', 'v_add_u32 v197, s58, v197', 'v_xor_b32 v198, 64, v197'][d])
            o += L(f'buffer_load_dwordx4 v{107+(d&1)}, {sWU if d&1 else sWG}, s{32+(d>>1)} offen nt lds', tag='w1dma')
        return o
    def w1_task(self):
        o = self.prep_task('w1dma', 's35', 40960, 'pw', tmp=32)
        h = []
        for t in range(2):
            h += L(f'ds_read_b64_tr_b16 v[{48+4*t}:{49+4*t}], v{197+t}\nds_read_b64_tr_b16 v[{50+4*t}:{51+4*t}], v{197+t} offset:512')
        o = o[:8] + h + o[8:]
        o += L(f'buffer_store_dwordx4 v[48:51], v199, {sWS}, s36 offen sc1', tag='pw') + L('s_add_u32 s36, s36, 81920')
        o += L(f'buffer_store_dwordx4 v[52:55], v199, {sWS}, s36 offen sc1', tag='pw')
        return o
    def flagW(self): return self.barrier(['pw']) + L(f's_atomic_swap {sN}, s[4:5], s64 offset:{FLW_OFF}')
    def arrive(self, k, tag):
        return L('s_mov_b64 exec, 1') + L(f'ds_add_rtn_u32 v59, v254, v255 offset:{4*k}', waitfor=[tag]) + L('s_mov_b64 exec, -1')
    def publish(self, k):
        R = self.RA
        return L(f'v_readfirstlane_b32 s58, v59\ns_nop 0\ns_cmp_lg_u32 s58, 3\ns_cbranch_scc1 L_nopub{k}\n'
                 + '\n'.join(f's_atomic_swap {sN}, s[4:5], s65 offset:{k*FLW_OFF + r*self.AREP}' for r in range(R)) + f'\nL_nopub{k}:')
    def pollW(self): return L(f'buffer_load_dword v4, v6, {sWS}, 0 offen sc1')
    def flagA(self):
        self.nfa = getattr(self, 'nfa', 0) + 1
        return self.barrier(['pa']) + L(f's_cmp_ge_u32 s3, {self.RA}\ns_cbranch_scc1 L_nfa{self.nfa}\ns_atomic_swap {sN}, s[4:5], s64\nL_nfa{self.nfa}:')
    def g_setup(self):
        return L(f'''
        s_lshr_b32 s58, s3, 1
        s_mul_i32 s58, s58, 3
        s_mul_i32 s59, {sSIG}, 6
        s_add_u32 s58, s58, s59
        s_and_b32 s59, s3, 1
        s_lshr_b32 s74, {sSIG}, 1
        s_mul_i32 s74, s74, 20
        s_mul_i32 s76, s59, 10
        s_add_u32 s74, s74, s76
        s_and_b32 s76, {sXC}, {self.RA - 1}
        s_lshl_b32 s76, s76, 8
        s_add_u32 s74, s74, s76
        v_min_u32 v6, 9, v2
        v_add_u32 v6, s74, v6
        v_mul_u32_u24 v6, {self.FS}, v6
        v_add_u32 v6, {WS_FLA + FLW_OFF}, v6
        s_lshl_b32 s74, s59, 7
        v_xor_b32 v5, s74, v3
        s_mul_i32 s58, s58, 40960
        s_mul_i32 s74, s59, 20480
        s_add_u32 s58, s58, s74
        s_add_u32 s58, s58, {WS_W1P}
        s_mul_i32 s59, s59, 40960
        s_add_u32 s76, s58, s59
        s_sub_u32 s74, s58, s59
        s_add_u32 s74, s74, 40960
        s_add_u32 s75, s58, 81920
        ''')
    def tile_consts(self):
        return L(f'''
        v_bfe_u32 v4, v2, 3, 1
        v_lshrrev_b32 v6, 5, v2
        v_lshl_or_b32 v4, v6, 1, v4
        v_lshlrev_b32 v4, 4, v4
        v_xor_b32 v6, v4, v3
        s_mul_i32 s58, s3, 40
        s_and_b32 s59, {sXC}, {self.RC - 1}
        s_mul_i32 s59, s59, 160
        s_add_u32 s58, s58, s59
        v_min_u32 v4, 39, v2
        v_add_u32 v4, s58, v4
        v_mul_u32_u24 v4, {self.FC}, v4
        v_add_u32 v4, {WS_FLC}, v4
        s_mul_i32 s61, s3, 10240
        s_mul_i32 s60, {sR}, {self.TPI}
        s_add_u32 s60, s60, s61
        s_add_u32 s60, s60, {WS_X1S}
        ''')
    def w1_loads(self, k0=0, k1=60, only=None, skip=None):
        ks = list(range(k0, k1))
        ks = [k for k in ks if (only is None or k % 3 == only) and k % 3 != skip]
        items = []; cur = {}
        for k in ks:
            s, role = divmod(k, 3); a = 4*k
            if cur.get(role) != s//4: items.append(L(f's_add_u32 s{67+role}, s{74+role}, {4096*(s//4)}')); cur[role] = s//4
            items.append(L(f'buffer_load_dwordx4 a[{a}:{a+3}], {"v5" if role == 1 else "v3"}, {sWS}, s{67+role} offen offset:{1024*(s%4)} sc1'))
        return items
    def w1_touch(self):
        if not self.o('w1touch', 1): return []
        return L(f'''
        s_and_b32 s58, {sR}, 7
        s_lshl_b32 s58, s58, 2
        s_add_u32 s58, s58, s3
        s_mul_i32 s58, s58, 7680
        s_mul_i32 s59, {sSIG}, 245760
        s_add_u32 s58, s58, s59
        s_add_u32 s58, s58, {WS_W1P}
        v_min_u32 v95, 59, v2
        v_lshlrev_b32 v95, 7, v95
        buffer_load_dword v95, v95, {sWS}, s58 offen sc1
        ''')
    def tile_dma(self, j):
        items = []
        for i in range(10):
            it = []
            if i % 4 == 0:
                items += [L(f's_add_u32 m0, s61, {L_SLOT[j] + 1024*i}'), L(f's_add_u32 s62, s60, {j*16*self.TPI + 1024*i}')]
            it += L(f'buffer_load_dwordx4 v6, {sWS}, s62 offen offset:{1024*(i%4)} sc1 lds', tag=f'tile{j}')
            items.append(it)
        return items
    def pollC(self, stage, dst):
        o = L(f's_mov_b32 s63, {stage*self.CSTG}\nbuffer_load_dword {dst}, v4, {sWS}, s63 offen sc1'); o[1].lines = 40*self.FC//128
        return o
    def ic2_loads(self):
        return [L(f's_mov_b32 s62, {WS_IC2}'), L('v_lshlrev_b32 v28, 3, v2'), L(f'buffer_load_dwordx4 v[20:23], v3, {sWS}, s62 offen sc1'),
                L(f'buffer_load_dwordx4 v[24:27], v3, {sWS}, s62 offen offset:1024 sc1'),
                L(f'buffer_load_dwordx2 v[28:29], v28, {sWS}, s62 offen offset:2048 sc1')]
    def cmul(self, out, z, e, t):
        return L(f'''
        v_pk_mul_f32 v[{t}:{t+1}], v[{z}:{z+1}], v[{e}:{e+1}] op_sel:[0,0] op_sel_hi:[1,0]
        v_pk_fma_f32 v[{out}:{out+1}], v[{z}:{z+1}], v[{e}:{e+1}], v[{t}:{t+1}] op_sel:[1,1,0] op_sel_hi:[0,1,1] neg_lo:[1,0,0]
        ''')
    ALPHA = {}
    for _h in range(2):
        for _r in range(5): ALPHA[(_h, _r)] = 4*_h + _r
        for _k in range(3): ALPHA[(_h, 5+_k)] = 256 + 4*_h + 2*_k; ALPHA[(_h, 8+_k)] = 512 + 256*_h + 4*_k
        ALPHA[(_h, 11)] = 1032 + 256*_h; ALPHA[(_h, 12)] = 1544 + 256*_h
    def alpha_rows(self):
        di = lambda h, r: 8*(r >> 2) + 4*h + (r & 3)
        row = {}; fixes = {}
        for (h, r), al in sorted(self.ALPHA.items(), key=lambda x: di(*x[0])):
            i = di(h, r)
            if al in row: fixes[i] = row[al]
            else: row[al] = i
        free = sorted(fixes.keys())
        for al, i in list(row.items()):
            if i >= 24: row[al] = free.pop(0); fixes[i] = row[al]
        assert max(row.values()) < 24 and len(set(row.values())) == 24
        return row, fixes
    def kgen_setup(self, slot):
        P = 200; o = L('\n'.join(f'v_perm_b32 v{P+k}, v{207+2*k}, v{206+2*k}, v{194+slot}' for k in range(6)))
        for k in range(3): o += L(f'v_mul_f32 v{66+k}, v{P}, v{220+k}\nv_mul_f32 v{61+2*k}, v{P+1}, v{223+k}')
        for k in range(3): o += L(f'v_exp_f32 v{66+k}, v{66+k}\nv_fract_f32 v{61+2*k}, v{61+2*k}')
        for k in range(3): o += L(f'v_cos_f32 v{60+2*k}, v{61+2*k}\nv_sin_f32 v{61+2*k}, v{61+2*k}')
        for k in range(3): o += L(f'v_mul_f32 v{60+2*k}, v{60+2*k}, v{66+k}\nv_mul_f32 v{61+2*k}, v{61+2*k}, v{66+k}')
        o += L(f'v_mul_f32 v{P+2}, v{P+2}, v226\nv_mul_f32 v{P+3}, v{P+3}, v226')
        return o
    def kgen_chains(self, slot):
        P = 200; E1, E8, E256 = 60, 62, 64; T = 70
        row, _ = self.alpha_rows()
        U = lambda k: 76 + 2*k
        pts = []
        pts.append((self.cmul(U(0), P+4, P+2, T), U(0), 32+row[0], True))
        for k in range(1, 9): pts.append((self.cmul(U(k), U(k-1), E1, T), U(k), 32+row[k], True))
        for e in (0, 2, 4, 6, 8): pts.append((self.cmul(U(e), U(e), E256, T), U(e), 32+row[256+e], True))
        for b in (512, 768):
            for e in (0, 4, 8): pts.append((self.cmul(U(e), U(e), E256, T), U(e), 32+row[b+e], True))
        for b in range(4): pts.append((self.cmul(U(8), U(8), E256, T), U(8), 32+row[1032+256*b], True))
        pts.append(([], E8, 1, False))
        pts.append((self.cmul(74, E8, E8, T), 74, 2, False))
        for j in range(3, 32): pts.append((self.cmul(74, 74, E8, T), 74, j, False))
        B = self.o('kbatch', 11); out = []
        for i in range(0, len(pts), B):
            o = []; w = []
            for k, (c, z, r, neg) in enumerate(pts[i:i+B]):
                o += c + L(f'v_cvt_pk_bf16_f32 v{230+k}, v{z}, {"-" if neg else ""}v{z+1}')
                if not self.o('nowr', 0): w += L(f'ds_write_addtid_b32 v{230+k} offset:{r*TP}')
            out.append(o + w)
        ard = [L(f'ds_read_b128 v[{128+8*k}:{131+8*k}], v227 offset:{32*k}')[0] for k in range(8)]
        first = -(-24 // B) - 1
        out[first] += ard[:3]; out[first+1] += ard[3:]
        return out
    def kgen_mfma(self, slot, fillers, sfill):
        o = []
        for k in range(8):
            o += L(f'ds_read_b128 v[{132+8*k}:{135+8*k}], v228 offset:{32*k}')
        npre = self.o('kpre', 12)
        bb = [Ins(f'v_mfma_f32_32x32x16_bf16 v[96:111], v[{128+8*k}:{131+8*k}], v[{132+8*k}:{135+8*k}], {"0" if slot == 0 and k == 0 else "v[96:111]"}') for k in range(8)]
        return o + fillers[:npre] + interleave(bb, [Fill(fillers[npre:], 0, 6, ahead=8, prio=2), Fill(sfill, 0, 6, ahead=8)])
    def conv_consts(self):
        row, fixes = self.alpha_rows()
        b0 = L(f'''
        v_and_b32 v194, 1, v2
        v_mul_u32_u24 v194, 0x0202, v194
        v_lshlrev_b32 v194, 16, v194
        v_add_u32 v194, 0x01000c0c, v194
        v_add_u32 v195, 0x02020000, v194
        v_add_u32 v196, 0x02020000, v195
        v_and_b32 v228, 31, v2
        v_min_u32 v227, 23, v228
        s_lshl_b32 s70, s3, 14
        s_mul_i32 s71, s3, {KC_PITCH}
        s_add_u32 s71, s71, {L_KC}
        s_mul_i32 s72, s3, {H_PITCH}
        s_add_u32 s72, s72, {L_H}
        ''')
        for i, rr in fixes.items():
            b0 += L(f'v_writelane_b32 v227, {rr}, {i}\nv_writelane_b32 v227, {rr}, {i+32}')
        b0 += L(f'''
        v_lshrrev_b32 v229, 5, v2
        v_lshlrev_b32 v243, 4, v228
        v_lshl_add_u32 v242, v229, 3, v243
        v_sub_u32 v242, s71, v242
        v_lshl_add_u32 v243, v229, 9, v243
        v_sub_u32 v243, s71, v243
        v_lshlrev_b32 v244, 1, v2
        v_sub_u32 v244, s71, v244
        v_mov_b32 v246, s71
        v_lshl_add_u32 v229, v229, 4, s70
        s_movk_i32 s58, {TP}
        v_add_u32 v227, 32, v227
        v_mad_u32_u24 v227, v227, s58, v229
        v_mad_u32_u24 v228, v228, s58, v229
        v_mov_b32 v72, 0x00003f80
        v_mov_b32 v56, 0
        v_mov_b32 v57, 0
        v_lshl_add_u32 v58, v2, 3, s72
        v_and_b32 v7, 15, v2
        v_lshl_add_u32 v59, v7, 2, s71
        v_lshl_add_u32 v73, v2, 2, s70
        ds_write_b32 v73, v72
        ds_write_b64 v58, v[56:57]
        ds_write_b32 v59, v56
        ds_write_b32 v59, v56 offset:{2112}
        ds_write_b32 v59, v56 offset:{KC1}
        ds_write_b32 v59, v56 offset:{KC1 + 2116}
        ds_write_b32 v59, v56 offset:{KCD + 256}
        v_mov_b32 v254, {L_CST}
        v_mov_b32 v255, 1
        ds_write_b64 v254, v[56:57]
        ''')
        b1 = L(f'''
        v_bfe_u32 v247, v0, 2, 2
        v_lshlrev_b32 v247, 4, v247
        v_lshl_add_u32 v247, v0, 6, v247
        v_add_u32 v247, {L_X}, v247
        v_xor_b32 v248, 16, v247
        v_xor_b32 v249, 32, v247
        v_xor_b32 v250, 48, v247
        v_lshlrev_b32 v192, 4, v0
        v_add_u32 v251, {L_H + 512}, v192
        v_lshrrev_b32 v8, 4, v2
        v_lshlrev_b32 v193, 4, v8
        v_lshlrev_b32 v9, 5, v7
        v_add3_u32 v9, v9, v193, s72
        v_and_b32 v10, 1, v7
        v_mul_u32_u24 v10, {KC1 + 2}, v10
        v_add3_u32 v10, v10, v193, s71
        v_xor_b32 v193, v193, v3
        v_lshlrev_b32 v11, 1, v7
        v_sub_u32 v10, v10, v11
        v_add_u32 v12, {P2 - 32 - 1024 - 960}, v10
        v_add_u32 v10, {P2 - 32 - 960}, v10
        v_lshrrev_b32 v29, 2, v7
        v_lshrrev_b32 v16, 1, v29
        v_and_b32 v16, v16, v29
        v_add_u32 v29, v29, v16
        v_and_b32 v14, 1, v8
        v_mad_u32_u24 v29, v14, 6, v29
        v_mul_u32_u24 v29, 640, v29
        v_and_b32 v16, 3, v7
        s_lshl_b32 s58, {sCB4}, 2
        s_add_u32 s58, s58, {WS_MODP//8}
        v_add3_u32 v29, v29, v16, s58
        v_lshlrev_b32 v29, 3, v29
        ''')
        return [self.w1_setup(), b0, b1, self.g_setup()]
    def conv_late(self):
        c0 = L(f'''
        v_bfe_u32 v13, v7, 1, 2
        v_xor_b32 v13, s3, v13
        v_lshlrev_b32 v13, 4, v13
        v_lshl_add_u32 v13, v7, 7, v13
        v_lshl_add_u32 v13, v14, 6, v13
        v_add_u32 v13, {L_X}, v13
        ''')
        c1 = L(f'''
        v_lshlrev_b32 v15, 3, v14
        v_lshrrev_b32 v28, 2, v7
        v_lshl_add_u32 v15, v28, 1, v15
        v_lshrrev_b32 v28, 1, v8
        v_add_u32 v15, v15, v28
        v_mul_u32_u24 v15, {self.TPI}, v15
        v_and_b32 v28, 3, v7
        v_lshl_add_u32 v15, v28, 4, v15
        s_lshl_b32 s32, {sCH}, 6
        s_add_u32 s32, s32, {WS_X1S}
        v_add_u32 v15, s32, v15
        ''')
        c2 = L(f'''
        s_movk_i32 s33, 0x1ff0
        v_lshlrev_b32 v28, 3, v8
        v_lshlrev_b32 v29, v7, s33
        s_movk_i32 s33, 0x0fe0
        v_lshrrev_b32 v29, v28, v29
        v_lshlrev_b32 v30, v7, s33
        s_mov_b32 s33, 0x8001
        v_lshrrev_b32 v30, v28, v30
        s_mov_b32 s34, 0x10001
        ''')
        for dst, m in ((20, 29), (24, 30)):
            for dw in range(4):
                c2 += L(f'''
                v_bfe_u32 v{dst+dw}, v{m}, {2*dw}, 2
                v_mul_u32_u24 v{dst+dw}, s33, v{dst+dw}
                v_and_b32 v{dst+dw}, s34, v{dst+dw}
                v_mul_u32_u24 v{dst+dw}, 0x3f80, v{dst+dw}
                ''')
        c3 = L(f'''
        v_add_u32 v11, {-1088}, v10
        v_lshlrev_b32 v14, 2, v8
        v_sub_u32 v14, v14, v7
        v_lshl_add_u32 v14, v14, 2, s71
        v_add_u32 v14, {KCD + 60}, v14
        s_mul_i32 s66, s3, {self.RC//4*self.CREP}
        s_mul_i32 s33, {sCB4}, {self.FC}
        s_add_u32 s66, s66, s33
        s_add_u32 s66, s66, {WS_FLC}
        ''')
        return c0, c1, c2, c3
    def conv_path(self, S):
        S.set_state(self.st_conv)
        S.emit('L_main:'); S.dummy = 'ds_read_b32 v1, v3'
        S.emit(self.cc_late); S.emit('s_mov_b32 m0, s70')
        pollA = L(f'buffer_load_dword v58, v28, {sWS}, 0 offen sc1')
        modld = L(f'buffer_load_dwordx2 v[56:57], v29, {sWS}, 0 offen sc1')
        pollW = self.pollW()
        xld = (L('s_mov_b32 m0, s43') + L('\n'.join(f'buffer_load_dwordx4 v[{32+4*g}:{35+4*g}], v192, {sWS}, {so} offen sc1' for g, so in enumerate(('s44', 's45', 's49', 's77'))))
               + L('\n'.join(f'buffer_load_dwordx4 v193, {sWS}, s42 offen offset:{1024*i} sc1 lds' for i in range(4)), tag='xdma') + L('s_mov_b32 m0, s70'))
        set0 = L(f'''
        s_mul_i32 s42, {sCB4}, {self.XP}
        s_lshl_b32 s43, s3, 12
        s_add_u32 s42, s42, s43
        s_add_u32 s42, s42, {WS_XT}
        s_add_u32 s43, s43, {L_X}
        s_movk_i32 s44, {WS_STAT}
        s_movk_i32 s45, {WS_STAT + 0x1000}
        s_movk_i32 s49, {WS_STAT + 0x2000}
        s_movk_i32 s77, {WS_STAT + 0x3000}
        ''')
        set1 = L(f's_lshl_b32 s73, s2, 4\ns_add_u32 s73, s73, {WS_IC2}\ns_and_b32 s62, s2, 3')
        modv = self.stamp('_mod0') + self.check(modld, ['v57'], None) + self.stamp('_modok') + L(f'''
        v_mov_b32 v57, v56
        v_bfe_u32 v52, v2, 2, 1
        v_cvt_f32_u32 v52, v52
        v_permlane16_swap_b32 v56, v57
        v_add_f32 v48, v56, v57
        v_cvt_pk_bf16_f32 v48, 0, v48
        v_add_f32 v48, v48, v52
        v_cvt_pk_bf16_f32 v48, 0, v48
        s_add_u32 s58, s3, 8
        s_add_u32 s59, s3, 12
        v_readlane_b32 s40, v48, s58
        v_readlane_b32 s41, v48, s59
        ''')
        for c in range(4): modv += L(f'v_readlane_b32 s{32+2*c}, v48, {4+c}\nv_readlane_b32 s{33+2*c}, v48, {c}')
        modv += L(f'''
        s_and_b32 s58, s41, 0x7fffffff
        s_cselect_b32 s41, s41, 0x21800000
        v_mov_b32 v51, s41
        v_mul_f32 v51, s40, v51
        v_mov_b32 v52, 0x21800000
        v_cmp_eq_f32 vcc, 0, v48
        v_add_u32 v54, -12, v0
        v_xor_b32 v55, s62, v54
        v_lshl_add_u32 v55, v55, 2, s73
        v_cndmask_b32 v52, v48, v52, vcc
        v_cmp_gt_u32 vcc, 4, v54
        v_rcp_f32 v127, v52
        v_mov_b32 v126, {OOB}
        v_cndmask_b32 v126, v126, v55, vcc
        v_lshlrev_b32 v53, 4, v2
        v_alignbit_b32 v53, s41, s41, v53
        v_alignbit_b32 v53, v53, v53, 16
        v_lshrrev_b32 v54, 1, v7
        v_lshlrev_b32 v55, 2, v8
        v_sub_u32 v54, v54, v55
        v_cmp_eq_u32 vcc, 0, v54
        v_cmp_eq_u32 s[58:59], 1, v54
        v_cmp_eq_u32 s[62:63], 2, v54
        v_cmp_eq_u32 s[64:65], 3, v54
        v_cndmask_b32 v16, 0, v53, vcc
        v_cndmask_b32 v17, 0, v53, s[58:59]
        v_cndmask_b32 v18, 0, v53, s[62:63]
        v_cndmask_b32 v19, 0, v53, s[64:65]
        ''')
        segs = []
        for slot in range(3):
            segs += self.kgen_chains(slot)
            segs.append(self.kgen_mfma(slot, [self.kgen_setup(1), self.kgen_setup(2), modv][slot], [set0, set1, []][slot]) + self.stamp(f'slot{slot}'))
        ns = len(segs)//3
        pos = lambda name, slot, frac: min(len(segs) - 1, int(round(ns*(self.o(name, int(100*(slot + frac)))/100.0))) - 1)
        ev = {}
        def at(p, code): ev.setdefault(p, []).extend(code)
        pfa, pw1, pfw = pos('e_fla', 0, .84), pos('e_w1', 1, .5), pos('e_flw', 2, .67)
        ppa, pca, pmo, ppw = pos('e_pa', 2, 0), pos('e_ca', 2, .67), pos('e_mo', 2, .34), pos('e_pw', 3, 0)
        assert pfa <= pw1 and pfw < 3*ns - 1 and pca >= max(ppa, ns - 1, pw1) and pmo < 3*ns - 1 and pfw >= pw1
        at(pfa, self.stamp('_ch0') + self.arrive(0, 'pa') + self.stamp('_fla'))
        at(pfa + 1, self.publish(0))
        at(pos('e_t2', 2, .5), self.stamp('_ta') + self.touch('L_gp') + L('L_cv_t2:') + self.stamp('_tb'))
        pwd = pos('e_wd', 0, .34); assert pwd < min(pw1, ns - 1)
        at(pwd, self.w1_dma() + L('s_mov_b32 m0, s70'))
        wt = self.w1_task(); rd, st_ = wt[:12], wt[12:]
        groups = []
        for i in st_:
            if i.kind == 'vmem': groups.append([i])
            else: groups[-1].append(i)
        per = self.o('wsper', 2); at(pw1, rd); plast = pw1
        for k in range(0, 6, per):
            plast = pw1 + 1 + k//per; at(plast, flat(groups[k:k+per]))
        assert pfw >= plast and pca >= pw1 + 1 + 3//per
        at(pfw, self.stamp('_fw0') + self.arrive(1, 'pw') + self.stamp('_fw1')); at(pfw + 1, self.publish(1)); assert pfw + 1 < 3*ns - 1
        at(ppa, pollA)
        at(pmo, modld)
        at(pca, self.stamp('_a0') + self.check(pollA, ['v58'], None) + self.stamp('_aok') + xld)
        if self.o('e_cw', 500) < 500: at(ppw, pollW)
        ecw = self.o('e_cw', 500); nearly = self.o('w1e', 5); npre_w1 = 0
        wchk = self.stamp('_w0') + self.check(pollW, ['v4'], None) + self.stamp('_wok')
        if ecw <= 300:
            pcw = pos('e_cw', 3, 0); assert pcw >= ppw
            at(pcw, wchk)
            for k in range(pcw, len(segs)):
                at(k, flat(self.w1_loads(npre_w1, npre_w1 + nearly))); npre_w1 += nearly
        S.emit(ev.get(-1, []))
        S.emit(self.kgen_setup(0))
        for k, sg in enumerate(segs):
            S.emit(sg); S.emit(self.stamp(f'_K{k}')); S.emit(ev.get(k, [])); S.emit(self.stamp(f'_E{k}'))
        S.emit(self.stamp('_t2'))
        S.emit('v_add_f32 v96, v96, v245')
        for r in range(13): S.emit(f'v_mul_f32 v{96+r}, v{96+r}, v51')
        cv = lambda d, a, b: f'v_cvt_pk_bf16_f32 v{d}, v{96+a}, v{96+b}\n'
        S.emit(cv(64, 4, 3) + cv(65, 2, 1) + cv(66, 3, 2) + cv(67, 1, 0) + cv(68, 7, 7) + cv(69, 6, 5) + cv(70, 7, 6) + cv(71, 5, 5) +
               cv(72, 10, 10) + cv(73, 10, 9) + cv(74, 9, 9) + cv(75, 8, 8) + cv(76, 10, 10) + cv(77, 9, 9) + cv(78, 9, 8) + cv(79, 8, 8) +
               cv(80, 11, 12) + cv(82, 10, 10) + cv(83, 10, 10) + f'''
        ds_write_b64 v242, v[64:65] offset:{P2 - 8}
        ds_write_b64 v242, v[66:67] offset:{KC1 + P2 - 4}
        ds_write_b64 v242, v[68:69] offset:{P2 - 8 - 512}
        ds_write_b64 v242, v[70:71] offset:{KC1 + P2 - 4 - 512}
        ds_write_b128 v243, v[72:75] offset:{P2 - 16 - 1024}
        ds_write_b128 v243, v[76:79] offset:{KC1 + P2 - 12 - 1024}
        ds_write_b16 v244, v80 offset:{KCD + 254}
        ds_write_b16_d16_hi v244, v80 offset:{KCD + 254 - 128}
        s_mov_b64 exec, 1
        ds_write_b16_d16_hi v246, v67 offset:{P2}
        s_mov_b32 exec_hi, 0x80000000
        s_mov_b32 exec_lo, 0
        ds_write_b64 v246, v[82:83] offset:56
        ds_write_b16 v246, v82 offset:{KC1 + 58}
        ds_write_b64 v246, v[82:83] offset:{KC1 + 60}
        s_mov_b64 exec, -1
        ''')
        S.emit(self.stamp('kexp'))
        def kread(G, dst):
            if G == 32: a, o = 'v11', 0
            else: a, o = ('v10', 16*(15 - G)) if G < 16 else ('v12', 16*(31 - G))
            return [Ins(f'ds_read2_b32 v[{dst}:{dst+1}], {a} offset0:{o} offset1:{o+1}'), Ins(f'ds_read2_b32 v[{dst+2}:{dst+3}], {a} offset0:{o+2} offset1:{o+3}')]
        KF = lambda p, r: 128 + 64*(p >> 1) + 8*r + 4*(p & 1)
        kreads = [x for pp in (0, 2) for r in range(8) for p in (pp, pp+1) for x in kread(8*p + r, KF(p, r))]
        npre = self.o('npre', 32); assert npre <= 32
        S.emit(L('\n'.join(f'ds_read_b128 v[{64+4*c}:{67+4*c}], v{247+c}' for c in range(4)), waitfor=['xdma']))
        S.emit(self.stamp('_xin'))
        S.emit(kreads[:npre//4])
        n2 = self.o('w1pre', 4)
        if ecw == 400: S.emit(wchk)
        if ecw <= 400: S.emit(flat(self.w1_loads(npre_w1, npre_w1 + n2))); npre_w1 += n2
        for c in range(4):
            x = 64 + 4*c; o = []
            for g in range(4):
                t = 80 + 2*(g & 1); b = 32 + 4*g
                o += L(f'''
                v_lshlrev_b32 v{t}, 16, v{x+g}
                v_and_b32 v{t+1}, 0xffff0000, v{x+g}
                v_pk_fma_f32 v[{t}:{t+1}], v[{t}:{t+1}], v[{b}:{b+1}], v[{b+2}:{b+3}]
                v_pk_fma_f32 v[{t}:{t+1}], v[{t}:{t+1}], s[{32+2*c}:{33+2*c}], s[{32+2*c}:{33+2*c}] op_sel:[0,0,1] op_sel_hi:[1,0,1]
                v_cvt_pk_bf16_f32 v{x+g}, v{t}, v{t+1}
                ''')
            o += L(f'ds_write_b128 v251, v[{x}:{x+3}] offset:{H_PITCH*c}', tag='hw')
            S.emit(o)
            if c < 3:
                S.emit(kreads[(c+1)*npre//4:(c+2)*npre//4])
            if ecw >= 500 and c == self.o('pwc', 1): S.emit(pollW)
            if ecw == 401 + c: S.emit(wchk)
            if ecw <= 401 + c:
                n2 = self.o('w1pre2', 2)
                S.emit(flat(self.w1_loads(npre_w1, npre_w1 + n2))); npre_w1 += n2
        S.emit(self.barrier(['hw']))
        S.emit(self.stamp('prep'))
        S.dummy = 'ds_read_b32 v1, v3'
        epoch = []
        acc = lambda q: f'v[{96+4*q}:{99+4*q}]'
        seq = []; started = set()
        def mm(q, A, B):
            C = acc(q) if q in started else '0'; started.add(q); seq.append((acc(q), A, B, C))
        def box(u):
            d = 112 + 8*(u & 1)
            seq.append((f'v[{d}:{d+3}]', ('h9', u), 'v[20:23]', '0')); seq.append((f'v[{d+4}:{d+7}]', ('h', 3, 0, u), 'v[24:27]', '0'))
        kf = lambda p, r: f'v[{KF(p, r)}:{KF(p, r)+3}]'
        for r in range(8):
            for q in range(2):
                if r == 7: mm(q, 'v[16:19]', ('x', q))
                for p in range(q + 1): mm(q, kf(p, r), ('h', 0, r, q - p))
        nA = len(seq)
        for r in range(8):
            if r == 4: a1 = len(seq); box(0); box(1)
            if r == 6: a2 = len(seq); box(2); box(3)
            for q in range(2, 4):
                if r == 7: mm(q, 'v[16:19]', ('x', q))
                for p in range(q + 1): mm(q, kf(p, r), ('h', 1, r, q - p))
        nB = len(seq)
        for ps, q0 in ((2, 4), (4, 6)):
            for r in range(8):
                for q in (q0, q0 + 1):
                    if r == 0: mm(q, 'v[116:119]' if False else ('k32', ps), ('h', ps, 0, q - 4))
                    if r == 2: mm(q, 'v[16:19]', ('x', q)); xlast = len(seq) - 1
                    for p in range(4): mm(q, kf(p, r), ('h', ps, r, q - p))
                    if r == 1:
                        for u in range(q - 3): mm(q, f'v[{40+4*u}:{43+4*u}]', f'a[{240+4*(q-u-4)}:{243+4*(q-u-4)}]')
            if ps == 2: nC = len(seq)
        def fragload(f, dst):
            if f[0] == 'h': return [Ins(f'ds_read_b128 v[{dst}:{dst+3}], v9 offset:{512 + 512*f[3] - 64*f[2] - 32}')]
            if f[0] == 'h9': return [Ins(f'ds_read_b128 v[{dst}:{dst+3}], v9 offset:{512 + 512*f[1] - 48}')]
            if f[0] == 'x': return [Ins(f'ds_read_b128 v[{dst}:{dst+3}], v13 offset:{2048*f[1]}')]
            if f[0] == 'k32': return kread(32, dst)
        bb, pinned, head = alloc_frags(seq, 'v_mfma_f32_16x16x32_bf16', list(range(56, 96, 4)), fragload, lead=self.o('lead', 7))
        S.emit(head)
        def cvts(us):
            o = []
            for u in us:
                d = 112 + 8*(u & 1)
                o += L('\n'.join(f'v_cvt_pk_bf16_f32 v{40+4*u+r}, v{d+r}, v{d+4+r}' for r in range(4)))
            return o
        farld = []
        for dl in range(4):
            o = 16*(3 - dl)
            farld += [Ins(f'ds_read2_b32 a[{240+4*dl}:{241+4*dl}], v14 offset0:{o} offset1:{o+1}'), Ins(f'ds_read2_b32 a[{242+4*dl}:{243+4*dl}], v14 offset0:{o+2} offset1:{o+3}')]
        N = len(bb)
        dr = self.o('drain', 40)
        gfA = nA + 10 + dr; gfB = nB + 10 + dr; gfC = nC + 10 + self.o('drainc', 48)
        g_poll = self.o('g_poll', 130); g_chk = self.o('g_chk', 165)
        pc = self.pollC(0, 'v31')
        c0, c1, c2, c3 = self.conv_late()
        self.pB = self.pollC(1, 'v192')
        self.pipe = Pipe(self.o('sv', 68), self.o('svst', 280), self.o('win', 480))
        wck = Fill([wchk] if ecw >= 500 else [], max(0, ecw - 500), max(0, ecw - 500), prio=5, hard=True, name='w1')
        w1f = Fill(self.w1_loads(npre_w1, 60), 0, 10**9, prio=1, name='w1', asap=True, carry=True, after=[wck]); self.w1f = w1f
        lf = Fill(c0 + c1 + c2 + c3, 0, 1, prio=2, name='late', slack=1)
        marks = [(0, 0), (len(c0), 7), (len(c0 + c1), 18), (len(c0 + c1 + c2), a1 - 4), (len(c0 + c1 + c2 + c3), 66)]
        for (k0, g0), (k1, g1) in zip(marks, marks[1:]):
            for k in range(k0, k1): lf.want[k] = g0 + (g1 - g0)*(k - k0)/(k1 - k0)
        tc = Fill(L(f's_mov_b32 s46, {16*self.TPI}\ns_mov_b32 s47, {32*self.TPI}\ns_mov_b32 s48, {48*self.TPI}') + self.tile_consts() + self.g1_pre[0], 68, 165, prio=1, name='g1pre', ahead=10, after=[lf])
        ck = Fill([self.stamp('_chk0') + self.check(pc, ['v31'], None) + self.stamp('_chk1')], g_chk, g_chk, prio=5, hard=True, name='tail')
        tail = Fill(self.tile_dma(0) + [self.barrier()] + self.ic2_loads(), g_chk, N - 3, prio=4, asap=True, after=[ck], name='tail')
        fpb = Fill([self.pB], N - self.o('gpB', 14), N - self.o('gpB', 14), prio=5, hard=True, name='tail')
        g1v = Fill(self.g1_pre[1], xlast + 2, N - 8, prio=1, name='g1pre', ahead=30, after=[tc])
        for k, it in enumerate(g1v.items):
            if ('v', 31) in it[0].defs: break
        for kk in range(k, len(g1v.items)): g1v.lo[kk] = g_chk + 4
        fills = [
            Fill(kreads[npre:], 0, 70, prio=3, hard=True),
            Fill(cvts((0, 1)), a1 + 8, a1 + 15, prio=2, hard=True),
            Fill(cvts((2, 3)), a2 + 8, a2 + 15, prio=2, hard=True),
            Fill(farld[:4], nB - 4, nB + 4, prio=2, hard=True, after=[lf]), Fill(farld[4:], nB + 30, nB + 50, prio=2),
            Fill(self.epi(0, '0', 'pA') + L(f'buffer_store_dword v127, v126, {sWS}, 0 offen sc1', tag='pA'), nA + 3, nA + 10, prio=3, burst=True),
            Fill(self.epi(1, 's46', 'pB'), nB + 3, nB + 10, prio=3, burst=True),
            Fill(self.epi(2, 's47', 'pC'), nC + 3, nC + 10, prio=3, burst=True),
            wck, w1f, lf, tc, g1v, ck, tail, fpb,
            Fill([self.stamp('_fa0') + self.flagC(0, 'pA') + self.stamp('_fa1')], gfA, gfA, prio=4, hard=True, after=[lf]),
            Fill([self.stamp('_fb0') + self.flagC(1, 'pB') + self.stamp('_fb1')], gfB, gfB, prio=4, hard=True),
            Fill([self.flagC(2, 'pC')], gfC, gfC, prio=4, hard=True),
            Fill([pc], g_poll, g_poll, prio=4, hard=True, name='tail'),
        ]
        if isinstance(self.stamps, list):
            for nm in self.stamps:
                if nm.startswith('_C'): fills.append(Fill([self.stamp(nm)], int(nm[2:]), int(nm[2:]), prio=9, hard=True))
        merged = interleave(bb, fills, pinned, report='conv', pipe=self.pipe)
        S.emit(merged)
        k0 = max(k for k, i in enumerate(merged) if i in ck.items[0])
        self.mirror = [i for i in merged[k0+1:] if i.src in ('tail', 'w1') or i.kind == 'vmem']
        done = [i for i in merged[:k0] if i.src == 'w1' and i.kind == 'vmem' and i.defs]
        self.nA2 = npre_w1 + len(done)
        self.w1cur = {r: [i for i in merged[:k0] if i.src == 'w1' and ('s', 67 + r) in i.defs][-1] for r in range(3)}
        S.emit(self.stamp('conv'))
    def flagC(self, stage, tag, skip=False):
        o = self.barrier([tag])
        if skip: o += L('s_cmp_eq_u32 s0, 1\ns_cbranch_scc1 L_noflc')
        for r in range(self.RC//4): o += L(f's_atomic_swap {sN}, s[4:5], s66 offset:{stage*self.CSTG + r*self.CREP}')
        if skip: o += L('L_noflc:')
        return o
    def epi(self, j, soff, tag, t=None):
        t = t or 32 + 4*(j & 1); qa, qb = 96 + 8*j, 100 + 8*j
        return L(f'''
        v_cvt_pk_bf16_f32 v{t}, v{qa}, v{qa+1}
        v_cvt_pk_bf16_f32 v{t+2}, v{qb}, v{qb+1}
        v_cvt_pk_bf16_f32 v{t+1}, v{qa+2}, v{qa+3}
        v_cvt_pk_bf16_f32 v{t+3}, v{qb+2}, v{qb+3}
        v_permlane16_swap_b32 v{t}, v{t+2}
        v_permlane16_swap_b32 v{t+1}, v{t+3}
        ''') + L(f'buffer_store_dwordx4 v[{t}:{t+3}], v15, {sWS}, {soff} offen sc1', tag=tag)
    def mod_unit(self, S, su, scol='s71', va='v57', tag='moddma', mid=(), also=()):
        S.emit(f's_and_b32 s58, {su}, 1\ns_mul_i32 s58, s58, 640\nv_add_u32 v58, s58, v51')
        S.wait_tags([tag] + list(also)); S.emit('s_waitcnt lgkmcnt(0)\ns_barrier'); S.emit(list(mid))
        for b in range(10):
            S.emit(f'''
            ds_read_b64_tr_b16 v[{128+8*b}:{129+8*b}], {va} offset:{4096*b}
            ds_read_b64_tr_b16 v[{130+8*b}:{131+8*b}], {va} offset:{4096*b+512}
            ds_read_b128 v[{132+8*b}:{135+8*b}], v58 offset:{64*b}
            ''')
        for b in range(10):
            S.emit(f'v_mfma_f32_16x16x32_bf16 v[52:55], v[{132+8*b}:{135+8*b}], v[{128+8*b}:{131+8*b}], {"0" if b == 0 else "v[52:55]"}')
        S.emit(f'''
        s_and_b32 s58, {su}, 1
        s_mul_i32 s58, s58, 3840
        s_add_u32 s58, s58, {scol}
        s_lshl_b32 s59, s3, 4
        s_add_u32 s58, s58, s59
        s_lshl_b32 s58, s58, 3
        s_add_u32 s58, s58, {WS_MODP}
        v_mov_b32 v53, {sN}
        buffer_store_dwordx2 v[52:53], v59, {sWS}, s58 offen sc1
        ''')
    def w2_dma(self, sT):
        o = L(f'''
        s_mul_hi_u32 s40, {sT}, {(2**32 + 9)//10}
        s_mul_i32 s58, s40, 10
        s_sub_u32 s41, {sT}, s58
        s_lshl_b32 s40, s40, 2
        s_add_u32 s40, s40, s3
        s_mul_hi_u32 s58, s40, {(2**32 + 2)//3}
        s_mul_i32 s59, s58, 3
        s_sub_u32 s59, s40, s59
        s_mul_i32 s58, s58, 96
        s_mul_i32 s42, s59, 48
        s_cmp_eq_u32 s59, 2
        s_cselect_b32 s42, 32, s42
        s_cselect_b32 s43, 8, 4
        s_cselect_b32 s44, 48, 16
        s_cselect_b32 s45, 0, 4
        s_mul_i32 s43, s43, 1280
        s_mul_i32 s44, s44, 1280
        s_add_u32 s58, s58, s42
        s_mul_i32 s58, s58, 1280
        s_lshl_b32 s59, s41, 7
        s_add_u32 s42, s58, s59
        s_add_u32 s43, s42, s43
        v_and_b32 v12, s45, v104
        v_add_u32 v12, v12, v104
        v_mul_u32_u24 v12, 1280, v12
        v_add_u32 v13, v12, v106
        v_add_u32 v12, v12, v105
        ''')
        for d in range(4):
            if d == 2: o += L('s_add_u32 s42, s42, s44\ns_add_u32 s43, s43, s44')
            o += L(f's_add_u32 m0, s66, {1024*d}\ns_nop 0')
            o += L(f'buffer_load_dwordx4 v{12+(d&1)}, {sWD}, s{42+(d&1)} offen nt lds', tag='w2dma')
            o += L(f's_add_u32 m0, s66, {57344 + 1024*d - 128}\ns_nop 0')
            o += L(f'buffer_load_dwordx4 v{12+(d&1)}, {sWD}, s{42+(d&1)} offen offset:128 nt lds', tag='w2dma')
        return o
    def w2_finish(self):
        return L(f'''
        s_mul_i32 s58, s41, 192
        s_add_u32 s58, s58, s40
        s_lshl_b32 s58, s58, 10
        s_add_u32 s58, s58, {WS_W2P}
        ''') + self.prep_task('w2dma', 's58', 49152, 'w2st', tmp=208) + L('s_add_u32 s58, s58, 49152') + self.prep_task('w2dma', 's58', 49152, 'w2st', tmp=224, loff=57344)
    def spare_path(self, S):
        S.set_state(self.st_spare)
        S.emit('L_spare:'); S.dummy = 'ds_read_b32 v1, v3'; nml = 3*self.o('mlpre', 5); S.emit(self.mod_late[:nml]); pass
        S.emit(f'''
        s_lshl_b32 s58, s3, 5
        v_subrev_u32 v57, s66, v112
        v_xor_b32 v57, s58, v57
        v_add_u32 v56, {L_H}, v57
        v_lshrrev_b32 v58, 4, v2
        v_lshlrev_b32 v58, 4, v58
        v_add_u32 v51, {L_VEC}, v58
        v_lshlrev_b32 v59, 3, v2
        v_mov_b32 v43, {OOB}
        v_cmp_gt_u32 vcc, 16, v2
        v_add_u32 v42, {L_VEC}, v12
        s_mov_b32 s65, -1
        v_cndmask_b32 v59, v43, v59, vcc
        ''')
        for k in range(4): S.emit(f'v_lshlrev_b32 v{32+k}, 16, v{200+(k>>1)}' if k % 2 == 0 else f'v_and_b32 v{32+k}, 0xffff0000, v{200+(k>>1)}')
        for op in ('v_mul_f32 T, 0xbfb8aa3b, X', 'v_exp_f32 T, T', 'v_add_f32 T, 1.0, T', 'v_rcp_f32 T, T', 'v_mul_f32 X, X, T'):
            for k in range(4): S.emit(op.replace('T', f'v{36+k}').replace('X', f'v{32+k}'))
        S.emit('v_cvt_pk_bf16_f32 v32, v32, v33\nv_cvt_pk_bf16_f32 v33, v34, v35\nds_write_b64 v42, v[32:33]')
        S.wait_tags(['pa']); S.emit(self.mod_late[nml:])
        S.emit(self.flagA() + self.stamp('_fla'))
        S.emit(self.touch('L_s')); S.emit('L_s0:\ns_mov_b64 exec, -1')
        S.emit(f'''
        s_sub_u32 s46, s2, 184
        s_cmp_lt_u32 {sJ}, 23
        s_cbranch_scc1 L_sp_a
        s_cmp_lt_u32 s46, 60
        s_cbranch_scc1 L_sp_c
        ''')
        fl = lambda: []
        st = S.state()
        S.emit(fl()); self.mod_unit(S, 's70'); S.emit(self.stamp('slot0'))
        S.emit('s_branch L_sp_b2done')
        S.set_state(st)
        S.emit('L_sp_a:\ns_add_u32 s46, s46, 120')
        md = self.mod_dma('s46', 's47', L_H, 'mod2'); nm = self.o('m2mid', 0)
        S.emit(md[0]); S.emit(fl()); S.emit(flat(md[1][:nm]))
        self.mod_unit(S, 's70'); S.emit(self.stamp('slot0'))
        S.emit(flat(md[1][nm:]))
        self.mod_unit(S, 's46', 's47', 'v56', 'mod2')
        S.emit('s_branch L_sp_b2done')
        S.set_state(st)
        S.emit('L_sp_c:\ns_lshl_b32 s46, s46, 1')
        wd = self.w2_dma('s46'); ns0 = min(k for k, i in enumerate(wd) if 'm0' in i.defs); nset = ns0 + self.o('w2mid', 0)
        S.emit(wd[:ns0]); S.emit(fl()); S.emit(wd[ns0:nset])
        self.mod_unit(S, 's70'); S.emit(self.stamp('slot0'))
        S.emit(wd[nset:])
        w2late = self.o('w2late', 0)
        if not w2late: S.emit(self.w2_finish())
        S.emit(f'''
        s_lshl_b32 s58, s46, 6
        s_lshl_b32 s59, s3, 2
        s_add_u32 s65, s58, s59
        L_sp_b2done:
        ''')
        S.emit(self.stamp('slot1'))
        S.emit(self.touch('L_gp')); S.emit('L_sp_t2:')
        S.emit(self.g_setup())
        pw = self.pollW()
        S.emit(pw); S.emit(self.check(pw, ['v4'], None, sleep=8))
        S.emit(self.stamp('slot2')); S.emit(self.tile_consts())
        def pick(tag):
            S.emit(f's_cmp_lt_u32 {sJ}, 24\ns_cbranch_scc1 L_sp_{tag}0\ns_cmp_lt_u32 {sJ}, 28\ns_cbranch_scc1 L_sp_{tag}1')
        S.emit(f'''
        v_min_u32 v56, 159, v0
        v_lshlrev_b32 v57, 5, v56
        v_add_u32 v57, {WS_MODP + 3*640*8}, v57
        v_add_u32 v58, {640*8}, v57
        s_mov_b32 s59, {3840*8}
        ''')
        gl = []
        for k, (a, so) in enumerate((('v58', '0'), ('v58', 's59'), ('v57', '0'), ('v57', 's59'))):
            gl += L(f'buffer_load_dwordx4 v[{64+8*k}:{67+8*k}], {a}, {sWS}, {so} offen sc1\nbuffer_load_dwordx4 v[{68+8*k}:{71+8*k}], {a}, {sWS}, {so} offen offset:16 sc1')
        S.emit(f's_cmp_ge_u32 {sXC}, 4\ns_cselect_b32 s1, 1, 0')
        ng = self.o('gat', 0); ng2 = ng + 12; ng3 = ng2 + 12; assert ng3 <= self.nA2
        def seg(tag, body):
            pick(tag); st = S.state()
            for v in (2, 0, 1):
                S.set_state(st)
                if v != 2: S.emit(f'L_sp_{tag}{v}:')
                body(v)
                if v != 1: S.emit(f's_branch L_sp_{tag}j')
            S.emit(f'L_sp_{tag}j:')
        seg('p', lambda v: S.emit(flat(self.w1_loads(0, 60, only=v) + self.w1_loads(0, ng, skip=v))))
        if w2late:
            S.emit('s_cmp_eq_u32 s65, -1\ns_cbranch_scc1 L_sp_nw1'); S.emit(self.w2_finish()); S.emit('L_sp_nw1:')
        S.emit('s_cmp_eq_u32 s1, 1\ns_cbranch_scc1 L_sp_nogl'); S.emit(gl); S.emit('L_sp_nogl:')
        seg('q', lambda v: S.emit(flat(self.w1_loads(ng, ng2, skip=v))))
        S.emit('s_cmp_eq_u32 s1, 1\ns_cbranch_scc1 L_sp_nog')
        S.emit(self.check(gl, [f'v{65+2*k}' for k in range(16)], 'v50', sleep=8))
        for k in range(4):
            S.emit(f'''
            v_add_f32 v{64+2*k}, v{64+2*k}, v{72+2*k}
            v_add_f32 v{80+2*k}, v{80+2*k}, v{88+2*k}
            v_cvt_pk_bf16_f32 v{64+2*k}, 0, v{64+2*k}
            v_add_f32 v{64+2*k}, 1.0, v{64+2*k}
            ''')
        S.emit(f'''
        v_cvt_pk_bf16_f32 v72, v64, v66
        v_cvt_pk_bf16_f32 v73, v68, v70
        v_cvt_pk_bf16_f32 v74, v80, v82
        v_cvt_pk_bf16_f32 v75, v84, v86
        v_lshlrev_b32 v56, 3, v56
        v_add_u32 v56, {L_VEC + 1536}, v56
        ds_write_b64 v56, v[72:73]
        ds_write_b64 v56, v[74:75] offset:1280
        v_and_b32 v57, 1, v2
        v_mul_u32_u24 v57, 1280, v57
        v_lshrrev_b32 v58, 5, v2
        v_lshl_add_u32 v57, v58, 4, v57
        s_and_b32 s59, s3, 1
        s_mul_i32 s58, s59, 640
        s_add_u32 s58, s58, {L_VEC + 1536}
        v_add_u32 v57, s58, v57
        s_waitcnt lgkmcnt(0)
        s_barrier
        ''')
        for s in range(20): S.emit(f'ds_read_b128 v[{128+4*s}:{131+4*s}], v57 offset:{32*s}')
        S.emit(f'''
        s_lshr_b32 s58, s3, 1
        s_mul_i32 s58, s58, 3
        s_mul_i32 s43, {sSIG}, 6
        s_add_u32 s58, s58, s43
        s_lshl_b32 s58, s58, 10
        s_lshl_b32 s43, s59, 9
        s_add_u32 s58, s58, s43
        s_add_u32 s58, s58, {WS_WX}
        s_lshl_b32 s43, s59, 10
        s_add_u32 s42, s58, s43
        s_sub_u32 s40, s58, s43
        s_add_u32 s40, s40, 1024
        s_add_u32 s41, s58, 2048
        v_mov_b32 v58, {OOB}
        v_cmp_gt_u32 vcc, 32, v2
        s_nop 1
        v_cndmask_b32 v56, v58, v3, vcc
        v_cndmask_b32 v57, v58, v5, vcc
        ''')
        S.emit('L_sp_nog:')
        S.emit(self.stamp('_xin'))
        def last(v):
            S.vm = []
            S.emit(flat(self.w1_loads(ng2, ng3, skip=v)))
            S.emit(f's_cmp_eq_u32 s1, 1\ns_cbranch_scc1 L_sp_x{v}')
            for k in range(20): S.emit(f'v_mfma_f32_32x32x16_bf16 v[64:79], v[{128+4*k}:{131+4*k}], a[{12*k+4*v}:{12*k+4*v+3}], {"0" if k == 0 else "v[64:79]"}')
            d = 64
            S.emit(f'''
            v_cvt_pk_bf16_f32 v{d+2}, 0, v{d}
            v_cvt_pk_bf16_f32 v{d+3}, 0, v{d+1}
            v_sub_f32 v{d}, v{d}, v{d+2}
            v_sub_f32 v{d+1}, v{d+1}, v{d+3}
            v_cvt_pk_bf16_f32 v{d}, -v{d+2}, -v{d}
            v_cvt_pk_bf16_f32 v{d+1}, v{d+3}, v{d+1}
            v_mov_b32 v{d+2}, 0
            v_mov_b32 v{d+3}, {sN}
            buffer_store_dwordx4 v[{d}:{d+3}], v{57 if v == 1 else 56}, {sWS}, s{40+v} offen sc1
            ''')
            S.emit(f'L_sp_x{v}:')
            S.emit(self.stamp('_wok'))
            S.emit(flat(self.w1_loads(ng3, self.nA2, skip=v)))
        seg('r', last)
        pc = self.pollC(0, 'v128')
        S.emit('s_waitcnt lgkmcnt(0)'); S.emit(pc)
        S.emit(f'''
        v_mov_b32 v15, {OOB}
        s_mov_b32 s47, 0
        s_mov_b32 s48, 0
        ''')
        S.emit(cp(flat(self.g1_pre[0]) + flat(self.g1_pre[1])))
        S.emit('s_barrier')
        S.emit(self.stamp('kexp'))
        S.emit('s_waitcnt vmcnt(0)')
        S.emit(f's_cmp_eq_u32 s65, -1\ns_cbranch_scc1 L_sp_nw2\ns_atomic_swap {sN}, s[4:5], s65 offset:{WS_FLW2}\nL_sp_nw2:')
        S.emit(self.check(pc, ['v128'], None, sleep=8))
        S.emit(self.stamp('_chk1'))
        S.emit(cp(list(self.w1cur.values()))); S.emit(cp(self.mirror))
        tail = [i.text for i in S.vm]
        assert tail == [i.text for i in self.join_vm[-len(tail):]] or [i.text for i in self.join_vm] == tail[-len(self.join_vm):], (tail, self.join_vm)
        S.emit(self.stamp('conv'))
        S.emit('s_branch L_g1')
    def finish(self, S):
        if self.probe:
            S.emit(self.stamp('end'))
            S.wait_all(); S.out.append(Ins('s_waitcnt vmcnt(0) lgkmcnt(0)'))
            k = self.stamp_names.index(self.probe)
            role = self.o('prole', 2)
            S.emit(f's_sub_u32 s58, s{78+2*k}, s78')
            if role < 2: S.emit(f's_cmp_eq_u32 s0, {role}\ns_cselect_b32 s58, s58, 0')
            if self.o('pwg', -1) >= 0: S.emit(f's_cmp_eq_u32 s2, {self.o("pwg", 0)}\ns_cselect_b32 s58, s58, 0')
            S.emit('s_min_u32 s58, s58, 20000\ns_add_u32 s58, s58, 6000')
            if self.o('ponly', -1) >= 0: S.emit(f's_cmp_eq_u32 s2, {self.o("ponly", 0)}\ns_cselect_b32 s58, s58, 0')
            S.emit('L_spin:')
            S.out += L('s_memrealtime s[60:61]\ns_waitcnt lgkmcnt(0)\ns_sub_u32 s60, s60, s78\ns_cmp_lt_u32 s60, s58\ns_cbranch_scc1 L_spin')
        elif self.stamps:
            S.emit(self.stamp('end'))
            S.wait_all()
            S.out.append(Ins('s_waitcnt vmcnt(0) lgkmcnt(0)'))
            S.emit(f'''
            s_lshl_b32 s58, s2, 2
            s_add_u32 s58, s58, s3
            s_lshl_b32 s58, s58, 8
            s_add_u32 s58, s58, {WS_DBG}
            v_mov_b32 v31, {OOB}
            v_writelane_b32 v31, 0, 0
            ''')
            for k in range(len(self.stamp_names)):
                S.emit(f'v_mov_b32 v1, s{78+2*k}\nbuffer_store_dword v1, v31, {sWS}, s58 offen offset:{4*k}')
            S.emit(f'v_mov_b32 v1, {sBUD}\nbuffer_store_dword v1, v31, {sWS}, s58 offen offset:60')
        S.emit('s_endpgm')
    def build(self):
        import gen2
        self.g1_pre = gen2.g1_pre(self)
        P = Stream(); self.prologue(P)
        S = Stream(); self.conv_path(S)
        S.emit('L_g1:'); self.join_vm = list(S.vm)
        if self.stop == 'conv':
            S.emit('s_nop 7')
            S.emit(self.epi(2, 's47', 'p2') + self.epi(3, 's48', 'p2'))
        else:
            import gen2
            gen2.gemms(self, S)
        if self.o('wsite', -1) >= 0:
            k0 = self.o('wsite', 0); start = max(k for k, i in enumerate(S.out) if 'hw' in i.waitfor) + 1
            sites = []; gap = 0
            for k in range(start, len(S.out)):
                i = S.out[k]
                if i.kind == 'mfma': gap += 1
                if (i.mn == 's_waitcnt' and 'vmcnt' in i.text) or i.mn == 's_barrier' or i.mn == 's_cbranch_vccnz' or (i.mn == 's_cmp_lg_u64' and S.out[k+2].mn == 's_cmp_lg_u64'): sites.append((k, gap, i))
            self.nsites = len(sites); self.stamps = True
            ins = []
            for n, (k, gp, i) in enumerate(sites[k0:k0+5]):
                ph = f'C{gp}' if gp <= 238 else (f'G{gp-238}' if gp <= 484 else f'H{gp-484}')
                nm = ph + {'s_waitcnt': 'w' + i.text.split('(')[1].split(')')[0] if i.mn == 's_waitcnt' else '', 's_barrier': 'bar', 's_cbranch_vccnz': 'chk', 's_cmp_lg_u64': 'schk'}[i.mn]
                ins.append((k, self.stamp(f'.{n}'), self.stamp(nm + '.' * n), {'s_cbranch_vccnz': 2, 's_cmp_lg_u64': 5}.get(i.mn, 1)))
            for k, a_, b_, w in reversed(ins): S.out[k:k+w] = a_ + S.out[k:k+w] + b_
            self.stamps = ['none']
        self.finish(S)
        slow1 = self.slow; self.slow = []
        Q = Stream(); self.spare_path(Q)
        dm = self.o('drop', 0)
        if dm:
            import re
            pats = {1: r'buffer_load_dwordx4 a\[\d+:\d+\], v[35], s\[4:7\], s6[789]',
                    2: r'buffer_load_dword v\d+, v4,', 4: r'buffer_store_dwordx4 v\[\d+:\d+\], v1[578],', 8: r'buffer_store_dword v1, v30',
                    16: r'buffer_load_dwordx4 v6, .* lds', 32: r'buffer_load_dwordx4 v\[\d+:\d+\], v3, s\[4:7\], s6[78]', 64: r'buffer_(load|store)_dwordx2 v\[(10:11|32:33)\]'}
            pats[256] = r'(buffer_load_dwordx4 v1[23], s\[24:27\]|buffer_store_dwordx4 v\[\d+:\d+\], v3, s\[4:7\], s58)'
            lists = [S.out] + ([Q.out] if dm & 128 else [])
            for lst in lists:
                for k, i in enumerate(lst):
                    if any(dm & b and re.match(p, i.text) for b, p in pats.items()): lst[k] = Ins('s_mov_b32 vcc_hi, 0x12345')
        body = S.out + slow1 + Q.out + self.slow
        body, npages, nbytes, mis = layout(body, minpages=8)
        for i in P.out: i.text = i.text.replace('@CODEMAX@', str(nbytes // 128 * 128))
        pro, _, pbytes, _ = layout(P.out, stubs=False)
        self.info = dict(pages=npages, bytes=nbytes, pro=pbytes, misaligned=mis, nops=S.nops, waits=S.nwait, dummy=S.ndummy, n=len(S.out))
        self.log = P.log + S.log + Q.log
        txt = f'; @launch grid=(256,1,1) block=(256,1,1) lds={LDS_BYTES}\n.amdgcn_target "amdgcn-amd-amdhsa--gfx950"\n.text\n.p2align 12\n.globl {NAME}\n.p2align 8\n.type {NAME},@function\n{NAME}:\n'
        txt += render(pro)
        txt += '.p2align 12\n' + render(body)
        if not self.o('nt', 1): txt = txt.replace(' nt lds', ' lds').replace(' nt\n', '\n')
        txt += f'''.section .rodata,"a"
.p2align 6
.amdhsa_kernel {NAME}
  .amdhsa_next_free_vgpr 512
  .amdhsa_next_free_sgpr 102
  .amdhsa_accum_offset 256
  .amdhsa_group_segment_fixed_size 0
  .amdhsa_kernarg_size 144
  .amdhsa_user_sgpr_count 2
  .amdhsa_user_sgpr_kernarg_segment_ptr 1
  .amdhsa_system_sgpr_workgroup_id_x 1
  .amdhsa_float_denorm_mode_32 {self.o('denorm', 3)}
.end_amdhsa_kernel
'''
        return txt

def alloc_frags(seq, mn, pool, loader, lead, maxper=1, notbefore=None):
    first = {}; last = {}
    for k, (D, A, B, C) in enumerate(seq):
        for f in (A, B):
            if isinstance(f, tuple): first.setdefault(f, k); last[f] = k
    order = sorted(first, key=lambda f: first[f])
    freeat = {r: -1 for r in pool}
    used = {}; pinned = {}; head = []; reg = {}
    for f in order:
        r = min(freeat, key=lambda x: freeat[x])
        lds = loader(f, r)
        want = first[f] - 1 - lead
        lo = max(freeat[r], notbefore(f) if notbefore else -1)
        for i in lds:
            g = max(want, lo)
            if g >= 0:
                c = g
                while c > max(lo, 0) and used.get(c, 0) >= maxper and c > g - 4: c -= 1
                if used.get(c, 0) >= maxper:
                    c = g
                    while used.get(c, 0) >= maxper and c < first[f] - 3: c += 1
                g = c
            assert g < first[f], (f, g, first[f])
            if g < 0: head.append(i)
            else: pinned.setdefault(g, []).append(i); used[g] = used.get(g, 0) + 1
        reg[f] = r; freeat[r] = last[f]
    R = lambda f: f'v[{reg[f]}:{reg[f]+3}]' if isinstance(f, tuple) else f
    bb = [Ins(f'{mn} {D}, {R(A)}, {R(B)}, {C}') for D, A, B, C in seq]
    return bb, pinned, head

if __name__ == '__main__':
    import argparse
    ap = argparse.ArgumentParser(); ap.add_argument('-o', default='k.s'); ap.add_argument('--stop'); ap.add_argument('--stamps', action='store_true'); ap.add_argument('--log', action='store_true')
    ap.add_argument('--opt', default=''); ap.add_argument('--audit', action='store_true'); ap.add_argument('--probe')
    a = ap.parse_args()
    opt = {k: int(v) for k, v in (x.split('=') for x in a.opt.split(',') if x)}
    g = Gen(stop=a.stop, stamps=a.stamps, probe=a.probe, **opt)
    t = g.build(); open(a.o, 'w').write(t)
    print(g.info, g.stamp_names)
    if a.log: print('\n'.join(g.log))
    import fw
    print('\n'.join(x for x in fw.AUDIT if a.audit or x.startswith('CONFLICT') or x.startswith('sched') or (a.log and 'place' in x)))
```

```python
import re, subprocess, os, tempfile

REG = re.compile(r'^(-|abs\()?([vas])(?:(\d+)|\[(\d+):(\d+)\])\)?$')
TRANS = ('v_exp_f32', 'v_log_f32', 'v_rcp_f32', 'v_rsq_f32', 'v_sqrt_f32', 'v_sin_f32', 'v_cos_f32')
NODEF_S = ('s_cmp', 's_cbranch', 's_waitcnt', 's_barrier', 's_nop', 's_branch', 's_setprio', 's_sleep', 's_endpgm', 's_bitcmp')

def regs_of(op):
    op = op.strip()
    if op in ('vcc', 'exec', 'm0'): return [op]
    if op in ('vcc_lo', 'vcc_hi'): return ['vcc']
    if op in ('exec_lo', 'exec_hi'): return ['exec']
    m = REG.match(op)
    if not m: return []
    k = m.group(2)
    if m.group(3) is not None: return [(k, int(m.group(3)))]
    return [(k, i) for i in range(int(m.group(4)), int(m.group(5)) + 1)]

class Ins:
    __slots__ = ('text', 'mn', 'kind', 'defs', 'uses', 'ops', 'tag', 'waitfor', 'size', 'srcc', 'srcab', 'passes', 'wide', 'lanesel', 'note', 'src', 'xuses', 'xdefs', 'lines')
    def __init__(self, text, tag=None, waitfor=None):
        self.text = text.strip(); self.tag = tag; self.waitfor = waitfor or []
        self.size = None; self.srcc = []; self.srcab = []; self.passes = 0; self.wide = False; self.lanesel = []; self.note = None; self.src = None; self.xuses = set(); self.xdefs = set(); self.lines = None
        t = self.text
        if t.endswith(':') or t.startswith('.') or t.startswith(';') or t == '':
            self.mn = ''; self.kind = 'label' if t.endswith(':') else 'dir'; self.defs = set(); self.uses = set(); self.ops = []; return
        parts = t.split(None, 1)
        mn = parts[0]; rest = parts[1] if len(parts) > 1 else ''
        ops = []; cur = ''; depth = 0
        for ch in rest:
            if ch == '[': depth += 1
            if ch == ']': depth -= 1
            if ch == ',' and depth == 0: ops.append(cur.strip()); cur = ''
            else: cur += ch
        mods = ''
        if cur.strip():
            sp = cur.strip().split(None, 1); ops.append(sp[0]); mods = sp[1] if len(sp) > 1 else ''
        self.mn = mn; self.ops = ops
        base = re.sub(r'_(e32|e64|dpp|sdwa)$', '', mn)
        R = [regs_of(o) for o in ops]
        flat = lambda L: set(x for l in L for x in l)
        d = set(); u = set()
        if mn.startswith('v_mfma'):
            self.kind = 'mfma'; d = set(R[0]); u = flat(R[1:]); self.srcc = R[3]; self.srcab = R[1] + R[2]
            self.passes = 8 if '32x32' in mn else 4
        elif mn.startswith('v_'):
            self.kind = 'trans' if base in TRANS else 'valu'
            if 'permlane' in mn: d = flat(R); u = flat(R)
            elif base in ('v_add_co_u32', 'v_sub_co_u32', 'v_addc_co_u32'): d = flat(R[:2]); u = flat(R[2:])
            else:
                d = set(R[0]); u = flat(R[1:])
                if base in ('v_fmac_f32', 'v_dot2c_f32_bf16', 'v_writelane_b32') or mn.endswith('_dpp'): u |= d
                if base == 'v_cndmask_b32' and len(ops) == 3: u.add('vcc')
                if base in ('v_readlane_b32', 'v_writelane_b32'): self.lanesel = R[2]
            u.add('exec')
        elif mn.startswith('ds_'):
            self.kind = 'ds'
            if mn.startswith('ds_read') or '_rtn_' in mn or mn.startswith('ds_bperm') or mn.startswith('ds_swizzle'):
                d = set(R[0]); u = flat(R[1:])
                if 'd16' in mn: u |= d
            else:
                u = flat(R)
            if 'addtid' in mn: u.add('m0')
        elif mn.startswith('buffer_') or mn.startswith('global_'):
            self.kind = 'vmem'
            lds = ' lds' in (' ' + mods) or '_lds_' in mn
            if 'load' in mn and not lds:
                d = set(R[0]); u = flat(R[1:])
                if 'd16' in mn: u |= d
            else:
                u = flat(R)
                if lds: u.add('m0')
                if 'store' in mn and ('x3' in mn or 'x4' in mn):
                    self.wide = set(R[0] if mn.startswith('buffer_') else R[1])
        elif mn.startswith('s_atomic'):
            self.kind = 'smem'; u = flat(R); self.note = 'async'
        elif mn.startswith('s_load') or mn.startswith('s_memtime') or mn.startswith('s_memrealtime'):
            self.kind = 'smem'; d = set(R[0]); u = flat(R[1:])
        elif mn.startswith('s_'):
            self.kind = 'salu'
            if any(mn.startswith(p) for p in NODEF_S): u = flat(R)
            else: d = set(R[0]); u = flat(R[1:])
            if re.match(r's_(cmp|add|sub|and|or|xor|lshl|lshr|ashr|bfe|min|max|not|bitcmp)', mn): d.add('scc')
            if re.match(r's_(cselect|cbranch_scc|addc|subb)', mn): u.add('scc')
            if mn.startswith('s_cbranch_vcc'): u.add('vcc')
        else:
            raise ValueError('unknown instruction ' + t)
        self.defs = d; self.uses = u
    def states(self):
        if self.kind in ('label', 'dir'): return 0
        if self.mn == 's_nop': return int(self.ops[0], 0) + 1
        return 1
    def __repr__(self): return self.text

def L(text, **kw):
    out = []
    for l in text.strip('\n').split('\n'):
        l = l.split(';')[0].strip() if not l.strip().startswith(';') else ''
        if l: out.append(Ins(l, **kw))
    return out

def isv(r): return isinstance(r, tuple) and r[0] in 'va'
def iss(r): return r == 'vcc' or (isinstance(r, tuple) and r[0] == 's')

def need_states(p, c):
    n = 0
    pv = p.kind in ('valu', 'trans'); cv = c.kind in ('valu', 'trans')
    if pv:
        dv = set(r for r in p.defs if isv(r)); dsg = set(r for r in p.defs if iss(r))
        if c.kind == 'mfma' and dv & c.uses: n = max(n, 2)
        if cv and dv & c.uses:
            if c.mn.endswith('_dpp') or 'permlane' in c.mn: n = max(n, 2)
            if 'readlane' in c.mn or 'readfirstlane' in c.mn: n = max(n, 1)
            if p.kind == 'trans' and c.kind != 'trans': n = max(n, 1)
        if p.mn.startswith('v_dot2') and (dv & (c.uses | c.defs)):
            same_c = c.mn == p.mn and not (dv & set(regs_of(c.ops[1]) + regs_of(c.ops[2])))
            if not same_c: n = max(n, 3)
        if dsg:
            if cv and dsg & c.uses: n = max(n, 2)
            if cv and dsg & set(c.lanesel): n = max(n, 4)
            if c.kind == 'vmem' and dsg & c.uses: n = max(n, 5)
            if c.kind in ('salu', 'smem') and dsg & c.uses and not c.mn.startswith('s_cbranch'): n = max(n, 1)
    if p.kind == 'mfma':
        big = 12 if p.passes == 8 else 8
        if c.kind == 'mfma':
            if p.defs & set(c.srcab): n = max(n, big)
            if p.defs & set(c.srcc):
                if not (set(c.srcc) == p.defs and c.passes == p.passes): n = max(n, big - 2)
            elif p.defs & c.defs: n = max(n, big)
        elif c.kind in ('valu', 'trans', 'ds', 'vmem'):
            if p.defs & (c.uses | c.defs): n = max(n, big)
            if set(r for r in p.srcc if isv(r)) & c.defs: n = max(n, 7 if p.passes == 8 else 3)
    if p.wide and (p.wide & c.defs): n = max(n, 2 if cv else 1)
    if p.kind == 'salu' and 'm0' in p.defs and 'm0' in c.uses and c.kind in ('ds', 'vmem'): n = max(n, 1)
    return n

class Stream:
    def __init__(self):
        self.out = []
        self.vm = []
        self.lg = []
        self.sm = []
        self.nops = 0; self.nwait = 0
        self.t = 0; self.tm = -99; self.shadow = []; self.dummy = None; self.shadow_len = 1400; self.ndummy = 0
        self.log = []
    def state(self): return (list(self.vm), list(self.lg), list(self.sm))
    def set_state(self, st): self.vm, self.lg, self.sm = list(st[0]), list(st[1]), list(st[2])
    def _raw(self, ins):
        if ins.kind not in ('label', 'dir'):
            dist = 0; need = 0; who = None; tm = None
            for p in reversed(self.out):
                if dist >= 12: break
                if p.kind in ('label', 'dir'): continue
                d = dist
                if p.kind == 'mfma':
                    if tm is None: tm = dist
                    else: tm += p.passes; d = max(dist, tm - 1)
                k = need_states(p, ins) - d
                if k > need: need = k; who = p
                dist += p.states()
            if need > 0:
                self.nops += need
                self.log.append(f'pad {need}: [{who}] -> [{ins}]')
                self.out.append(Ins(f's_nop {need-1}'))
        self.out.append(ins)
        if ins.kind == 'mfma':
            self.t = max(self.t, self.tm); self.tm = self.t + 4*ins.passes; self.t += 8
        else: self.t += cost(ins)
    def _wait(self, vm=None, lg=None):
        parts = []
        self.shadow = [x for x in self.shadow if x[0] > self.t]
        k = sum(x[1] for x in self.shadow)
        if lg is not None and lg < len(self.lg) and lg < k and self.dummy:
            for _ in range(k - lg):
                di = Ins(self.dummy); di.defs = set(); self._raw(di); self.lg.append(di); lg += 1; self.ndummy += 1
        if vm is not None and vm < len(self.vm):
            vm = min(vm, 63); parts.append(f'vmcnt({vm})'); self.vm = self.vm[len(self.vm)-vm:] if vm else []
        if lg is not None and (lg < len(self.lg) or (lg == 0 and self.sm)):
            lg = min(lg, 15); parts.append(f'lgkmcnt({lg})'); self.lg = self.lg[len(self.lg)-lg:] if lg else []
            if lg == 0: self.sm = []
        if parts:
            self.nwait += 1
            self._raw(Ins('s_waitcnt ' + ' '.join(parts)))
    def wait_tags(self, tags):
        vm = lg = None
        for i, o in enumerate(self.vm):
            if o.tag in tags: vm = len(self.vm) - 1 - i
        for i, o in enumerate(self.lg):
            if o.tag in tags: lg = len(self.lg) - 1 - i
        self._wait(vm, lg)
    def wait_all(self): self._wait(0, 0)
    def needs(self, ins):
        touch = ins.uses | ins.defs
        vm = lg = None
        for i, o in enumerate(self.vm):
            if (o.defs & touch) or (o.tag is not None and o.tag in ins.waitfor): vm = len(self.vm) - 1 - i
        for i, o in enumerate(self.lg):
            if (o.defs & touch) or (o.tag is not None and o.tag in ins.waitfor): lg = len(self.lg) - 1 - i
        for o in self.sm:
            if (o.defs & touch) and o.note != 'stamp': lg = 0
        return vm, lg
    def emit(self, x):
        if isinstance(x, str): x = L(x)
        if isinstance(x, (list, tuple)):
            for k, i in enumerate(x):
                self.emit(i)
                if isinstance(i, Ins) and i.note == 'gap':
                    grp = []
                    for y in x[k+1:]:
                        grp.append(y)
                        if y.note == 'gap': break
                    vm = lg = None
                    for y in grp:
                        v, l = self.needs(y)
                        if v is not None: vm = v if vm is None else min(vm, v)
                        if l is not None: lg = l if lg is None else min(lg, l)
                    self._wait(vm, lg)
            return
        ins = x
        if ins.mn == 's_waitcnt':
            m = re.search(r'vmcnt\((\d+)\)', ins.text); m2 = re.search(r'lgkmcnt\((\d+)\)', ins.text)
            self._wait(int(m.group(1)) if m else None, int(m2.group(1)) if m2 else None)
            return
        self._wait(*self.needs(ins))
        self._raw(ins)
        if ins.kind == 'vmem': self.vm.append(ins)
        elif ins.kind == 'ds': self.lg.append(ins)
        elif ins.kind == 'smem' and ins.note == 'async': self.shadow.append((self.t + self.shadow_len, 2 if 'load_dwordx' in ins.mn else 1))
        elif ins.kind == 'smem' and ins.note != 'stamp': self.sm.append(ins)

def ismem(i): return i.kind in ('ds', 'vmem')
def cost(ins):
    k = ins.kind
    if k in ('label', 'dir'): return 0
    if k == 'ds':
        if 'write' in ins.mn: return 20 if 'b128' in ins.mn else (12 if 'b64' in ins.mn else 8)
        return 4
    if k == 'trans': return 8
    if k == 'vmem': return (20 if 'x4' in ins.mn else 12) if 'store' in ins.mn else 8
    if k == 'mfma': return 4 * ins.passes
    if ins.mn == 's_barrier': return 8
    if ins.mn == 's_nop': return 4 * ins.states()
    return 4

def ldst(i):
    if i.kind == 'vmem': return 32 if ' lds' in i.text else 0
    if i.kind != 'ds': return 0
    if 'write' in i.mn: return 52 if 'b128' in i.mn else 24
    if 'u16' in i.mn: return 32
    return 16 if ('b128' in i.mn or 'read2' in i.mn) else 8
LDSLIM = [56]

class Fill:
    def __init__(self, items, g0, g1, prio=1, hard=False, name=None, ahead=0, slack=None, burst=False, after=(), asap=False, carry=False):
        self.items = [i if isinstance(i, list) else [i] for i in items if not (isinstance(i, list) and not i)]
        self.g0 = g0; self.g1 = g1; self.prio = prio; self.hard = hard; self.k = 0; self.name = name
        self.ahead = ahead; self.slack = slack; self.burst = burst; self.after = list(after); self.asap = asap; self.carry = carry
        w = [max(1, sum(cost(x) for x in it)) for it in self.items]
        tot = max(sum(w) - (w[-1] if w else 0), 1); acc = 0; self.want = []
        for c in w:
            self.want.append(g0 + (g1 - g0) * acc / tot); acc += c
        self.lo = [g0] * len(self.items)
        self.dl = [g1 if asap else 10**9] * len(self.items)
        if asap: self.want = [g0] * len(self.items)
        self.placed = []

class Pipe:
    def __init__(self, sv=80, st=350, win=450): self.sv = sv; self.st = st; self.win = win; self.busy = 0; self.hw = win + 300
    def service(self, i):
        if 'store' in i.mn: return self.st if ('x4' in i.mn and 'sc1' in i.text) else 120
        if i.lines is not None: return max(64, self.sv * i.lines // 8)
        return self.sv

def interleave(backbone, fills, pinned=None, slack=3.0, vgap=66, dlat=None, report=None, pipe=None, quiet=()):
    pinned = pinned or {}
    out = []; est = 0; lastv = -10**9; ready = {}; over = []; idle = 0; blog = []; pipe_extra = 2; stall = []; lb = 0
    N = len(backbone)
    for g, m in enumerate(backbone):
        span = 4 * m.passes
        dl = dlat if dlat is not None else (3 if m.passes == 8 else 5)
        hz = 3 if m.passes == 8 else 4
        for r in m.defs: ready[r] = g + hz
        mem = list(pinned.get(g, [])); alu = []; front = []
        budget = span - 8 - sum(cost(x) for x in mem)
        nxt = backbone[g+1] if g + 1 < N else None
        freeS = not (nxt is not None and any(ready.get(r, -99) > g - 6 and r not in nxt.srcc for r in nxt.srcab))
        for x in mem:
            for r in x.defs: ready[r] = g + dl
        last = g == N - 1
        lb = max(0, lb - span) + sum(ldst(x) for x in mem)
        usedalu = set()
        while True:
            best = None
            for f in fills:
                if f.k >= len(f.items): continue
                it = f.items[f.k]; late = g - f.want[f.k]
                if any(d.k < len(d.items) or (d.placed and d.placed[-1] >= g and not last) for d in f.after): continue
                fin = last and not f.carry
                if not fin and (g < f.lo[f.k] or late < -f.ahead): continue
                sl = f.slack if f.slack is not None else slack
                force = fin or (late >= 0 and f.hard) or (late >= sl and not f.asap) or g >= f.dl[f.k]
                real = [x for x in it if x.kind not in ('label', 'dir')]
                memitem = any(ismem(x) for x in real) and all(ismem(x) or x.kind in ('salu', 'smem') for x in real) and not any(x.mn == 's_barrier' or x.mn.startswith('s_cbranch') for x in real)
                sonly = len(real) == 1 and real[0].kind in ('salu', 'smem') and real[0].mn not in ('s_barrier', 's_nop') and not real[0].mn.startswith('s_cbranch')
                if any(ready.get(r, -99) > g for x in real for r in (x.uses | x.defs)) and not (fin or (late >= sl + 3 and not f.asap) or (f.hard and late >= 0)): continue
                lt = sum(ldst(x) for x in real if x.kind == 'ds')
                if lt and lb + lt > max(LDSLIM[0], lt + 8) and not force: continue
                c = sum(cost(x) for x in real); where = 'alu'
                if sonly and freeS and id(f) not in usedalu and not any(x.src is f for x in mem): c = 0; where = 'front'
                elif memitem:
                    if id(f) in usedalu:
                        if not force: continue
                        c += 8
                    else: where = 'mem'
                    if any(x.kind == 'vmem' for x in real) and not force:
                        if f.asap:
                            if pipe.busy > pipe.win or any(x.kind == 'vmem' for x in mem): continue
                            if any(q >= g and pipe.busy + pipe.sv + qx > (q - g)*(span + 2) for q, qx in quiet): continue
                        elif not f.burst and est - lastv < vgap: continue
                else:
                    c += 8 * sum(1 for a_, b_ in zip([None] + real, real) if ismem(b_) and not (a_ is not None and ismem(a_)))
                starve = f.asap and pipe.busy < pipe.win // 2 and c <= budget + 8
                if c > budget and not force and not starve and not (not mem and not alu and late >= 0): continue
                key = (0 if (force and (f.hard or c <= budget)) else 1, 0 if c <= budget else 1, -f.prio, -late)
                if best is None or key < best[0]: best = (key, f, it, c, where)
            if best is None: break
            _, f, it, c, where = best
            for x in it: x.src = f
            if where == 'front': front += it; freeS = False
            elif where == 'mem': mem += it
            else: alu += it; usedalu.add(id(f))
            for x in it:
                lb += ldst(x) if x.kind == 'ds' else 0
                if x.kind == 'ds':
                    for r in x.defs: ready[r] = g + dl
                elif x.kind == 'vmem':
                    lastv = est
                    if pipe: pipe.busy += pipe.service(x)
            budget -= c; f.k += 1; f.placed.append(g)
        m.note = 'gap'
        out += [m] + front + mem + alu
        est += span + max(0, -budget); over.append(max(0, -budget))
        if pipe:
            if pipe.busy > pipe.hw: stall.append(pipe.busy - pipe.hw); pipe.busy = pipe.hw
            else: stall.append(0)
            pipe.busy -= span + max(0, -budget) + pipe_extra
            if pipe.busy < 0: idle -= pipe.busy; pipe.busy = 0
            blog.append(pipe.busy)
    for n, f in enumerate(fills):
        assert f.k == len(f.items) or f.carry, (f.name, f.k)
        f.rest = f.items[f.k:]
        for it in f.items[:f.k]:
            for x in it: x.src = f.name or f'F{n}'
    if report:
        AUDIT.append(f'sched {report}: gaps {N} est {est} over ' + ' '.join(str(sum(over[k:k+10])) for k in range(0, N, 10)))
        if pipe: AUDIT.append(f'sched {report} pipe: idle {idle} stall {sum(stall)}: ' + ' '.join(str(sum(stall[k:k+10])) for k in range(0, N, 10)))
        for n, f in enumerate(fills):
            if f.placed: AUDIT.append(f'   place {f.name or "F%d" % n}: [{f.g0},{f.g1}] -> {f.placed[0]}..{f.placed[-1]} n={len(f.placed)}')
    audit(out)
    return out

AUDIT = []
def audit(seq):
    last = {}; own = {}; cross = {}
    g = -1
    for i in seq:
        if i.kind == 'mfma' and i.src is None: g += 1
        me = i.src or 'bb'
        for r in (i.uses | i.xuses) - {'exec'}:
            if r in last and last[r][0] != me:
                if (me, r) in own and me != 'bb' and last[r][0] != 'bb' and 'permlane32' not in i.mn:
                    AUDIT.append(f'CONFLICT gap {g}: {me} [{i}] reads {r} last written by {last[r][0]} [{last[r][1]}]')
                cross.setdefault((last[r][0], me), {}).setdefault(r, g)
        for r in i.defs | i.xdefs:
            last[r] = (me, i); own[(me, r)] = i
    def fmt(d):
        return ' '.join((f'{r[0]}{r[1]}' if isinstance(r, tuple) else r) + f'@{g}' for r, g in sorted(d.items(), key=str))
    for (a, b), d in cross.items():
        AUDIT.append(f'flow {a} -> {b}: {fmt(d)}')

CLANG = 'clang'; OBJDUMP = 'llvm-objdump'
def measure_sizes(ins_list):
    real = [i for i in ins_list if i.kind not in ('label', 'dir')]
    txt = '.amdgcn_target "amdgcn-amd-amdhsa--gfx950"\n.text\n' + '\n'.join(
        (i.text if not (i.mn.startswith('s_cbranch') or i.mn == 's_branch') else 's_nop 0') for i in real) + '\n'
    with tempfile.TemporaryDirectory() as td:
        open(td + '/a.s', 'w').write(txt)
        r = subprocess.run([CLANG, '-x', 'assembler', '-target', 'amdgcn-amd-amdhsa', '-mcpu=gfx950', '-c', td + '/a.s', '-o', td + '/a.o'], capture_output=True, text=True)
        if r.returncode: raise RuntimeError(r.stderr[:3000])
        o = subprocess.run([OBJDUMP, '-d', td + '/a.o'], capture_output=True, text=True).stdout
    sz = [len(m.group(1).split()) * 4 for m in re.finditer(r'// [0-9A-F]+: ([0-9A-F ]+)$', o, re.M)]
    assert len(sz) == len(real), (len(sz), len(real))
    for i, s in zip(real, sz): i.size = s

NOPROMO = ('v_readfirstlane', 'v_accvgpr', 'v_permlane', 'v_dot2c', 'v_nop')
def promotable(i):
    return i.kind in ('valu', 'trans') and i.size == 4 and not any(i.mn.startswith(p) for p in NOPROMO) and not re.search(r'_(e32|e64|dpp|sdwa)$', i.mn)

def layout(ins_list, stub_every=4, minrun=6, minrun_m=3, minpages=0, stubs=True):
    measure_sizes(ins_list)
    real_idx = [k for k, i in enumerate(ins_list) if i.kind not in ('label', 'dir')]
    nxt = {a: b for a, b in zip(real_idx, real_idx[1:])}
    out = []; off = 0; page = 0; dostub = stubs; stubs = []; mis = 0
    def stub(p):
        s = Ins(f's_cbranch_execz L_stub{p + stub_every}'); s.size = 4; stubs.append((p, s))
        return [Ins(f'L_stub{p}:'), s]
    for k, i in enumerate(ins_list):
        if i.kind in ('label', 'dir'): out.append(i); continue
        if dostub and off >= page * 4096:
            out += stub(page); off += 4; page += 1
        if i.size == 4 and off % 8 == 0 and k in nxt and ins_list[nxt[k]].size == 8 and promotable(i):
            parts = i.text.split(None, 1); i.text = parts[0] + '_e64 ' + parts[1]; i.size = 8
        if i.size == 8 and off % 8 == 4:
            run = 0; kk = k; hasm = False
            while kk is not None and ins_list[kk].size == 8 and run < 12:
                hasm |= ins_list[kk].kind == 'mfma'; run += 1; kk = nxt.get(kk)
            prevm = out and out[-1].kind == 'mfma'
            if (run >= minrun and not hasm) or (run >= minrun_m and prevm and i.kind in ('valu', 'trans', 'mfma')):
                n = Ins('s_nop 0'); n.size = 4; out.append(n); off += 4
        if i.size == 8 and off % 8 == 4: mis += 1
        out.append(i); off += i.size
    if dostub:
        pos = {id(x): k for k, x in enumerate(out)}
        ksp = [k for k, x in enumerate(out) if x.text == 'L_spare:'][0]
        sp = [p for p, x in stubs if pos[id(x)] > ksp]
        nmain = page - len(sp)
        for p, x in stubs:
            if p in sp: x.text = 's_cbranch_execz L_s0'
            elif p < stub_every: x.text = 's_cbranch_execz L_tdone'
            elif p + stub_every >= nmain: x.text = 's_cbranch_execz L_tdone2'
        for k in range(4):
            out += [Ins(f'.set L_gp{k}, ' + (f'L_stub{4+k}' if 4 + k < nmain else 'L_tdone2'))]
        for k in range(3):
            out += [Ins(f'.set L_s{k+1}, ' + (f'L_stub{sp[k]}' if k < len(sp) else 'L_s0'))]
    return out, page, off, mis

def render(ins_list):
    return '\n'.join((i.text if i.kind in ('label', 'dir') else '    ' + i.text) for i in ins_list) + '\n'
```

```python
from fw import *
from gen import *

ACCK = [128, 96]; ACCH = [144, 112]; ACCS = 160
RING = [40, 44, 48, 52, 56, 60]
RECV = 64
GT = 72
PK = 76
MT = 224; MP = 228
BX = 84
WXK, WXH = 88, 92
vK1, vK3, vI2 = 'v7', 'v8', 'v9'
vST = 10
vTR, vTR2, vEW, vER, vHX, vHY, vSR = 'v12', 'v13', 'v14', 'v16', 'v17', 'v18', 'v19'
IC2 = 20
M32 = 'v_mfma_f32_32x32x16_bf16'; M16 = 'v_mfma_f32_16x16x32_bf16'
def r16(b): return f'v[{b}:{b+15}]'
def w2reg(ct, ks):
    k = ct*12 + ks
    if k < 16: b = 176 + 4*k; return f'v[{b}:{b+3}]'
    if k < 20: b = 240 + 4*(k - 16); return f'a[{b}:{b+3}]'
    if k < 24: b = [20, 24, 32, 36][k - 20]; return f'v[{b}:{b+3}]'
    b = 4*(k - 24) if k < 36 else 96 + 4*(k - 36); return f'a[{b}:{b+3}]'
def tokreg(stage, ks):
    if stage in (0, 3): b = 48 + 4*ks; return f'a[{b}:{b+3}]'
    if stage == 1: b = 192 + 4*ks; return f'a[{b}:{b+3}]'
    b = 128 + 4*ks; return f'v[{b}:{b+3}]'
L_SA = 40960; L_SB = 147456; RES = 240
CG = [8, 9, 10, 11, 16, 17, 18, 19]; CI = [116, 117, 118, 119, 124, 125, 126, 127]

def g1_pre(g):
    sc = L(f'''
    s_and_b32 s33, s3, 1
    s_lshr_b32 s32, s3, 1
    s_lshl_b32 s37, {sR}, 14
    s_add_u32 s37, s37, {WS_ST2}
    s_and_b32 s58, {sSIG}, 3
    s_lshl_b32 s41, s58, 2
    s_lshl_b32 s58, s58, 8
    s_lshl_b32 s59, s33, 7
    s_add_u32 s38, s58, s59
    s_lshr_b32 s58, {sSIG}, 2
    s_lshl_b32 s59, s58, 7
    s_add_u32 s41, s41, s59
    s_lshl_b32 s58, s58, {g.o('stsh', 5)}
    s_add_u32 s38, s38, s58
    s_add_u32 s38, s38, s37
    s_lshl_b32 s58, {sR}, 9
    s_add_u32 s41, s41, s58
    s_add_u32 s41, s41, {WS_FLH}
    s_mul_i32 s40, {sR}, 98304
    s_mul_i32 s58, {sSIG}, 3072
    s_add_u32 s40, s40, s58
    s_add_u32 s40, s40, {WS_HH}
    s_mov_b32 s42, 0x01000100
    s_mov_b32 s43, 0x03020302
    s_lshr_b32 s34, {sSIG}, 3
    s_lshl_b32 s34, s34, 2
    s_and_b32 s58, {sSIG}, 3
    s_add_u32 s34, s34, s58
    s_mov_b32 s35, {sR}
    s_bfe_u32 s36, {sSIG}, 0x10002
    s_lshl_b32 s39, s35, 2
    s_add_u32 s39, s39, s3
    s_lshl_b32 s39, s39, 7
    s_add_u32 s39, s39, {WS_FLH}
    s_mul_i32 s44, s34, {5*49152}
    s_mul_i32 s58, s3, 12288
    s_add_u32 s44, s44, s58
    s_add_u32 s44, s44, {WS_W2P}
    s_lshl_b32 s45, s35, 1
    s_add_u32 s45, s45, s36
    s_mul_i32 s45, s45, 49152
    s_add_u32 s45, s45, s58
    s_add_u32 s45, s45, {WS_HH}
    s_mul_i32 s58, s32, 3
    s_mul_i32 s59, {sSIG}, 6
    s_add_u32 s58, s58, s59
    s_lshl_b32 s58, s58, 10
    s_add_u32 s49, s58, {WS_WX + 2048}
    s_lshl_b32 s59, s33, 10
    s_add_u32 s77, s58, s59
    s_add_u32 s77, s77, {WS_WX}
    s_mov_b32 s8, {sN}
    s_mov_b32 s9, {sN}
    v_bfe_u32 v12, v2, 2, 2
    v_lshrrev_b32 v7, 5, v2
    v_lshl_add_u32 v8, v7, 3, v12
    v_lshrrev_b32 v12, 1, v12
    v_lshl_or_b32 v12, v7, 1, v12
    v_bfe_u32 v7, v2, 4, 1
    v_bfe_u32 v10, v2, 1, 1
    v_lshl_or_b32 v10, v7, 1, v10
    v_xor_b32 v12, v12, v10
    v_lshlrev_b32 v12, 4, v12
    v_lshl_add_u32 v12, v8, 6, v12
    v_and_b32 v10, 1, v2
    v_lshl_add_u32 v12, v10, 3, v12
    s_mul_i32 s58, s33, 20480
    v_add_u32 v12, s58, v12
    v_and_b32 v0, 7, v2
    v_mul_u32_u24 v0, 20, v0
    v_lshrrev_b32 v10, 3, v2
    v_add_lshl_u32 v0, v0, v10, 2
    v_and_or_b32 v0, v2, 3, v0
    v_bfe_u32 v30, v2, 1, 3
    v_mul_u32_u24 v8, 20, v30
    v_lshrrev_b32 v10, 4, v2
    v_add_lshl_u32 v8, v8, v10, 2
    v_lshlrev_b32 v10, 1, v2
    v_xor_b32 v30, v30, v10
    v_and_or_b32 v30, v30, 3, v8
    s_lshl_b32 s58, {sSIG}, 1
    s_add_u32 s58, s58, s33
    s_lshr_b32 s59, s58, 3
    s_and_b32 s58, s58, 7
    s_lshl_b32 s58, s58, 1
    ''' + ''.join(f'''    v_bfe_u32 v10, {r}, 1, 1
    v_lshrrev_b32 v8, 2, {r}
    v_and_or_b32 v10, v8, 2, v10
    v_xor_b32 v10, s59, v10
    v_lshl_add_u32 v10, v10, 4, s58
    v_lshl_add_u32 {r}, {r}, 6, v10
    ''' for r in ('v0', 'v30')))
    ve = L(f'''
    v_add_u32 v13, {L_SLOT[2]}, v12
    s_mul_i32 s58, s3, 6144
    s_add_u32 s58, s58, {L_EX}
    v_add_u32 v14, s58, v3
    s_xor_b32 s59, s3, 1
    s_mul_i32 s59, s59, 6144
    s_add_u32 s59, s59, {L_EX}
    v_add_u32 v16, s59, v3
    v_mul_u32_u24 v17, 49152, v7
    v_and_b32 v18, 15, v2
    v_lshl_add_u32 v18, v18, 4, v17
    v_lshrrev_b32 v19, 5, v2
    v_lshl_add_u32 v17, v19, 8, v18
    s_lshl_b32 s58, s3, 9
    v_add_u32 v17, s58, v17
    s_lshl_b32 s58, s3, 8
    s_add_u32 s58, s58, 2048
    v_add_u32 v18, s58, v18
    v_mul_u32_u24 v19, 0x7f, v19
    v_lshl_or_b32 v18, v19, 24, v18
    v_and_b32 v19, 7, v2
    v_lshlrev_b32 v19, 7, v19
    v_bfe_u32 v10, v2, 3, 2
    v_lshl_add_u32 v19, v10, {g.o('stsh', 5)}, v19
    v_lshrrev_b32 v8, 4, v2
    v_min_u32 v8, 2, v8
    s_mul_i32 s58, s3, 3
    v_add_u32 v8, s58, v8
    v_min_u32 v8, 9, v8
    v_xor_b32 v10, s36, v8
    v_lshrrev_b32 v7, 2, v2
    v_xor_b32 v7, v7, v2
    v_bfe_u32 v7, v7, 1, 1
    v_lshl_or_b32 v10, v10, 1, v7
    v_and_b32 v10, 3, v10
    v_bfe_u32 v7, v2, 2, 2
    v_lshl_add_u32 v8, v8, 3, v7
    v_lshl_add_u32 v8, v8, 2, v10
    v_and_b32 v10, 1, v2
    v_lshl_add_u32 v8, v8, 1, v10
    s_mul_i32 s58, s34, 5120
    v_lshl_add_u32 v31, v8, 3, s58
    ''')
    return sc, ve

def gemms(g, S):
    o = g.o
    S.emit(g.barrier(['tile0']))
    S.emit(g.stamp('g1'))
    def stats_step(kind):
        it = []
        if kind == 1: it += [L(f'v_add_u32 v0, {L_SLOT[1]}, v0'), L(f'v_add_u32 v30, {L_SLOT[1]}, v30')]
        if kind == 2:
            it += [L(f's_mul_i32 s72, s32, {L_SLOT[3] - L_SLOT[2]}'), L(f's_add_u32 s72, s72, {L_SLOT[2] - L_SLOT[1]}'), L('v_add_u32 v0, s72, v0'), L('v_add_u32 v30, s72, v30')]
            it += [L('s_lshl_b32 s72, s32, 12'), L('s_add_u32 s38, s38, s72')]
        dsr = lambda d, a, off: L(f'ds_read_u16_d16_hi v{d}, {a} offset:{off}')
        def pair(p, r):
            if p == 0: return [dsr(r, 'v0', 0), dsr(r + 1, 'v0', 2048)]
            if p == 4: return [dsr(r, 'v30', 4096), dsr(r + 1, f'v{r+1}', 4096)]
            return [dsr(r, f'v{r+1}', 0), dsr(r + 1, f'v{r+1}', 2048)]
        adr = lambda p, r: L(f'v_xor_b32 v{r+1}, {64*p + 16*(p >> 1)}, v0') if p < 4 else L(f'v_xor_b32 v{r+1}, 64, v30')
        def use(p, r):
            o_ = []
            for h in range(2):
                x = f'v{r+h}'; ic = IC2 + (p + 4*h if p < 4 else 8 + h)
                if p == 0 and h == 0: o_ += [L(f'v_mul_f32 v32, {x}, v{ic}'), L('v_mul_f32 v33, v32, v32')]
                else: o_ += [L(f'v_mul_f32 {x}, {x}, v{ic}'), L(f'v_add_f32 v32, v32, {x}'), L(f'v_fmac_f32 v33, {x}, {x}')]
            return o_
        it += [adr(1, 36), adr(2, 38)] + pair(0, 34) + pair(1, 36) + pair(2, 38)
        it += use(0, 34) + [adr(3, 34)] + pair(3, 34) + use(1, 36) + [adr(4, 36)] + pair(4, 36) + use(2, 38) + use(3, 34) + use(4, 36)
        for k in ('row_ror:8 row_mask:0xf', 'row_ror:4 row_mask:0xf', 'row_ror:2 row_mask:0xf', 'row_ror:1 row_mask:0xf', 'row_bcast:15 row_mask:0xa', 'row_bcast:31 row_mask:0xc'):
            it.append(L(f'v_add_f32_dpp v32, v32, v32 {k} bank_mask:0xf\nv_add_f32_dpp v33, v33, v33 {k} bank_mask:0xf'))
        fs = g.finish_stats('v32', 'v33', 'v32')
        it += [[i] for i in fs[:-1] + L(f's_mov_b32 s71, {sN}') + fs[-1:]]
        it.append(L('v_readlane_b32 s70, v32, 63'))
        at = f's_atomic_swap_x2 s[70:71], s[4:5], s38 offset:{4096*kind}'
        it.append(L(at) if kind == 2 else L(f's_cmp_lg_u32 s32, 0\ns_cbranch_scc1 L_nost{kind}\n{at}\nL_nost{kind}:'))
        return it
    wxld = L(f'buffer_load_dwordx4 v[{WXK}:{WXK+3}], v3, {sWS}, s77 offen sc1\nbuffer_load_dwordx4 v[{WXH}:{WXH+3}], v5, {sWS}, s49 offen sc1')
    wxfix = [g.check(wxld, [f'v{WXK+3}', f'v{WXH+3}'], f'v{MT}')] + [[i] for i in L(f'''
    v_mov_b32 v86, 0
    v_mov_b32 v87, 0
    v_mov_b32 v{WXK+3}, 0
    v_mov_b32 v{WXH+3}, 0
    v_bfe_i32 v{MT}, v2, 3, 1
    v_bfi_b32 v{WXH}, v{MT}, 0, v{WXH}
    v_bfi_b32 v{WXH+1}, v{MT}, 0, v{WXH+1}
    ''')]
    def w2_loads(k0, k1):
        items = []
        for k in range(k0, k1):
            ct, ks = divmod(k, 12); it = []
            if ks % 4 == 0 or k == k0: items.append(L(f's_add_u32 s67, s44, {ct*49152 + 4096*(ks//4)}'))
            it += L(f'buffer_load_dwordx4 {w2reg(ct, ks)}, v3, {sWS}, s67 offen offset:{1024*(ks%4)} sc1')
            items.append(it)
        return items
    def stage(ks0, n, base, pitch):
        it = [L(f's_mul_i32 s73, s3, {pitch}')]
        for i in range(n):
            x = L(f'buffer_load_dwordx4 v3, {sWS}, s67 offen offset:{1024*(i%4)} sc1 lds', tag='stg')
            if i % 4 == 0: it.append(L(f's_add_u32 s67, s44, {2*49152 + 1024*(ks0 + i)}')); it.append(L(f's_add_u32 m0, s73, {base + 1024*i}'))
            it.append(x)
        return it
    stageB = stage(0, 3, L_SB, 3072); stageA = stage(3, 9, L_SA, 9216)
    unstage = [[i] for i in L(f'''
    s_mul_i32 s72, s3, 3072
    s_add_u32 s72, s72, {L_SB}
    v_add_u32 v0, s72, v3
    s_mul_i32 s72, s3, 9216
    s_add_u32 s72, s72, {L_SA}
    v_add_u32 v30, s72, v3
    ''')] + [L(f'ds_read_b128 {w2reg(2, i)}, {"v0" if i < 3 else "v30"} offset:{1024*(i if i < 3 else i - 3)}', waitfor=['stg']) for i in range(12)]
    def resread(j):
        d = RES + 4*j
        if j == 2: return [L(f'v_add_u32 v{d+2}, {L_SLOT[2]}, v31'), L(f'ds_read_b64_tr_b16 v[{d}:{d+1}], v{d+2}'), L(f'ds_read_b64_tr_b16 v[{d+2}:{d+3}], v{d+2} offset:256')]
        return [L(f'ds_read_b64_tr_b16 v[{d+2*e}:{d+2*e+1}], v31 offset:{L_SLOT[j] + 256*e}') for e in range(2)]
    def tok_loads(stage):
        items = []
        for ks in range(12):
            it = []
            if ks % 4 == 0: items.append(L(f's_add_u32 s68, s45, {stage*32*49152 + 1024*ks}'))
            it += L(f'buffer_load_dwordx4 {tokreg(stage, ks)}, v3, {sWS}, s68 offen offset:{1024*(ks%4)} sc1')
            items.append(it)
        return items
    def flagH(stage, waits=()):
        return g.barrier([f'hh{stage}'] + list(waits)) + L(f's_cmp_lg_u32 s3, {stage}\ns_cbranch_scc1 L_nofh{stage}\ns_atomic_swap {sN}, s[4:5], s41 offset:{stage*32768}\nL_nofh{stage}:')
    PH = [g.spoll(16 + 4*st, 's39', st*32768) for st in range(4)]
    w2p_pre = L(f'''
    s_mul_i32 s58, s34, 5
    s_add_u32 s59, s58, 4
    s_lshr_b32 s58, s58, 2
    s_lshr_b32 s59, s59, 2
    s_sub_u32 s59, s59, s58
    s_mul_i32 s46, s3, 30
    s_add_u32 s58, s58, s46
    v_and_b32 v236, 3, v2
    v_min_u32 v236, 2, v236
    v_mul_u32_u24 v236, 10, v236
    v_bfe_u32 v{MT+1}, v2, 2, 1
    v_mad_u32_u24 v236, v{MT+1}, s59, v236
    v_add_u32 v236, s58, v236
    v_lshrrev_b32 v236, 1, v236
    v_lshlrev_b32 v236, 7, v236
    v_add_u32 v236, {WS_FLW2}, v236
    ''')
    w2p = L(f'buffer_load_dwordx4 v[{MP}:{MP+3}], v236, {sWS}, 0 offen sc1')
    w2chk = g.check(w2p, [f'v{MP+k}' for k in range(4)], f'v{MT+1}')
    cst_pre = L(f'''
    s_mul_i32 s58, s34, 80
    s_mul_i32 s59, s3, 24
    s_add_u32 s58, s58, s59
    v_and_b32 v{MT+3}, 31, v2
    v_add_u32 v{MT+3}, s58, v{MT+3}
    v_min_u32 v{MT+3}, 639, v{MT+3}
    v_lshrrev_b32 v{MT+2}, 5, v2
    v_mul_u32_u24 v{MT+2}, 3840, v{MT+2}
    v_add_lshl_u32 v{MT+3}, v{MT+3}, v{MT+2}, 3
    s_mov_b32 s64, {WS_MODP + 4*640*8}
    s_mov_b32 s65, {WS_MODP + 5*640*8}
    ''')
    cstld = L(f'buffer_load_dwordx2 v[{MP+4}:{MP+5}], v{MT+3}, {sWS}, s64 offen sc1\nbuffer_load_dwordx2 v[{MP+6}:{MP+7}], v{MT+3}, {sWS}, s65 offen sc1')
    a_, b_, c_, d_ = (f'v{MP+4+k}' for k in range(4))
    cstfin = [g.check(cstld, [b_, d_], f'v{MT+2}')] + [[i] for i in L(f'''
    v_mov_b32 {b_}, {a_}
    v_mov_b32 {d_}, {c_}
    s_lshl_b32 s58, s3, 8
    s_add_u32 s58, s58, {L_CST}
    v_permlane32_swap_b32 {a_}, {b_}
    v_permlane32_swap_b32 {c_}, {d_}
    v_add_f32 {a_}, {a_}, {b_}
    v_add_f32 {c_}, {c_}, {d_}
    v_cvt_pk_bf16_f32 {a_}, 0, {a_}
    v_cvt_pk_bf16_f32 {c_}, 0, {c_}
    v_add_f32 {a_}, 1.0, {a_}
    v_cvt_pk_bf16_f32 {a_}, 0, {a_}
    v_mov_b32 {b_}, 0x21800000
    ''')] + [L(f'''
    v_cmp_eq_f32 vcc, 0, {a_}
    v_and_b32 {d_}, 31, v2
    v_lshl_add_u32 {d_}, {d_}, 2, s58
    v_cndmask_b32 {a_}, {a_}, {b_}, vcc
    ''')] + [[i] for i in L(f'''
    v_rcp_f32 {a_}, {a_}
    ds_write_b32 {d_}, {c_}
    ds_write_b32 {d_}, {a_} offset:128
    ''')]
    def sendS(j): return [L(f'ds_write_b128 {vEW}, v[{ACCS+4*q}:{ACCS+4*q+3}] offset:{1024*q}', tag=f'snd{j}') for q in range(4)]
    def sendH(j): return [L(f'ds_write_b128 {vEW}, v[{ACCH[j&1]+4+8*q}:{ACCH[j&1]+7+8*q}] offset:{4096+1024*q}', tag=f'snd{j}') for q in range(2)]
    def recv(j):
        dst = [ACCK[j&1] + 4*q for q in range(4)] + [ACCH[j&1], ACCH[j&1] + 8]
        rd = lambda q: L(f'ds_read_b128 v[{RECV+4*(q%5)}:{RECV+4*(q%5)+3}], {vER} offset:{1024*q}')
        it = [rd(q) for q in range(5)]
        for q in range(6):
            it += [L(f'v_add_f32 v{dst[q]+b}, v{dst[q]+b}, v{RECV+4*(q%5)+b}') for b in range(4)]
            if q == 0: it.append(rd(5))
        return it
    def statld(j): return L(f's_add_u32 s63, s37, {4096*j}\nbuffer_load_dwordx2 v[{vST}:{vST+1}], {vSR}, {sWS}, s63 offen sc1')
    def statuse(j, ld):
        return [g.check(ld, [f'v{vST+1}'], None)] + [[i] for i in L(f'''
        v_and_b32 {vI2}, 0xffff0000, v{vST}
        v_rcp_f32 {vK1}, {vI2}
        v_perm_b32 v{BX}, v{vST}, v{vST}, s42
        v_perm_b32 v{BX+1}, v{vST}, v{vST}, s43
        v_mul_f32 {vI2}, {vI2}, {vI2}
        v_mul_f32 {vK3}, {vK1}, {vK1}
        v_mul_f32 {vK1}, 0xc0135761, {vK1}
        v_mul_f32 {vK3}, 0x3d372713, {vK3}
        v_mul_f32 {vK3}, {vK3}, {vK1}
        ''')]
    def fold(j): return [(r16(ACCK[j&1]), f'v[{WXK}:{WXK+3}]', f'v[{BX}:{BX+3}]', r16(ACCK[j&1])), (r16(ACCH[j&1]), f'v[{WXH}:{WXH+3}]', f'v[{BX}:{BX+3}]', r16(ACCH[j&1]))]
    def gelu(j):
        prs = [(ACCK[j&1] + b, PK + (b >> 1)) for b in range(0, 8, 2)] + [(ACCH[j&1] + b, PK + 4 + (b >> 1)) for b in (0, 2)]
        it = []
        for n, (a, p) in enumerate(prs):
            t0, t1 = GT + 2*(n & 1), GT + 1 + 2*(n & 1)
            it += [[i] for i in L(f'''
            v_mul_f32 v{t0}, v{a}, v{a}
            v_mul_f32 v{t1}, v{a+1}, v{a+1}
            v_fma_f32 v{t0}, v{t0}, {vK3}, {vK1}
            v_fma_f32 v{t1}, v{t1}, {vK3}, {vK1}
            v_mul_f32 v{t0}, v{t0}, v{a}
            v_mul_f32 v{t1}, v{t1}, v{a+1}
            v_exp_f32 v{t0}, v{t0}
            v_mul_f32 v{a}, v{a}, v{a+8}
            v_exp_f32 v{t1}, v{t1}
            v_mul_f32 v{a+1}, v{a+1}, v{a+9}
            v_fma_f32 v{t0}, v{t0}, {vI2}, {vI2}
            v_fma_f32 v{t1}, v{t1}, {vI2}, {vI2}
            v_rcp_f32 v{t0}, v{t0}
            v_rcp_f32 v{t1}, v{t1}
            v_mul_f32 v{a}, v{a}, v{t0}
            v_mul_f32 v{a+1}, v{a+1}, v{t1}
            v_cvt_pk_bf16_f32 v{p}, v{a}, v{a+1}
            ''')]
            if n == 2: it.append(L(f's_add_u32 s69, s40, {j*32*49152}'))
        it.append(L(f'v_permlane32_swap_b32 v{PK+4}, v{PK+6}'))
        it.append(L(f'v_permlane32_swap_b32 v{PK+5}, v{PK+7}'))
        it.append(L(f'buffer_store_dwordx4 v[{PK}:{PK+3}], {vHX}, {sWS}, s69 offen sc1', tag=f'hh{j}'))
        it.append(L(f'buffer_store_dwordx4 v[{PK+4}:{PK+7}], {vHY}, {sWS}, s69 offen sc1', tag=f'hh{j}'))
        return it
    FP = [o('fp0', 18), o('fp1', 18), o('fp2', 18)]
    seq = []; T0 = []; freeat = {}
    for j in range(4):
        order = [(2, 0), (1, 0), (2, 1), (1, 1), (2, 2), (1, 2), (0, 0), (0, 1), (0, 2)]
        for s in range(3, 17): order += [(2, s), (1, s), (0, s)]
        order += [(ro, s) for ro in (0, 1, 2) for s in (17, 18, 19)]
        T0.append(len(seq))
        for n, (ro, s) in enumerate(order):
            if j > 0 and n == FP[j-1]: seq += fold(j - 1)
            d = r16([ACCS, ACCH[j&1], ACCK[j&1]][ro]); a = 12*s + 4*ro
            seq.append((d, f'a[{a}:{a+3}]', ('t', j, s), '0' if s == 0 else d))
            if j == 3: freeat[a] = len(seq) - 1
    T0.append(len(seq))
    B2 = [T0[j+1] - o('b2back', 9) for j in range(4)]
    def tload(f, dst):
        _, j, s = f
        a, base = (vTR2, 0) if j == 2 else (vTR, L_SLOT[j])
        return [Ins(f'ds_read_b64_tr_b16 v[{dst+2*e}:{dst+2*e+1}], {a} offset:{base + 1024*s + 256*e}') for e in range(2)]
    bb, pinned, head = alloc_frags(seq, M32, RING, tload, lead=o('lead1', 9), maxper=2, notbefore=lambda f: B2[f[1]-1] + 1 if f[1] > 0 else -1)
    S.emit(head)
    F = []
    one = lambda items, gp, prio=5, name=None: Fill([items], gp, gp, prio=prio, hard=True, name=name)
    sing = lambda l: [[i] for i in l]
    t0, t1, t2, t3, t4 = T0
    LAT = o('lat', 16)
    use0 = {}
    for k, (D, A, B, C) in enumerate(seq[:t1]): use0[A] = k
    w1r = Fill(g.w1f.rest, 0, 10**9, prio=4, name='w1', asap=True); F.append(w1r)
    for k in range(len(w1r.items) - 1, -1, -1):
        i = w1r.items[k][0]
        w1r.dl[k] = max(0, use0[i.ops[0]] - LAT) if i.kind == 'vmem' else 10**9
        if k + 1 < len(w1r.items): w1r.dl[k] = min(w1r.dl[k], w1r.dl[k+1])
    def dma(j, chk, pre, gchk, dl):
        c = one(g.stamp(f'_{pre}0') + g.check(chk, ['v192'], None) + g.stamp(f'_{pre}1'), gchk, name='dma')
        d = Fill(g.tile_dma(j), gchk, dl, prio=3, name='dma', asap=True, after=[c])
        n = len(d.items)
        for k in range(n): d.dl[k] = dl - (n - 1 - k)*0.6
        F.extend([c, d]); return c, d
    F.append(Fill(stats_step(0), 0, o('st0end', 16), prio=4, ahead=4, name='st0'))
    BE = min(B2[0], o('be', 46))
    c1, d1 = dma(1, g.pB, 'b', o('gchkB', 4), BE - o('lat2', 20)); d1.prio = 5
    pC = g.pollC(2, 'v192')
    fpc = one(pC, o('gpC', 40), name='dma'); fpc.after = [c1]; F.append(fpc)
    gD = o('gstD', 4)
    F.append(Fill(sing(g.epi(3, 's48', 'pD', t=PK)), gD - 3, gD, prio=5, slack=1, name='epiD', burst=True))
    F.append(one(g.flagC(3, 'pD', skip=True), gD + o('gflD', 40)))
    c2, d2 = dma(2, pC, 'c', o('gchkC', 62), B2[1] - o('lat2', 20)); c2.after = [fpc]; d2.after.append(d1)
    gq = o('gq', 20); gx = o('gwx', 30)
    m1 = Fill(sing(cst_pre) + sing(cstld) + sing(w2p_pre) + [w2p], 2, gq, prio=2, ahead=3, name='misc', burst=True); F.append(m1)
    m2 = Fill(sing(wxld), gx, gx + 1, prio=3, slack=1, name='misc', burst=True); F.append(m2)
    mc = Fill(cstfin + [w2chk], o('gcst', 38), o('gcst', 38) + 8, prio=3, ahead=3, slack=1, name='misc', after=[m1]); F.append(mc)
    mf = Fill(wxfix, gx + 22, gx + 24, prio=3, ahead=1, slack=1, name='misc', after=[m2, mc]); F.append(mf); w2c = mc
    F.append(one(g.stamp('_t1w') + g.barrier(['tile1']) + g.stamp('_t1b'), BE))
    for j in range(4): F.append(Fill(resread(j), T0[j] + 30, T0[j] + 32, prio=1, name='res'))
    GE = [o('gelend', 57), o('gelend', 57), o('gelend2', 48)]; gprev = []
    for j in range(3):
        b = T0[j+1]; fp = FP[j]
        F.append(Fill(sendS(j) + sendH(j), b - 5, b + o('sndend', 5), prio=6, hard=True, name='send'))
        b1 = b + o('sndend', 5) + 2
        F.append(one(g.barrier([f'snd{j}'] + (['tile3'] if j == 1 else [])), b1))
        rc = Fill(recv(j), b1 + 1, b + fp - 2, prio=5, slack=1, ahead=3, name='recv', after=gprev); F.append(rc)
        ld = statld(j)
        F.append(one(ld, b + (o('gst0', -8) if j == 0 else o('gst', -8)), name=f'stat{j}'))
        su = statuse(j, ld)
        F.append(Fill([g.stamp(f'_s{j}a') + su[0] + g.stamp(f'_s{j}b')] + su[1:], b + fp - o('sulen', 6), b + fp - 2, prio=5, hard=True, name=f'stat{j}', after=gprev))
        gprev = [Fill(gelu(j), b + fp + 3, b + GE[j], prio=3, ahead=o('gelah', 3), name='gelu', after=[rc], burst=True)]; F += gprev
        if j > 0:
            F.append(one(g.barrier([f'tile{j+1}'] if j == 1 else []), B2[j]))
            F.append(one(flagH(j - 1), b + o('gflH', 30)))
        if j == 1: bt3 = b1
    F.append(one(g.barrier([]), B2[3]))
    F.append(Fill(sendS(3), t4 - 5, t4 - 2, prio=6, hard=True, name='send'))
    F.append(Fill(stats_step(1), BE + 1, t1 + o('st1end', 10), prio=2, ahead=6, name='st1'))
    pD = g.pollC(3, 'v192')
    fpd = one(pD, t1 + o('gpD', 10), name='dma'); fpd.after = [c2]; F.append(fpd)
    c3, d3 = dma(3, pD, 'd', t1 + o('gchkD', 32), bt3 - o('lat2', 20)); c3.after = [fpd]; d3.after.append(d2)
    s2 = Fill(stats_step(2), bt3 + 1, t2 + o('st2end', 30), prio=4, ahead=6, name='st2'); F.append(s2)
    wa = Fill(w2_loads(0, 4) + w2_loads(5, 12) + w2_loads(16, 20), 30, t3, prio=1, name='w2', asap=True, after=[w2c, w1r]); F.append(wa)
    wb = Fill(w2_loads(12, 16) + w2_loads(4, 5) + stageB + stageA, t1, t3 + 4, prio=1, name='w2', asap=True, after=[wa, mf, d3]); F.append(wb)
    nb = len(wb.items) - len(stageA)
    for kk in range(nb, len(wb.items)): wb.lo[kk] = bt3 + 1
    wc = Fill(w2_loads(20, 24), t2, t3 + 6, prio=1, name='w2', asap=True, after=[s2, wb]); F.append(wc)
    F.append(one(PH[0][0], t3 + o('gpH0', -8), name='late'))
    def bind(f):
        for k, it in enumerate(f.items):
            for i in it:
                for r in i.defs:
                    if isinstance(r, tuple) and r[0] == 'a' and r[1] in freeat: f.lo[k] = max(f.lo[k], freeat[r[1]]); f.want[k] = max(f.want[k], f.lo[k])
    fu = Fill(unstage, t3 + 24, t3 + 44, prio=2, name='unstage', after=[s2, wb]); bind(fu); F.append(fu)
    ch0 = one(PH[0][1], t3 + o('late0', 12), name='late'); F.append(ch0)
    f3 = Fill(tok_loads(0) + w2_loads(36, 60), t3, 10**9, prio=2, name='late', asap=True, carry=True, after=[ch0, wc]); bind(f3); F.append(f3)
    for k in range(len(tok_loads(0))): f3.dl[k] = t4 - LAT - (14 - k)*0.6
    sl3 = statld(3); F.append(one(sl3, t4 - 24, name='stat3'))
    su3 = statuse(3, sl3)
    F.append(one(PH[1][0], t4 - o('gpH1', 8)))
    if isinstance(g.stamps, list):
        for nm in g.stamps:
            if nm.startswith('_G'): F.append(one(g.stamp(nm), int(nm[2:]), prio=9))
    S.emit(interleave(bb, F, pinned, report='g1', pipe=g.pipe))
    late_rest = f3.rest
    S.emit(g.stamp('g1end'))
    g2a = L(f'''
    s_mul_i32 s58, s3, 5120
    s_add_u32 s58, s58, {L_PART}
    v_add_u32 v13, s58, v3
    ''')
    g2b = L(f'''
    v_lshrrev_b32 v84, 4, v2
    v_and_b32 v85, 15, v2
    s_mul_i32 s58, s3, 3
    v_min_u32 v86, 2, v84
    v_add_u32 v87, s58, v86
    v_cmp_lt_u32 s[48:49], 9, v87
    v_cmp_eq_u32 s[46:47], 3, v84
    v_min_u32 v87, 9, v87
    s_or_b64 s[48:49], s[48:49], s[46:47]
    v_lshlrev_b32 v88, 9, v87
    v_lshl_add_u32 v12, v85, 4, v88
    v_add_u32 v12, {L_PART}, v12
    s_lshl_b32 s58, s3, 8
    s_add_u32 s58, s58, {L_CST}
    v_lshl_add_u32 v86, v86, 5, s58
    s_lshr_b32 s58, s35, 3
    s_lshl_b32 s58, s58, 8
    s_bfe_u32 s59, s35, 0x20001
    s_lshl_b32 s59, s59, 6
    s_add_u32 s58, s58, s59
    s_and_b32 s59, s35, 1
    s_lshl_b32 s59, s59, 3
    s_add_u32 s58, s58, s59
    s_lshl_b32 s59, s36, 5
    s_add_u32 s58, s58, s59
    v_and_b32 v88, 8, v85
    v_add3_u32 v88, v88, v85, s58
    v_mul_u32_u24 v88, 1280, v88
    v_lshl_add_u32 v88, v87, 4, v88
    s_mul_i32 s58, s34, 160
    v_add_u32 v88, s58, v88
    v_mov_b32 v89, {OOB}
    v_cndmask_b32 v6, v88, v89, s[48:49]
    ds_read_b128 v[8:11], v86
    ds_read_b128 v[16:19], v86 offset:16
    ds_read_b128 v[116:119], v86 offset:128
    ds_read_b128 v[124:127], v86 offset:144
    ''')
    ACC = [40, 60]; FT = 80
    FQ = o('fq', 12)
    bb = []; done = {}
    KM = [0, o('km1', 8), o('km2', 8), o('km3', 8)]
    for st in range(4):
        order = [(ct, ks) for ks in range(KM[st]) for ct in range(5)] + [(ct, ks) for ct in range(5) for ks in range(KM[st], 12)]
        for ct, ks in order:
            d = f'v[{ACC[st&1]+4*ct}:{ACC[st&1]+4*ct+3}]'
            if len(bb) == FQ: bb += [Ins(f'{M32} {x[0]}, {x[1]}, {x[2]}, {x[3]}') for x in fold(3)]
            bb.append(Ins(f'{M16} {d}, {w2reg(ct, ks)}, {tokreg(st, ks)}, {"0" if ks == 0 else d}')); done[st, ct] = len(bb) - 1
    def pwrite(st, ct): return L(f'ds_write_b128 v13, v[{ACC[st&1]+4*ct}:{ACC[st&1]+4*ct+3}] offset:{20480*(st&1) + 1024*ct}', tag=f'pw{st}')
    def final(st, pk=False):
        it = []
        for w in range(4):
            for h in range(2): it.append(L(f'ds_read_b128 v[{FT+8*w+4*h}:{FT+8*w+4*h+3}], v12 offset:{20480*(st&1) + 5120*w + 256*h}'))
        X = RES + 4*st; Y = FT + 32
        if pk:
            P = lambda r: f'v[{r}:{r+1}]'
            U = 40
            pre = []
            for c in range(0, 8, 2):
                pre += [L(f'v_lshlrev_b32 v{U+c}, 16, v{X+(c>>1)}'), L(f'v_and_b32 v{U+c+1}, 0xffff0000, v{X+(c>>1)}'), L(f'v_mul_f32 v{U+c}, v{U+c}, v{CI[c]}'), L(f'v_mul_f32 v{U+c+1}, v{U+c+1}, v{CI[c+1]}')]
            for c in range(0, 8, 2): it.append(L(f'v_pk_add_f32 {P(FT+c)}, {P(FT+c)}, {P(FT+8+c)}'))
            for c in range(0, 8, 2): it.append(L(f'v_pk_add_f32 {P(FT+c)}, {P(FT+c)}, {P(FT+16+c)}'))
            for c in range(0, 8, 2):
                it += [L(f'v_pk_add_f32 {P(FT+c)}, {P(FT+c)}, {P(FT+24+c)}'), L(f'v_pk_fma_f32 {P(FT+c)}, {P(FT+c)}, {P(CG[c])}, {P(U+c)}'), L(f'v_cvt_pk_bf16_f32 v{Y+(c>>1)}, v{FT+c}, v{FT+c+1}')]
            it.append(L(f's_mov_b32 s69, {st*512*1280}\nbuffer_store_dwordx4 v[{Y}:{Y+3}], v6, {sOUT}, s69 offen {["", "sc1", "nt", "sc0 sc1"][o("outf", 0)]}'))
            return pre, it
        for c in range(8):
            it += [L(f'v_add_f32 v{FT+c}, v{FT+c}, v{FT+8+c}'), L(f'v_add_f32 v{FT+16+c}, v{FT+16+c}, v{FT+24+c}')]
        for c in range(8):
            u = f'v_lshlrev_b32 v{FT+8+c}, 16, v{X+(c>>1)}' if c % 2 == 0 else f'v_and_b32 v{FT+8+c}, 0xffff0000, v{X+(c>>1)}'
            it += [L(f'v_add_f32 v{FT+c}, v{FT+c}, v{FT+16+c}'), L(u), L(f'v_mul_f32 v{FT+c}, v{FT+c}, v{CG[c]}'), L(f'v_fmac_f32 v{FT+c}, v{FT+8+c}, v{CI[c]}')]
            if c % 2 == 1: it.append(L(f'v_cvt_pk_bf16_f32 v{Y+(c>>1)}, v{FT+c-1}, v{FT+c}'))
        it.append(L(f's_mov_b32 s69, {st*512*1280}\nbuffer_store_dwordx4 v[{Y}:{Y+3}], v6, {sOUT}, s69 offen {["", "sc1", "nt", "sc0 sc1"][o("outf", 0)]}'))
        return it
    F = []
    S.emit(flat(sendH(3))); S.emit(flat(su3))
    ge3 = o('gel3', 32)
    F.append(one(g.barrier(['snd3']), 0))
    rc = Fill(recv(3), 1, FQ - 2, prio=5, slack=0, name='recv'); F.append(rc)
    g3f = Fill(gelu(3), FQ + 3, ge3, prio=5, slack=0, name='gelu', after=[rc], burst=True); F.append(g3f)
    F.append(one(flagH(2), o('gfl2', 12)))
    F.append(Fill(sing(g2a), 2, 10, prio=4, hard=True, name='g2set'))
    F.append(Fill([g2b[:9]] + sing(g2b[9:]), ge3 + 1, 66, prio=4, slack=0, name='g2set', after=[g3f]))
    use = {}
    for k, i in enumerate(bb):
        for op in i.ops[1:3]: use.setdefault((op, k//60 if op in [tokreg(0, q) for q in range(12)] and k > 100 else 0), k)
    def dls(f, lat, key=0):
        for k in range(len(f.items) - 1, -1, -1):
            i = f.items[k][0]
            f.dl[k] = max(0, use[i.ops[0], key] - lat) if i.kind == 'vmem' else 10**9
            if k + 1 < len(f.items): f.dl[k] = min(f.dl[k], f.dl[k+1])
    L2 = o('lat3', 28)
    flw = Fill(late_rest, 0, 10**9, prio=4, name='late', asap=True); dls(flw, L2); F.append(flw)
    ch1 = one(PH[1][1], o('gcH1', 6), name='h1'); F.append(ch1)
    flr = Fill(tok_loads(1), 0, 10**9, prio=3, name='tok', asap=True, after=[ch1]); dls(flr, L2); F.append(flr)
    lastw = []
    for st in range(4):
        b = 60*st + 2
        for ct in range(5):
            gp = done[st, ct] + 3
            if gp < 242: F.append(one(pwrite(st, ct), gp))
            else: lastw += pwrite(st, ct)
        if st < 3:
            F.append(one(g.barrier([f'pw{st}']), b + 67))
            F.append(Fill(final(st), b + 68, b + (116 if st < 2 else 104), prio=2, ahead=6, name='final'))
    pre3, fin3 = final(3, pk=True)
    F.append(Fill(pre3, 226, 238, prio=1, ahead=20, name='pre3'))
    F.append(one(flagH(3), ge3 + o('gfl3', 44)))
    gp2 = o('gpH2', 44); g2c = o('gcH2', 76)
    F.append(one(PH[2][0], gp2, name='h2'))
    ch2 = one(g.stamp('_h2a') + PH[2][1] + g.stamp('_h2b'), g2c, name='h2'); F.append(ch2)
    h2 = Fill(tok_loads(2), g2c, 10**9, prio=4, name='tok', asap=True, after=[flr, ch2]); dls(h2, L2); F.append(h2)
    gp3 = o('gpH3', 116); g3c = o('gcH3', 146)
    F.append(one(PH[3][0], gp3, name='h3'))
    ch3 = one(g.stamp('_h3a') + PH[3][1] + g.stamp('_h3b'), g3c, name='h3'); F.append(ch3)
    h3 = Fill(tok_loads(3), g3c, 10**9, prio=4, name='tok', asap=True, after=[h2, ch3]); dls(h3, L2, 3); F.append(h3)
    if isinstance(g.stamps, list):
        for nm in g.stamps:
            if nm.startswith('_H'): F.append(one(g.stamp(nm), int(nm[2:]), prio=9))
    S.emit(interleave(bb, F, report='g2', pipe=g.pipe))
    S.emit(g.stamp('g2m'))
    S.emit(lastw); S.emit(g.barrier(['pw3'])); S.emit(flat(fin3))
    S.emit(f's_or_b32 s58, s2, s3\ns_cbranch_scc1 L_noep\ns_atomic_swap {sN}, s[4:5], 0\nL_noep:')
```

```python
import sys
from fw import *

NAME = 'adaLN_cond__ssm_conv_s4__glu_gated_geglu__prompt_kernel'
WS_E = 0; WS_STAT = 0x1000; WS_FLW2 = 0x10000; WS_IC2 = 0x1E000
WS_MODP = 0x20000; WS_WX = 0x40000; WS_FLH = 0x60000; WS_DBG = 0x80000
WS_XT = 0x100000; WS_X1S = 0x400000; WS_W1P = 0x700000; WS_W2P = 0xB20000; WS_HH = 0xD00000
WS_FLA = 0x1300000; WS_FLC = 0x1340000; WS_ST2 = 0x13C0000; WS_SIZE = 0x1400000
FLW_OFF = 0x20000
OOB = 0x7F000000
L_TAB = 0; L_STG = 65536
L_KC = 81920; KC_PITCH = 4736; KC1 = 2236; KCD = 4384
L_LN = 81920 + 4 * KC_PITCH; LNP = 5152
L_VEC = L_LN + 10240
L_H = 122880; H_PITCH = 4608
L_X = L_H + 4 * H_PITCH
L_SLOT = [0, 40960, 81920, 0]
L_EX = 122880
L_CST = 159744
L_RES = 40960; L_PART = 81920
LDS_BYTES = 163840
TP = 272
P2 = 2*1056
sWS, sX, sOUT, sWG, sWU, sWD, sWM = 's[4:7]', 's[8:11]', 's[12:15]', 's[16:19]', 's[20:23]', 's[24:27]', 's[28:31]'
sN, sXC, sJ, sSIG, sR, sBUD = 's50', 's51', 's52', 's53', 's54', 's55'
sCH, sCB4 = 's56', 's57'
BUD = 40000
def cp(l): return [Ins(i.text, tag=i.tag, waitfor=i.waitfor) for i in l]
def flat(items): return [x for it in items for x in (it if isinstance(it, list) else [it])]

class Gen:
    def __init__(self, stop=None, stamps=False, probe=None, **opt):
        self.stop = stop; self.stamps = stamps; self.opt = opt; self.probe = probe
        if probe: self.stamps = [probe]
        self.slow = []; self.npoll = 0; self.stamp_names = []
        if isinstance(self.stamps, list): self.stamp_names = ['start'] + [x for x in self.stamps if x not in ('none', 'start', 'end')]
        self.XP = 16384 + opt.get('xpad', 0); self.TPI = 40960 + opt.get('tpad', 0)
        assert 160*self.XP <= WS_X1S - WS_XT and 64*self.TPI <= WS_W1P - WS_X1S
        self.RA = opt.get('ra', 2); self.FS = opt.get('fs', 32); self.AREP = 256*self.FS
        self.RC = opt.get('rc', 4); self.FC = opt.get('fc', 32); self.CREP = 160*self.FC; self.CSTG = self.RC*self.CREP
        assert 4*self.CSTG <= WS_ST2 - WS_FLC
    def o(self, k, d): return self.opt.get(k, d)
    def stamp(self, name):
        if not self.stamps: return []
        if self.stamps is not True and name not in self.stamps and name not in ('start', 'end'): return []
        if self.stamps is True and name.startswith('_'): return []
        if name not in self.stamp_names: self.stamp_names.append(name)
        k = self.stamp_names.index(name); assert k < 12
        i = Ins(f's_{"memtime" if self.o("cyc", 0) else "memrealtime"} s[{78+2*k}:{79+2*k}]'); i.note = 'stamp'
        return [i]
    def check(self, loads, tagregs, tmp, sleep=4):
        k = self.npoll; self.npoll += 1
        def cmp():
            if len(tagregs) == 1: return L(f'v_cmp_ne_u32 vcc, {sN}, {tagregs[0]}')
            t = list(tagregs)
            o = L(f'v_xor_b32 {tmp}, {t[0]}, {t[1]}')
            for r in t[2:]: o += L(f'v_sad_u32 {tmp}, {t[0]}, {r}, {tmp} clamp')
            return o + L(f'v_sad_u32 {tmp}, {t[0]}, {sN}, {tmp} clamp\nv_cmp_ne_u32 vcc, 0, {tmp}')
        fast = cmp() + L(f's_cbranch_vccnz L_slow{k}\nL_back{k}:')
        if self.o('nocheck', 0) and (sleep == 4 or (sleep == 9 and (self.o('static', 0) or self.o('drop', 0) & 10))) and k >= self.o('nocheck', 0) - 1: fast[-2] = Ins('s_nop 0')
        dd = set()
        for i in loads:
            fast[-2].xuses |= (i.uses - dd); dd |= i.defs
        fast[-2].xdefs = set(r for r in dd if not isv(r)) | {'scc'}
        s = Stream()
        s.emit(f'L_slow{k}:\ns_sub_u32 {sBUD}, {sBUD}, 1\ns_cbranch_scc1 L_giveup{k}\ns_sleep {sleep if sleep != 4 else self.o("slp", 2)}')
        s.emit([Ins(i.text) for i in loads]); s.wait_all(); s.emit(cmp())
        s.emit(f's_cbranch_vccnz L_slow{k}\ns_branch L_back{k}\nL_giveup{k}:\ns_mov_b32 {sBUD}, 0\ns_branch L_back{k}')
        self.slow += s.out
        return fast
    def spoll(self, base, soff, off):
        k = self.npoll; self.npoll += 1
        ld = f's_load_dwordx4 s[{base}:{base+3}], s[4:5], {soff} offset:{off} glc'
        test = lambda lab: f's_cmp_lg_u64 s[{base}:{base+1}], s[8:9]\ns_cbranch_scc1 {lab}\ns_cmp_lg_u64 s[{base+2}:{base+3}], s[8:9]\ns_cbranch_scc1 {lab}'
        issue = L(ld); issue[0].note = 'async'
        fast = L(test(f'L_slow{k}') + f'\nL_back{k}:')
        if self.o('nocheck', 0): fast = L(test(f'L_back{k}') + f'\nL_back{k}:')
        self.slow += L(f'''
        L_again{k}:
        s_sub_u32 {sBUD}, {sBUD}, 1
        s_cbranch_scc1 L_giveup{k}
        {ld}
        L_slow{k}:
        s_waitcnt lgkmcnt(0)
        {test(f'L_again{k}')}
        s_branch L_back{k}
        L_giveup{k}:
        s_mov_b32 {sBUD}, 0
        s_branch L_back{k}
        ''')
        return issue, fast
    def barrier(self, waitfor=None): return [Ins('s_barrier', waitfor=waitfor)]
    def touch(self, pre):
        return L(f'''
        s_mov_b64 exec, 0
        s_cmp_eq_u32 s3, 0
        s_cbranch_scc1 {pre}0
        s_cmp_eq_u32 s3, 1
        s_cbranch_scc1 {pre}1
        s_cmp_eq_u32 s3, 2
        s_cbranch_scc1 {pre}2
        s_branch {pre}3
        ''')
    def prologue(self, S):
        S.emit(self.stamp('start'))
        S.emit(f'''
        s_cmp_ge_u32 s2, 256
        s_cbranch_scc1 L_exit
        s_load_dwordx2 s[8:9], s[0:1], 0
        s_load_dwordx16 s[16:31], s[0:1], 80
        s_load_dwordx16 s[32:47], s[0:1], 8
        v_lshrrev_b32 v1, 6, v0
        s_lshr_b32 {sJ}, s2, 3
        v_and_b32 v2, 63, v0
        v_readfirstlane_b32 s3, v1
        s_lshl_b32 s60, {sJ}, 2
        s_getpc_b64 s[76:77]
        s_add_u32 s60, s60, s3
        s_mul_i32 s60, s60, 384
        s_min_u32 s60, s60, @CODEMAX@
        s_add_u32 s76, s76, s60
        s_addc_u32 s77, s77, 0
        v_min_u32 v4, 2, v2
        v_lshlrev_b32 v4, 7, v4
        ''')
        if self.o('codepf', 2) >= 2: S.emit('global_load_dword v252, v4, s[76:77]' + (' nt' if self.o('codepf', 2) == 3 else ''))
        S.emit(f'''
        v_lshlrev_b32 v3, 4, v2
        s_mov_b32 s10, 2621440
        s_mov_b32 s11, 0x20000
        s_and_b32 s63, s2, 127
        s_mul_i32 s60, s63, 20480
        s_mul_i32 s62, s3, 5120
        s_add_u32 s60, s60, s62
        s_add_u32 s65, s60, 4096
        s_mul_i32 s61, s3, {LNP}
        s_add_u32 s61, s61, {L_LN}
        s_mov_b32 m0, s61
        s_cmp_lt_u32 s2, 128
        s_cselect_b32 s62, 0, {OOB}
        v_or_b32 v125, s62, v3
        s_and_b32 {sXC}, s2, 7
        s_mul_i32 {sCB4}, {sXC}, 20
        s_add_u32 {sCB4}, {sCB4}, {sJ}
        s_lshl_b32 {sCH}, {sCB4}, 2
        s_add_u32 {sCH}, {sCH}, s3
        v_lshrrev_b32 v104, 3, v2
        v_bfe_u32 v105, v2, 4, 1
        v_lshlrev_b32 v105, 1, v105
        v_and_b32 v106, 7, v2
        v_xor_b32 v105, v105, v106
        v_lshlrev_b32 v105, 4, v105
        v_xor_b32 v106, 64, v105
        s_movk_i32 s64, 3072
        v_mad_u32_u24 v107, v104, s64, v105
        v_mad_u32_u24 v108, v104, s64, v106
        s_movk_i32 s64, 7680
        v_mad_u32_u24 v110, v104, s64, v105
        v_mad_u32_u24 v111, v104, s64, v106
        s_lshl_b32 s66, s3, 12
        s_add_u32 s66, s66, {L_STG}
        s_lshr_b32 s71, {sCH}, 1
        s_lshl_b32 s71, s71, 2
        s_min_u32 s71, s71, 1276
        s_mul_i32 s70, {sCH}, 384
        v_mul_u32_u24 v109, 6, v2
        v_and_b32 v109, 0x1fc, v109
        v_add_u32 v109, s70, v109
        s_and_b32 s70, {sXC}, 3
        s_lshl_b32 s70, s70, 2
        s_and_b32 {sSIG}, {sJ}, 3
        s_add_u32 {sSIG}, {sSIG}, s70
        s_lshr_b32 s70, {sXC}, 2
        s_lshl_b32 s70, s70, 3
        s_lshr_b32 {sR}, {sJ}, 2
        s_add_u32 {sR}, {sR}, s70
        s_mov_b32 {sBUD}, {BUD}
        s_cmp_ge_u32 {sJ}, 20
        s_cbranch_scc1 L_sp_pro
        s_waitcnt lgkmcnt(0)
        ''')
        srd = lambda: L(f'''
        s_mov_b64 s[12:13], s[26:27]
        s_mov_b64 s[28:29], s[24:25]
        s_mov_b64 s[48:49], s[22:23]
        s_mov_b64 s[24:25], s[20:21]
        s_mov_b64 s[20:21], s[18:19]
        s_mov_b32 s30, 4915200
        s_mov_b32 s31, s11
        s_mov_b32 s6, {WS_SIZE}
        s_mov_b32 s7, s11
        s_mov_b32 s14, s10
        s_mov_b32 s15, s11
        s_mov_b32 s18, 1966080
        s_mov_b32 s19, s11
        s_mov_b32 s22, s18
        s_mov_b32 s23, s11
        s_mov_b32 s26, s18
        s_mov_b32 s27, s11
        ''')
        pf = lambda: L('global_load_dword v252, v4, s[76:77]') if self.o('codepf', 2) == 1 else []
        S.emit(self.stamp('_karg'))
        S.emit(L('\n'.join(f'buffer_load_dwordx4 v125, {sX}, s60 offen offset:{o} nt lds' for o in (0, 1024, 2048, 3072)), tag='lndma'))
        S.emit('s_add_u32 m0, s61, 4096\ns_mov_b64 s[4:5], s[30:31]')
        S.emit(L(f'buffer_load_dwordx4 v125, {sX}, s65 offen nt lds', tag='lndma'))
        S.emit('s_mov_b32 s0, 0\ns_load_dword s68, s[44:45], s71\ns_load_dword s69, s[46:47], s71\ns_load_dword s67, s[4:5], 0')
        S.emit(pf())
        S.emit('\n'.join(f'global_load_dwordx2 v[{206+2*k}:{207+2*k}], v109, s[{32+2*k}:{33+2*k}] nt' for k in range(6)))
        S.emit(srd())
        cc = self.conv_consts(); nsh = max(2, min(len(cc), self.o('nshadow', 4)))
        S.emit(flat(cc[:nsh])); self.cc_late = flat(cc[nsh:])
        S.emit(self.stamp('_cst'))
        S.emit(self.common_consts())
        self.ln_w1(S)
        S.emit(self.stamp('ln'))
        self.st_conv = (list(S.vm), list(S.lg), [])
        S.emit('s_branch L_main')
        S.set_state(([], [], []))
        S.emit(f'''
        L_sp_pro:
        s_mul_i32 s70, {sXC}, 12
        s_add_u32 s70, s70, {sJ}
        s_sub_u32 s70, s70, 20
        v_min_u32 v12, 159, v0
        v_lshlrev_b32 v12, 3, v12
        ''')
        md = self.mod_dma('s70')
        S.emit(md[0]); S.out += L('s_waitcnt lgkmcnt(0)')
        S.emit('s_mov_b64 s[4:5], s[30:31]'); sr = srd(); S.emit(sr[:7])
        S.emit('global_load_dwordx2 v[200:201], v12, s[48:49]'); S.emit(pf())
        ne = self.o('modearly', 1); self.mod_late = flat(md[1][ne:])
        S.emit(flat(md[1][:ne])); S.emit('s_mov_b32 s0, 1\ns_load_dword s67, s[4:5], 0'); S.emit(sr[7:])
        self.st_spare = S.state()
        S.emit(f'''
        s_branch L_spare
        L_tdone2:
        s_mov_b64 exec, -1
        s_cmp_eq_u32 s0, 1
        s_cbranch_scc1 L_sp_t2
        s_branch L_cv_t2
        L_exit:
        s_endpgm
        ''')
    def mod_dma(self, su, scol='s71', lbase=0, tag='moddma'):
        o = L(f'''
        s_lshr_b32 s58, {su}, 1
        s_mul_hi_u32 s59, s58, {(2**32 + 9)//10}
        s_mul_i32 {scol}, s59, 10
        s_sub_u32 s58, s58, {scol}
        s_lshl_b32 s59, s59, 2
        s_lshr_b32 s59, 0x534210, s59
        s_and_b32 s59, s59, 15
        s_mul_i32 {scol}, s59, 640
        s_lshl_b32 s58, s58, 6
        s_add_u32 {scol}, {scol}, s58
        s_and_b32 s58, {su}, 1
        s_mul_i32 s58, s58, {320*7680}
        s_mul_i32 s59, s3, {80*7680}
        s_add_u32 s72, s58, s59
        s_lshl_b32 s58, {scol}, 1
        s_add_u32 s72, s72, s58
        s_mul_i32 s73, s3, 10240
        ''')
        items = []
        for d in range(10):
            it = L(f's_add_u32 m0, s73, {lbase + 1024*d}')
            it += L('s_nop 0') if d == 0 else L(f's_add_u32 s72, s72, {8*7680}')
            it += L(f'buffer_load_dwordx4 v{110+(d&1)}, {sWM}, s72 offen nt lds', tag=tag)
            items.append(it)
        return o, items
    def common_consts(self):
        return L(f'''
        v_lshrrev_b32 v112, 4, v2
        v_bfe_u32 v113, v2, 2, 2
        v_lshlrev_b32 v114, 10, v112
        v_lshl_add_u32 v114, v113, 7, v114
        v_and_b32 v112, 1, v112
        v_lshrrev_b32 v113, 1, v113
        v_lshl_or_b32 v112, v112, 1, v113
        v_lshl_add_u32 v114, v112, 5, v114
        v_and_b32 v112, 3, v2
        v_lshl_add_u32 v112, v112, 3, v114
        v_add_u32 v112, s66, v112
        v_xor_b32 v113, 32, v112
        v_xor_b32 v114, 64, v112
        v_xor_b32 v115, 96, v112
        s_mul_i32 s65, s2, {self.FS}
        s_add_u32 s65, s65, {WS_FLA}
        s_and_b32 s58, {sXC}, {self.RA - 1}
        s_mul_i32 s58, s58, {self.AREP}
        s_add_u32 s58, s58, {WS_FLA}
        v_lshrrev_b32 v28, 1, v0
        v_mul_u32_u24 v28, {self.FS}, v28
        v_add_u32 v28, s58, v28
        ''')
    def late_consts(self):
        return L(f'''
        s_mul_i32 {sN}, s67, 1664525
        s_add_u32 {sN}, {sN}, 1013904223
        s_lshl_b32 s59, s68, 16
        s_and_b32 s68, s68, 0xffff0000
        s_lshl_b32 s67, s69, 16
        s_and_b32 s69, s69, 0xffff0000
        s_and_b32 s58, {sCH}, 1
        s_cselect_b32 s68, s68, s59
        s_cselect_b32 s69, s69, s67
        v_mov_b32 v226, s68
        v_mul_f32 v226, 0x3fb8aa3b, v226
        v_exp_f32 v226, v226
        v_mov_b32 v245, 0
        v_writelane_b32 v245, s69, 0
        v_cvt_pk_bf16_f32 v226, 0, v226
        v_mul_f32 v220, 0x3fb8aa3b, v226
        v_mul_f32 v223, 0.15915494, v226
        v_mul_f32 v221, 0x41000000, v220
        v_mul_f32 v224, 0x41000000, v223
        v_mul_f32 v222, 0x43800000, v220
        v_mul_f32 v225, 0x43800000, v223
        ''')
    def ln_w1(self, S):
        S.emit(f'''
        v_lshrrev_b32 v123, 4, v2
        v_mul_u32_u24 v120, {1280 - 256}, v123
        v_add3_u32 v120, v120, v3, s61
        v_bfe_u32 v121, v2, 2, 2
        v_mul_u32_u24 v121, 1280, v121
        v_lshl_add_u32 v121, v123, 4, v121
        v_and_b32 v122, 1, v2
        v_mul_u32_u24 v122, {2*LNP}, v122
        v_and_b32 v123, 2, v2
        v_lshl_add_u32 v121, v123, 2, v121
        s_mul_i32 s58, s3, 320
        s_add_u32 s58, s58, {L_LN}
        v_add3_u32 v121, v121, v122, s58
        v_mul_u32_u24 v124, {self.XP - 128}, v104
        v_add_u32 v124, v124, v125
        v_mov_b32 v126, {OOB}
        s_and_b32 s58, s3, 1
        s_lshl_b32 s58, s58, 13
        s_lshl_b32 s59, s63, 1
        s_lshr_b32 s60, s3, 1
        s_add_u32 s59, s59, s60
        s_lshl_b32 s59, s59, 4
        s_add_u32 s58, s58, s59
        s_add_u32 s58, s58, {WS_STAT}
        s_or_b32 s58, s58, s62
        s_add_u32 s59, s58, 4096
        v_writelane_b32 v126, s58, 0
        v_writelane_b32 v126, s59, 32
        ''')
        S.emit(self.touch('L_stub')); S.emit('L_tdone:\ns_mov_b64 exec, -1')
        S.emit(self.stamp('_touched'))
        S.emit(self.late_consts())
        S.emit(f'''
        s_mul_i32 s58, s3, {40*self.XP}
        s_lshl_b32 s59, s63, 7
        s_add_u32 s58, s58, s59
        s_add_u32 s60, s58, {WS_XT}
        s_mov_b32 s59, 0x3f803f80
        ''')
        S.emit(self.stamp('_preln'))
        S.wait_tags(['lndma'])
        S.emit(self.stamp('_lndma'))
        S.emit('\n'.join(f'ds_read_b128 v[{128+4*i}:{131+4*i}], v120 offset:{256*i}' for i in range(5)) + '\ns_barrier')
        for p in range(5):
            S.emit(f'ds_read_b64_tr_b16 v[{32+4*p}:{33+4*p}], v121 offset:{64*p}\nds_read_b64_tr_b16 v[{34+4*p}:{35+4*p}], v121 offset:{64*p+LNP}')
        xst = [L(f'buffer_store_dwordx4 v[{32+4*p}:{35+4*p}], v124, {sWS}, s60 offen sc1', tag='pa') + (L(f's_add_u32 s60, s60, {8*self.XP}') if p < 4 else []) for p in range(5)]
        self.xst = xst
        for r in range(128, 148):
            c1, c2 = ('0', '0') if r == 128 else ('v116', 'v117')
            S.emit(f'v_dot2_f32_bf16 v116, v{r}, s59, {c1}\nv_dot2_f32_bf16 v117, v{r}, v{r}, {c2}')
            if r == 131: S.emit(xst[0])
        S.emit(xst[1])
        for k in (8, 4, 2, 1):
            S.emit(f'v_add_f32_dpp v116, v116, v116 row_ror:{k} row_mask:0xf bank_mask:0xf\nv_add_f32_dpp v117, v117, v117 row_ror:{k} row_mask:0xf bank_mask:0xf')
        S.emit(self.finish_stats('v116', 'v117', 'v118'))
        S.emit(f'''
        v_and_b32 v116, 0xffff0000, v118
        v_rcp_f32 v116, v116
        v_lshlrev_b32 v118, 16, v118
        v_mul_f32 v118, -v118, v116
        v_permlane16_swap_b32 v116, v117
        v_permlane16_swap_b32 v118, v119
        ''')
        S.emit(L(f'buffer_store_dwordx4 v[116:119], v126, {sWS}, 0 offen sc1', tag='pa'))
        S.emit(xst[2])
    def finish_stats(self, s1, s2, out):
        return L(f'''
        v_mul_f32 {s1}, 0x3acccccd, {s1}
        v_mul_f32 {s2}, 0x3acccccd, {s2}
        v_fma_f32 {s2}, -{s1}, {s1}, {s2}
        v_max_f32 {s2}, 0, {s2}
        v_cvt_pk_bf16_f32 {s2}, 0, {s2}
        v_add_f32 {s2}, 0x3727c5ac, {s2}
        v_cvt_pk_bf16_f32 {s2}, 0, {s2}
        v_sqrt_f32 {s2}, {s2}
        v_cvt_pk_bf16_f32 {out}, {s1}, {s2}
        ''')
    def prep_task(self, dmatag, sdst, stride, sttag, tmp, loff=0, va='v3'):
        o = []
        for t in range(4):
            o += L(f'ds_read_b64_tr_b16 v[{tmp+4*t}:{tmp+4*t+1}], v{112+t} offset:{loff}\nds_read_b64_tr_b16 v[{tmp+4*t+2}:{tmp+4*t+3}], v{112+t} offset:{loff+512}', waitfor=[dmatag])
        for t in range(4):
            o += L(f'buffer_store_dwordx4 v[{tmp+4*t}:{tmp+4*t+3}], {va}, {sWS}, {sdst} offen sc1', tag=sttag)
            if t < 3: o += L(f's_add_u32 {sdst}, {sdst}, {stride}')
        return o
    def w1_setup(self):
        return L(f'''
        s_mul_hi_u32 s58, s2, {(2**32 + 19)//20}
        s_mul_i32 s59, s58, 20
        s_sub_u32 s59, s2, s59
        s_lshl_b32 s59, s59, 1
        s_and_b32 s36, s3, 1
        s_add_u32 s59, s59, s36
        s_lshr_b32 s37, s3, 1
        s_mul_i32 s34, s59, {16*3072}
        s_mul_i32 s32, s58, 384
        s_add_u32 s34, s34, s32
        s_lshl_b32 s32, s37, 7
        s_add_u32 s32, s32, s34
        s_add_u32 s33, s32, {8*3072}
        s_mul_i32 s35, s37, {8*3072}
        s_add_u32 s34, s34, s35
        s_add_u32 s34, s34, 256
        s_mul_i32 s58, s58, 480
        s_add_u32 s58, s58, s59
        s_lshl_b32 s58, s58, 10
        s_add_u32 s58, s58, {WS_W1P}
        s_mul_i32 s35, s37, 163840
        s_add_u32 s35, s35, s58
        s_lshl_b32 s36, s37, 9
        s_add_u32 s36, s36, s58
        s_add_u32 s36, s36, 327680
        s_add_u32 s37, s66, {L_X - L_STG}
        v_lshrrev_b32 v199, 5, v2
        v_mul_u32_u24 v199, {40960 - 512}, v199
        v_add_u32 v199, v199, v3
        ''')
    def w1_dma(self):
        o = []
        for d in range(6):
            o += L(f's_add_u32 m0, {"s66" if d < 4 else "s37"}, {1024*(d & 3)}')
            o += L(['v_cmp_gt_u32 vcc, 32, v2', 'v_add_u32 v197, -2048, v113', 's_sub_u32 s58, s37, s66', 'v_cndmask_b32 v197, v197, v112, vcc', 'v_add_u32 v197, s58, v197', 'v_xor_b32 v198, 64, v197'][d])
            o += L(f'buffer_load_dwordx4 v{107+(d&1)}, {sWU if d&1 else sWG}, s{32+(d>>1)} offen nt lds', tag='w1dma')
        return o
    def w1_task(self):
        o = self.prep_task('w1dma', 's35', 40960, 'pw', tmp=32)
        h = []
        for t in range(2):
            h += L(f'ds_read_b64_tr_b16 v[{48+4*t}:{49+4*t}], v{197+t}\nds_read_b64_tr_b16 v[{50+4*t}:{51+4*t}], v{197+t} offset:512')
        o = o[:8] + h + o[8:]
        o += L(f'buffer_store_dwordx4 v[48:51], v199, {sWS}, s36 offen sc1', tag='pw') + L('s_add_u32 s36, s36, 81920')
        o += L(f'buffer_store_dwordx4 v[52:55], v199, {sWS}, s36 offen sc1', tag='pw')
        return o
    def flagW(self): return self.barrier(['pw']) + L(f's_atomic_swap {sN}, s[4:5], s64 offset:{FLW_OFF}')
    def arrive(self, k, tag):
        return L('s_mov_b64 exec, 1') + L(f'ds_add_rtn_u32 v59, v254, v255 offset:{4*k}', waitfor=[tag]) + L('s_mov_b64 exec, -1')
    def publish(self, k):
        R = self.RA
        return L(f'v_readfirstlane_b32 s58, v59\ns_nop 0\ns_cmp_lg_u32 s58, 3\ns_cbranch_scc1 L_nopub{k}\n'
                 + '\n'.join(f's_atomic_swap {sN}, s[4:5], s65 offset:{k*FLW_OFF + r*self.AREP}' for r in range(R)) + f'\nL_nopub{k}:')
    def pollW(self): return L(f'buffer_load_dword v4, v6, {sWS}, 0 offen sc1')
    def flagA(self):
        self.nfa = getattr(self, 'nfa', 0) + 1
        return self.barrier(['pa']) + L(f's_cmp_ge_u32 s3, {self.RA}\ns_cbranch_scc1 L_nfa{self.nfa}\ns_atomic_swap {sN}, s[4:5], s64\nL_nfa{self.nfa}:')
    def g_setup(self):
        return L(f'''
        s_lshr_b32 s58, s3, 1
        s_mul_i32 s58, s58, 3
        s_mul_i32 s59, {sSIG}, 6
        s_add_u32 s58, s58, s59
        s_and_b32 s59, s3, 1
        s_lshr_b32 s74, {sSIG}, 1
        s_mul_i32 s74, s74, 20
        s_mul_i32 s76, s59, 10
        s_add_u32 s74, s74, s76
        s_and_b32 s76, {sXC}, {self.RA - 1}
        s_lshl_b32 s76, s76, 8
        s_add_u32 s74, s74, s76
        v_min_u32 v6, 9, v2
        v_add_u32 v6, s74, v6
        v_mul_u32_u24 v6, {self.FS}, v6
        v_add_u32 v6, {WS_FLA + FLW_OFF}, v6
        s_lshl_b32 s74, s59, 7
        v_xor_b32 v5, s74, v3
        s_mul_i32 s58, s58, 40960
        s_mul_i32 s74, s59, 20480
        s_add_u32 s58, s58, s74
        s_add_u32 s58, s58, {WS_W1P}
        s_mul_i32 s59, s59, 40960
        s_add_u32 s76, s58, s59
        s_sub_u32 s74, s58, s59
        s_add_u32 s74, s74, 40960
        s_add_u32 s75, s58, 81920
        ''')
    def tile_consts(self):
        return L(f'''
        v_bfe_u32 v4, v2, 3, 1
        v_lshrrev_b32 v6, 5, v2
        v_lshl_or_b32 v4, v6, 1, v4
        v_lshlrev_b32 v4, 4, v4
        v_xor_b32 v6, v4, v3
        s_mul_i32 s58, s3, 40
        s_and_b32 s59, {sXC}, {self.RC - 1}
        s_mul_i32 s59, s59, 160
        s_add_u32 s58, s58, s59
        v_min_u32 v4, 39, v2
        v_add_u32 v4, s58, v4
        v_mul_u32_u24 v4, {self.FC}, v4
        v_add_u32 v4, {WS_FLC}, v4
        s_mul_i32 s61, s3, 10240
        s_mul_i32 s60, {sR}, {self.TPI}
        s_add_u32 s60, s60, s61
        s_add_u32 s60, s60, {WS_X1S}
        ''')
    def w1_loads(self, k0=0, k1=60, only=None, skip=None):
        ks = list(range(k0, k1))
        ks = [k for k in ks if (only is None or k % 3 == only) and k % 3 != skip]
        items = []; cur = {}
        for k in ks:
            s, role = divmod(k, 3); a = 4*k
            if cur.get(role) != s//4: items.append(L(f's_add_u32 s{67+role}, s{74+role}, {4096*(s//4)}')); cur[role] = s//4
            items.append(L(f'buffer_load_dwordx4 a[{a}:{a+3}], {"v5" if role == 1 else "v3"}, {sWS}, s{67+role} offen offset:{1024*(s%4)} sc1'))
        return items
    def w1_touch(self):
        if not self.o('w1touch', 1): return []
        return L(f'''
        s_and_b32 s58, {sR}, 7
        s_lshl_b32 s58, s58, 2
        s_add_u32 s58, s58, s3
        s_mul_i32 s58, s58, 7680
        s_mul_i32 s59, {sSIG}, 245760
        s_add_u32 s58, s58, s59
        s_add_u32 s58, s58, {WS_W1P}
        v_min_u32 v95, 59, v2
        v_lshlrev_b32 v95, 7, v95
        buffer_load_dword v95, v95, {sWS}, s58 offen sc1
        ''')
    def tile_dma(self, j):
        items = []
        for i in range(10):
            it = []
            if i % 4 == 0:
                items += [L(f's_add_u32 m0, s61, {L_SLOT[j] + 1024*i}'), L(f's_add_u32 s62, s60, {j*16*self.TPI + 1024*i}')]
            it += L(f'buffer_load_dwordx4 v6, {sWS}, s62 offen offset:{1024*(i%4)} sc1 lds', tag=f'tile{j}')
            items.append(it)
        return items
    def pollC(self, stage, dst):
        o = L(f's_mov_b32 s63, {stage*self.CSTG}\nbuffer_load_dword {dst}, v4, {sWS}, s63 offen sc1'); o[1].lines = 40*self.FC//128
        return o
    def ic2_loads(self):
        return [L(f's_mov_b32 s62, {WS_IC2}'), L('v_lshlrev_b32 v28, 3, v2'), L(f'buffer_load_dwordx4 v[20:23], v3, {sWS}, s62 offen sc1'),
                L(f'buffer_load_dwordx4 v[24:27], v3, {sWS}, s62 offen offset:1024 sc1'),
                L(f'buffer_load_dwordx2 v[28:29], v28, {sWS}, s62 offen offset:2048 sc1')]
    def cmul(self, out, z, e, t):
        return L(f'''
        v_pk_mul_f32 v[{t}:{t+1}], v[{z}:{z+1}], v[{e}:{e+1}] op_sel:[0,0] op_sel_hi:[1,0]
        v_pk_fma_f32 v[{out}:{out+1}], v[{z}:{z+1}], v[{e}:{e+1}], v[{t}:{t+1}] op_sel:[1,1,0] op_sel_hi:[0,1,1] neg_lo:[1,0,0]
        ''')
    ALPHA = {}
    for _h in range(2):
        for _r in range(5): ALPHA[(_h, _r)] = 4*_h + _r
        for _k in range(3): ALPHA[(_h, 5+_k)] = 256 + 4*_h + 2*_k; ALPHA[(_h, 8+_k)] = 512 + 256*_h + 4*_k
        ALPHA[(_h, 11)] = 1032 + 256*_h; ALPHA[(_h, 12)] = 1544 + 256*_h
    def alpha_rows(self):
        di = lambda h, r: 8*(r >> 2) + 4*h + (r & 3)
        row = {}; fixes = {}
        for (h, r), al in sorted(self.ALPHA.items(), key=lambda x: di(*x[0])):
            i = di(h, r)
            if al in row: fixes[i] = row[al]
            else: row[al] = i
        free = sorted(fixes.keys())
        for al, i in list(row.items()):
            if i >= 24: row[al] = free.pop(0); fixes[i] = row[al]
        assert max(row.values()) < 24 and len(set(row.values())) == 24
        return row, fixes
    def kgen_setup(self, slot):
        P = 200; o = L('\n'.join(f'v_perm_b32 v{P+k}, v{207+2*k}, v{206+2*k}, v{194+slot}' for k in range(6)))
        for k in range(3): o += L(f'v_mul_f32 v{66+k}, v{P}, v{220+k}\nv_mul_f32 v{61+2*k}, v{P+1}, v{223+k}')
        for k in range(3): o += L(f'v_exp_f32 v{66+k}, v{66+k}\nv_fract_f32 v{61+2*k}, v{61+2*k}')
        for k in range(3): o += L(f'v_cos_f32 v{60+2*k}, v{61+2*k}\nv_sin_f32 v{61+2*k}, v{61+2*k}')
        for k in range(3): o += L(f'v_mul_f32 v{60+2*k}, v{60+2*k}, v{66+k}\nv_mul_f32 v{61+2*k}, v{61+2*k}, v{66+k}')
        o += L(f'v_mul_f32 v{P+2}, v{P+2}, v226\nv_mul_f32 v{P+3}, v{P+3}, v226')
        return o
    def kgen_chains(self, slot):
        P = 200; E1, E8, E256 = 60, 62, 64; T = 70
        row, _ = self.alpha_rows()
        U = lambda k: 76 + 2*k
        pts = []
        pts.append((self.cmul(U(0), P+4, P+2, T), U(0), 32+row[0], True))
        for k in range(1, 9): pts.append((self.cmul(U(k), U(k-1), E1, T), U(k), 32+row[k], True))
        for e in (0, 2, 4, 6, 8): pts.append((self.cmul(U(e), U(e), E256, T), U(e), 32+row[256+e], True))
        for b in (512, 768):
            for e in (0, 4, 8): pts.append((self.cmul(U(e), U(e), E256, T), U(e), 32+row[b+e], True))
        for b in range(4): pts.append((self.cmul(U(8), U(8), E256, T), U(8), 32+row[1032+256*b], True))
        pts.append(([], E8, 1, False))
        pts.append((self.cmul(74, E8, E8, T), 74, 2, False))
        for j in range(3, 32): pts.append((self.cmul(74, 74, E8, T), 74, j, False))
        B = self.o('kbatch', 11); out = []
        for i in range(0, len(pts), B):
            o = []; w = []
            for k, (c, z, r, neg) in enumerate(pts[i:i+B]):
                o += c + L(f'v_cvt_pk_bf16_f32 v{230+k}, v{z}, {"-" if neg else ""}v{z+1}')
                if not self.o('nowr', 0): w += L(f'ds_write_addtid_b32 v{230+k} offset:{r*TP}')
            out.append(o + w)
        ard = [L(f'ds_read_b128 v[{128+8*k}:{131+8*k}], v227 offset:{32*k}')[0] for k in range(8)]
        first = -(-24 // B) - 1
        out[first] += ard[:3]; out[first+1] += ard[3:]
        return out
    def kgen_mfma(self, slot, fillers, sfill):
        o = []
        for k in range(8):
            o += L(f'ds_read_b128 v[{132+8*k}:{135+8*k}], v228 offset:{32*k}')
        npre = self.o('kpre', 12)
        bb = [Ins(f'v_mfma_f32_32x32x16_bf16 v[96:111], v[{128+8*k}:{131+8*k}], v[{132+8*k}:{135+8*k}], {"0" if slot == 0 and k == 0 else "v[96:111]"}') for k in range(8)]
        return o + fillers[:npre] + interleave(bb, [Fill(fillers[npre:], 0, 6, ahead=8, prio=2), Fill(sfill, 0, 6, ahead=8)])
    def conv_consts(self):
        row, fixes = self.alpha_rows()
        b0 = L(f'''
        v_and_b32 v194, 1, v2
        v_mul_u32_u24 v194, 0x0202, v194
        v_lshlrev_b32 v194, 16, v194
        v_add_u32 v194, 0x01000c0c, v194
        v_add_u32 v195, 0x02020000, v194
        v_add_u32 v196, 0x02020000, v195
        v_and_b32 v228, 31, v2
        v_min_u32 v227, 23, v228
        s_lshl_b32 s70, s3, 14
        s_mul_i32 s71, s3, {KC_PITCH}
        s_add_u32 s71, s71, {L_KC}
        s_mul_i32 s72, s3, {H_PITCH}
        s_add_u32 s72, s72, {L_H}
        ''')
        for i, rr in fixes.items():
            b0 += L(f'v_writelane_b32 v227, {rr}, {i}\nv_writelane_b32 v227, {rr}, {i+32}')
        b0 += L(f'''
        v_lshrrev_b32 v229, 5, v2
        v_lshlrev_b32 v243, 4, v228
        v_lshl_add_u32 v242, v229, 3, v243
        v_sub_u32 v242, s71, v242
        v_lshl_add_u32 v243, v229, 9, v243
        v_sub_u32 v243, s71, v243
        v_lshlrev_b32 v244, 1, v2
        v_sub_u32 v244, s71, v244
        v_mov_b32 v246, s71
        v_lshl_add_u32 v229, v229, 4, s70
        s_movk_i32 s58, {TP}
        v_add_u32 v227, 32, v227
        v_mad_u32_u24 v227, v227, s58, v229
        v_mad_u32_u24 v228, v228, s58, v229
        v_mov_b32 v72, 0x00003f80
        v_mov_b32 v56, 0
        v_mov_b32 v57, 0
        v_lshl_add_u32 v58, v2, 3, s72
        v_and_b32 v7, 15, v2
        v_lshl_add_u32 v59, v7, 2, s71
        v_lshl_add_u32 v73, v2, 2, s70
        ds_write_b32 v73, v72
        ds_write_b64 v58, v[56:57]
        ds_write_b32 v59, v56
        ds_write_b32 v59, v56 offset:{2112}
        ds_write_b32 v59, v56 offset:{KC1}
        ds_write_b32 v59, v56 offset:{KC1 + 2116}
        ds_write_b32 v59, v56 offset:{KCD + 256}
        v_mov_b32 v254, {L_CST}
        v_mov_b32 v255, 1
        ds_write_b64 v254, v[56:57]
        ''')
        b1 = L(f'''
        v_bfe_u32 v247, v0, 2, 2
        v_lshlrev_b32 v247, 4, v247
        v_lshl_add_u32 v247, v0, 6, v247
        v_add_u32 v247, {L_X}, v247
        v_xor_b32 v248, 16, v247
        v_xor_b32 v249, 32, v247
        v_xor_b32 v250, 48, v247
        v_lshlrev_b32 v192, 4, v0
        v_add_u32 v251, {L_H + 512}, v192
        v_lshrrev_b32 v8, 4, v2
        v_lshlrev_b32 v193, 4, v8
        v_lshlrev_b32 v9, 5, v7
        v_add3_u32 v9, v9, v193, s72
        v_and_b32 v10, 1, v7
        v_mul_u32_u24 v10, {KC1 + 2}, v10
        v_add3_u32 v10, v10, v193, s71
        v_xor_b32 v193, v193, v3
        v_lshlrev_b32 v11, 1, v7
        v_sub_u32 v10, v10, v11
        v_add_u32 v12, {P2 - 32 - 1024 - 960}, v10
        v_add_u32 v10, {P2 - 32 - 960}, v10
        v_lshrrev_b32 v29, 2, v7
        v_lshrrev_b32 v16, 1, v29
        v_and_b32 v16, v16, v29
        v_add_u32 v29, v29, v16
        v_and_b32 v14, 1, v8
        v_mad_u32_u24 v29, v14, 6, v29
        v_mul_u32_u24 v29, 640, v29
        v_and_b32 v16, 3, v7
        s_lshl_b32 s58, {sCB4}, 2
        s_add_u32 s58, s58, {WS_MODP//8}
        v_add3_u32 v29, v29, v16, s58
        v_lshlrev_b32 v29, 3, v29
        ''')
        ne = self.o('early', 3); cl = self.conv_late()
        fix = lambda l: [Ins(i.text.replace('s32', 's38').replace('s33', 's39').replace('s34', 's40').replace('v28', 'v60').replace('v29', 'v61').replace('v30', 'v62')) for i in l]
        return [self.w1_setup(), b0, b1 + flat([fix(cl[k]) for k in range(3) if ne >> k & 1]), self.g_setup()]
    def conv_late(self):
        c0 = L(f'''
        v_bfe_u32 v13, v7, 1, 2
        v_xor_b32 v13, s3, v13
        v_lshlrev_b32 v13, 4, v13
        v_lshl_add_u32 v13, v7, 7, v13
        v_lshl_add_u32 v13, v14, 6, v13
        v_add_u32 v13, {L_X}, v13
        ''')
        c1 = L(f'''
        v_lshlrev_b32 v15, 3, v14
        v_lshrrev_b32 v28, 2, v7
        v_lshl_add_u32 v15, v28, 1, v15
        v_lshrrev_b32 v28, 1, v8
        v_add_u32 v15, v15, v28
        v_mul_u32_u24 v15, {self.TPI}, v15
        v_and_b32 v28, 3, v7
        v_lshl_add_u32 v15, v28, 4, v15
        s_lshl_b32 s32, {sCH}, 6
        s_add_u32 s32, s32, {WS_X1S}
        v_add_u32 v15, s32, v15
        ''')
        c2 = L(f'''
        s_movk_i32 s33, 0x1ff0
        v_lshlrev_b32 v28, 3, v8
        v_lshlrev_b32 v29, v7, s33
        s_movk_i32 s33, 0x0fe0
        v_lshrrev_b32 v29, v28, v29
        v_lshlrev_b32 v30, v7, s33
        s_mov_b32 s33, 0x8001
        v_lshrrev_b32 v30, v28, v30
        s_mov_b32 s34, 0x10001
        ''')
        for dst, m in ((20, 29), (24, 30)):
            for dw in range(4):
                c2 += L(f'''
                v_bfe_u32 v{dst+dw}, v{m}, {2*dw}, 2
                v_mul_u32_u24 v{dst+dw}, s33, v{dst+dw}
                v_and_b32 v{dst+dw}, s34, v{dst+dw}
                v_mul_u32_u24 v{dst+dw}, 0x3f80, v{dst+dw}
                ''')
        c3 = L(f'''
        v_add_u32 v11, {-1088}, v10
        v_lshlrev_b32 v14, 2, v8
        v_sub_u32 v14, v14, v7
        v_lshl_add_u32 v14, v14, 2, s71
        v_add_u32 v14, {KCD + 60}, v14
        s_mul_i32 s66, s3, {self.RC//4*self.CREP}
        s_mul_i32 s33, {sCB4}, {self.FC}
        s_add_u32 s66, s66, s33
        s_add_u32 s66, s66, {WS_FLC}
        ''')
        return c0, c1, c2, c3
    def conv_path(self, S):
        S.set_state(self.st_conv)
        S.emit('L_main:'); S.shadow_len = self.o('shadow', 1100); S.dummy = 'ds_read_b32 v1, v3'
        S.emit(self.cc_late); S.emit('s_mov_b32 m0, s70')
        pollA = L(f'buffer_load_dword v58, v28, {sWS}, 0 offen sc1')
        modld = L(f'buffer_load_dwordx2 v[56:57], v29, {sWS}, 0 offen sc1')
        pollW = self.pollW()
        xld = (L('s_mov_b32 m0, s43') + L('\n'.join(f'buffer_load_dwordx4 v[{32+4*g}:{35+4*g}], v192, {sWS}, {so} offen sc1' for g, so in enumerate(('s44', 's45', 's49', 's77'))))
               + L('\n'.join(f'buffer_load_dwordx4 v193, {sWS}, s42 offen offset:{1024*i} sc1 lds' for i in range(4)), tag='xdma') + L('s_mov_b32 m0, s70'))
        set0 = L(f'''
        s_mul_i32 s42, {sCB4}, {self.XP}
        s_lshl_b32 s43, s3, 12
        s_add_u32 s42, s42, s43
        s_add_u32 s42, s42, {WS_XT}
        s_add_u32 s43, s43, {L_X}
        s_movk_i32 s44, {WS_STAT}
        s_movk_i32 s45, {WS_STAT + 0x1000}
        s_movk_i32 s49, {WS_STAT + 0x2000}
        s_movk_i32 s77, {WS_STAT + 0x3000}
        ''')
        set1 = L(f's_lshl_b32 s73, s2, 4\ns_add_u32 s73, s73, {WS_IC2}\ns_and_b32 s62, s2, 3')
        modv = self.stamp('_mod0') + self.check(modld, ['v57'], None) + self.stamp('_modok') + L(f'''
        v_mov_b32 v57, v56
        v_bfe_u32 v52, v2, 2, 1
        v_cvt_f32_u32 v52, v52
        v_permlane16_swap_b32 v56, v57
        v_add_f32 v48, v56, v57
        v_cvt_pk_bf16_f32 v48, 0, v48
        v_add_f32 v48, v48, v52
        v_cvt_pk_bf16_f32 v48, 0, v48
        s_add_u32 s58, s3, 8
        s_add_u32 s59, s3, 12
        v_readlane_b32 s40, v48, s58
        v_readlane_b32 s41, v48, s59
        ''')
        for c in range(4): modv += L(f'v_readlane_b32 s{32+2*c}, v48, {4+c}\nv_readlane_b32 s{33+2*c}, v48, {c}')
        modv += L(f'''
        s_and_b32 s58, s41, 0x7fffffff
        s_cselect_b32 s41, s41, 0x21800000
        v_mov_b32 v51, s41
        v_mul_f32 v51, s40, v51
        v_mov_b32 v52, 0x21800000
        v_cmp_eq_f32 vcc, 0, v48
        v_add_u32 v54, -12, v0
        v_xor_b32 v55, s62, v54
        v_lshl_add_u32 v55, v55, 2, s73
        v_cndmask_b32 v52, v48, v52, vcc
        v_cmp_gt_u32 vcc, 4, v54
        v_rcp_f32 v127, v52
        v_mov_b32 v126, {OOB}
        v_cndmask_b32 v126, v126, v55, vcc
        v_lshlrev_b32 v53, 4, v2
        v_alignbit_b32 v53, s41, s41, v53
        v_alignbit_b32 v53, v53, v53, 16
        v_lshrrev_b32 v54, 1, v7
        v_lshlrev_b32 v55, 2, v8
        v_sub_u32 v54, v54, v55
        v_cmp_eq_u32 vcc, 0, v54
        v_cmp_eq_u32 s[58:59], 1, v54
        v_cmp_eq_u32 s[62:63], 2, v54
        v_cmp_eq_u32 s[64:65], 3, v54
        v_cndmask_b32 v16, 0, v53, vcc
        v_cndmask_b32 v17, 0, v53, s[58:59]
        v_cndmask_b32 v18, 0, v53, s[62:63]
        v_cndmask_b32 v19, 0, v53, s[64:65]
        ''')
        segs = []
        for slot in range(3):
            segs += self.kgen_chains(slot)
            segs.append(self.kgen_mfma(slot, [self.kgen_setup(1), self.kgen_setup(2), modv][slot], [set0, set1, []][slot]) + self.stamp(f'slot{slot}'))
        ns = len(segs)//3
        pos = lambda name, slot, frac: min(len(segs) - 1, int(round(ns*(self.o(name, int(100*(slot + frac)))/100.0))) - 1)
        ev = {}
        def at(p, code): ev.setdefault(p, []).extend(code)
        pfa, pw1, pfw = pos('e_fla', 1, 0), pos('e_w1', 1, .17), pos('e_flw', 2, .34)
        ppa, pca, pmo, ppw = pos('e_pa', 2, 0), pos('e_ca', 2, .67), pos('e_mo', 2, .34), pos('e_pw', 3, 0)
        assert pfa <= pw1 and pfw < 3*ns - 1 and pca >= max(ppa, ns - 1, pw1) and pmo < 3*ns - 1 and pfw >= pw1
        at(pfa, self.stamp('_ch0') + self.arrive(0, 'pa') + self.stamp('_fla'))
        at(pfa + 1, self.publish(0))
        at(pos('e_t2', 2, .5), self.stamp('_ta') + self.touch('L_gp') + L('L_cv_t2:') + self.stamp('_tb'))
        pwd = pos('e_wd', 0, .17); assert pwd < min(pw1, ns - 1)
        at(pwd, self.w1_dma() + L('s_mov_b32 m0, s70'))
        wt = self.w1_task(); rd, st_ = wt[:12], wt[12:]
        groups = []
        for i in st_:
            if i.kind == 'vmem': groups.append([i])
            else: groups[-1].append(i)
        per = self.o('wsper', 2); at(pw1, rd); plast = pw1
        for k in range(0, 6, per):
            plast = pw1 + 1 + k//per; at(plast, flat(groups[k:k+per]))
        assert pfw >= plast and pca >= pw1 + 1 + 3//per
        at(pfw, self.stamp('_fw0') + self.arrive(1, 'pw') + self.stamp('_fw1')); at(pfw + 1, self.publish(1)); assert pfw + 1 < 3*ns - 1
        at(ppa, pollA)
        at(pmo, modld)
        at(pca, self.stamp('_a0') + self.check(pollA, ['v58'], None) + self.stamp('_aok') + xld)
        if self.o('e_cw', 402) < 500: at(ppw, pollW)
        ecw = self.o('e_cw', 402); nearly = self.o('w1e', 5); npre_w1 = 0
        wchk = self.stamp('_w0') + self.check(pollW, ['v4'], None) + self.stamp('_wok')
        if ecw <= 300:
            pcw = pos('e_cw', 3, 0); assert pcw >= ppw
            at(pcw, wchk)
            for k in range(pcw, len(segs)):
                at(k, flat(self.w1_loads(npre_w1, npre_w1 + nearly))); npre_w1 += nearly
        S.emit(ev.get(-1, []))
        S.emit(self.kgen_setup(0)); S.emit(self.xst[3]); ev[0] = self.xst[4] + ev.get(0, [])
        for k, sg in enumerate(segs):
            S.emit(sg); S.emit(self.stamp(f'_K{k}')); S.emit(ev.get(k, [])); S.emit(self.stamp(f'_E{k}'))
        S.emit(self.stamp('_t2'))
        S.emit('v_add_f32 v96, v96, v245')
        for r in range(0, 14, 2): S.emit(f'v_pk_mul_f32 v[{96+r}:{97+r}], v[{96+r}:{97+r}], v[50:51] op_sel:[0,1] op_sel_hi:[1,1]')
        cv = lambda d, a, b: f'v_cvt_pk_bf16_f32 v{d}, v{96+a}, v{96+b}\n'
        S.emit(cv(64, 4, 3) + cv(65, 2, 1) + cv(66, 3, 2) + cv(67, 1, 0) + cv(68, 7, 7) + cv(69, 6, 5) + cv(70, 7, 6) + cv(71, 5, 5) +
               cv(72, 10, 10) + cv(73, 10, 9) + cv(74, 9, 9) + cv(75, 8, 8) + cv(76, 10, 10) + cv(77, 9, 9) + cv(78, 9, 8) + cv(79, 8, 8) +
               cv(80, 11, 12) + cv(82, 10, 10) + cv(83, 10, 10) + f'''
        ds_write_b64 v242, v[64:65] offset:{P2 - 8}
        ds_write_b64 v242, v[66:67] offset:{KC1 + P2 - 4}
        ds_write_b64 v242, v[68:69] offset:{P2 - 8 - 512}
        ds_write_b64 v242, v[70:71] offset:{KC1 + P2 - 4 - 512}
        ds_write_b128 v243, v[72:75] offset:{P2 - 16 - 1024}
        ds_write_b128 v243, v[76:79] offset:{KC1 + P2 - 12 - 1024}
        ds_write_b16 v244, v80 offset:{KCD + 254}
        ds_write_b16_d16_hi v244, v80 offset:{KCD + 254 - 128}
        s_mov_b64 exec, 1
        ds_write_b16_d16_hi v246, v67 offset:{P2}
        s_mov_b32 exec_hi, 0x80000000
        s_mov_b32 exec_lo, 0
        ds_write_b64 v246, v[82:83] offset:56
        ds_write_b16 v246, v82 offset:{KC1 + 58}
        ds_write_b64 v246, v[82:83] offset:{KC1 + 60}
        s_mov_b64 exec, -1
        ''')
        S.emit(self.stamp('kexp'))
        def kread(G, dst):
            if G == 32: a, o = 'v11', 0
            else: a, o = ('v10', 16*(15 - G)) if G < 16 else ('v12', 16*(31 - G))
            return [Ins(f'ds_read2_b32 v[{dst}:{dst+1}], {a} offset0:{o} offset1:{o+1}'), Ins(f'ds_read2_b32 v[{dst+2}:{dst+3}], {a} offset0:{o+2} offset1:{o+3}')]
        KF = lambda p, r: 128 + 64*(p >> 1) + 8*r + 4*(p & 1)
        kreads = [x for pp in (0, 2) for r in range(8) for p in (pp, pp+1) for x in kread(8*p + r, KF(p, r))]
        npre = self.o('npre', 32); assert npre <= 32
        S.emit(L('\n'.join(f'ds_read_b128 v[{64+4*c}:{67+4*c}], v{247+c}' for c in range(4)), waitfor=['xdma']))
        S.emit(self.stamp('_xin'))
        S.emit(kreads[:npre//4])
        n2 = self.o('w1pre', 4)
        if ecw == 400: S.emit(wchk)
        if ecw <= 400: S.emit(flat(self.w1_loads(npre_w1, npre_w1 + n2))); npre_w1 += n2
        for c in range(4):
            x = 64 + 4*c; o = []
            for g in range(4):
                t = 80 + 2*(g & 1); b = 32 + 4*g
                o += L(f'''
                v_lshlrev_b32 v{t}, 16, v{x+g}
                v_and_b32 v{t+1}, 0xffff0000, v{x+g}
                v_pk_fma_f32 v[{t}:{t+1}], v[{t}:{t+1}], v[{b}:{b+1}], v[{b+2}:{b+3}]
                v_pk_fma_f32 v[{t}:{t+1}], v[{t}:{t+1}], s[{32+2*c}:{33+2*c}], s[{32+2*c}:{33+2*c}] op_sel:[0,0,1] op_sel_hi:[1,0,1]
                v_cvt_pk_bf16_f32 v{x+g}, v{t}, v{t+1}
                ''')
            o += L(f'ds_write_b128 v251, v[{x}:{x+3}] offset:{H_PITCH*c}', tag='hw')
            S.emit(o)
            if c < 3:
                S.emit(kreads[(c+1)*npre//4:(c+2)*npre//4])
            if ecw >= 500 and c == self.o('pwc', 1): S.emit(pollW)
            if ecw == 401 + c: S.emit(wchk)
            if ecw <= 401 + c:
                n2 = self.o('w1pre2', 2)
                S.emit(flat(self.w1_loads(npre_w1, npre_w1 + n2))); npre_w1 += n2
        S.emit(self.barrier(['hw']))
        S.emit(self.stamp('prep'))
        S.dummy = 'ds_read_b32 v1, v3'
        epoch = []
        acc = lambda q: f'v[{96+4*q}:{99+4*q}]'
        seq = []; started = set()
        def mm(q, A, B):
            C = acc(q) if q in started else '0'; started.add(q); seq.append((acc(q), A, B, C))
        def box(u):
            d = 112 + 8*(u & 1)
            seq.append((f'v[{d}:{d+3}]', ('h9', u), 'v[20:23]', '0')); seq.append((f'v[{d+4}:{d+7}]', ('h', 3, 0, u), 'v[24:27]', '0'))
        kf = lambda p, r: f'v[{KF(p, r)}:{KF(p, r)+3}]'
        for r in range(8):
            for q in range(2):
                if r == 7: mm(q, 'v[16:19]', ('x', q))
                for p in range(q + 1): mm(q, kf(p, r), ('h', 0, r, q - p))
        nA = len(seq)
        for r in range(8):
            if r == 4: a1 = len(seq); box(0); box(1)
            if r == 6: a2 = len(seq); box(2); box(3)
            for q in range(2, 4):
                if r == 7: mm(q, 'v[16:19]', ('x', q))
                for p in range(q + 1): mm(q, kf(p, r), ('h', 1, r, q - p))
        nB = len(seq)
        for ps, q0 in ((2, 4), (4, 6)):
            for r in range(8):
                for q in (q0, q0 + 1):
                    if r == 0: mm(q, 'v[116:119]' if False else ('k32', ps), ('h', ps, 0, q - 4))
                    if r == 2: mm(q, 'v[16:19]', ('x', q)); xlast = len(seq) - 1
                    for p in range(4): mm(q, kf(p, r), ('h', ps, r, q - p))
                    if r == 1:
                        for u in range(q - 3): mm(q, f'v[{40+4*u}:{43+4*u}]', f'a[{240+4*(q-u-4)}:{243+4*(q-u-4)}]')
            if ps == 2: nC = len(seq)
        def fragload(f, dst):
            if f[0] == 'h': return [Ins(f'ds_read_b128 v[{dst}:{dst+3}], v9 offset:{512 + 512*f[3] - 64*f[2] - 32}')]
            if f[0] == 'h9': return [Ins(f'ds_read_b128 v[{dst}:{dst+3}], v9 offset:{512 + 512*f[1] - 48}')]
            if f[0] == 'x': return [Ins(f'ds_read_b128 v[{dst}:{dst+3}], v13 offset:{2048*f[1]}')]
            if f[0] == 'k32': return kread(32, dst)
        bb, pinned, head = alloc_frags(seq, 'v_mfma_f32_16x16x32_bf16', list(range(56, 96, 4)), fragload, lead=self.o('lead', 7))
        S.emit(head)
        def cvts(us):
            o = []
            for u in us:
                d = 112 + 8*(u & 1)
                o += L('\n'.join(f'v_cvt_pk_bf16_f32 v{40+4*u+r}, v{d+r}, v{d+4+r}' for r in range(4)))
            return o
        farld = []
        for dl in range(4):
            o = 16*(3 - dl)
            farld += [Ins(f'ds_read2_b32 a[{240+4*dl}:{241+4*dl}], v14 offset0:{o} offset1:{o+1}'), Ins(f'ds_read2_b32 a[{242+4*dl}:{243+4*dl}], v14 offset0:{o+2} offset1:{o+3}')]
        N = len(bb)
        dr = self.o('drain', 46)
        gfA = nA + 10 + dr; gfB = nB + 10 + self.o('drainb', 58); gfC = nC + 10 + self.o('drainc', 48)
        g_poll = self.o('g_poll', 130); g_chk = self.o('g_chk', 165)
        pc = self.pollC(0, 'v31')
        c0, c1, c2, c3 = [c if not (k < 3 and self.o('early', 3) >> k & 1) else [] for k, c in enumerate(self.conv_late())]
        self.pB = self.pollC(1, 'v192')
        self.pipe = Pipe(self.o('sv', 68), self.o('svst', 280), self.o('win', 480))
        wck = Fill([wchk] if ecw >= 500 else [], max(0, ecw - 500), max(0, ecw - 500), prio=5, hard=True, name='w1')
        w1f = Fill(self.w1_loads(npre_w1, 60), 0, 10**9, prio=1, name='w1', asap=True, carry=True, after=[wck]); self.w1f = w1f
        lf = Fill(c0 + c1 + c2 + c3, 0, 1, prio=2, name='late', slack=1)
        marks = [(0, 0), (len(c0), 7), (len(c0 + c1), 18), (len(c0 + c1 + c2), a1 - 4), (len(c0 + c1 + c2 + c3), 66)]
        for (k0, g0), (k1, g1) in zip(marks, marks[1:]):
            for k in range(k0, k1): lf.want[k] = g0 + (g1 - g0)*(k - k0)/(k1 - k0)
        tc = Fill(L(f's_mov_b32 s46, {16*self.TPI}\ns_mov_b32 s47, {32*self.TPI}\ns_mov_b32 s48, {48*self.TPI}') + self.tile_consts() + self.g1_pre[0], 68, 165, prio=1, name='g1pre', ahead=10, after=[lf])
        ck = Fill([self.stamp('_chk0') + self.check(pc, ['v31'], None) + self.stamp('_chk1')], g_chk, g_chk, prio=5, hard=True, name='tail')
        tail = Fill(self.tile_dma(0) + [self.barrier()] + self.ic2_loads(), g_chk, N - 3, prio=4, asap=True, after=[ck], name='tail')
        fpb = Fill([self.pB], N - self.o('gpB', 14), N - self.o('gpB', 14), prio=5, hard=True, name='tail')
        g1v = Fill(self.g1_pre[1], xlast + 2, N - 8, prio=1, name='g1pre', ahead=30, after=[tc])
        for k, it in enumerate(g1v.items):
            if ('v', 31) in it[0].defs: break
        for kk in range(k, len(g1v.items)): g1v.lo[kk] = g_chk + 4
        fills = [
            Fill(kreads[npre:], 0, 70, prio=3, hard=True),
            Fill(cvts((0, 1)), a1 + 8, a1 + 15, prio=2, hard=True),
            Fill(cvts((2, 3)), a2 + 8, a2 + 15, prio=2, hard=True),
            Fill(farld[:4], nB - 4, nB + 4, prio=2, hard=True, after=[lf]), Fill(farld[4:], nB + 30, nB + 50, prio=2),
            Fill(self.epi(0, '0', 'pA') + L(f'buffer_store_dword v127, v126, {sWS}, 0 offen sc1', tag='pA'), nA + 3, nA + 10, prio=3, burst=True),
            Fill(self.epi(1, 's46', 'pB'), nB + 3, nB + 10, prio=3, burst=True),
            Fill(self.epi(2, 's47', 'pC'), nC + 3, nC + 10, prio=3, burst=True),
            wck, w1f, lf, tc, g1v, ck, tail, fpb,
            Fill([self.stamp('_fa0') + self.flagC(0, 'pA') + self.stamp('_fa1')], gfA, gfA, prio=4, hard=True, after=[lf]),
            Fill([self.stamp('_fb0') + self.flagC(1, 'pB') + self.stamp('_fb1')], gfB, gfB, prio=4, hard=True),
            Fill([self.flagC(2, 'pC')], gfC, gfC, prio=4, hard=True),
            Fill([pc], g_poll, g_poll, prio=4, hard=True, name='tail'),
        ]
        if isinstance(self.stamps, list):
            for nm in self.stamps:
                if nm.startswith('_C'): fills.append(Fill([self.stamp(nm)], int(nm[2:]), int(nm[2:]), prio=9, hard=True))
        merged = interleave(bb, fills, pinned, report='conv', pipe=self.pipe,
                            quiet=[(q, self.o('qx', 0)) for b_, q in ((1, nA + 10), (2, nB + 10), (4, g_poll), (8, nC + 10)) if self.o('quiet', 0) & b_])
        S.emit(merged)
        k0 = max(k for k, i in enumerate(merged) if i in ck.items[0])
        self.mirror = [i for i in merged[k0+1:] if i.src in ('tail', 'w1') or i.kind == 'vmem']
        done = [i for i in merged[:k0] if i.src == 'w1' and i.kind == 'vmem' and i.defs]
        self.nA2 = npre_w1 + len(done)
        self.w1cur = {r: [i for i in merged[:k0] if i.src == 'w1' and ('s', 67 + r) in i.defs][-1] for r in range(3)}
        S.emit(self.stamp('conv'))
    def flagC(self, stage, tag, skip=False):
        o = self.barrier([tag])
        if skip: o += L('s_cmp_eq_u32 s0, 1\ns_cbranch_scc1 L_noflc')
        for r in range(self.RC//4): o += L(f's_atomic_swap {sN}, s[4:5], s66 offset:{stage*self.CSTG + r*self.CREP}')
        if skip: o += L('L_noflc:')
        return o
    def epi(self, j, soff, tag, t=None):
        t = t or 32 + 4*(j & 1); qa, qb = 96 + 8*j, 100 + 8*j
        return L(f'''
        v_cvt_pk_bf16_f32 v{t}, v{qa}, v{qa+1}
        v_cvt_pk_bf16_f32 v{t+2}, v{qb}, v{qb+1}
        v_cvt_pk_bf16_f32 v{t+1}, v{qa+2}, v{qa+3}
        v_cvt_pk_bf16_f32 v{t+3}, v{qb+2}, v{qb+3}
        v_permlane16_swap_b32 v{t}, v{t+2}
        v_permlane16_swap_b32 v{t+1}, v{t+3}
        ''') + L(f'buffer_store_dwordx4 v[{t}:{t+3}], v15, {sWS}, {soff} offen sc1', tag=tag)
    def mod_unit(self, S, su, scol='s71', va='v57', tag='moddma', mid=(), also=()):
        S.emit(f's_and_b32 s58, {su}, 1\ns_mul_i32 s58, s58, 640\nv_add_u32 v58, s58, v51')
        S.wait_tags([tag] + list(also)); S.emit('s_waitcnt lgkmcnt(0)\ns_barrier'); S.emit(list(mid))
        for b in range(10):
            S.emit(f'''
            ds_read_b64_tr_b16 v[{128+8*b}:{129+8*b}], {va} offset:{4096*b}
            ds_read_b64_tr_b16 v[{130+8*b}:{131+8*b}], {va} offset:{4096*b+512}
            ds_read_b128 v[{132+8*b}:{135+8*b}], v58 offset:{64*b}
            ''')
        for b in range(10):
            S.emit(f'v_mfma_f32_16x16x32_bf16 v[52:55], v[{132+8*b}:{135+8*b}], v[{128+8*b}:{131+8*b}], {"0" if b == 0 else "v[52:55]"}')
        S.emit(f'''
        s_and_b32 s58, {su}, 1
        s_mul_i32 s58, s58, 3840
        s_add_u32 s58, s58, {scol}
        s_lshl_b32 s59, s3, 4
        s_add_u32 s58, s58, s59
        s_lshl_b32 s58, s58, 3
        s_add_u32 s58, s58, {WS_MODP}
        v_mov_b32 v53, {sN}
        buffer_store_dwordx2 v[52:53], v59, {sWS}, s58 offen sc1
        ''')
    def w2_dma(self, sT):
        o = L(f'''
        s_mul_hi_u32 s40, {sT}, {(2**32 + 9)//10}
        s_mul_i32 s58, s40, 10
        s_sub_u32 s41, {sT}, s58
        s_lshl_b32 s40, s40, 2
        s_add_u32 s40, s40, s3
        s_mul_hi_u32 s58, s40, {(2**32 + 2)//3}
        s_mul_i32 s59, s58, 3
        s_sub_u32 s59, s40, s59
        s_mul_i32 s58, s58, 96
        s_mul_i32 s42, s59, 48
        s_cmp_eq_u32 s59, 2
        s_cselect_b32 s42, 32, s42
        s_cselect_b32 s43, 8, 4
        s_cselect_b32 s44, 48, 16
        s_cselect_b32 s45, 0, 4
        s_mul_i32 s43, s43, 1280
        s_mul_i32 s44, s44, 1280
        s_add_u32 s58, s58, s42
        s_mul_i32 s58, s58, 1280
        s_lshl_b32 s59, s41, 7
        s_add_u32 s42, s58, s59
        s_add_u32 s43, s42, s43
        v_and_b32 v12, s45, v104
        v_add_u32 v12, v12, v104
        v_mul_u32_u24 v12, 1280, v12
        v_add_u32 v13, v12, v106
        v_add_u32 v12, v12, v105
        ''')
        for d in range(4):
            if d == 2: o += L('s_add_u32 s42, s42, s44\ns_add_u32 s43, s43, s44')
            o += L(f's_add_u32 m0, s66, {1024*d}\ns_nop 0')
            o += L(f'buffer_load_dwordx4 v{12+(d&1)}, {sWD}, s{42+(d&1)} offen nt lds', tag='w2dma')
            o += L(f's_add_u32 m0, s66, {57344 + 1024*d - 128}\ns_nop 0')
            o += L(f'buffer_load_dwordx4 v{12+(d&1)}, {sWD}, s{42+(d&1)} offen offset:128 nt lds', tag='w2dma')
        return o
    def w2_finish(self):
        return L(f'''
        s_mul_i32 s58, s41, 192
        s_add_u32 s58, s58, s40
        s_lshl_b32 s58, s58, 10
        s_add_u32 s58, s58, {WS_W2P}
        ''') + self.prep_task('w2dma', 's58', 49152, 'w2st', tmp=208) + L('s_add_u32 s58, s58, 49152') + self.prep_task('w2dma', 's58', 49152, 'w2st', tmp=224, loff=57344)
    def spare_path(self, S):
        S.set_state(self.st_spare)
        S.emit('L_spare:'); S.dummy = 'ds_read_b32 v1, v3'; S.emit(self.touch('L_s')); S.emit('L_s0:\ns_mov_b64 exec, -1'); S.emit(self.common_consts()[:14]); S.emit(self.late_consts()[:2])
        S.emit(f'''
        s_lshl_b32 s58, s3, 5
        v_subrev_u32 v57, s66, v112
        v_xor_b32 v57, s58, v57
        v_add_u32 v56, {L_H}, v57
        v_lshrrev_b32 v58, 4, v2
        v_lshlrev_b32 v58, 4, v58
        v_add_u32 v51, {L_VEC}, v58
        v_lshlrev_b32 v59, 3, v2
        v_mov_b32 v43, {OOB}
        v_cmp_gt_u32 vcc, 16, v2
        v_add_u32 v42, {L_VEC}, v12
        s_mov_b32 s65, -1
        v_cndmask_b32 v59, v43, v59, vcc
        ''')
        for k in range(4): S.emit(f'v_lshlrev_b32 v{32+k}, 16, v{200+(k>>1)}' if k % 2 == 0 else f'v_and_b32 v{32+k}, 0xffff0000, v{200+(k>>1)}')
        for op in ('v_mul_f32 T, 0xbfb8aa3b, X', 'v_exp_f32 T, T', 'v_add_f32 T, 1.0, T', 'v_rcp_f32 T, T', 'v_mul_f32 X, X, T'):
            for k in range(4): S.emit(op.replace('T', f'v{36+k}').replace('X', f'v{32+k}'))
        S.emit('v_cvt_pk_bf16_f32 v32, v32, v33\nv_cvt_pk_bf16_f32 v33, v34, v35\nds_write_b64 v42, v[32:33]')
        S.emit(self.mod_late)
        S.emit(f's_cmp_lt_u32 {sJ}, 23\ns_cbranch_scc1 L_sp_a')
        st = S.state()
        self.mod_unit(S, 's70'); S.emit(self.stamp('slot0'))
        S.emit('s_sub_u32 s46, s2, 184\ns_cmp_ge_u32 s46, 60\ns_cbranch_scc1 L_sp_b2done\ns_lshl_b32 s46, s46, 1')
        S.emit(self.w2_dma('s46')); S.emit(self.w2_finish())
        S.emit('s_lshl_b32 s58, s46, 6\ns_lshl_b32 s59, s3, 2\ns_add_u32 s65, s58, s59\ns_branch L_sp_b2done')
        S.set_state(st)
        S.emit('L_sp_a:\ns_sub_u32 s46, s2, 64')
        md = self.mod_dma('s46', 's47', L_H, 'mod2'); nm = self.o('m2mid', 10)
        S.emit(md[0]); S.emit(flat(md[1][:nm]))
        self.mod_unit(S, 's70'); S.emit(self.stamp('slot0'))
        S.emit(flat(md[1][nm:]))
        self.mod_unit(S, 's46', 's47', 'v56', 'mod2')
        S.emit('L_sp_b2done:')
        S.emit(self.stamp('slot1'))
        S.emit(self.touch('L_gp')); S.emit('L_sp_t2:')
        S.emit(self.g_setup())
        S.emit(f'''
        v_mov_b32 v56, {OOB}
        v_mov_b32 v57, {OOB}
        s_mov_b32 s40, 0
        s_mov_b32 s41, 0
        s_mov_b32 s42, 0
        s_cmp_ge_u32 {sXC}, 4
        s_cbranch_scc1 L_sp_nog
        ''')
        S.emit(f'''
        v_min_u32 v56, 159, v0
        v_lshlrev_b32 v57, 5, v56
        v_add_u32 v57, {WS_MODP + 3*640*8}, v57
        v_add_u32 v58, {640*8}, v57
        s_mov_b32 s59, {3840*8}
        ''')
        gl = []
        for k, (a, so) in enumerate((('v58', '0'), ('v58', 's59'), ('v57', '0'), ('v57', 's59'))):
            gl += L(f'buffer_load_dwordx4 v[{64+8*k}:{67+8*k}], {a}, {sWS}, {so} offen sc1\nbuffer_load_dwordx4 v[{68+8*k}:{71+8*k}], {a}, {sWS}, {so} offen offset:16 sc1')
        S.emit(gl)
        S.emit(self.check(gl, [f'v{65+2*k}' for k in range(16)], 'v50', sleep=8))
        for k in range(4):
            S.emit(f'''
            v_add_f32 v{64+2*k}, v{64+2*k}, v{72+2*k}
            v_add_f32 v{80+2*k}, v{80+2*k}, v{88+2*k}
            v_cvt_pk_bf16_f32 v{64+2*k}, 0, v{64+2*k}
            v_add_f32 v{64+2*k}, 1.0, v{64+2*k}
            ''')
        S.emit(f'''
        v_cvt_pk_bf16_f32 v72, v64, v66
        v_cvt_pk_bf16_f32 v73, v68, v70
        v_cvt_pk_bf16_f32 v74, v80, v82
        v_cvt_pk_bf16_f32 v75, v84, v86
        v_lshlrev_b32 v56, 3, v56
        v_add_u32 v56, {L_VEC + 1536}, v56
        ds_write_b64 v56, v[72:73]
        ds_write_b64 v56, v[74:75] offset:1280
        v_and_b32 v57, 1, v2
        v_mul_u32_u24 v57, 1280, v57
        v_lshrrev_b32 v58, 5, v2
        v_lshl_add_u32 v57, v58, 4, v57
        s_and_b32 s59, s3, 1
        s_mul_i32 s58, s59, 640
        s_add_u32 s58, s58, {L_VEC + 1536}
        v_add_u32 v57, s58, v57
        s_waitcnt lgkmcnt(0)
        s_barrier
        ''')
        for s in range(20): S.emit(f'ds_read_b128 v[{128+4*s}:{131+4*s}], v57 offset:{32*s}')
        S.emit(f'''
        s_lshr_b32 s58, s3, 1
        s_mul_i32 s58, s58, 3
        s_mul_i32 s43, {sSIG}, 6
        s_add_u32 s58, s58, s43
        s_lshl_b32 s58, s58, 10
        s_lshl_b32 s43, s59, 9
        s_add_u32 s58, s58, s43
        s_add_u32 s58, s58, {WS_WX}
        s_lshl_b32 s43, s59, 10
        s_add_u32 s42, s58, s43
        s_sub_u32 s40, s58, s43
        s_add_u32 s40, s40, 1024
        s_add_u32 s41, s58, 2048
        v_mov_b32 v58, {OOB}
        v_cmp_gt_u32 vcc, 32, v2
        s_nop 1
        v_cndmask_b32 v56, v58, v3, vcc
        v_cndmask_b32 v57, v58, v5, vcc
        ''')
        S.emit('L_sp_nog:')
        S.emit(self.stamp('_xin'))
        pw = self.pollW()
        S.emit(pw); S.emit(self.check(pw, ['v4'], None, sleep=8))
        S.emit(f's_cmp_eq_u32 s65, -1\ns_cbranch_scc1 L_sp_nw2\ns_atomic_swap {sN}, s[4:5], s65 offset:{WS_FLW2}\nL_sp_nw2:')
        S.emit(self.stamp('slot2'))
        S.emit(f's_cmp_lt_u32 {sJ}, 24\ns_cbranch_scc1 L_sp_p0\ns_cmp_lt_u32 {sJ}, 28\ns_cbranch_scc1 L_sp_p1')
        st = S.state()
        for v in (2, 0, 1):
            S.set_state(st)
            if v != 2: S.emit(f'L_sp_p{v}:')
            lds = self.w1_loads(0, 60, only=v) + self.w1_loads(0, self.nA2, skip=v)
            nld = 0; k = 0; lag = self.o('xlag', 9)
            for it in lds:
                S.emit(it)
                if it[0].kind == 'vmem':
                    nld += 1
                    if nld > lag and k < 20:
                        S.emit(f'v_mfma_f32_32x32x16_bf16 v[64:79], v[{128+4*k}:{131+4*k}], a[{12*k+4*v}:{12*k+4*v+3}], {"0" if k == 0 else "v[64:79]"}'); k += 1
            assert k == 20
            d = 64
            S.emit(f'''
            v_cvt_pk_bf16_f32 v{d+2}, 0, v{d}
            v_cvt_pk_bf16_f32 v{d+3}, 0, v{d+1}
            v_sub_f32 v{d}, v{d}, v{d+2}
            v_sub_f32 v{d+1}, v{d+1}, v{d+3}
            v_cvt_pk_bf16_f32 v{d}, -v{d+2}, -v{d}
            v_cvt_pk_bf16_f32 v{d+1}, v{d+3}, v{d+1}
            v_mov_b32 v{d+2}, 0
            v_mov_b32 v{d+3}, {sN}
            buffer_store_dwordx4 v[{d}:{d+3}], v{57 if v == 1 else 56}, {sWS}, s{40+v} offen sc1
            ''')
            if v != 1: S.emit('s_branch L_sp_pj')
        S.emit('L_sp_pj:')
        S.emit(self.stamp('_wok'))
        S.emit(self.tile_consts())
        pc = self.pollC(0, 'v128')
        S.emit('s_waitcnt lgkmcnt(0)'); S.emit(pc)
        S.emit(f'''
        v_mov_b32 v15, {OOB}
        s_mov_b32 s47, 0
        s_mov_b32 s48, 0
        ''')
        S.emit(cp(flat(self.g1_pre[0]) + flat(self.g1_pre[1])))
        S.emit('s_barrier')
        S.emit(self.stamp('kexp'))
        S.emit(self.check(pc, ['v128'], None, sleep=9))
        S.emit(self.stamp('_chk1'))
        S.emit(cp(list(self.w1cur.values()))); S.emit(cp(self.mirror))
        tail = [i.text for i in S.vm]
        assert tail == [i.text for i in self.join_vm[-len(tail):]] or [i.text for i in self.join_vm] == tail[-len(self.join_vm):], (tail, self.join_vm)
        S.emit(self.stamp('conv'))
        S.emit('s_branch L_g1')
    def finish(self, S):
        if self.probe:
            S.emit(self.stamp('end'))
            S.wait_all(); S.out.append(Ins('s_waitcnt vmcnt(0) lgkmcnt(0)'))
            k = self.stamp_names.index(self.probe)
            role = self.o('prole', 2)
            S.emit(f's_sub_u32 s58, s{78+2*k}, s78')
            if role < 2: S.emit(f's_cmp_eq_u32 s0, {role}\ns_cselect_b32 s58, s58, 0')
            if self.o('pwg', -1) >= 0: S.emit(f's_cmp_eq_u32 s2, {self.o("pwg", 0)}\ns_cselect_b32 s58, s58, 0')
            S.emit('s_min_u32 s58, s58, 20000\ns_add_u32 s58, s58, 6000')
            if self.o('ponly', -1) >= 0: S.emit(f's_cmp_eq_u32 s2, {self.o("ponly", 0)}\ns_cselect_b32 s58, s58, 0')
            S.emit('L_spin:')
            S.out += L('s_memrealtime s[60:61]\ns_waitcnt lgkmcnt(0)\ns_sub_u32 s60, s60, s78\ns_cmp_lt_u32 s60, s58\ns_cbranch_scc1 L_spin')
        elif self.stamps:
            S.emit(self.stamp('end'))
            S.wait_all()
            S.out.append(Ins('s_waitcnt vmcnt(0) lgkmcnt(0)'))
            S.emit(f'''
            s_lshl_b32 s58, s2, 2
            s_add_u32 s58, s58, s3
            s_lshl_b32 s58, s58, 8
            s_add_u32 s58, s58, {WS_DBG}
            v_mov_b32 v31, {OOB}
            v_writelane_b32 v31, 0, 0
            ''')
            for k in range(len(self.stamp_names)):
                S.emit(f'v_mov_b32 v1, s{78+2*k}\nbuffer_store_dword v1, v31, {sWS}, s58 offen offset:{4*k}')
            S.emit(f'v_mov_b32 v1, {sBUD}\nbuffer_store_dword v1, v31, {sWS}, s58 offen offset:60')
        S.emit('s_endpgm')
    def build(self):
        import gen2, fw
        fw.LDSLIM[0] = self.o('ldslim', 56)
        self.g1_pre = gen2.g1_pre(self)
        P = Stream(); self.prologue(P)
        S = Stream(); self.conv_path(S)
        S.emit('L_g1:'); self.join_vm = list(S.vm)
        if self.stop == 'conv':
            S.emit('s_nop 7')
            S.emit(self.epi(2, 's47', 'p2') + self.epi(3, 's48', 'p2'))
        else:
            import gen2
            gen2.gemms(self, S)
        if self.o('wsite', -1) >= 0:
            k0 = self.o('wsite', 0); start = max(k for k, i in enumerate(S.out) if 'hw' in i.waitfor) + 1
            sites = []; gap = 0
            for k in range(start, len(S.out)):
                i = S.out[k]
                if i.kind == 'mfma': gap += 1
                if (i.mn == 's_waitcnt' and 'vmcnt' in i.text) or i.mn == 's_barrier' or i.mn == 's_cbranch_vccnz' or (i.mn == 's_cmp_lg_u64' and S.out[k+2].mn == 's_cmp_lg_u64'): sites.append((k, gap, i))
            self.nsites = len(sites); self.stamps = True
            ins = []
            for n, (k, gp, i) in enumerate(sites[k0:k0+5]):
                ph = f'C{gp}' if gp <= 238 else (f'G{gp-238}' if gp <= 484 else f'H{gp-484}')
                nm = ph + {'s_waitcnt': 'w' + i.text.split('(')[1].split(')')[0] if i.mn == 's_waitcnt' else '', 's_barrier': 'bar', 's_cbranch_vccnz': 'chk', 's_cmp_lg_u64': 'schk'}[i.mn]
                ins.append((k, self.stamp(f'.{n}'), self.stamp(nm + '.' * n), {'s_cbranch_vccnz': 2, 's_cmp_lg_u64': 5}.get(i.mn, 1)))
            for k, a_, b_, w in reversed(ins): S.out[k:k+w] = a_ + S.out[k:k+w] + b_
            self.stamps = ['none']
        self.finish(S)
        slow1 = self.slow; self.slow = []
        Q = Stream(); self.spare_path(Q)
        if self.o('static', 0):
            k0 = max(k for k, i in enumerate(S.out) if 'hw' in i.waitfor); k1 = max(k for k, i in enumerate(S.out) if 'pw3' in i.waitfor)
            for k in range(k0, k1):
                i = S.out[k]
                if i.kind == 'vmem' and self.o('static', 0) == 2 and 'store' not in i.mn:
                    continue
                if i.kind == 'vmem' or i.note == 'async': S.out[k] = Ins('s_mov_b32 vcc_hi, 0x12345')
        dm = self.o('drop', 0)
        if dm:
            import re
            pats = {1: r'buffer_load_dwordx4 a\[\d+:\d+\], v[35], s\[4:7\], s6[789]',
                    2: r'buffer_load_dword v\d+, v4,', 4: r'buffer_store_dwordx4 v\[\d+:\d+\], v1[578],', 8: r'buffer_store_dword v1, v30',
                    16: r'buffer_load_dwordx4 v6, .* lds', 32: r'buffer_load_dwordx4 v\[\d+:\d+\], v3, s\[4:7\], s6[78]', 64: r'buffer_(load|store)_dwordx2 v\[(10:11|32:33)\]'}
            pats[256] = r'(buffer_load_dwordx4 v1[23], s\[24:27\]|buffer_store_dwordx4 v\[\d+:\d+\], v3, s\[4:7\], s58)'
            pats[512] = r'buffer_store_dwordx4 v\[\d+:\d+\], v(3|199), s\[4:7\], s3[56]'
            lists = [S.out] + ([Q.out] if dm & 128 else [])
            for lst in lists:
                for k, i in enumerate(lst):
                    if any(dm & b and re.match(p, i.text) for b, p in pats.items()): lst[k] = Ins('s_mov_b32 vcc_hi, 0x12345')
        body = S.out + slow1 + Q.out + self.slow
        body, npages, nbytes, mis = layout(body, minpages=8)
        for i in P.out: i.text = i.text.replace('@CODEMAX@', str(nbytes // 128 * 128))
        pro, _, pbytes, _ = layout(P.out, stubs=False)
        self.info = dict(pages=npages, bytes=nbytes, pro=pbytes, misaligned=mis, nops=S.nops, waits=S.nwait, dummy=S.ndummy, n=len(S.out))
        self.log = P.log + S.log + Q.log
        txt = f'; @launch grid=(256,1,1) block=(256,1,1) lds={LDS_BYTES}\n.amdgcn_target "amdgcn-amd-amdhsa--gfx950"\n.text\n.p2align 12\n.globl {NAME}\n.p2align 8\n.type {NAME},@function\n{NAME}:\n'
        txt += render(pro)
        txt += '.p2align 12\n' + render(body)
        if not self.o('nt', 1): txt = txt.replace(' nt lds', ' lds').replace(' nt\n', '\n')
        txt += f'''.section .rodata,"a"
.p2align 6
.amdhsa_kernel {NAME}
  .amdhsa_next_free_vgpr 512
  .amdhsa_next_free_sgpr 102
  .amdhsa_accum_offset 256
  .amdhsa_group_segment_fixed_size 0
  .amdhsa_kernarg_size 144
  .amdhsa_user_sgpr_count 2
  .amdhsa_user_sgpr_kernarg_segment_ptr 1
  .amdhsa_system_sgpr_workgroup_id_x 1
  .amdhsa_float_denorm_mode_32 {self.o('denorm', 3)}
.end_amdhsa_kernel
'''
        return txt

def alloc_frags(seq, mn, pool, loader, lead, maxper=1, notbefore=None):
    first = {}; last = {}
    for k, (D, A, B, C) in enumerate(seq):
        for f in (A, B):
            if isinstance(f, tuple): first.setdefault(f, k); last[f] = k
    order = sorted(first, key=lambda f: first[f])
    freeat = {r: -1 for r in pool}
    used = {}; pinned = {}; head = []; reg = {}
    for f in order:
        r = min(freeat, key=lambda x: freeat[x])
        lds = loader(f, r)
        want = first[f] - 1 - lead
        lo = max(freeat[r], notbefore(f) if notbefore else -1)
        for i in lds:
            g = max(want, lo)
            if g >= 0:
                c = g
                while c > max(lo, 0) and used.get(c, 0) >= maxper and c > g - 4: c -= 1
                if used.get(c, 0) >= maxper:
                    c = g
                    while used.get(c, 0) >= maxper and c < first[f] - 3: c += 1
                g = c
            assert g < first[f], (f, g, first[f])
            if g < 0: head.append(i)
            else: pinned.setdefault(g, []).append(i); used[g] = used.get(g, 0) + 1
        reg[f] = r; freeat[r] = last[f]
    R = lambda f: f'v[{reg[f]}:{reg[f]+3}]' if isinstance(f, tuple) else f
    bb = [Ins(f'{mn} {D}, {R(A)}, {R(B)}, {C}') for D, A, B, C in seq]
    return bb, pinned, head

if __name__ == '__main__':
    import argparse
    ap = argparse.ArgumentParser(); ap.add_argument('-o', default='k.s'); ap.add_argument('--stop'); ap.add_argument('--stamps', action='store_true'); ap.add_argument('--log', action='store_true')
    ap.add_argument('--opt', default=''); ap.add_argument('--audit', action='store_true'); ap.add_argument('--probe')
    a = ap.parse_args()
    opt = {k: int(v) for k, v in (x.split('=') for x in a.opt.split(',') if x)}
    g = Gen(stop=a.stop, stamps=a.stamps, probe=a.probe, **opt)
    t = g.build(); open(a.o, 'w').write(t)
    print(g.info, g.stamp_names)
    if a.log: print('\n'.join(g.log))
    import fw
    print('\n'.join(x for x in fw.AUDIT if a.audit or x.startswith('CONFLICT') or x.startswith('sched') or (a.log and 'place' in x)))
```

```python
import re, subprocess, os, tempfile

REG = re.compile(r'^(-|abs\()?([vas])(?:(\d+)|\[(\d+):(\d+)\])\)?$')
TRANS = ('v_exp_f32', 'v_log_f32', 'v_rcp_f32', 'v_rsq_f32', 'v_sqrt_f32', 'v_sin_f32', 'v_cos_f32')
NODEF_S = ('s_cmp', 's_cbranch', 's_waitcnt', 's_barrier', 's_nop', 's_branch', 's_setprio', 's_sleep', 's_endpgm', 's_bitcmp')

def regs_of(op):
    op = op.strip()
    if op in ('vcc', 'exec', 'm0'): return [op]
    if op in ('vcc_lo', 'vcc_hi'): return ['vcc']
    if op in ('exec_lo', 'exec_hi'): return ['exec']
    m = REG.match(op)
    if not m: return []
    k = m.group(2)
    if m.group(3) is not None: return [(k, int(m.group(3)))]
    return [(k, i) for i in range(int(m.group(4)), int(m.group(5)) + 1)]

class Ins:
    __slots__ = ('text', 'mn', 'kind', 'defs', 'uses', 'ops', 'tag', 'waitfor', 'size', 'srcc', 'srcab', 'passes', 'wide', 'lanesel', 'note', 'src', 'xuses', 'xdefs', 'lines')
    def __init__(self, text, tag=None, waitfor=None):
        self.text = text.strip(); self.tag = tag; self.waitfor = waitfor or []
        self.size = None; self.srcc = []; self.srcab = []; self.passes = 0; self.wide = False; self.lanesel = []; self.note = None; self.src = None; self.xuses = set(); self.xdefs = set(); self.lines = None
        t = self.text
        if t.endswith(':') or t.startswith('.') or t.startswith(';') or t == '':
            self.mn = ''; self.kind = 'label' if t.endswith(':') else 'dir'; self.defs = set(); self.uses = set(); self.ops = []; return
        parts = t.split(None, 1)
        mn = parts[0]; rest = parts[1] if len(parts) > 1 else ''
        ops = []; cur = ''; depth = 0
        for ch in rest:
            if ch == '[': depth += 1
            if ch == ']': depth -= 1
            if ch == ',' and depth == 0: ops.append(cur.strip()); cur = ''
            else: cur += ch
        mods = ''
        if cur.strip():
            sp = cur.strip().split(None, 1); ops.append(sp[0]); mods = sp[1] if len(sp) > 1 else ''
        self.mn = mn; self.ops = ops
        base = re.sub(r'_(e32|e64|dpp|sdwa)$', '', mn)
        R = [regs_of(o) for o in ops]
        flat = lambda L: set(x for l in L for x in l)
        d = set(); u = set()
        if mn.startswith('v_mfma'):
            self.kind = 'mfma'; d = set(R[0]); u = flat(R[1:]); self.srcc = R[3]; self.srcab = R[1] + R[2]
            self.passes = 8 if '32x32' in mn else 4
        elif mn.startswith('v_'):
            self.kind = 'trans' if base in TRANS else 'valu'
            if 'permlane' in mn: d = flat(R); u = flat(R)
            elif base in ('v_add_co_u32', 'v_sub_co_u32', 'v_addc_co_u32'): d = flat(R[:2]); u = flat(R[2:])
            else:
                d = set(R[0]); u = flat(R[1:])
                if base in ('v_fmac_f32', 'v_dot2c_f32_bf16', 'v_writelane_b32') or mn.endswith('_dpp'): u |= d
                if base == 'v_cndmask_b32' and len(ops) == 3: u.add('vcc')
                if base in ('v_readlane_b32', 'v_writelane_b32'): self.lanesel = R[2]
            u.add('exec')
        elif mn.startswith('ds_'):
            self.kind = 'ds'
            if mn.startswith('ds_read') or '_rtn_' in mn or mn.startswith('ds_bperm') or mn.startswith('ds_swizzle'):
                d = set(R[0]); u = flat(R[1:])
                if 'd16' in mn: u |= d
            else:
                u = flat(R)
            if 'addtid' in mn: u.add('m0')
        elif mn.startswith('buffer_') or mn.startswith('global_'):
            self.kind = 'vmem'
            lds = ' lds' in (' ' + mods) or '_lds_' in mn
            if 'load' in mn and not lds:
                d = set(R[0]); u = flat(R[1:])
                if 'd16' in mn: u |= d
            else:
                u = flat(R)
                if lds: u.add('m0')
                if 'store' in mn and ('x3' in mn or 'x4' in mn):
                    self.wide = set(R[0] if mn.startswith('buffer_') else R[1])
        elif mn.startswith('s_atomic'):
            self.kind = 'smem'; u = flat(R); self.note = 'async'
        elif mn.startswith('s_load') or mn.startswith('s_memtime') or mn.startswith('s_memrealtime'):
            self.kind = 'smem'; d = set(R[0]); u = flat(R[1:])
        elif mn.startswith('s_'):
            self.kind = 'salu'
            if any(mn.startswith(p) for p in NODEF_S): u = flat(R)
            else: d = set(R[0]); u = flat(R[1:])
            if re.match(r's_(cmp|add|sub|and|or|xor|lshl|lshr|ashr|bfe|min|max|not|bitcmp)', mn): d.add('scc')
            if re.match(r's_(cselect|cbranch_scc|addc|subb)', mn): u.add('scc')
            if mn.startswith('s_cbranch_vcc'): u.add('vcc')
        else:
            raise ValueError('unknown instruction ' + t)
        self.defs = d; self.uses = u
    def states(self):
        if self.kind in ('label', 'dir'): return 0
        if self.mn == 's_nop': return int(self.ops[0], 0) + 1
        return 1
    def __repr__(self): return self.text

def L(text, **kw):
    out = []
    for l in text.strip('\n').split('\n'):
        l = l.split(';')[0].strip() if not l.strip().startswith(';') else ''
        if l: out.append(Ins(l, **kw))
    return out

def isv(r): return isinstance(r, tuple) and r[0] in 'va'
def iss(r): return r == 'vcc' or (isinstance(r, tuple) and r[0] == 's')

def need_states(p, c):
    n = 0
    pv = p.kind in ('valu', 'trans'); cv = c.kind in ('valu', 'trans')
    if pv:
        dv = set(r for r in p.defs if isv(r)); dsg = set(r for r in p.defs if iss(r))
        if c.kind == 'mfma' and dv & c.uses: n = max(n, 2)
        if cv and dv & c.uses:
            if c.mn.endswith('_dpp') or 'permlane' in c.mn: n = max(n, 2)
            if 'readlane' in c.mn or 'readfirstlane' in c.mn: n = max(n, 1)
            if p.kind == 'trans' and c.kind != 'trans': n = max(n, 1)
        if p.mn.startswith('v_dot2') and (dv & (c.uses | c.defs)):
            same_c = c.mn == p.mn and not (dv & set(regs_of(c.ops[1]) + regs_of(c.ops[2])))
            if not same_c: n = max(n, 3)
        if dsg:
            if cv and dsg & c.uses: n = max(n, 2)
            if cv and dsg & set(c.lanesel): n = max(n, 4)
            if c.kind == 'vmem' and dsg & c.uses: n = max(n, 5)
            if c.kind in ('salu', 'smem') and dsg & c.uses and not c.mn.startswith('s_cbranch'): n = max(n, 1)
    if p.kind == 'mfma':
        big = 12 if p.passes == 8 else 8
        if c.kind == 'mfma':
            if p.defs & set(c.srcab): n = max(n, big)
            if p.defs & set(c.srcc):
                if not (set(c.srcc) == p.defs and c.passes == p.passes): n = max(n, big - 2)
            elif p.defs & c.defs: n = max(n, big)
        elif c.kind in ('valu', 'trans', 'ds', 'vmem'):
            if p.defs & (c.uses | c.defs): n = max(n, big)
            if set(r for r in p.srcc if isv(r)) & c.defs: n = max(n, 7 if p.passes == 8 else 3)
    if p.wide and (p.wide & c.defs): n = max(n, 2 if cv else 1)
    if p.kind == 'salu' and 'm0' in p.defs and 'm0' in c.uses and c.kind in ('ds', 'vmem'): n = max(n, 1)
    return n

class Stream:
    def __init__(self):
        self.out = []
        self.vm = []
        self.lg = []
        self.sm = []
        self.nops = 0; self.nwait = 0
        self.t = 0; self.tm = -99; self.shadow = []; self.dummy = None; self.shadow_len = 1400; self.ndummy = 0
        self.log = []
    def state(self): return (list(self.vm), list(self.lg), list(self.sm))
    def set_state(self, st): self.vm, self.lg, self.sm = list(st[0]), list(st[1]), list(st[2])
    def _raw(self, ins):
        if ins.kind not in ('label', 'dir'):
            dist = 0; need = 0; who = None; tm = None
            for p in reversed(self.out):
                if dist >= 12: break
                if p.kind in ('label', 'dir'): continue
                d = dist
                if p.kind == 'mfma':
                    if tm is None: tm = dist
                    else: tm += p.passes; d = max(dist, tm - 1)
                k = need_states(p, ins) - d
                if k > need: need = k; who = p
                dist += p.states()
            if need > 0:
                self.nops += need
                self.log.append(f'pad {need}: [{who}] -> [{ins}]')
                self.out.append(Ins(f's_nop {need-1}'))
        self.out.append(ins)
        if ins.kind == 'mfma':
            self.t = max(self.t, self.tm); self.tm = self.t + 4*ins.passes; self.t += 8
        else: self.t += cost(ins)
    def _wait(self, vm=None, lg=None):
        parts = []
        self.shadow = [x for x in self.shadow if x[0] > self.t]
        k = sum(x[1] for x in self.shadow)
        if lg is not None and lg < len(self.lg) and lg < k and self.dummy:
            for _ in range(k - lg):
                di = Ins(self.dummy); di.defs = set(); self._raw(di); self.lg.append(di); lg += 1; self.ndummy += 1
        if vm is not None and vm < len(self.vm):
            vm = min(vm, 63); parts.append(f'vmcnt({vm})'); self.vm = self.vm[len(self.vm)-vm:] if vm else []
        if lg is not None and (lg < len(self.lg) or (lg == 0 and self.sm)):
            lg = min(lg, 15); parts.append(f'lgkmcnt({lg})'); self.lg = self.lg[len(self.lg)-lg:] if lg else []
            if lg == 0: self.sm = []
        if parts:
            self.nwait += 1
            self._raw(Ins('s_waitcnt ' + ' '.join(parts)))
    def wait_tags(self, tags):
        vm = lg = None
        for i, o in enumerate(self.vm):
            if o.tag in tags: vm = len(self.vm) - 1 - i
        for i, o in enumerate(self.lg):
            if o.tag in tags: lg = len(self.lg) - 1 - i
        self._wait(vm, lg)
    def wait_all(self): self._wait(0, 0)
    def needs(self, ins):
        touch = ins.uses | ins.defs
        vm = lg = None
        for i, o in enumerate(self.vm):
            if (o.defs & touch) or (o.tag is not None and o.tag in ins.waitfor): vm = len(self.vm) - 1 - i
        for i, o in enumerate(self.lg):
            if (o.defs & touch) or (o.tag is not None and o.tag in ins.waitfor): lg = len(self.lg) - 1 - i
        for o in self.sm:
            if (o.defs & touch) and o.note != 'stamp': lg = 0
        return vm, lg
    def emit(self, x):
        if isinstance(x, str): x = L(x)
        if isinstance(x, (list, tuple)):
            for k, i in enumerate(x):
                self.emit(i)
                if isinstance(i, Ins) and i.note == 'gap':
                    grp = []
                    for y in x[k+1:]:
                        grp.append(y)
                        if y.note == 'gap': break
                    vm = lg = None
                    for y in grp:
                        v, l = self.needs(y)
                        if v is not None: vm = v if vm is None else min(vm, v)
                        if l is not None: lg = l if lg is None else min(lg, l)
                    self._wait(vm, lg)
            return
        ins = x
        if ins.mn == 's_waitcnt':
            m = re.search(r'vmcnt\((\d+)\)', ins.text); m2 = re.search(r'lgkmcnt\((\d+)\)', ins.text)
            self._wait(int(m.group(1)) if m else None, int(m2.group(1)) if m2 else None)
            return
        self._wait(*self.needs(ins))
        self._raw(ins)
        if ins.kind == 'vmem': self.vm.append(ins)
        elif ins.kind == 'ds': self.lg.append(ins)
        elif ins.kind == 'smem' and ins.note == 'async': self.shadow.append((self.t + self.shadow_len, 2 if 'load_dwordx' in ins.mn else 1))
        elif ins.kind == 'smem' and ins.note != 'stamp': self.sm.append(ins)

def ismem(i): return i.kind in ('ds', 'vmem')
def cost(ins):
    k = ins.kind
    if k in ('label', 'dir'): return 0
    if k == 'ds':
        if 'write' in ins.mn: return 20 if 'b128' in ins.mn else (12 if 'b64' in ins.mn else 8)
        return 4
    if k == 'trans': return 8
    if k == 'vmem': return (20 if 'x4' in ins.mn else 12) if 'store' in ins.mn else 8
    if k == 'mfma': return 4 * ins.passes
    if ins.mn == 's_barrier': return 8
    if ins.mn.startswith('s_cbranch'): return 16
    if 'permlane' in ins.mn: return 8
    if ins.mn == 's_nop': return 4 * ins.states()
    return 4

def ldst(i):
    if i.kind == 'vmem': return 32 if ' lds' in i.text else 0
    if i.kind != 'ds': return 0
    if 'write' in i.mn: return 52 if 'b128' in i.mn else 24
    if 'u16' in i.mn: return 32
    return 16 if ('b128' in i.mn or 'read2' in i.mn) else 8
LDSLIM = [56]

class Fill:
    def __init__(self, items, g0, g1, prio=1, hard=False, name=None, ahead=0, slack=None, burst=False, after=(), asap=False, carry=False, flex=0):
        self.items = [i if isinstance(i, list) else [i] for i in items if not (isinstance(i, list) and not i)]
        self.g0 = g0; self.g1 = g1; self.prio = prio; self.hard = hard; self.k = 0; self.name = name
        self.ahead = ahead; self.slack = slack; self.burst = burst; self.after = list(after); self.asap = asap; self.carry = carry; self.flex = flex
        w = [max(1, sum(cost(x) for x in it)) for it in self.items]
        tot = max(sum(w) - (w[-1] if w else 0), 1); acc = 0; self.want = []
        for c in w:
            self.want.append(g0 + (g1 - g0) * acc / tot); acc += c
        self.lo = [g0] * len(self.items)
        self.dl = [g1 if asap else 10**9] * len(self.items)
        if asap: self.want = [g0] * len(self.items)
        self.placed = []

class Pipe:
    def __init__(self, sv=80, st=350, win=450):
        self.sv = sv; self.st = st; self.win = win; self.busy = 0; self.hw = win + 300
        self.now = 0; self.last = 0; self.done = {}; self.ll = 650; self.ls = 1150
    def service(self, i):
        if 'store' in i.mn: return self.st if ('x4' in i.mn and 'sc1' in i.text) else 120
        if i.lines is not None: return max(64, self.sv * i.lines // 8)
        return self.sv

    def issue(self, i):
        lat = self.ls if ('store' in i.mn and 'sc1' in i.text) else self.ll
        self.last = max(self.last + 16, self.now + max(lat, self.busy + 300))
        for r in i.defs: self.done[r] = self.last
        if i.tag: self.done[i.tag] = self.last
        self.busy += self.service(i)
    def wait(self, i):
        return max([0] + [self.done.get(r, 0) - self.now for r in list(i.uses | i.defs) + list(i.waitfor)])

def interleave(backbone, fills, pinned=None, slack=3.0, vgap=66, dlat=None, report=None, pipe=None, quiet=()):
    pinned = pinned or {}
    out = []; est = 0; lastv = -10**9; ready = {}; over = []; idle = 0; blog = []; pipe_extra = 2; stall = []; lb = 0; pred = []
    N = len(backbone)
    for g, m in enumerate(backbone):
        span = 4 * m.passes
        dl = dlat if dlat is not None else (3 if m.passes == 8 else 5)
        hz = 3 if m.passes == 8 else 4
        if pipe:
            w = pipe.wait(m)
            if w > 0: pred.append(f'{g}:mfma:{w}'); pipe.now += w; pipe.busy = max(0, pipe.busy - w)
        for r in m.defs: ready[r] = g + hz
        mem = list(pinned.get(g, [])); alu = []; front = []
        budget = span - 8 - sum(cost(x) for x in mem)
        nxt = backbone[g+1] if g + 1 < N else None
        freeS = not (nxt is not None and any(ready.get(r, -99) > g - 6 and r not in nxt.srcc for r in nxt.srcab))
        for x in mem:
            for r in x.defs: ready[r] = g + dl
        last = g == N - 1
        lb = max(0, lb - span) + sum(ldst(x) for x in mem)
        usedalu = set()
        while True:
            best = None
            for f in fills:
                if f.k >= len(f.items): continue
                it = f.items[f.k]; late = g - f.want[f.k]
                if any(d.k < len(d.items) or (d.placed and d.placed[-1] >= g and not last) for d in f.after): continue
                fin = last and not f.carry
                if not fin and (g < f.lo[f.k] or late < -f.ahead): continue
                sl = f.slack if f.slack is not None else slack
                force = fin or (late >= 0 and f.hard) or (late >= sl and not f.asap) or g >= f.dl[f.k]
                real = [x for x in it if x.kind not in ('label', 'dir')]
                memitem = any(ismem(x) for x in real) and all(ismem(x) or x.kind in ('salu', 'smem') for x in real) and not any(x.mn == 's_barrier' or x.mn.startswith('s_cbranch') for x in real)
                sonly = len(real) == 1 and real[0].kind in ('salu', 'smem') and real[0].mn not in ('s_barrier', 's_nop') and not real[0].mn.startswith('s_cbranch')
                if any(ready.get(r, -99) > g for x in real for r in (x.uses | x.defs)) and not (fin or (late >= sl + 3 and not f.asap) or (f.hard and late >= 0)): continue
                if pipe and f.flex and not fin and g < f.flex and max(pipe.wait(x) for x in real) > 0: continue
                lt = sum(ldst(x) for x in real if x.kind == 'ds')
                if lt and lb + lt > max(LDSLIM[0], lt + 8) and not force: continue
                c = sum(cost(x) for x in real) + sum(16 for a_, b_ in zip(real, real[1:]) if b_.mn == 's_cbranch_vccnz'); where = 'alu'
                if real and real[0].mn == 's_cbranch_vccnz' and id(f) in usedalu and not fin: continue
                if sonly and freeS and id(f) not in usedalu and not any(x.src is f for x in mem): c = 0; where = 'front'
                elif memitem:
                    if id(f) in usedalu:
                        if not force: continue
                        c += 8
                    else: where = 'mem'
                    if any(x.kind == 'vmem' for x in real) and not force:
                        if f.asap:
                            if pipe.busy > pipe.win or any(x.kind == 'vmem' for x in mem): continue
                            if any(q >= g and pipe.busy + pipe.sv + qx > (q - g)*(span + 2) for q, qx in quiet): continue
                        elif not f.burst and est - lastv < vgap: continue
                else:
                    c += 8 * sum(1 for a_, b_ in zip([None] + real, real) if ismem(b_) and not (a_ is not None and ismem(a_)))
                starve = f.asap and pipe.busy < pipe.win // 2 and c <= budget + 8
                if c > budget and not force and not starve and not (not mem and not alu and late >= 0): continue
                key = (0 if (force and (f.hard or c <= budget)) else 1, 0 if c <= budget else 1, -f.prio, -late)
                if best is None or key < best[0]: best = (key, f, it, c, where)
            if best is None: break
            _, f, it, c, where = best
            for x in it: x.src = f
            if pipe:
                w = max(pipe.wait(x) for x in it)
                if w > 0: pred.append(f'{g}:{f.name or it[0].mn}:{w}'); pipe.now += w; pipe.busy = max(0, pipe.busy - w)
            if f.flex and late > 0 and f.k == 0: f.want = [x + late for x in f.want]
            if where == 'front': front += it; freeS = False
            elif where == 'mem': mem += it
            else: alu += it; usedalu.add(id(f))
            for x in it:
                lb += ldst(x) if x.kind == 'ds' else 0
                if x.kind == 'ds':
                    for r in x.defs: ready[r] = g + dl
                elif x.kind == 'vmem':
                    lastv = est
                    if pipe: pipe.issue(x)
            budget -= c; f.k += 1; f.placed.append(g)
        m.note = 'gap'
        out += [m] + front + mem + alu
        est += span + max(0, -budget); over.append(max(0, -budget))
        if pipe:
            if pipe.busy > pipe.hw: stall.append(pipe.busy - pipe.hw); pipe.busy = pipe.hw
            else: stall.append(0)
            pipe.now += span + max(0, -budget) + pipe_extra + stall[-1]
            pipe.busy -= span + max(0, -budget) + pipe_extra
            if pipe.busy < 0: idle -= pipe.busy; pipe.busy = 0
            blog.append(pipe.busy)
    for n, f in enumerate(fills):
        assert f.k == len(f.items) or f.carry, (f.name, f.k)
        f.rest = f.items[f.k:]
        for it in f.items[:f.k]:
            for x in it: x.src = f.name or f'F{n}'
    if report:
        AUDIT.append(f'sched {report}: gaps {N} est {est} over ' + ' '.join(str(sum(over[k:k+10])) for k in range(0, N, 10)))
        if pipe: AUDIT.append(f'sched {report} pipe: idle {idle} stall {sum(stall)}: ' + ' '.join(str(sum(stall[k:k+10])) for k in range(0, N, 10)))
        if pipe: AUDIT.append(f'sched {report} predicted waits: ' + ' '.join(pred))
        for n, f in enumerate(fills):
            if f.placed: AUDIT.append(f'   place {f.name or "F%d" % n}: [{f.g0},{f.g1}] -> {f.placed[0]}..{f.placed[-1]} n={len(f.placed)}')
    audit(out)
    return out

AUDIT = []
def audit(seq):
    last = {}; own = {}; cross = {}
    g = -1
    for i in seq:
        if i.kind == 'mfma' and i.src is None: g += 1
        me = i.src or 'bb'
        for r in (i.uses | i.xuses) - {'exec'}:
            if r in last and last[r][0] != me:
                if (me, r) in own and me != 'bb' and last[r][0] != 'bb' and 'permlane32' not in i.mn:
                    AUDIT.append(f'CONFLICT gap {g}: {me} [{i}] reads {r} last written by {last[r][0]} [{last[r][1]}]')
                cross.setdefault((last[r][0], me), {}).setdefault(r, g)
        for r in i.defs | i.xdefs:
            last[r] = (me, i); own[(me, r)] = i
    def fmt(d):
        return ' '.join((f'{r[0]}{r[1]}' if isinstance(r, tuple) else r) + f'@{g}' for r, g in sorted(d.items(), key=str))
    for (a, b), d in cross.items():
        AUDIT.append(f'flow {a} -> {b}: {fmt(d)}')

CLANG = 'clang'; OBJDUMP = 'llvm-objdump'
def measure_sizes(ins_list):
    real = [i for i in ins_list if i.kind not in ('label', 'dir')]
    txt = '.amdgcn_target "amdgcn-amd-amdhsa--gfx950"\n.text\n' + '\n'.join(
        (i.text if not (i.mn.startswith('s_cbranch') or i.mn == 's_branch') else 's_nop 0') for i in real) + '\n'
    with tempfile.TemporaryDirectory() as td:
        open(td + '/a.s', 'w').write(txt)
        r = subprocess.run([CLANG, '-x', 'assembler', '-target', 'amdgcn-amd-amdhsa', '-mcpu=gfx950', '-c', td + '/a.s', '-o', td + '/a.o'], capture_output=True, text=True)
        if r.returncode: raise RuntimeError(r.stderr[:3000])
        o = subprocess.run([OBJDUMP, '-d', td + '/a.o'], capture_output=True, text=True).stdout
    sz = [len(m.group(1).split()) * 4 for m in re.finditer(r'// [0-9A-F]+: ([0-9A-F ]+)$', o, re.M)]
    assert len(sz) == len(real), (len(sz), len(real))
    for i, s in zip(real, sz): i.size = s

NOPROMO = ('v_readfirstlane', 'v_accvgpr', 'v_permlane', 'v_dot2c', 'v_nop')
def promotable(i):
    return i.kind in ('valu', 'trans') and i.size == 4 and not any(i.mn.startswith(p) for p in NOPROMO) and not re.search(r'_(e32|e64|dpp|sdwa)$', i.mn)

def layout(ins_list, stub_every=4, minpages=0, stubs=True, mode=1):
    measure_sizes(ins_list)
    dostub = stubs
    real = [i for i in ins_list if i.kind not in ('label', 'dir')]
    INF = 1e18
    cur = {(0, 0): (0.0, None)}; hist = []
    prev = None
    for n, i in enumerate(real):
        nxt = {}
        opts = [(0, i.size, 0.0)]
        if promotable(i): opts.append((0, 8, 0.02))
        if i.size == 8:
            free = prev is not None and prev.kind == 'mfma' and i.kind != 'vmem'
            opts.append((4, 8, 0.5 if free else 4.5))
        for (off, fl), (c, _) in cur.items():
            for pad, sz, pc in opts:
                o = off; f = fl; cc = c + pc
                if dostub and (n == 0 or o >= 4096): o = o % 4096 + 4; f = 0
                if pad: o += 4; f = 0
                if sz == 4: f = 0
                elif o % 32 == 28:
                    if f: cc += 4
                    f = 1
                k = (o + sz if dostub else (o + sz) % 32, f)
                if cc < nxt.get(k, (INF,))[0]: nxt[k] = (cc, ((off, fl), pad, sz))
        if len(nxt) > 48:
            best = {}
            for k, v in nxt.items():
                kk = (k[0] % 32, k[1], k[0] >= 4096)
                if kk not in best or v[0] < nxt[best[kk]][0]: best[kk] = k
            nxt = {k: nxt[k] for k in best.values()}
        hist.append(nxt); cur = nxt; prev = i
    k = min(cur, key=lambda x: cur[x][0]); mis = round(cur[k][0])
    choice = [None]*len(real)
    for n in range(len(real) - 1, -1, -1):
        pk, pad, sz = hist[n][k][1]; choice[n] = (pad, sz); k = pk
    out = []; off = 0; page = 0; stubs = []; n = 0
    def stub(p):
        s = Ins(f's_cbranch_execz L_stub{p + stub_every}'); s.size = 4; stubs.append((p, s))
        return [Ins(f'L_stub{p}:'), s]
    for i in ins_list:
        if i.kind in ('label', 'dir'): out.append(i); continue
        pad, sz = choice[n]; n += 1
        if dostub and off >= page * 4096:
            out += stub(page); off += 4; page += 1
        if pad:
            x = Ins('s_nop 0'); x.size = 4; out.append(x); off += 4
        if sz != i.size:
            parts = i.text.split(None, 1); i.text = parts[0] + '_e64 ' + parts[1]; i.size = 8
        out.append(i); off += i.size
    if dostub:
        pos = {id(x): k for k, x in enumerate(out)}
        ksp = [k for k, x in enumerate(out) if x.text == 'L_spare:'][0]
        sp = [p for p, x in stubs if pos[id(x)] > ksp]
        nmain = page - len(sp)
        for p, x in stubs:
            if p in sp: x.text = 's_cbranch_execz L_s0'
            elif p < stub_every: x.text = 's_cbranch_execz L_tdone'
            elif p + stub_every >= nmain: x.text = 's_cbranch_execz L_tdone2'
        for k in range(4):
            out += [Ins(f'.set L_gp{k}, ' + (f'L_stub{4+k}' if 4 + k < nmain else 'L_tdone2'))]
        for k in range(3):
            out += [Ins(f'.set L_s{k+1}, ' + (f'L_stub{sp[k]}' if k < len(sp) else 'L_s0'))]
    return out, page, off, mis

def render(ins_list):
    return '\n'.join((i.text if i.kind in ('label', 'dir') else '    ' + i.text) for i in ins_list) + '\n'
```

```python
from fw import *
from gen import *

ACCK = [128, 96]; ACCH = [144, 112]; ACCS = 160
RING = [40, 44, 48, 52, 56, 60]
RECV = 64
GT = 72
PK = 76
MT = 224; MP = 228
BX = 84
WXK, WXH = 88, 92
vK1, vK3, vI2 = 'v7', 'v8', 'v9'
vST = 10
vTR, vTR2, vEW, vER, vHX, vHY, vSR = 'v12', 'v13', 'v14', 'v16', 'v17', 'v18', 'v19'
IC2 = 20
M32 = 'v_mfma_f32_32x32x16_bf16'; M16 = 'v_mfma_f32_16x16x32_bf16'
def r16(b): return f'v[{b}:{b+15}]'
def w2reg(ct, ks):
    k = ct*12 + ks
    if k < 16: b = 176 + 4*k; return f'v[{b}:{b+3}]'
    if k < 20: b = 240 + 4*(k - 16); return f'a[{b}:{b+3}]'
    if k < 24: b = [20, 24, 32, 36][k - 20]; return f'v[{b}:{b+3}]'
    b = [144, 48, 192][k//12 - 2] + 4*ks; return f'a[{b}:{b+3}]'
def tokreg(stage, ks):
    if stage in (0, 3): b = 4*ks; return f'a[{b}:{b+3}]'
    if stage == 1: b = 96 + 4*ks; return f'a[{b}:{b+3}]'
    b = 128 + 4*ks; return f'v[{b}:{b+3}]'
L_SA = 40960; L_SB = 147456; RES = 240
CG = [8, 9, 10, 11, 16, 17, 18, 19]; CI = [116, 117, 118, 119, 124, 125, 126, 127]

def g1_pre(g):
    sc = L(f'''
    s_and_b32 s33, s3, 1
    s_lshr_b32 s32, s3, 1
    s_mul_i32 s37, {sR}, 6144
    s_add_u32 s37, s37, {WS_ST2}
    s_and_b32 s58, {sSIG}, 3
    s_lshl_b32 s41, s58, 2
    s_lshl_b32 s58, s58, 8
    s_lshl_b32 s59, s33, 7
    s_add_u32 s38, s58, s59
    s_lshr_b32 s58, {sSIG}, 2
    s_lshl_b32 s59, s58, 7
    s_add_u32 s41, s41, s59
    s_lshl_b32 s58, s58, {g.o('stsh', 5)}
    s_add_u32 s38, s38, s58
    s_add_u32 s38, s38, s37
    s_lshl_b32 s58, s32, 10
    s_add_u32 s38, s38, s58
    s_and_b32 s1, {sSIG}, 4
    s_lshl_b32 s1, s1, 8
    s_add_u32 s1, s1, s37
    s_lshl_b32 s58, {sR}, 9
    s_add_u32 s41, s41, s58
    s_add_u32 s41, s41, {WS_FLH}
    s_mul_i32 s58, s3, {FLH_REP}
    s_add_u32 s41, s41, s58
    s_mul_i32 s40, {sR}, 98304
    s_mul_i32 s58, {sSIG}, 3072
    s_add_u32 s40, s40, s58
    s_add_u32 s40, s40, {WS_HH}
    s_mov_b32 s42, 0x01000100
    s_mov_b32 s43, 0x03020302
    s_lshr_b32 s34, {sSIG}, 3
    s_lshl_b32 s34, s34, 2
    s_and_b32 s58, {sSIG}, 3
    s_add_u32 s34, s34, s58
    s_mov_b32 s35, {sR}
    s_bfe_u32 s36, {sSIG}, 0x10002
    s_lshl_b32 s39, s35, 2
    s_add_u32 s39, s39, s3
    s_lshl_b32 s39, s39, 7
    s_add_u32 s39, s39, {WS_FLH}
    s_lshr_b32 s58, {sSIG}, 2
    s_mul_i32 s58, s58, {FLH_REP}
    s_add_u32 s39, s39, s58
    s_mul_i32 s44, s34, {5*49152}
    s_mul_i32 s58, s3, 12288
    s_add_u32 s44, s44, s58
    s_add_u32 s44, s44, {WS_W2P}
    s_lshl_b32 s45, s35, 1
    s_add_u32 s45, s45, s36
    s_mul_i32 s45, s45, 49152
    s_add_u32 s45, s45, s58
    s_add_u32 s45, s45, {WS_HH}
    s_mul_i32 s58, s32, 3
    s_mul_i32 s59, {sSIG}, 6
    s_add_u32 s58, s58, s59
    s_lshl_b32 s58, s58, 10
    s_add_u32 s49, s58, {WS_WX + 2048}
    s_lshl_b32 s59, s33, 10
    s_add_u32 s77, s58, s59
    s_add_u32 s77, s77, {WS_WX}
    s_add_u32 s37, s37, 4096
    s_mov_b32 s8, {sN}
    s_mov_b32 s9, {sN}
    v_bfe_u32 v12, v2, 2, 2
    v_lshrrev_b32 v7, 5, v2
    v_lshl_add_u32 v8, v7, 3, v12
    v_lshrrev_b32 v12, 1, v12
    v_lshl_or_b32 v12, v7, 1, v12
    v_bfe_u32 v7, v2, 4, 1
    v_bfe_u32 v10, v2, 1, 1
    v_lshl_or_b32 v10, v7, 1, v10
    v_xor_b32 v12, v12, v10
    v_lshlrev_b32 v12, 4, v12
    v_lshl_add_u32 v12, v8, 6, v12
    v_and_b32 v10, 1, v2
    v_lshl_add_u32 v12, v10, 3, v12
    s_mul_i32 s58, s33, 20480
    v_add_u32 v12, s58, v12
    v_and_b32 v0, 7, v2
    v_mul_u32_u24 v0, 20, v0
    v_lshrrev_b32 v10, 3, v2
    v_add_lshl_u32 v0, v0, v10, 2
    v_and_or_b32 v0, v2, 3, v0
    v_bfe_u32 v30, v2, 1, 3
    v_mul_u32_u24 v8, 20, v30
    v_lshrrev_b32 v10, 4, v2
    v_add_lshl_u32 v8, v8, v10, 2
    v_lshlrev_b32 v10, 1, v2
    v_xor_b32 v30, v30, v10
    v_and_or_b32 v30, v30, 3, v8
    s_lshl_b32 s58, {sSIG}, 1
    s_add_u32 s58, s58, s33
    s_lshr_b32 s59, s58, 3
    s_and_b32 s58, s58, 7
    s_lshl_b32 s58, s58, 1
    ''' + ''.join(f'''    v_bfe_u32 v10, {r}, 1, 1
    v_lshrrev_b32 v8, 2, {r}
    v_and_or_b32 v10, v8, 2, v10
    v_xor_b32 v10, s59, v10
    v_lshl_add_u32 v10, v10, 4, s58
    v_lshl_add_u32 {r}, {r}, 6, v10
    ''' for r in ('v0', 'v30')))
    ve = L(f'''
    v_add_u32 v13, {L_SLOT[2]}, v12
    s_mul_i32 s58, s3, 6144
    s_add_u32 s58, s58, {L_EX}
    v_add_u32 v14, s58, v3
    s_xor_b32 s59, s3, 1
    s_mul_i32 s59, s59, 6144
    s_add_u32 s59, s59, {L_EX}
    v_add_u32 v16, s59, v3
    v_mul_u32_u24 v17, 49152, v7
    v_and_b32 v18, 15, v2
    v_lshl_add_u32 v18, v18, 4, v17
    v_lshrrev_b32 v19, 5, v2
    v_lshl_add_u32 v17, v19, 8, v18
    s_lshl_b32 s58, s3, 9
    v_add_u32 v17, s58, v17
    s_lshl_b32 s58, s3, 8
    s_add_u32 s58, s58, 2048
    v_add_u32 v18, s58, v18
    v_mul_u32_u24 v19, 0x7f, v19
    v_lshl_or_b32 v18, v19, 24, v18
    v_and_b32 v19, 7, v2
    v_lshlrev_b32 v19, 7, v19
    v_bfe_u32 v10, v2, 3, 2
    v_lshl_add_u32 v19, v10, {g.o('stsh', 5)}, v19
    v_lshrrev_b32 v8, 4, v2
    v_min_u32 v8, 2, v8
    s_mul_i32 s58, s3, 3
    v_add_u32 v8, s58, v8
    v_min_u32 v8, 9, v8
    v_xor_b32 v10, s36, v8
    v_lshrrev_b32 v7, 2, v2
    v_xor_b32 v7, v7, v2
    v_bfe_u32 v7, v7, 1, 1
    v_lshl_or_b32 v10, v10, 1, v7
    v_and_b32 v10, 3, v10
    v_bfe_u32 v7, v2, 2, 2
    v_lshl_add_u32 v8, v8, 3, v7
    v_lshl_add_u32 v8, v8, 2, v10
    v_and_b32 v10, 1, v2
    v_lshl_add_u32 v8, v8, 1, v10
    s_mul_i32 s58, s34, 5120
    v_lshl_add_u32 v31, v8, 3, s58
    ''')
    return sc, ve

def gemms(g, S):
    o = g.o
    S.emit(g.stamp('g1'))
    def stats_step(kind):
        it = []
        if kind == 1: it += [L(f'v_add_u32 v0, {L_SLOT[1]}, v0'), L(f'v_add_u32 v30, {L_SLOT[1]}, v30')]
        if kind == 2:
            it += [L(f's_mul_i32 s72, s32, {L_SLOT[3] - L_SLOT[2]}'), L(f's_add_u32 s72, s72, {L_SLOT[2] - L_SLOT[1]}'), L('v_add_u32 v0, s72, v0'), L('v_add_u32 v30, s72, v30')]
        dsr = lambda d, a, off: L(f'ds_read_u16_d16_hi v{d}, {a} offset:{off}')
        def pair(p, r):
            if p == 0: return [dsr(r, 'v0', 0), dsr(r + 1, 'v0', 2048)]
            if p == 4: return [dsr(r, 'v30', 4096), dsr(r + 1, f'v{r+1}', 4096)]
            return [dsr(r, f'v{r+1}', 0), dsr(r + 1, f'v{r+1}', 2048)]
        adr = lambda p, r: L(f'v_xor_b32 v{r+1}, {64*p + 16*(p >> 1)}, v0') if p < 4 else L(f'v_xor_b32 v{r+1}, 64, v30')
        def use(p, r):
            o_ = []
            for h in range(2):
                x = f'v{r+h}'; ic = IC2 + (p + 4*h if p < 4 else 8 + h)
                if p == 0 and h == 0: o_ += [L(f'v_mul_f32 v32, {x}, v{ic}'), L('v_mul_f32 v33, v32, v32')]
                else: o_ += [L(f'v_mul_f32 {x}, {x}, v{ic}'), L(f'v_add_f32 v32, v32, {x}'), L(f'v_fmac_f32 v33, {x}, {x}')]
            return o_
        it += [adr(1, 36), adr(2, 38)] + pair(0, 34) + pair(1, 36) + pair(2, 38)
        it += use(0, 34) + [adr(3, 34)] + pair(3, 34) + use(1, 36) + [adr(4, 36)] + pair(4, 36) + use(2, 38) + use(3, 34) + use(4, 36)
        for k in ('row_ror:8 row_mask:0xf', 'row_ror:4 row_mask:0xf', 'row_ror:2 row_mask:0xf', 'row_ror:1 row_mask:0xf', 'row_bcast:15 row_mask:0xa', 'row_bcast:31 row_mask:0xc'):
            it.append(L(f'v_add_f32_dpp v32, v32, v32 {k} bank_mask:0xf\nv_add_f32_dpp v33, v33, v33 {k} bank_mask:0xf'))
        fs = g.finish_stats('v32', 'v33', 'v32')
        it += [[i] for i in fs[:-1] + L(f's_mov_b32 s71, {sN}') + fs[-1:]]
        it.append(L('v_readlane_b32 s70, v32, 63'))
        it.append(L(f's_atomic_swap_x2 s[70:71], s[4:5], s38 offset:{2048*kind}'))
        return it
    wxld = L(f'buffer_load_dwordx4 v[{WXK}:{WXK+3}], v3, {sWS}, s77 offen sc1\nbuffer_load_dwordx4 v[{WXH}:{WXH+3}], v5, {sWS}, s49 offen sc1')
    wxfix = g.check(wxld, [f'v{WXK+3}', f'v{WXH+3}'], f'v{MT}', split=True) + [[i] for i in L(f'''
    v_mov_b32 v86, 0
    v_mov_b32 v87, 0
    v_mov_b32 v{WXK+3}, 0
    v_mov_b32 v{WXH+3}, 0
    v_bfe_i32 v{MT}, v2, 3, 1
    v_bfi_b32 v{WXH}, v{MT}, 0, v{WXH}
    v_bfi_b32 v{WXH+1}, v{MT}, 0, v{WXH+1}
    ''')]
    def w2_loads(k0, k1):
        items = []
        for k in range(k0, k1):
            ct, ks = divmod(k, 12); it = []
            if ks % 4 == 0 or k == k0: items.append(L(f's_add_u32 s67, s44, {ct*49152 + 4096*(ks//4)}'))
            it += L(f'buffer_load_dwordx4 {w2reg(ct, ks)}, v3, {sWS}, s67 offen offset:{1024*(ks%4)} sc1')
            items.append(it)
        return items
    def stage(ks0, n, base, pitch):
        it = [L(f's_mul_i32 s73, s3, {pitch}')]
        for i in range(n):
            x = L(f'buffer_load_dwordx4 v3, {sWS}, s67 offen offset:{1024*(i%4)} sc1 lds', tag='stg')
            if i % 4 == 0: it.append(L(f's_add_u32 s67, s44, {2*49152 + 1024*(ks0 + i)}')); it.append(L(f's_add_u32 m0, s73, {base + 1024*i}'))
            it.append(x)
        return it
    stageB = stage(0, 3, L_SB, 3072); stageA = stage(3, 9, L_SA, 9216)
    unstage = [[i] for i in L(f'''
    s_mul_i32 s72, s3, 3072
    s_add_u32 s72, s72, {L_SB}
    v_add_u32 v0, s72, v3
    s_mul_i32 s72, s3, 9216
    s_add_u32 s72, s72, {L_SA}
    v_add_u32 v30, s72, v3
    ''')] + [L(f'ds_read_b128 {w2reg(2, i)}, {"v0" if i < 3 else "v30"} offset:{1024*(i if i < 3 else i - 3)}', waitfor=['stg']) for i in range(12)]
    def resread(j):
        d = RES + 4*j
        if j == 2: return [L(f'v_add_u32 v{d+2}, {L_SLOT[2]}, v31'), L(f'ds_read_b64_tr_b16 v[{d}:{d+1}], v{d+2}'), L(f'ds_read_b64_tr_b16 v[{d+2}:{d+3}], v{d+2} offset:256')]
        return [L(f'ds_read_b64_tr_b16 v[{d+2*e}:{d+2*e+1}], v31 offset:{L_SLOT[j] + 256*e}') for e in range(2)]
    def tok_loads(stage):
        items = []
        for ks in range(12):
            it = []
            if ks % 4 == 0: items.append(L(f's_add_u32 s68, s45, {stage*32*49152 + 1024*ks}'))
            it += L(f'buffer_load_dwordx4 {tokreg(stage, ks)}, v3, {sWS}, s68 offen offset:{1024*(ks%4)} sc1')
            items.append(it)
        return items
    def flagH(stage, waits=()):
        return g.barrier([f'hh{stage}'] + list(waits)) + L(f's_atomic_swap {sN}, s[4:5], s41 offset:{stage*FLH_STG}')
    PH = [g.spoll(16 + 4*st, 's39', st*FLH_STG) for st in range(4)]
    w2p_pre = L(f'''
    s_mul_i32 s58, s34, 5
    s_add_u32 s59, s58, 4
    s_lshr_b32 s58, s58, 2
    s_lshr_b32 s59, s59, 2
    s_sub_u32 s59, s59, s58
    s_mul_i32 s46, s3, 30
    s_add_u32 s58, s58, s46
    v_and_b32 v236, 3, v2
    v_min_u32 v236, 2, v236
    v_mul_u32_u24 v236, 10, v236
    v_bfe_u32 v{MT+1}, v2, 2, 1
    v_mad_u32_u24 v236, v{MT+1}, s59, v236
    v_add_u32 v236, s58, v236
    v_lshrrev_b32 v236, 1, v236
    v_lshlrev_b32 v236, 7, v236
    v_add_u32 v236, {WS_FLW2}, v236
    ''')
    w2p = L(f'buffer_load_dwordx4 v[{MP}:{MP+3}], v236, {sWS}, 0 offen sc1')
    cst_pre = L(f'''
    s_mul_i32 s58, s34, 80
    s_mul_i32 s59, s3, 24
    s_add_u32 s58, s58, s59
    v_and_b32 v{MT+3}, 31, v2
    v_add_u32 v{MT+3}, s58, v{MT+3}
    v_min_u32 v{MT+3}, 639, v{MT+3}
    v_lshrrev_b32 v{MT+2}, 5, v2
    v_mul_u32_u24 v{MT+2}, 3840, v{MT+2}
    v_add_lshl_u32 v{MT+3}, v{MT+3}, v{MT+2}, 3
    s_mov_b32 s64, {WS_MODP + 4*640*8}
    s_mov_b32 s65, {WS_MODP + 5*640*8}
    ''')
    cstld = L(f'buffer_load_dwordx2 v[{MP+4}:{MP+5}], v{MT+3}, {sWS}, s64 offen sc1\nbuffer_load_dwordx2 v[{MP+6}:{MP+7}], v{MT+3}, {sWS}, s65 offen sc1')
    a_, b_, c_, d_ = (f'v{MP+4+k}' for k in range(4))
    cstfin = g.check(cstld + w2p, [b_, d_] + [f'v{MP+k}' for k in range(4)], f'v{MT+2}', split=True) + [[i] for i in L(f'''
    v_mov_b32 {b_}, {a_}
    v_mov_b32 {d_}, {c_}
    s_lshl_b32 s58, s3, 8
    s_add_u32 s58, s58, {L_CST}
    v_permlane32_swap_b32 {a_}, {b_}
    v_permlane32_swap_b32 {c_}, {d_}
    v_add_f32 {a_}, {a_}, {b_}
    v_add_f32 {c_}, {c_}, {d_}
    v_cvt_pk_bf16_f32 {a_}, 0, {a_}
    v_cvt_pk_bf16_f32 {c_}, 0, {c_}
    v_add_f32 {a_}, 1.0, {a_}
    v_cvt_pk_bf16_f32 {a_}, 0, {a_}
    v_mov_b32 {b_}, 0x21800000
    ''')] + [L(f'''
    v_cmp_eq_f32 vcc, 0, {a_}
    v_and_b32 {d_}, 31, v2
    v_lshl_add_u32 {d_}, {d_}, 2, s58
    v_cndmask_b32 {a_}, {a_}, {b_}, vcc
    ''')] + [[i] for i in L(f'''
    v_rcp_f32 {a_}, {a_}
    ds_write_b32 {d_}, {c_}
    ds_write_b32 {d_}, {a_} offset:128
    ''')]
    def sendS(j): return [L(f'ds_write_b128 {vEW}, v[{ACCS+4*q}:{ACCS+4*q+3}] offset:{1024*q}', tag=f'snd{j}') for q in range(4)]
    def sendH(j): return [L(f'ds_write_b128 {vEW}, v[{ACCH[j&1]+4+8*q}:{ACCH[j&1]+7+8*q}] offset:{4096+1024*q}', tag=f'snd{j}') for q in range(2)]
    def recv(j):
        dst = [ACCK[j&1] + 4*q for q in range(4)] + [ACCH[j&1], ACCH[j&1] + 8]
        rd = lambda q: L(f'ds_read_b128 v[{RECV+4*(q%5)}:{RECV+4*(q%5)+3}], {vER} offset:{1024*q}')
        it = [rd(q) for q in range(5)]
        for q in range(6):
            it += [L(f'v_add_f32 v{dst[q]+b}, v{dst[q]+b}, v{RECV+4*(q%5)+b}') for b in range(4)]
            if q == 0: it.append(rd(5))
        return it
    def statld(j):
        so, off = [('s1', 0), ('s1', 2048), ('s37', 0), ('s37', 1024)][j]
        return L(f'buffer_load_dwordx2 v[{vST}:{vST+1}], {vSR}, {sWS}, {so} offen offset:{off} sc1')
    def statuse(j, ld):
        return g.check(ld, [f'v{vST+1}'], None, split=True) + [[i] for i in L(f'''
        v_and_b32 {vI2}, 0xffff0000, v{vST}
        v_rcp_f32 {vK1}, {vI2}
        v_perm_b32 v{BX}, v{vST}, v{vST}, s42
        v_perm_b32 v{BX+1}, v{vST}, v{vST}, s43
        v_mul_f32 {vI2}, {vI2}, {vI2}
        v_mul_f32 {vK3}, {vK1}, {vK1}
        v_mul_f32 {vK1}, 0xc0135761, {vK1}
        v_mul_f32 {vK3}, 0x3d372713, {vK3}
        v_mul_f32 {vK3}, {vK3}, {vK1}
        ''')]
    def fold(j): return [(r16(ACCK[j&1]), f'v[{WXK}:{WXK+3}]', f'v[{BX}:{BX+3}]', r16(ACCK[j&1])), (r16(ACCH[j&1]), f'v[{WXH}:{WXH+3}]', f'v[{BX}:{BX+3}]', r16(ACCH[j&1]))]
    def gelu(j):
        prs = [(ACCK[j&1] + b, PK + (b >> 1)) for b in range(0, 8, 2)] + [(ACCH[j&1] + b, PK + 4 + (b >> 1)) for b in (0, 2)]
        it = []
        for n, (a, p) in enumerate(prs):
            t0, t1 = GT + 2*(n & 1), GT + 1 + 2*(n & 1)
            it += [[i] for i in L(f'''
            v_mul_f32 v{t0}, v{a}, v{a}
            v_mul_f32 v{t1}, v{a+1}, v{a+1}
            v_fma_f32 v{t0}, v{t0}, {vK3}, {vK1}
            v_fma_f32 v{t1}, v{t1}, {vK3}, {vK1}
            v_mul_f32 v{t0}, v{t0}, v{a}
            v_mul_f32 v{t1}, v{t1}, v{a+1}
            v_exp_f32 v{t0}, v{t0}
            v_mul_f32 v{a}, v{a}, v{a+8}
            v_exp_f32 v{t1}, v{t1}
            v_mul_f32 v{a+1}, v{a+1}, v{a+9}
            v_fma_f32 v{t0}, v{t0}, {vI2}, {vI2}
            v_fma_f32 v{t1}, v{t1}, {vI2}, {vI2}
            v_rcp_f32 v{t0}, v{t0}
            v_rcp_f32 v{t1}, v{t1}
            v_mul_f32 v{a}, v{a}, v{t0}
            v_mul_f32 v{a+1}, v{a+1}, v{t1}
            v_cvt_pk_bf16_f32 v{p}, v{a}, v{a+1}
            ''')]
            if n == 2: it.append(L(f's_add_u32 s69, s40, {j*32*49152}'))
        it.append(L(f'v_permlane32_swap_b32 v{PK+4}, v{PK+6}'))
        it.append(L(f'v_permlane32_swap_b32 v{PK+5}, v{PK+7}'))
        it.append(L(f'buffer_store_dwordx4 v[{PK}:{PK+3}], {vHX}, {sWS}, s69 offen sc1', tag=f'hh{j}'))
        it.append(L(f'buffer_store_dwordx4 v[{PK+4}:{PK+7}], {vHY}, {sWS}, s69 offen sc1', tag=f'hh{j}'))
        return it
    FP = [o('fp0', 18), o('fp1', 18), o('fp2', 18)]
    seq = []; T0 = []; freeat = {}
    for j in range(4):
        order = [(2, 0), (1, 0), (2, 1), (1, 1), (2, 2), (1, 2), (0, 0), (0, 1), (0, 2)]
        for s in range(3, 17): order += [(2, s), (1, s), (0, s)]
        order += [(ro, s) for ro in (0, 1, 2) for s in (17, 18, 19)]
        T0.append(len(seq))
        for n, (ro, s) in enumerate(order):
            if j > 0 and n == FP[j-1]: seq += fold(j - 1)
            d = r16([ACCS, ACCH[j&1], ACCK[j&1]][ro]); a = 12*s + 4*ro
            seq.append((d, f'a[{a}:{a+3}]', ('t', j, s), '0' if s == 0 else d))
            if j == 3: freeat[a] = len(seq) - 1
    T0.append(len(seq))
    B2 = [T0[j+1] - o('b2back', 9) for j in range(4)]
    def tload(f, dst):
        _, j, s = f
        a, base = (vTR2, 0) if j == 2 else (vTR, L_SLOT[j])
        return [Ins(f'ds_read_b64_tr_b16 v[{dst+2*e}:{dst+2*e+1}], {a} offset:{base + 1024*s + 256*e}') for e in range(2)]
    bb, pinned, head = alloc_frags(seq, M32, RING, tload, lead=o('lead1', 9), maxper=2, notbefore=lambda f: B2[f[1]-1] + 1 if f[1] > 0 else -1)
    S.emit(head)
    F = []
    one = lambda items, gp, prio=5, name=None: Fill([items], gp, gp, prio=prio, hard=True, name=name)
    sing = lambda l: [[i] for i in l]
    t0, t1, t2, t3, t4 = T0
    LAT = o('lat', 16)
    use0 = {}
    for k, (D, A, B, C) in enumerate(seq[:t1]): use0[A] = k
    w1r = Fill(g.w1f.rest, 0, 10**9, prio=4, name='w1', asap=True); F.append(w1r)
    for k in range(len(w1r.items) - 1, -1, -1):
        i = w1r.items[k][0]
        w1r.dl[k] = max(0, use0[i.ops[0]] - LAT) if i.kind == 'vmem' else 10**9
        if k + 1 < len(w1r.items): w1r.dl[k] = min(w1r.dl[k], w1r.dl[k+1])
    def dma(j, chk, pre, gchk, dl):
        cc = g.check(chk, ['v192'], None, split=True)
        c = Fill([g.stamp(f'_{pre}0') + cc[0], cc[1] + g.stamp(f'_{pre}1')], gchk - 1, gchk, prio=5, hard=True, name='dma')
        d = Fill(g.tile_dma(j), gchk, dl, prio=3, name='dma', asap=True, after=[c])
        n = len(d.items)
        for k in range(n): d.dl[k] = dl - (n - 1 - k)*0.6
        F.extend([c, d]); return c, d
    eD, gD = g.epi(3, 's48', 'pD', 0, 1, t=PK); F += eD
    F.append(Fill(stats_step(0), 5, o('st0end', 20), prio=4, ahead=4, name='st0', after=[eD[1]]))
    BE = min(B2[0], o('be', 51))
    c1, d1 = dma(1, g.pB, 'b', o('gchkB', 16), BE - o('lat2', 20)); d1.prio = 5
    pC = g.pollC(2, 'v192')
    fpc = one(pC, o('gpC', 40), name='dma'); fpc.after = [c1]; F.append(fpc)
    F.append(one(g.flagC(3, 'pD', skip=True), gD + o('gflD', 34)))
    c2, d2 = dma(2, pC, 'c', o('gchkC', 62), B2[1] - o('lat2', 20)); c2.after = [fpc]; d2.after.append(d1)
    gq = o('gq', 20); gx = o('gwx', 30)
    m1 = Fill(sing(cst_pre) + sing(cstld) + sing(w2p_pre) + [w2p], 2, gq, prio=2, ahead=3, name='misc', burst=True); F.append(m1)
    m2 = Fill(sing(wxld), gx, gx + 1, prio=3, slack=1, name='misc', burst=True); F.append(m2)
    mc = Fill(cstfin, o('gcst', 38), o('gcst', 38) + 8, prio=3, ahead=3, slack=1, name='misc', after=[m1], flex=54); F.append(mc)
    mf = Fill(wxfix, gx + 22, gx + 24, prio=3, ahead=1, slack=1, name='misc', after=[m2, mc]); F.append(mf); w2c = mc
    F.append(one(g.stamp('_t1w') + g.barrier(['tile1']) + g.stamp('_t1b'), BE))
    for j in range(4): F.append(Fill(resread(j), T0[j] + 30, T0[j] + 32, prio=1, name='res'))
    GE = [o('gelend', 57), o('gelend', 57), o('gelend2', 48)]; gprev = []
    for j in range(3):
        b = T0[j+1]; fp = FP[j]
        F.append(Fill(sendS(j) + sendH(j), b - 5, b + o('sndend', 5), prio=6, hard=True, name='send'))
        b1 = b + o('sndend', 5) + 2
        F.append(one(g.barrier([f'snd{j}'] + (['tile3'] if j == 1 else [])), b1))
        rc = Fill(recv(j), b1 + 1, b + fp - 2, prio=5, slack=1, ahead=3, name='recv', after=gprev); F.append(rc)
        ld = statld(j)
        F.append(one(ld, b + (o('gst0', -8) if j == 0 else o('gst', -8)), name=f'stat{j}'))
        su = statuse(j, ld)
        F.append(Fill([g.stamp(f'_s{j}a') + su[0], su[1] + g.stamp(f'_s{j}b')] + su[2:], b + fp - o('sulen', 6), b + fp - 2, prio=5, hard=True, name=f'stat{j}', after=gprev))
        gprev = [Fill(gelu(j), b + fp + 3, b + GE[j], prio=3, ahead=o('gelah', 3), name='gelu', after=[rc], burst=True)]; F += gprev
        if j > 0:
            F.append(one(g.barrier([f'tile{j+1}'] if j == 1 else []), B2[j]))
            F.append(one(flagH(j - 1), b + o('gflH', 28)))
        if j == 1: bt3 = b1
    F.append(one(g.barrier([]), B2[3]))
    F.append(Fill(sendS(3), t4 - 5, t4 - 2, prio=6, hard=True, name='send'))
    F.append(Fill(stats_step(1), BE + 1, t1 + o('st1end', 18), prio=2, ahead=6, name='st1'))
    pD = g.pollC(3, 'v192')
    fpd = one(pD, t1 + o('gpD', 10), name='dma'); fpd.after = [c2]; F.append(fpd)
    c3, d3 = dma(3, pD, 'd', t1 + o('gchkD', 32), bt3 - o('lat2', 20)); c3.after = [fpd]; d3.after.append(d2)
    s2 = Fill(stats_step(2), bt3 + 1, t2 + o('st2end', 30), prio=4, ahead=6, name='st2'); F.append(s2)
    wa = Fill(w2_loads(0, 4) + w2_loads(5, 12) + w2_loads(16, 20), 30, t3, prio=1, name='w2', asap=True, after=[w2c, w1r]); F.append(wa)
    wb = Fill(w2_loads(12, 16) + w2_loads(4, 5) + stageB + stageA, t1, t3 + 4, prio=1, name='w2', asap=True, after=[wa, mf, d3]); F.append(wb)
    nb = len(wb.items) - len(stageA)
    for kk in range(nb, len(wb.items)): wb.lo[kk] = bt3 + 1
    wc = Fill(w2_loads(20, 24), t2, t3 + 6, prio=1, name='w2', asap=True, after=[s2, wb]); F.append(wc)
    F.append(one(PH[0][0], t3 + o('gpH0', -10), name='late'))
    def bind(f):
        for k, it in enumerate(f.items):
            for i in it:
                for r in i.defs:
                    if isinstance(r, tuple) and r[0] == 'a' and r[1] in freeat: f.lo[k] = max(f.lo[k], freeat[r[1]]); f.want[k] = max(f.want[k], f.lo[k])
    fu = Fill(unstage, t3 + 36, t3 + 54, prio=2, name='unstage', after=[s2, wb]); bind(fu); F.append(fu)
    ch0 = one(PH[0][1], t3 + o('late0', 8), name='late'); F.append(ch0)
    f3 = Fill(tok_loads(0) + w2_loads(36, 60), t3, 10**9, prio=2, name='late', asap=True, carry=True, after=[ch0, wc]); bind(f3); F.append(f3)
    for k in range(len(tok_loads(0))): f3.dl[k] = t4 - LAT - (14 - k)*0.6
    sl3 = statld(3); F.append(one(sl3, t4 - 24, name='stat3'))
    su3 = statuse(3, sl3)
    F.append(one(PH[1][0], t4 - o('gpH1', 8)))
    if isinstance(g.stamps, list):
        for nm in g.stamps:
            if nm.startswith('_G'): F.append(one(g.stamp(nm), int(nm[2:]), prio=9))
    S.emit(interleave(bb, F, pinned, report='g1', pipe=g.pipe))
    late_rest = f3.rest
    S.emit(g.stamp('g1end'))
    g2a = L(f'''
    s_mul_i32 s58, s3, 5120
    s_add_u32 s58, s58, {L_PART}
    v_add_u32 v13, s58, v3
    ''')
    g2b = L(f'''
    v_lshrrev_b32 v84, 4, v2
    v_and_b32 v85, 15, v2
    s_mul_i32 s58, s3, 3
    v_min_u32 v86, 2, v84
    v_add_u32 v87, s58, v86
    v_cmp_lt_u32 s[48:49], 9, v87
    v_cmp_eq_u32 s[46:47], 3, v84
    v_min_u32 v87, 9, v87
    s_or_b64 s[48:49], s[48:49], s[46:47]
    v_lshlrev_b32 v88, 9, v87
    v_lshl_add_u32 v12, v85, 4, v88
    v_add_u32 v12, {L_PART}, v12
    s_lshl_b32 s58, s3, 8
    s_add_u32 s58, s58, {L_CST}
    v_lshl_add_u32 v86, v86, 5, s58
    s_lshr_b32 s58, s35, 3
    s_lshl_b32 s58, s58, 8
    s_bfe_u32 s59, s35, 0x20001
    s_lshl_b32 s59, s59, 6
    s_add_u32 s58, s58, s59
    s_and_b32 s59, s35, 1
    s_lshl_b32 s59, s59, 3
    s_add_u32 s58, s58, s59
    s_lshl_b32 s59, s36, 5
    s_add_u32 s58, s58, s59
    v_and_b32 v88, 8, v85
    v_add3_u32 v88, v88, v85, s58
    v_mul_u32_u24 v88, 1280, v88
    v_lshl_add_u32 v88, v87, 4, v88
    s_mul_i32 s58, s34, 160
    v_add_u32 v88, s58, v88
    v_mov_b32 v89, {OOB}
    v_cndmask_b32 v6, v88, v89, s[48:49]
    ds_read_b128 v[8:11], v86
    ds_read_b128 v[16:19], v86 offset:16
    ds_read_b128 v[116:119], v86 offset:128
    ds_read_b128 v[124:127], v86 offset:144
    ''')
    ACC = [40, 60]; FT = 80
    FQ = o('fq', 12)
    bb = []; done = {}
    KM = [0, o('km1', 8), o('km2', 8), o('km3', 8)]
    SP = o('split', 3)
    blocks = [(0, range(SP)), (1, range(SP)), (0, range(SP, 5)), (1, range(SP, 5)), (2, range(5)), (3, range(5))]
    for n, (st, cts) in enumerate(blocks):
        km = KM[st] if n not in (2, 3) else 0
        order = [(ct, ks) for ks in range(km) for ct in cts] + [(ct, ks) for ct in cts for ks in range(km, 12)]
        for ct, ks in order:
            d = f'v[{ACC[st&1]+4*ct}:{ACC[st&1]+4*ct+3}]'
            if len(bb) == FQ: bb += [Ins(f'{M32} {x[0]}, {x[1]}, {x[2]}, {x[3]}') for x in fold(3)]
            bb.append(Ins(f'{M16} {d}, {w2reg(ct, ks)}, {tokreg(st, ks)}, {"0" if ks == 0 else d}')); done[st, ct] = len(bb) - 1
    def pwrite(st, ct): return L(f'ds_write_b128 v13, v[{ACC[st&1]+4*ct}:{ACC[st&1]+4*ct+3}] offset:{20480*(st&1) + 1024*ct}', tag=f'pw{st}')
    def final(st, pk=False):
        it = []
        for w in range(4):
            for h in range(2): it.append(L(f'ds_read_b128 v[{FT+8*w+4*h}:{FT+8*w+4*h+3}], v12 offset:{20480*(st&1) + 5120*w + 256*h}'))
        X = RES + 4*st; Y = FT + 32
        if pk:
            P = lambda r: f'v[{r}:{r+1}]'
            U = 40
            pre = []
            for c in range(0, 8, 2):
                pre += [L(f'v_lshlrev_b32 v{U+c}, 16, v{X+(c>>1)}'), L(f'v_and_b32 v{U+c+1}, 0xffff0000, v{X+(c>>1)}'), L(f'v_mul_f32 v{U+c}, v{U+c}, v{CI[c]}'), L(f'v_mul_f32 v{U+c+1}, v{U+c+1}, v{CI[c+1]}')]
            for c in range(0, 8, 2): it.append(L(f'v_pk_add_f32 {P(FT+c)}, {P(FT+c)}, {P(FT+8+c)}'))
            for c in range(0, 8, 2): it.append(L(f'v_pk_add_f32 {P(FT+c)}, {P(FT+c)}, {P(FT+16+c)}'))
            for c in range(0, 8, 2):
                it += [L(f'v_pk_add_f32 {P(FT+c)}, {P(FT+c)}, {P(FT+24+c)}'), L(f'v_pk_fma_f32 {P(FT+c)}, {P(FT+c)}, {P(CG[c])}, {P(U+c)}'), L(f'v_cvt_pk_bf16_f32 v{Y+(c>>1)}, v{FT+c}, v{FT+c+1}')]
            it.append(L(f's_mov_b32 s69, {st*512*1280}\nbuffer_store_dwordx4 v[{Y}:{Y+3}], v6, {sOUT}, s69 offen {["", "sc1", "nt", "sc0 sc1"][o("outf", 2)]}'))
            return pre, it
        for c in range(8):
            it += [L(f'v_add_f32 v{FT+c}, v{FT+c}, v{FT+8+c}'), L(f'v_add_f32 v{FT+16+c}, v{FT+16+c}, v{FT+24+c}')]
        for c in range(8):
            u = f'v_lshlrev_b32 v{FT+8+c}, 16, v{X+(c>>1)}' if c % 2 == 0 else f'v_and_b32 v{FT+8+c}, 0xffff0000, v{X+(c>>1)}'
            it += [L(f'v_add_f32 v{FT+c}, v{FT+c}, v{FT+16+c}'), L(u), L(f'v_mul_f32 v{FT+c}, v{FT+c}, v{CG[c]}'), L(f'v_fmac_f32 v{FT+c}, v{FT+8+c}, v{CI[c]}')]
            if c % 2 == 1: it.append(L(f'v_cvt_pk_bf16_f32 v{Y+(c>>1)}, v{FT+c-1}, v{FT+c}'))
        it.append(L(f's_mov_b32 s69, {st*512*1280}\nbuffer_store_dwordx4 v[{Y}:{Y+3}], v6, {sOUT}, s69 offen {["", "sc1", "nt", "sc0 sc1"][o("outf", 2)]}'))
        return it
    F = []
    S.emit(su3[0]); S.emit(flat(sendH(3))); S.emit(flat(su3[1:]))
    ge3 = o('gel3', 32); assert ge3 + 3 < 12*SP + 2
    F.append(one(g.barrier(['snd3']), 0))
    rc = Fill(recv(3), 1, FQ - 2, prio=5, slack=0, name='recv'); F.append(rc)
    g3f = Fill(gelu(3), FQ + 3, ge3, prio=5, slack=0, name='gelu', after=[rc], burst=True); F.append(g3f)
    F.append(one(flagH(2), o('gfl2', 12)))
    F.append(Fill(sing(g2a), 2, 10, prio=4, hard=True, name='g2set'))
    F.append(Fill([g2b[:9]] + sing(g2b[9:]), ge3 + 1, 66, prio=4, slack=0, name='g2set', after=[g3f]))
    use = {}
    for k, i in enumerate(bb):
        for op in i.ops[1:3]: use.setdefault((op, k//60 if op in [tokreg(0, q) for q in range(12)] and k > 125 else 0), k)
    def dls(f, lat, key=0):
        for k in range(len(f.items) - 1, -1, -1):
            i = f.items[k][0]
            f.dl[k] = max(0, use[i.ops[0], key] - lat) if i.kind == 'vmem' else 10**9
            if k + 1 < len(f.items): f.dl[k] = min(f.dl[k], f.dl[k+1])
    L2 = o('lat3', 28)
    flw = Fill(late_rest, 0, 10**9, prio=4 if SP == 5 else 2, name='late', asap=True); dls(flw, L2); F.append(flw)
    ch1 = one(PH[1][1], o('gcH1', 3), name='h1'); F.append(ch1)
    flr = Fill(tok_loads(1), 0, 10**9, prio=3, name='tok', asap=True, after=[ch1]); dls(flr, L2); F.append(flr)
    for k in range(len(flr.items)): flr.dl[k] = min(flr.dl[k], ge3 - 2 - (len(flr.items) - 1 - k)*o('t1sp', 16)/10.0)
    lastw = []; fprev = []; pe = 0
    for st in range(4):
        b = 60*st + 2
        for ct in range(5):
            gp = done[st, ct] + 3
            if gp < 242: F.append(one(pwrite(st, ct), gp))
            else: lastw += pwrite(st, ct)
        if st < 3:
            b0 = done[st, 4] + 8
            F.append(one(g.barrier([f'pw{st}']), b0))
            e0 = [b + 116 if SP == 5 else o('f0end', 142), b + 116 if SP == 5 else 184, b + 104][st]
            fprev = [Fill(final(st), max(b0 + 1, pe + 1), e0, prio=2, ahead=6, name='final', after=fprev)]; F += fprev; pe = e0
    pre3, fin3 = final(3, pk=True)
    F.append(Fill(pre3, 226, 238, prio=1, ahead=20, name='pre3'))
    F.append(one(flagH(3), ge3 + o('gfl3', 44)))
    gp2 = o('gpH2', 44); g2c = o('gcH2', 76)
    F.append(one(PH[2][0], gp2, name='h2'))
    ch2 = one(g.stamp('_h2a') + PH[2][1] + g.stamp('_h2b'), g2c, name='h2'); F.append(ch2)
    h2 = Fill(tok_loads(2), g2c, 10**9, prio=4, name='tok', asap=True, after=[flr, ch2]); dls(h2, L2); F.append(h2)
    gp3 = o('gpH3', 116); g3c = o('gcH3', 146)
    F.append(one(PH[3][0], gp3, name='h3'))
    ch3 = one(g.stamp('_h3a') + PH[3][1] + g.stamp('_h3b'), g3c, name='h3'); F.append(ch3)
    h3 = Fill(tok_loads(3), g3c, 10**9, prio=4, name='tok', asap=True, after=[h2, ch3]); dls(h3, L2, 3); F.append(h3)
    if isinstance(g.stamps, list):
        for nm in g.stamps:
            if nm.startswith('_H'): F.append(one(g.stamp(nm), int(nm[2:]), prio=9))
    S.emit(interleave(bb, F, report='g2', pipe=g.pipe))
    S.emit(g.stamp('g2m'))
    S.emit(lastw); S.emit(g.barrier(['pw3'])); S.emit(flat(fin3))
    S.emit(f's_or_b32 s58, s2, s3\ns_cbranch_scc1 L_noep\ns_atomic_swap {sN}, s[4:5], 0\nL_noep:')
```

```python
import sys
from fw import *

NAME = 'adaLN_cond__ssm_conv_s4__glu_gated_geglu__prompt_kernel'
WS_E = 0; WS_STAT = 0x1000; WS_FLW2 = 0x10000; WS_IC2 = 0x1E000
WS_MODP = 0x20000; WS_WX = 0x40000; WS_FLH = 0x60000; WS_DBG = 0x80000
WS_XT = 0x100000; WS_X1S = 0x400000; WS_W1P = 0x700000; WS_W2P = 0xB20000; WS_HH = 0xD00000
WS_FLA = 0x1300000; WS_FLC = 0x1340000; WS_ST2 = 0x13C0000; WS_SIZE = 0x1400000
FLW_OFF = 0x20000
OOB = 0x7F000000
L_TAB = 0; L_STG = 65536
L_KC = 81920; KC_PITCH = 4736; KC1 = 2236; KCD = 4384
L_LN = 81920 + 4 * KC_PITCH; LNP = 5152
L_VEC = L_LN + 10240
L_H = 122880; H_PITCH = 4608
L_X = L_H + 4 * H_PITCH
L_SLOT = [0, 40960, 81920, 0]
L_EX = 122880
L_CST = 159744
L_RES = 40960; L_PART = 81920
LDS_BYTES = 163840
TP = 272
P2 = 2*1056
sWS, sX, sOUT, sWG, sWU, sWD, sWM = 's[4:7]', 's[8:11]', 's[12:15]', 's[16:19]', 's[20:23]', 's[24:27]', 's[28:31]'
sN, sXC, sJ, sSIG, sR, sBUD = 's50', 's51', 's52', 's53', 's54', 's55'
sCH, sCB4 = 's56', 's57'
BUD = 40000
def cp(l): return [Ins(i.text, tag=i.tag, waitfor=i.waitfor) for i in l]
def flat(items): return [x for it in items for x in (it if isinstance(it, list) else [it])]

class Gen:
    def __init__(self, stop=None, stamps=False, probe=None, **opt):
        self.stop = stop; self.stamps = stamps; self.opt = opt; self.probe = probe
        if probe: self.stamps = [probe]
        self.slow = []; self.npoll = 0; self.stamp_names = []
        self.XP = 16384 + opt.get('xpad', 0); self.TPI = 40960 + opt.get('tpad', 0)
        assert 160*self.XP <= WS_X1S - WS_XT and 64*self.TPI <= WS_W1P - WS_X1S
        self.RA = opt.get('ra', 2); self.FS = opt.get('fs', 32); self.AREP = 256*self.FS
        self.RC = opt.get('rc', 4); self.FC = opt.get('fc', 32); self.CREP = 160*self.FC; self.CSTG = self.RC*self.CREP
        assert 4*self.CSTG <= WS_ST2 - WS_FLC
    def o(self, k, d): return self.opt.get(k, d)
    def stamp(self, name):
        if not self.stamps: return []
        if self.stamps is not True and name not in self.stamps and name not in ('start', 'end'): return []
        if self.stamps is True and name.startswith('_'): return []
        if name not in self.stamp_names: self.stamp_names.append(name)
        k = self.stamp_names.index(name); assert k < 12
        i = Ins(f's_{"memtime" if self.o("cyc", 0) else "memrealtime"} s[{78+2*k}:{79+2*k}]'); i.note = 'stamp'
        return [i]
    def check(self, loads, tagregs, tmp, sleep=4):
        k = self.npoll; self.npoll += 1
        def cmp():
            if len(tagregs) == 1: return L(f'v_cmp_ne_u32 vcc, {sN}, {tagregs[0]}')
            t = list(tagregs)
            o = L(f'v_xor_b32 {tmp}, {t[0]}, {t[1]}')
            for r in t[2:]: o += L(f'v_sad_u32 {tmp}, {t[0]}, {r}, {tmp} clamp')
            return o + L(f'v_sad_u32 {tmp}, {t[0]}, {sN}, {tmp} clamp\nv_cmp_ne_u32 vcc, 0, {tmp}')
        fast = cmp() + L(f's_cbranch_vccnz L_slow{k}\nL_back{k}:')
        if self.o('nocheck', 0) and (sleep == 4 or (sleep == 9 and (self.o('static', 0) or self.o('drop', 0) & 10))) and k >= self.o('nocheck', 0) - 1: fast[-2] = Ins('s_nop 0')
        dd = set()
        for i in loads:
            fast[-2].xuses |= (i.uses - dd); dd |= i.defs
        fast[-2].xdefs = set(r for r in dd if not isv(r)) | {'scc'}
        s = Stream()
        s.emit(f'L_slow{k}:\ns_sub_u32 {sBUD}, {sBUD}, 1\ns_cbranch_scc1 L_giveup{k}\ns_sleep {sleep if sleep != 4 else self.o("slp", 2)}')
        s.emit([Ins(i.text) for i in loads]); s.wait_all(); s.emit(cmp())
        s.emit(f's_cbranch_vccnz L_slow{k}\ns_branch L_back{k}\nL_giveup{k}:\ns_mov_b32 {sBUD}, 0\ns_branch L_back{k}')
        self.slow += s.out
        return fast
    def spoll(self, base, soff, off):
        k = self.npoll; self.npoll += 1
        ld = f's_load_dwordx4 s[{base}:{base+3}], s[4:5], {soff} offset:{off} glc'
        test = lambda lab: f's_cmp_lg_u64 s[{base}:{base+1}], s[8:9]\ns_cbranch_scc1 {lab}\ns_cmp_lg_u64 s[{base+2}:{base+3}], s[8:9]\ns_cbranch_scc1 {lab}'
        issue = L(ld); issue[0].note = 'async'
        fast = L(test(f'L_slow{k}') + f'\nL_back{k}:')
        if self.o('nocheck', 0): fast = L(test(f'L_back{k}') + f'\nL_back{k}:')
        self.slow += L(f'''
        L_again{k}:
        s_sub_u32 {sBUD}, {sBUD}, 1
        s_cbranch_scc1 L_giveup{k}
        {ld}
        L_slow{k}:
        s_waitcnt lgkmcnt(0)
        {test(f'L_again{k}')}
        s_branch L_back{k}
        L_giveup{k}:
        s_mov_b32 {sBUD}, 0
        s_branch L_back{k}
        ''')
        return issue, fast
    def barrier(self, waitfor=None): return [Ins('s_barrier', waitfor=waitfor)]
    def touch(self, pre):
        return L(f'''
        s_mov_b64 exec, 0
        s_cmp_eq_u32 s3, 0
        s_cbranch_scc1 {pre}0
        s_cmp_eq_u32 s3, 1
        s_cbranch_scc1 {pre}1
        s_cmp_eq_u32 s3, 2
        s_cbranch_scc1 {pre}2
        s_branch {pre}3
        ''')
    def prologue(self, S):
        S.emit(self.stamp('start'))
        S.emit(f'''
        s_cmp_ge_u32 s2, 256
        s_cbranch_scc1 L_exit
        s_load_dwordx2 s[8:9], s[0:1], 0
        s_load_dwordx16 s[16:31], s[0:1], 80
        s_load_dwordx16 s[32:47], s[0:1], 8
        v_lshrrev_b32 v1, 6, v0
        s_lshr_b32 {sJ}, s2, 3
        v_and_b32 v2, 63, v0
        v_readfirstlane_b32 s3, v1
        s_lshl_b32 s60, {sJ}, 2
        s_getpc_b64 s[76:77]
        s_add_u32 s60, s60, s3
        s_mul_i32 s60, s60, 384
        s_min_u32 s60, s60, @CODEMAX@
        s_add_u32 s76, s76, s60
        s_addc_u32 s77, s77, 0
        v_min_u32 v4, 2, v2
        v_lshlrev_b32 v4, 7, v4
        ''')
        if self.o('codepf', 2) >= 2: S.emit('global_load_dword v252, v4, s[76:77]' + (' nt' if self.o('codepf', 2) == 3 else ''))
        S.emit(f'''
        v_lshlrev_b32 v3, 4, v2
        s_mov_b32 s10, 2621440
        s_mov_b32 s11, 0x20000
        s_and_b32 s63, s2, 127
        s_mul_i32 s60, s63, 20480
        s_mul_i32 s62, s3, 5120
        s_add_u32 s60, s60, s62
        s_add_u32 s65, s60, 4096
        s_mul_i32 s61, s3, {LNP}
        s_add_u32 s61, s61, {L_LN}
        s_mov_b32 m0, s61
        s_cmp_lt_u32 s2, 128
        s_cselect_b32 s62, 0, {OOB}
        v_or_b32 v125, s62, v3
        s_and_b32 {sXC}, s2, 7
        s_mul_i32 {sCB4}, {sXC}, 20
        s_add_u32 {sCB4}, {sCB4}, {sJ}
        s_lshl_b32 {sCH}, {sCB4}, 2
        s_add_u32 {sCH}, {sCH}, s3
        v_lshrrev_b32 v104, 3, v2
        v_bfe_u32 v105, v2, 4, 1
        v_lshlrev_b32 v105, 1, v105
        v_and_b32 v106, 7, v2
        v_xor_b32 v105, v105, v106
        v_lshlrev_b32 v105, 4, v105
        v_xor_b32 v106, 64, v105
        s_movk_i32 s64, 3072
        v_mad_u32_u24 v107, v104, s64, v105
        v_mad_u32_u24 v108, v104, s64, v106
        s_movk_i32 s64, 7680
        v_mad_u32_u24 v110, v104, s64, v105
        v_mad_u32_u24 v111, v104, s64, v106
        s_lshl_b32 s66, s3, 12
        s_add_u32 s66, s66, {L_STG}
        s_lshr_b32 s71, {sCH}, 1
        s_lshl_b32 s71, s71, 2
        s_min_u32 s71, s71, 1276
        s_mul_i32 s70, {sCH}, 384
        v_mul_u32_u24 v109, 6, v2
        v_and_b32 v109, 0x1fc, v109
        v_add_u32 v109, s70, v109
        s_and_b32 s70, {sXC}, 3
        s_lshl_b32 s70, s70, 2
        s_and_b32 {sSIG}, {sJ}, 3
        s_add_u32 {sSIG}, {sSIG}, s70
        s_lshr_b32 s70, {sXC}, 2
        s_lshl_b32 s70, s70, 3
        s_lshr_b32 {sR}, {sJ}, 2
        s_add_u32 {sR}, {sR}, s70
        s_mov_b32 {sBUD}, {BUD}
        s_cmp_ge_u32 {sJ}, 20
        s_cbranch_scc1 L_sp_pro
        s_waitcnt lgkmcnt(0)
        ''')
        srd = lambda: L(f'''
        s_mov_b64 s[12:13], s[26:27]
        s_mov_b64 s[28:29], s[24:25]
        s_mov_b64 s[48:49], s[22:23]
        s_mov_b64 s[24:25], s[20:21]
        s_mov_b64 s[20:21], s[18:19]
        s_mov_b32 s30, 4915200
        s_mov_b32 s31, s11
        s_mov_b32 s6, {WS_SIZE}
        s_mov_b32 s7, s11
        s_mov_b32 s14, s10
        s_mov_b32 s15, s11
        s_mov_b32 s18, 1966080
        s_mov_b32 s19, s11
        s_mov_b32 s22, s18
        s_mov_b32 s23, s11
        s_mov_b32 s26, s18
        s_mov_b32 s27, s11
        ''')
        pf = lambda: L('global_load_dword v252, v4, s[76:77]') if self.o('codepf', 2) == 1 else []
        S.emit(self.stamp('_karg'))
        S.emit(L('\n'.join(f'buffer_load_dwordx4 v125, {sX}, s60 offen offset:{o} nt lds' for o in (0, 1024, 2048, 3072)), tag='lndma'))
        S.emit('s_add_u32 m0, s61, 4096\ns_mov_b64 s[4:5], s[30:31]')
        S.emit(L(f'buffer_load_dwordx4 v125, {sX}, s65 offen nt lds', tag='lndma'))
        S.emit('s_mov_b32 s0, 0\ns_load_dword s68, s[44:45], s71\ns_load_dword s69, s[46:47], s71\ns_load_dword s67, s[4:5], 0')
        S.emit(pf())
        S.emit('\n'.join(f'global_load_dwordx2 v[{206+2*k}:{207+2*k}], v109, s[{32+2*k}:{33+2*k}] nt' for k in range(6)))
        S.emit(srd())
        cc = self.conv_consts(); nsh = max(2, min(len(cc), self.o('nshadow', 4)))
        S.emit(flat(cc[:nsh])); self.cc_late = flat(cc[nsh:])
        S.emit(self.stamp('_cst'))
        S.emit(self.common_consts())
        self.ln_w1(S)
        S.emit(self.stamp('ln'))
        self.st_conv = (list(S.vm), list(S.lg), [])
        S.emit('s_branch L_main')
        S.set_state(([], [], []))
        S.emit(f'''
        L_sp_pro:
        s_mul_i32 s70, {sXC}, 12
        s_add_u32 s70, s70, {sJ}
        s_sub_u32 s70, s70, 20
        v_min_u32 v12, 159, v0
        v_lshlrev_b32 v12, 3, v12
        ''')
        md = self.mod_dma('s70')
        S.emit(md[0]); S.out += L('s_waitcnt lgkmcnt(0)')
        S.emit('s_mov_b64 s[4:5], s[30:31]'); sr = srd(); S.emit(sr[:7])
        S.emit('global_load_dwordx2 v[200:201], v12, s[48:49]'); S.emit(pf())
        ne = self.o('modearly', 2); self.mod_late = flat(md[1][ne:])
        S.emit(flat(md[1][:ne])); S.emit('s_mov_b32 s0, 1\ns_load_dword s67, s[4:5], 0'); S.emit(sr[7:])
        self.st_spare = S.state()
        S.emit(f'''
        s_branch L_spare
        L_tdone2:
        s_mov_b64 exec, -1
        s_cmp_eq_u32 s0, 1
        s_cbranch_scc1 L_sp_t2
        s_branch L_cv_t2
        L_exit:
        s_endpgm
        ''')
    def mod_dma(self, su, scol='s71', lbase=0, tag='moddma'):
        o = L(f'''
        s_lshr_b32 s58, {su}, 1
        s_mul_hi_u32 s59, s58, {(2**32 + 9)//10}
        s_mul_i32 {scol}, s59, 10
        s_sub_u32 s58, s58, {scol}
        s_lshl_b32 s59, s59, 2
        s_lshr_b32 s59, 0x534210, s59
        s_and_b32 s59, s59, 15
        s_mul_i32 {scol}, s59, 640
        s_lshl_b32 s58, s58, 6
        s_add_u32 {scol}, {scol}, s58
        s_and_b32 s58, {su}, 1
        s_mul_i32 s58, s58, {320*7680}
        s_mul_i32 s59, s3, {80*7680}
        s_add_u32 s72, s58, s59
        s_lshl_b32 s58, {scol}, 1
        s_add_u32 s72, s72, s58
        s_mul_i32 s73, s3, 10240
        ''')
        items = []
        for d in range(10):
            it = L(f's_add_u32 m0, s73, {lbase + 1024*d}')
            it += L('s_nop 0') if d == 0 else L(f's_add_u32 s72, s72, {8*7680}')
            it += L(f'buffer_load_dwordx4 v{110+(d&1)}, {sWM}, s72 offen nt lds', tag=tag)
            items.append(it)
        return o, items
    def common_consts(self):
        return L(f'''
        v_lshrrev_b32 v112, 4, v2
        v_bfe_u32 v113, v2, 2, 2
        v_lshlrev_b32 v114, 10, v112
        v_lshl_add_u32 v114, v113, 7, v114
        v_and_b32 v112, 1, v112
        v_lshrrev_b32 v113, 1, v113
        v_lshl_or_b32 v112, v112, 1, v113
        v_lshl_add_u32 v114, v112, 5, v114
        v_and_b32 v112, 3, v2
        v_lshl_add_u32 v112, v112, 3, v114
        v_add_u32 v112, s66, v112
        v_xor_b32 v113, 32, v112
        v_xor_b32 v114, 64, v112
        v_xor_b32 v115, 96, v112
        s_mul_i32 s65, s2, {self.FS}
        s_add_u32 s65, s65, {WS_FLA}
        s_and_b32 s58, {sXC}, {self.RA - 1}
        s_mul_i32 s58, s58, {self.AREP}
        s_add_u32 s58, s58, {WS_FLA}
        v_lshrrev_b32 v28, 1, v0
        v_mul_u32_u24 v28, {self.FS}, v28
        v_add_u32 v28, s58, v28
        ''')
    def late_consts(self):
        return L(f'''
        s_mul_i32 {sN}, s67, 1664525
        s_add_u32 {sN}, {sN}, 1013904223
        s_lshl_b32 s59, s68, 16
        s_and_b32 s68, s68, 0xffff0000
        s_lshl_b32 s67, s69, 16
        s_and_b32 s69, s69, 0xffff0000
        s_and_b32 s58, {sCH}, 1
        s_cselect_b32 s68, s68, s59
        s_cselect_b32 s69, s69, s67
        v_mov_b32 v226, s68
        v_mul_f32 v226, 0x3fb8aa3b, v226
        v_exp_f32 v226, v226
        v_mov_b32 v245, 0
        v_writelane_b32 v245, s69, 0
        v_cvt_pk_bf16_f32 v226, 0, v226
        v_mul_f32 v220, 0x3fb8aa3b, v226
        v_mul_f32 v223, 0.15915494, v226
        v_mul_f32 v221, 0x41000000, v220
        v_mul_f32 v224, 0x41000000, v223
        v_mul_f32 v222, 0x43800000, v220
        v_mul_f32 v225, 0x43800000, v223
        ''')
    def ln_w1(self, S):
        S.emit(f'''
        v_lshrrev_b32 v123, 4, v2
        v_mul_u32_u24 v120, {1280 - 256}, v123
        v_add3_u32 v120, v120, v3, s61
        v_bfe_u32 v121, v2, 2, 2
        v_mul_u32_u24 v121, 1280, v121
        v_lshl_add_u32 v121, v123, 4, v121
        v_and_b32 v122, 1, v2
        v_mul_u32_u24 v122, {2*LNP}, v122
        v_and_b32 v123, 2, v2
        v_lshl_add_u32 v121, v123, 2, v121
        s_mul_i32 s58, s3, 320
        s_add_u32 s58, s58, {L_LN}
        v_add3_u32 v121, v121, v122, s58
        v_mul_u32_u24 v124, {self.XP - 128}, v104
        v_add_u32 v124, v124, v125
        v_mov_b32 v126, {OOB}
        s_and_b32 s58, s3, 1
        s_lshl_b32 s58, s58, 13
        s_lshl_b32 s59, s63, 1
        s_lshr_b32 s60, s3, 1
        s_add_u32 s59, s59, s60
        s_lshl_b32 s59, s59, 4
        s_add_u32 s58, s58, s59
        s_add_u32 s58, s58, {WS_STAT}
        s_or_b32 s58, s58, s62
        s_add_u32 s59, s58, 4096
        v_writelane_b32 v126, s58, 0
        v_writelane_b32 v126, s59, 32
        ''')
        S.emit(self.touch('L_stub')); S.emit('L_tdone:\ns_mov_b64 exec, -1')
        S.emit(self.stamp('_touched'))
        S.emit(self.late_consts())
        S.emit(f'''
        s_mul_i32 s58, s3, {40*self.XP}
        s_lshl_b32 s59, s63, 7
        s_add_u32 s58, s58, s59
        s_add_u32 s60, s58, {WS_XT}
        s_mov_b32 s59, 0x3f803f80
        ''')
        S.emit(self.stamp('_preln'))
        S.wait_tags(['lndma'])
        S.emit(self.stamp('_lndma'))
        S.emit('\n'.join(f'ds_read_b128 v[{128+4*i}:{131+4*i}], v120 offset:{256*i}' for i in range(5)) + '\ns_barrier')
        for p in range(5):
            S.emit(f'ds_read_b64_tr_b16 v[{32+4*p}:{33+4*p}], v121 offset:{64*p}\nds_read_b64_tr_b16 v[{34+4*p}:{35+4*p}], v121 offset:{64*p+LNP}')
        xst = [L(f'buffer_store_dwordx4 v[{32+4*p}:{35+4*p}], v124, {sWS}, s60 offen sc1', tag='pa') + (L(f's_add_u32 s60, s60, {8*self.XP}') if p < 4 else []) for p in range(5)]
        self.xst = xst
        for r in range(128, 148):
            c1, c2 = ('0', '0') if r == 128 else ('v116', 'v117')
            S.emit(f'v_dot2_f32_bf16 v116, v{r}, s59, {c1}\nv_dot2_f32_bf16 v117, v{r}, v{r}, {c2}')
            if r == 131: S.emit(xst[0])
        S.emit(xst[1])
        for k in (8, 4, 2, 1):
            S.emit(f'v_add_f32_dpp v116, v116, v116 row_ror:{k} row_mask:0xf bank_mask:0xf\nv_add_f32_dpp v117, v117, v117 row_ror:{k} row_mask:0xf bank_mask:0xf')
        S.emit(self.finish_stats('v116', 'v117', 'v118'))
        S.emit(f'''
        v_and_b32 v116, 0xffff0000, v118
        v_rcp_f32 v116, v116
        v_lshlrev_b32 v118, 16, v118
        v_mul_f32 v118, -v118, v116
        v_permlane16_swap_b32 v116, v117
        v_permlane16_swap_b32 v118, v119
        ''')
        S.emit(L(f'buffer_store_dwordx4 v[116:119], v126, {sWS}, 0 offen sc1', tag='pa'))
        S.emit(xst[2])
    def finish_stats(self, s1, s2, out):
        return L(f'''
        v_mul_f32 {s1}, 0x3acccccd, {s1}
        v_mul_f32 {s2}, 0x3acccccd, {s2}
        v_fma_f32 {s2}, -{s1}, {s1}, {s2}
        v_max_f32 {s2}, 0, {s2}
        v_cvt_pk_bf16_f32 {s2}, 0, {s2}
        v_add_f32 {s2}, 0x3727c5ac, {s2}
        v_cvt_pk_bf16_f32 {s2}, 0, {s2}
        v_sqrt_f32 {s2}, {s2}
        v_cvt_pk_bf16_f32 {out}, {s1}, {s2}
        ''')
    def prep_task(self, dmatag, sdst, stride, sttag, tmp, loff=0, va='v3'):
        o = []
        for t in range(4):
            o += L(f'ds_read_b64_tr_b16 v[{tmp+4*t}:{tmp+4*t+1}], v{112+t} offset:{loff}\nds_read_b64_tr_b16 v[{tmp+4*t+2}:{tmp+4*t+3}], v{112+t} offset:{loff+512}', waitfor=[dmatag])
        for t in range(4):
            o += L(f'buffer_store_dwordx4 v[{tmp+4*t}:{tmp+4*t+3}], {va}, {sWS}, {sdst} offen sc1', tag=sttag)
            if t < 3: o += L(f's_add_u32 {sdst}, {sdst}, {stride}')
        return o
    def w1_setup(self):
        return L(f'''
        s_mul_hi_u32 s58, s2, {(2**32 + 19)//20}
        s_mul_i32 s59, s58, 20
        s_sub_u32 s59, s2, s59
        s_lshl_b32 s59, s59, 1
        s_and_b32 s36, s3, 1
        s_add_u32 s59, s59, s36
        s_lshr_b32 s37, s3, 1
        s_mul_i32 s34, s59, {16*3072}
        s_mul_i32 s32, s58, 384
        s_add_u32 s34, s34, s32
        s_lshl_b32 s32, s37, 7
        s_add_u32 s32, s32, s34
        s_add_u32 s33, s32, {8*3072}
        s_mul_i32 s35, s37, {8*3072}
        s_add_u32 s34, s34, s35
        s_add_u32 s34, s34, 256
        s_mul_i32 s58, s58, 480
        s_add_u32 s58, s58, s59
        s_lshl_b32 s58, s58, 10
        s_add_u32 s58, s58, {WS_W1P}
        s_mul_i32 s35, s37, 163840
        s_add_u32 s35, s35, s58
        s_lshl_b32 s36, s37, 9
        s_add_u32 s36, s36, s58
        s_add_u32 s36, s36, 327680
        s_add_u32 s37, s66, {L_X - L_STG}
        v_lshrrev_b32 v199, 5, v2
        v_mul_u32_u24 v199, {40960 - 512}, v199
        v_add_u32 v199, v199, v3
        ''')
    def w1_dma(self):
        o = []
        for d in range(6):
            o += L(f's_add_u32 m0, {"s66" if d < 4 else "s37"}, {1024*(d & 3)}')
            o += L(['v_cmp_gt_u32 vcc, 32, v2', 'v_add_u32 v197, -2048, v113', 's_sub_u32 s58, s37, s66', 'v_cndmask_b32 v197, v197, v112, vcc', 'v_add_u32 v197, s58, v197', 'v_xor_b32 v198, 64, v197'][d])
            o += L(f'buffer_load_dwordx4 v{107+(d&1)}, {sWU if d&1 else sWG}, s{32+(d>>1)} offen nt lds', tag='w1dma')
        return o
    def w1_task(self):
        o = self.prep_task('w1dma', 's35', 40960, 'pw', tmp=32)
        h = []
        for t in range(2):
            h += L(f'ds_read_b64_tr_b16 v[{48+4*t}:{49+4*t}], v{197+t}\nds_read_b64_tr_b16 v[{50+4*t}:{51+4*t}], v{197+t} offset:512')
        o = o[:8] + h + o[8:]
        o += L(f'buffer_store_dwordx4 v[48:51], v199, {sWS}, s36 offen sc1', tag='pw') + L('s_add_u32 s36, s36, 81920')
        o += L(f'buffer_store_dwordx4 v[52:55], v199, {sWS}, s36 offen sc1', tag='pw')
        return o
    def flagW(self): return self.barrier(['pw']) + L(f's_atomic_swap {sN}, s[4:5], s64 offset:{FLW_OFF}')
    def arrive(self, k, tag):
        return L('s_mov_b64 exec, 1') + L(f'ds_add_rtn_u32 v59, v254, v255 offset:{4*k}', waitfor=[tag]) + L('s_mov_b64 exec, -1')
    def publish(self, k):
        R = self.RA
        return L(f'v_readfirstlane_b32 s58, v59\ns_nop 0\ns_cmp_lg_u32 s58, 3\ns_cbranch_scc1 L_nopub{k}\n'
                 + '\n'.join(f's_atomic_swap {sN}, s[4:5], s65 offset:{k*FLW_OFF + r*self.AREP}' for r in range(R)) + f'\nL_nopub{k}:')
    def pollW(self): return L(f'buffer_load_dword v4, v6, {sWS}, 0 offen sc1')
    def flagA(self):
        self.nfa = getattr(self, 'nfa', 0) + 1
        return self.barrier(['pa']) + L(f's_cmp_ge_u32 s3, {self.RA}\ns_cbranch_scc1 L_nfa{self.nfa}\ns_atomic_swap {sN}, s[4:5], s64\nL_nfa{self.nfa}:')
    def g_setup(self):
        return L(f'''
        s_lshr_b32 s58, s3, 1
        s_mul_i32 s58, s58, 3
        s_mul_i32 s59, {sSIG}, 6
        s_add_u32 s58, s58, s59
        s_and_b32 s59, s3, 1
        s_lshr_b32 s74, {sSIG}, 1
        s_mul_i32 s74, s74, 20
        s_mul_i32 s76, s59, 10
        s_add_u32 s74, s74, s76
        s_and_b32 s76, {sXC}, {self.RA - 1}
        s_lshl_b32 s76, s76, 8
        s_add_u32 s74, s74, s76
        v_min_u32 v6, 9, v2
        v_add_u32 v6, s74, v6
        v_mul_u32_u24 v6, {self.FS}, v6
        v_add_u32 v6, {WS_FLA + FLW_OFF}, v6
        s_lshl_b32 s74, s59, 7
        v_xor_b32 v5, s74, v3
        s_mul_i32 s58, s58, 40960
        s_mul_i32 s74, s59, 20480
        s_add_u32 s58, s58, s74
        s_add_u32 s58, s58, {WS_W1P}
        s_mul_i32 s59, s59, 40960
        s_add_u32 s76, s58, s59
        s_sub_u32 s74, s58, s59
        s_add_u32 s74, s74, 40960
        s_add_u32 s75, s58, 81920
        ''')
    def tile_consts(self):
        return L(f'''
        v_bfe_u32 v4, v2, 3, 1
        v_lshrrev_b32 v6, 5, v2
        v_lshl_or_b32 v4, v6, 1, v4
        v_lshlrev_b32 v4, 4, v4
        v_xor_b32 v6, v4, v3
        s_mul_i32 s58, s3, 40
        s_and_b32 s59, {sXC}, {self.RC - 1}
        s_mul_i32 s59, s59, 160
        s_add_u32 s58, s58, s59
        v_min_u32 v4, 39, v2
        v_add_u32 v4, s58, v4
        v_mul_u32_u24 v4, {self.FC}, v4
        v_add_u32 v4, {WS_FLC}, v4
        s_mul_i32 s61, s3, 10240
        s_mul_i32 s60, {sR}, {self.TPI}
        s_add_u32 s60, s60, s61
        s_add_u32 s60, s60, {WS_X1S}
        ''')
    def w1_loads(self, k0=0, k1=60, only=None, skip=None):
        ks = list(range(k0, k1))
        ks = [k for k in ks if (only is None or k % 3 == only) and k % 3 != skip]
        items = []; cur = {}
        for k in ks:
            s, role = divmod(k, 3); a = 4*k
            if cur.get(role) != s//4: items.append(L(f's_add_u32 s{67+role}, s{74+role}, {4096*(s//4)}')); cur[role] = s//4
            items.append(L(f'buffer_load_dwordx4 a[{a}:{a+3}], {"v5" if role == 1 else "v3"}, {sWS}, s{67+role} offen offset:{1024*(s%4)} sc1'))
        return items
    def w1_touch(self):
        if not self.o('w1touch', 1): return []
        return L(f'''
        s_and_b32 s58, {sR}, 7
        s_lshl_b32 s58, s58, 2
        s_add_u32 s58, s58, s3
        s_mul_i32 s58, s58, 7680
        s_mul_i32 s59, {sSIG}, 245760
        s_add_u32 s58, s58, s59
        s_add_u32 s58, s58, {WS_W1P}
        v_min_u32 v95, 59, v2
        v_lshlrev_b32 v95, 7, v95
        buffer_load_dword v95, v95, {sWS}, s58 offen sc1
        ''')
    def tile_dma(self, j):
        items = []
        for i in range(10):
            it = []
            if i % 4 == 0:
                items += [L(f's_add_u32 m0, s61, {L_SLOT[j] + 1024*i}'), L(f's_add_u32 s62, s60, {j*16*self.TPI + 1024*i}')]
            it += L(f'buffer_load_dwordx4 v6, {sWS}, s62 offen offset:{1024*(i%4)} sc1 lds', tag=f'tile{j}')
            items.append(it)
        return items
    def pollC(self, stage, dst):
        o = L(f's_mov_b32 s63, {stage*self.CSTG}\nbuffer_load_dword {dst}, v4, {sWS}, s63 offen sc1'); o[1].lines = 40*self.FC//128
        return o
    def ic2_loads(self):
        return [L(f's_mov_b32 s62, {WS_IC2}'), L('v_lshlrev_b32 v28, 3, v2'), L(f'buffer_load_dwordx4 v[20:23], v3, {sWS}, s62 offen sc1'),
                L(f'buffer_load_dwordx4 v[24:27], v3, {sWS}, s62 offen offset:1024 sc1'),
                L(f'buffer_load_dwordx2 v[28:29], v28, {sWS}, s62 offen offset:2048 sc1')]
    def cmul(self, out, z, e, t):
        return L(f'''
        v_pk_mul_f32 v[{t}:{t+1}], v[{z}:{z+1}], v[{e}:{e+1}] op_sel:[0,0] op_sel_hi:[1,0]
        v_pk_fma_f32 v[{out}:{out+1}], v[{z}:{z+1}], v[{e}:{e+1}], v[{t}:{t+1}] op_sel:[1,1,0] op_sel_hi:[0,1,1] neg_lo:[1,0,0]
        ''')
    ALPHA = {}
    for _h in range(2):
        for _r in range(5): ALPHA[(_h, _r)] = 4*_h + _r
        for _k in range(3): ALPHA[(_h, 5+_k)] = 256 + 4*_h + 2*_k; ALPHA[(_h, 8+_k)] = 512 + 256*_h + 4*_k
        ALPHA[(_h, 11)] = 1032 + 256*_h; ALPHA[(_h, 12)] = 1544 + 256*_h
    def alpha_rows(self):
        di = lambda h, r: 8*(r >> 2) + 4*h + (r & 3)
        row = {}; fixes = {}
        for (h, r), al in sorted(self.ALPHA.items(), key=lambda x: di(*x[0])):
            i = di(h, r)
            if al in row: fixes[i] = row[al]
            else: row[al] = i
        free = sorted(fixes.keys())
        for al, i in list(row.items()):
            if i >= 24: row[al] = free.pop(0); fixes[i] = row[al]
        assert max(row.values()) < 24 and len(set(row.values())) == 24
        return row, fixes
    def kgen_setup(self, slot):
        P = 200; o = L('\n'.join(f'v_perm_b32 v{P+k}, v{207+2*k}, v{206+2*k}, v{194+slot}' for k in range(6)))
        for k in range(3): o += L(f'v_mul_f32 v{66+k}, v{P}, v{220+k}\nv_mul_f32 v{61+2*k}, v{P+1}, v{223+k}')
        for k in range(3): o += L(f'v_exp_f32 v{66+k}, v{66+k}\nv_fract_f32 v{61+2*k}, v{61+2*k}')
        for k in range(3): o += L(f'v_cos_f32 v{60+2*k}, v{61+2*k}\nv_sin_f32 v{61+2*k}, v{61+2*k}')
        for k in range(3): o += L(f'v_mul_f32 v{60+2*k}, v{60+2*k}, v{66+k}\nv_mul_f32 v{61+2*k}, v{61+2*k}, v{66+k}')
        o += L(f'v_mul_f32 v{P+2}, v{P+2}, v226\nv_mul_f32 v{P+3}, v{P+3}, v226')
        return o
    def kgen_chains(self, slot):
        P = 200; E1, E8, E256 = 60, 62, 64; T = 70
        row, _ = self.alpha_rows()
        U = lambda k: 76 + 2*k
        pts = []
        pts.append((self.cmul(U(0), P+4, P+2, T), U(0), 32+row[0], True))
        for k in range(1, 9): pts.append((self.cmul(U(k), U(k-1), E1, T), U(k), 32+row[k], True))
        for e in (0, 2, 4, 6, 8): pts.append((self.cmul(U(e), U(e), E256, T), U(e), 32+row[256+e], True))
        for b in (512, 768):
            for e in (0, 4, 8): pts.append((self.cmul(U(e), U(e), E256, T), U(e), 32+row[b+e], True))
        for b in range(4): pts.append((self.cmul(U(8), U(8), E256, T), U(8), 32+row[1032+256*b], True))
        pts.append(([], E8, 1, False))
        pts.append((self.cmul(74, E8, E8, T), 74, 2, False))
        for j in range(3, 32): pts.append((self.cmul(74, 74, E8, T), 74, j, False))
        B = self.o('kbatch', 11); out = []
        for i in range(0, len(pts), B):
            o = []; w = []
            for k, (c, z, r, neg) in enumerate(pts[i:i+B]):
                o += c + L(f'v_cvt_pk_bf16_f32 v{230+k}, v{z}, {"-" if neg else ""}v{z+1}')
                if not self.o('nowr', 0): w += L(f'ds_write_addtid_b32 v{230+k} offset:{r*TP}')
            out.append(o + w)
        ard = [L(f'ds_read_b128 v[{128+8*k}:{131+8*k}], v227 offset:{32*k}')[0] for k in range(8)]
        first = -(-24 // B) - 1
        out[first] += ard[:3]; out[first+1] += ard[3:]
        return out
    def kgen_mfma(self, slot, fillers, sfill):
        o = []
        for k in range(8):
            o += L(f'ds_read_b128 v[{132+8*k}:{135+8*k}], v228 offset:{32*k}')
        npre = self.o('kpre', 12)
        bb = [Ins(f'v_mfma_f32_32x32x16_bf16 v[96:111], v[{128+8*k}:{131+8*k}], v[{132+8*k}:{135+8*k}], {"0" if slot == 0 and k == 0 else "v[96:111]"}') for k in range(8)]
        return o + fillers[:npre] + interleave(bb, [Fill(fillers[npre:], 0, 6, ahead=8, prio=2), Fill(sfill, 0, 6, ahead=8)])
    def conv_consts(self):
        row, fixes = self.alpha_rows()
        b0 = L(f'''
        v_and_b32 v194, 1, v2
        v_mul_u32_u24 v194, 0x0202, v194
        v_lshlrev_b32 v194, 16, v194
        v_add_u32 v194, 0x01000c0c, v194
        v_add_u32 v195, 0x02020000, v194
        v_add_u32 v196, 0x02020000, v195
        v_and_b32 v228, 31, v2
        v_min_u32 v227, 23, v228
        s_lshl_b32 s70, s3, 14
        s_mul_i32 s71, s3, {KC_PITCH}
        s_add_u32 s71, s71, {L_KC}
        s_mul_i32 s72, s3, {H_PITCH}
        s_add_u32 s72, s72, {L_H}
        ''')
        for i, rr in fixes.items():
            b0 += L(f'v_writelane_b32 v227, {rr}, {i}\nv_writelane_b32 v227, {rr}, {i+32}')
        b0 += L(f'''
        v_lshrrev_b32 v229, 5, v2
        v_lshlrev_b32 v243, 4, v228
        v_lshl_add_u32 v242, v229, 3, v243
        v_sub_u32 v242, s71, v242
        v_lshl_add_u32 v243, v229, 9, v243
        v_sub_u32 v243, s71, v243
        v_lshlrev_b32 v244, 1, v2
        v_sub_u32 v244, s71, v244
        v_mov_b32 v246, s71
        v_lshl_add_u32 v229, v229, 4, s70
        s_movk_i32 s58, {TP}
        v_add_u32 v227, 32, v227
        v_mad_u32_u24 v227, v227, s58, v229
        v_mad_u32_u24 v228, v228, s58, v229
        v_mov_b32 v72, 0x00003f80
        v_mov_b32 v56, 0
        v_mov_b32 v57, 0
        v_lshl_add_u32 v58, v2, 3, s72
        v_and_b32 v7, 15, v2
        v_lshl_add_u32 v59, v7, 2, s71
        v_lshl_add_u32 v73, v2, 2, s70
        ds_write_b32 v73, v72
        ds_write_b64 v58, v[56:57]
        ds_write_b32 v59, v56
        ds_write_b32 v59, v56 offset:{2112}
        ds_write_b32 v59, v56 offset:{KC1}
        ds_write_b32 v59, v56 offset:{KC1 + 2116}
        ds_write_b32 v59, v56 offset:{KCD + 256}
        v_mov_b32 v254, {L_CST}
        v_mov_b32 v255, 1
        ds_write_b64 v254, v[56:57]
        ''')
        b1 = L(f'''
        v_bfe_u32 v247, v0, 2, 2
        v_lshlrev_b32 v247, 4, v247
        v_lshl_add_u32 v247, v0, 6, v247
        v_add_u32 v247, {L_X}, v247
        v_xor_b32 v248, 16, v247
        v_xor_b32 v249, 32, v247
        v_xor_b32 v250, 48, v247
        v_lshlrev_b32 v192, 4, v0
        v_add_u32 v251, {L_H + 512}, v192
        v_lshrrev_b32 v8, 4, v2
        v_lshlrev_b32 v193, 4, v8
        v_lshlrev_b32 v9, 5, v7
        v_add3_u32 v9, v9, v193, s72
        v_and_b32 v10, 1, v7
        v_mul_u32_u24 v10, {KC1 + 2}, v10
        v_add3_u32 v10, v10, v193, s71
        v_xor_b32 v193, v193, v3
        v_lshlrev_b32 v11, 1, v7
        v_sub_u32 v10, v10, v11
        v_add_u32 v12, {P2 - 32 - 1024 - 960}, v10
        v_add_u32 v10, {P2 - 32 - 960}, v10
        v_lshrrev_b32 v29, 2, v7
        v_lshrrev_b32 v16, 1, v29
        v_and_b32 v16, v16, v29
        v_add_u32 v29, v29, v16
        v_and_b32 v14, 1, v8
        v_mad_u32_u24 v29, v14, 6, v29
        v_mul_u32_u24 v29, 640, v29
        v_and_b32 v16, 3, v7
        s_lshl_b32 s58, {sCB4}, 2
        s_add_u32 s58, s58, {WS_MODP//8}
        v_add3_u32 v29, v29, v16, s58
        v_lshlrev_b32 v29, 3, v29
        ''')
        ne = self.o('early', 3); cl = self.conv_late()
        fix = lambda l: [Ins(i.text.replace('s32', 's38').replace('s33', 's39').replace('s34', 's40').replace('v28', 'v60').replace('v29', 'v61').replace('v30', 'v62')) for i in l]
        return [self.w1_setup(), b0, b1 + flat([fix(cl[k]) for k in range(3) if ne >> k & 1]), self.g_setup()]
    def conv_late(self):
        c0 = L(f'''
        v_bfe_u32 v13, v7, 1, 2
        v_xor_b32 v13, s3, v13
        v_lshlrev_b32 v13, 4, v13
        v_lshl_add_u32 v13, v7, 7, v13
        v_lshl_add_u32 v13, v14, 6, v13
        v_add_u32 v13, {L_X}, v13
        ''')
        c1 = L(f'''
        v_lshlrev_b32 v15, 3, v14
        v_lshrrev_b32 v28, 2, v7
        v_lshl_add_u32 v15, v28, 1, v15
        v_lshrrev_b32 v28, 1, v8
        v_add_u32 v15, v15, v28
        v_mul_u32_u24 v15, {self.TPI}, v15
        v_and_b32 v28, 3, v7
        v_lshl_add_u32 v15, v28, 4, v15
        s_lshl_b32 s32, {sCH}, 6
        s_add_u32 s32, s32, {WS_X1S}
        v_add_u32 v15, s32, v15
        ''')
        c2 = L(f'''
        s_movk_i32 s33, 0x1ff0
        v_lshlrev_b32 v28, 3, v8
        v_lshlrev_b32 v29, v7, s33
        s_movk_i32 s33, 0x0fe0
        v_lshrrev_b32 v29, v28, v29
        v_lshlrev_b32 v30, v7, s33
        s_mov_b32 s33, 0x8001
        v_lshrrev_b32 v30, v28, v30
        s_mov_b32 s34, 0x10001
        ''')
        for dst, m in ((20, 29), (24, 30)):
            for dw in range(4):
                c2 += L(f'''
                v_bfe_u32 v{dst+dw}, v{m}, {2*dw}, 2
                v_mul_u32_u24 v{dst+dw}, s33, v{dst+dw}
                v_and_b32 v{dst+dw}, s34, v{dst+dw}
                v_mul_u32_u24 v{dst+dw}, 0x3f80, v{dst+dw}
                ''')
        c3 = L(f'''
        v_add_u32 v11, {-1088}, v10
        v_lshlrev_b32 v14, 2, v8
        v_sub_u32 v14, v14, v7
        v_lshl_add_u32 v14, v14, 2, s71
        v_add_u32 v14, {KCD + 60}, v14
        s_mul_i32 s66, s3, {self.RC//4*self.CREP}
        s_mul_i32 s33, {sCB4}, {self.FC}
        s_add_u32 s66, s66, s33
        s_add_u32 s66, s66, {WS_FLC}
        ''')
        return c0, c1, c2, c3
    def conv_path(self, S):
        S.set_state(self.st_conv)
        S.emit('L_main:'); S.shadow_len = self.o('shadow', 1100); S.dummy = 'ds_read_b32 v1, v3'
        S.emit(self.cc_late); S.emit('s_mov_b32 m0, s70')
        pollA = L(f'buffer_load_dword v58, v28, {sWS}, 0 offen sc1')
        modld = L(f'buffer_load_dwordx2 v[56:57], v29, {sWS}, 0 offen sc1')
        pollW = self.pollW()
        xld = (L('s_mov_b32 m0, s43') + L('\n'.join(f'buffer_load_dwordx4 v[{32+4*g}:{35+4*g}], v192, {sWS}, {so} offen sc1' for g, so in enumerate(('s44', 's45', 's49', 's77'))))
               + L('\n'.join(f'buffer_load_dwordx4 v193, {sWS}, s42 offen offset:{1024*i} sc1 lds' for i in range(4)), tag='xdma') + L('s_mov_b32 m0, s70'))
        set0 = L(f'''
        s_mul_i32 s42, {sCB4}, {self.XP}
        s_lshl_b32 s43, s3, 12
        s_add_u32 s42, s42, s43
        s_add_u32 s42, s42, {WS_XT}
        s_add_u32 s43, s43, {L_X}
        s_movk_i32 s44, {WS_STAT}
        s_movk_i32 s45, {WS_STAT + 0x1000}
        s_movk_i32 s49, {WS_STAT + 0x2000}
        s_movk_i32 s77, {WS_STAT + 0x3000}
        ''')
        set1 = L(f's_lshl_b32 s73, s2, 4\ns_add_u32 s73, s73, {WS_IC2}\ns_and_b32 s62, s2, 3')
        modv = self.stamp('_mod0') + self.check(modld, ['v57'], None) + self.stamp('_modok') + L(f'''
        v_mov_b32 v57, v56
        v_bfe_u32 v52, v2, 2, 1
        v_cvt_f32_u32 v52, v52
        v_permlane16_swap_b32 v56, v57
        v_add_f32 v48, v56, v57
        v_cvt_pk_bf16_f32 v48, 0, v48
        v_add_f32 v48, v48, v52
        v_cvt_pk_bf16_f32 v48, 0, v48
        s_add_u32 s58, s3, 8
        s_add_u32 s59, s3, 12
        v_readlane_b32 s40, v48, s58
        v_readlane_b32 s41, v48, s59
        ''')
        for c in range(4): modv += L(f'v_readlane_b32 s{32+2*c}, v48, {4+c}\nv_readlane_b32 s{33+2*c}, v48, {c}')
        modv += L(f'''
        s_and_b32 s58, s41, 0x7fffffff
        s_cselect_b32 s41, s41, 0x21800000
        v_mov_b32 v51, s41
        v_mul_f32 v51, s40, v51
        v_mov_b32 v52, 0x21800000
        v_cmp_eq_f32 vcc, 0, v48
        v_add_u32 v54, -12, v0
        v_xor_b32 v55, s62, v54
        v_lshl_add_u32 v55, v55, 2, s73
        v_cndmask_b32 v52, v48, v52, vcc
        v_cmp_gt_u32 vcc, 4, v54
        v_rcp_f32 v127, v52
        v_mov_b32 v126, {OOB}
        v_cndmask_b32 v126, v126, v55, vcc
        v_lshlrev_b32 v53, 4, v2
        v_alignbit_b32 v53, s41, s41, v53
        v_alignbit_b32 v53, v53, v53, 16
        v_lshrrev_b32 v54, 1, v7
        v_lshlrev_b32 v55, 2, v8
        v_sub_u32 v54, v54, v55
        v_cmp_eq_u32 vcc, 0, v54
        v_cmp_eq_u32 s[58:59], 1, v54
        v_cmp_eq_u32 s[62:63], 2, v54
        v_cmp_eq_u32 s[64:65], 3, v54
        v_cndmask_b32 v16, 0, v53, vcc
        v_cndmask_b32 v17, 0, v53, s[58:59]
        v_cndmask_b32 v18, 0, v53, s[62:63]
        v_cndmask_b32 v19, 0, v53, s[64:65]
        ''')
        segs = []
        for slot in range(3):
            segs += self.kgen_chains(slot)
            segs.append(self.kgen_mfma(slot, [self.kgen_setup(1), self.kgen_setup(2), modv][slot], [set0, set1, []][slot]) + self.stamp(f'slot{slot}'))
        ns = len(segs)//3
        pos = lambda name, slot, frac: min(len(segs) - 1, int(round(ns*(self.o(name, int(100*(slot + frac)))/100.0))) - 1)
        ev = {}
        def at(p, code): ev.setdefault(p, []).extend(code)
        pfa, pw1, pfw = pos('e_fla', 1, 0), pos('e_w1', 1, .17), pos('e_flw', 2, .34)
        ppa, pca, pmo, ppw = pos('e_pa', 2, 0), pos('e_ca', 2, .67), pos('e_mo', 2, .34), pos('e_pw', 3, 0)
        assert pfa <= pw1 and pfw < 3*ns - 1 and pca >= max(ppa, ns - 1, pw1) and pmo < 3*ns - 1 and pfw >= pw1
        at(pfa, self.stamp('_ch0') + self.arrive(0, 'pa') + self.stamp('_fla'))
        at(pfa + 1, self.publish(0))
        at(pos('e_t2', 2, .5), self.stamp('_ta') + self.touch('L_gp') + L('L_cv_t2:') + self.stamp('_tb'))
        pwd = pos('e_wd', 0, .17); assert pwd < min(pw1, ns - 1)
        at(pwd, self.w1_dma() + L('s_mov_b32 m0, s70'))
        wt = self.w1_task(); rd, st_ = wt[:12], wt[12:]
        groups = []
        for i in st_:
            if i.kind == 'vmem': groups.append([i])
            else: groups[-1].append(i)
        per = self.o('wsper', 2); at(pw1, rd); plast = pw1
        for k in range(0, 6, per):
            plast = pw1 + 1 + k//per; at(plast, flat(groups[k:k+per]))
        assert pfw >= plast and pca >= pw1 + 1 + 3//per
        at(pfw, self.stamp('_fw0') + self.arrive(1, 'pw') + self.stamp('_fw1')); at(pfw + 1, self.publish(1)); assert pfw + 1 < 3*ns - 1
        at(ppa, pollA)
        at(pmo, modld)
        at(pca, self.stamp('_a0') + self.check(pollA, ['v58'], None) + self.stamp('_aok') + xld)
        if self.o('e_cw', 402) < 500: at(ppw, pollW)
        ecw = self.o('e_cw', 402); nearly = self.o('w1e', 5); npre_w1 = 0
        wchk = self.stamp('_w0') + self.check(pollW, ['v4'], None) + self.stamp('_wok')
        if ecw <= 300:
            pcw = pos('e_cw', 3, 0); assert pcw >= ppw
            at(pcw, wchk)
            for k in range(pcw, len(segs)):
                at(k, flat(self.w1_loads(npre_w1, npre_w1 + nearly))); npre_w1 += nearly
        S.emit(ev.get(-1, []))
        S.emit(self.kgen_setup(0)); S.emit(self.xst[3]); ev[0] = self.xst[4] + ev.get(0, [])
        for k, sg in enumerate(segs):
            S.emit(sg); S.emit(self.stamp(f'_K{k}')); S.emit(ev.get(k, [])); S.emit(self.stamp(f'_E{k}'))
        S.emit(self.stamp('_t2'))
        S.emit('v_add_f32 v96, v96, v245')
        for r in range(0, 14, 2): S.emit(f'v_pk_mul_f32 v[{96+r}:{97+r}], v[{96+r}:{97+r}], v[50:51] op_sel:[0,1] op_sel_hi:[1,1]')
        cv = lambda d, a, b: f'v_cvt_pk_bf16_f32 v{d}, v{96+a}, v{96+b}\n'
        S.emit(cv(64, 4, 3) + cv(65, 2, 1) + cv(66, 3, 2) + cv(67, 1, 0) + cv(68, 7, 7) + cv(69, 6, 5) + cv(70, 7, 6) + cv(71, 5, 5) +
               cv(72, 10, 10) + cv(73, 10, 9) + cv(74, 9, 9) + cv(75, 8, 8) + cv(76, 10, 10) + cv(77, 9, 9) + cv(78, 9, 8) + cv(79, 8, 8) +
               cv(80, 11, 12) + cv(82, 10, 10) + cv(83, 10, 10) + f'''
        ds_write_b64 v242, v[64:65] offset:{P2 - 8}
        ds_write_b64 v242, v[66:67] offset:{KC1 + P2 - 4}
        ds_write_b64 v242, v[68:69] offset:{P2 - 8 - 512}
        ds_write_b64 v242, v[70:71] offset:{KC1 + P2 - 4 - 512}
        ds_write_b128 v243, v[72:75] offset:{P2 - 16 - 1024}
        ds_write_b128 v243, v[76:79] offset:{KC1 + P2 - 12 - 1024}
        ds_write_b16 v244, v80 offset:{KCD + 254}
        ds_write_b16_d16_hi v244, v80 offset:{KCD + 254 - 128}
        s_mov_b64 exec, 1
        ds_write_b16_d16_hi v246, v67 offset:{P2}
        s_mov_b32 exec_hi, 0x80000000
        s_mov_b32 exec_lo, 0
        ds_write_b64 v246, v[82:83] offset:56
        ds_write_b16 v246, v82 offset:{KC1 + 58}
        ds_write_b64 v246, v[82:83] offset:{KC1 + 60}
        s_mov_b64 exec, -1
        ''')
        S.emit(self.stamp('kexp'))
        def kread(G, dst):
            if G == 32: a, o = 'v11', 0
            else: a, o = ('v10', 16*(15 - G)) if G < 16 else ('v12', 16*(31 - G))
            return [Ins(f'ds_read2_b32 v[{dst}:{dst+1}], {a} offset0:{o} offset1:{o+1}'), Ins(f'ds_read2_b32 v[{dst+2}:{dst+3}], {a} offset0:{o+2} offset1:{o+3}')]
        KF = lambda p, r: 128 + 64*(p >> 1) + 8*r + 4*(p & 1)
        kreads = [x for pp in (0, 2) for r in range(8) for p in (pp, pp+1) for x in kread(8*p + r, KF(p, r))]
        npre = self.o('npre', 32); assert npre <= 32
        S.emit(L('\n'.join(f'ds_read_b128 v[{64+4*c}:{67+4*c}], v{247+c}' for c in range(4)), waitfor=['xdma']))
        S.emit(self.stamp('_xin'))
        S.emit(kreads[:npre//4])
        n2 = self.o('w1pre', 4)
        if ecw == 400: S.emit(wchk)
        if ecw <= 400: S.emit(flat(self.w1_loads(npre_w1, npre_w1 + n2))); npre_w1 += n2
        for c in range(4):
            x = 64 + 4*c; o = []
            for g in range(4):
                t = 80 + 2*(g & 1); b = 32 + 4*g
                o += L(f'''
                v_lshlrev_b32 v{t}, 16, v{x+g}
                v_and_b32 v{t+1}, 0xffff0000, v{x+g}
                v_pk_fma_f32 v[{t}:{t+1}], v[{t}:{t+1}], v[{b}:{b+1}], v[{b+2}:{b+3}]
                v_pk_fma_f32 v[{t}:{t+1}], v[{t}:{t+1}], s[{32+2*c}:{33+2*c}], s[{32+2*c}:{33+2*c}] op_sel:[0,0,1] op_sel_hi:[1,0,1]
                v_cvt_pk_bf16_f32 v{x+g}, v{t}, v{t+1}
                ''')
            o += L(f'ds_write_b128 v251, v[{x}:{x+3}] offset:{H_PITCH*c}', tag='hw')
            S.emit(o)
            if c < 3:
                S.emit(kreads[(c+1)*npre//4:(c+2)*npre//4])
            if ecw >= 500 and c == self.o('pwc', 1): S.emit(pollW)
            if ecw == 401 + c: S.emit(wchk)
            if ecw <= 401 + c:
                n2 = self.o('w1pre2', 2)
                S.emit(flat(self.w1_loads(npre_w1, npre_w1 + n2))); npre_w1 += n2
        S.emit(self.barrier(['hw']))
        S.emit(self.stamp('prep'))
        S.dummy = 'ds_read_b32 v1, v3'
        epoch = []
        acc = lambda q: f'v[{96+4*q}:{99+4*q}]'
        seq = []; started = set()
        def mm(q, A, B):
            C = acc(q) if q in started else '0'; started.add(q); seq.append((acc(q), A, B, C))
        def box(u):
            d = 112 + 8*(u & 1)
            seq.append((f'v[{d}:{d+3}]', ('h9', u), 'v[20:23]', '0')); seq.append((f'v[{d+4}:{d+7}]', ('h', 3, 0, u), 'v[24:27]', '0'))
        kf = lambda p, r: f'v[{KF(p, r)}:{KF(p, r)+3}]'
        for r in range(8):
            for q in range(2):
                if r == 7: mm(q, 'v[16:19]', ('x', q))
                for p in range(q + 1): mm(q, kf(p, r), ('h', 0, r, q - p))
        nA = len(seq)
        for r in range(8):
            if r == 4: a1 = len(seq); box(0); box(1)
            if r == 6: a2 = len(seq); box(2); box(3)
            for q in range(2, 4):
                if r == 7: mm(q, 'v[16:19]', ('x', q))
                for p in range(q + 1): mm(q, kf(p, r), ('h', 1, r, q - p))
        nB = len(seq)
        for ps, q0 in ((2, 4), (4, 6)):
            for r in range(8):
                for q in (q0, q0 + 1):
                    if r == 0: mm(q, 'v[116:119]' if False else ('k32', ps), ('h', ps, 0, q - 4))
                    if r == 2: mm(q, 'v[16:19]', ('x', q)); xlast = len(seq) - 1
                    for p in range(4): mm(q, kf(p, r), ('h', ps, r, q - p))
                    if r == 1:
                        for u in range(q - 3): mm(q, f'v[{40+4*u}:{43+4*u}]', f'a[{240+4*(q-u-4)}:{243+4*(q-u-4)}]')
            if ps == 2: nC = len(seq)
        def fragload(f, dst):
            if f[0] == 'h': return [Ins(f'ds_read_b128 v[{dst}:{dst+3}], v9 offset:{512 + 512*f[3] - 64*f[2] - 32}')]
            if f[0] == 'h9': return [Ins(f'ds_read_b128 v[{dst}:{dst+3}], v9 offset:{512 + 512*f[1] - 48}')]
            if f[0] == 'x': return [Ins(f'ds_read_b128 v[{dst}:{dst+3}], v13 offset:{2048*f[1]}')]
            if f[0] == 'k32': return kread(32, dst)
        bb, pinned, head = alloc_frags(seq, 'v_mfma_f32_16x16x32_bf16', list(range(56, 96, 4)), fragload, lead=self.o('lead', 7))
        S.emit(head)
        def cvts(us):
            o = []
            for u in us:
                d = 112 + 8*(u & 1)
                o += L('\n'.join(f'v_cvt_pk_bf16_f32 v{40+4*u+r}, v{d+r}, v{d+4+r}' for r in range(4)))
            return o
        farld = []
        for dl in range(4):
            o = 16*(3 - dl)
            farld += [Ins(f'ds_read2_b32 a[{240+4*dl}:{241+4*dl}], v14 offset0:{o} offset1:{o+1}'), Ins(f'ds_read2_b32 a[{242+4*dl}:{243+4*dl}], v14 offset0:{o+2} offset1:{o+3}')]
        N = len(bb)
        dr = self.o('drain', 46)
        gfA = nA + 10 + dr; gfB = nB + 10 + self.o('drainb', 58); gfC = nC + 10 + self.o('drainc', 48)
        g_poll = self.o('g_poll', 130); g_chk = self.o('g_chk', 165)
        pc = self.pollC(0, 'v31')
        c0, c1, c2, c3 = [c if not (k < 3 and self.o('early', 3) >> k & 1) else [] for k, c in enumerate(self.conv_late())]
        self.pB = self.pollC(1, 'v192')
        self.pipe = Pipe(self.o('sv', 68), self.o('svst', 280), self.o('win', 480))
        wck = Fill([wchk] if ecw >= 500 else [], max(0, ecw - 500), max(0, ecw - 500), prio=5, hard=True, name='w1')
        w1f = Fill(self.w1_loads(npre_w1, 60), 0, 10**9, prio=1, name='w1', asap=True, carry=True, after=[wck]); self.w1f = w1f
        lf = Fill(c0 + c1 + c2 + c3, 0, 1, prio=2, name='late', slack=1)
        marks = [(0, 0), (len(c0), 7), (len(c0 + c1), 18), (len(c0 + c1 + c2), a1 - 4), (len(c0 + c1 + c2 + c3), 66)]
        for (k0, g0), (k1, g1) in zip(marks, marks[1:]):
            for k in range(k0, k1): lf.want[k] = g0 + (g1 - g0)*(k - k0)/(k1 - k0)
        tc = Fill(L(f's_mov_b32 s46, {16*self.TPI}\ns_mov_b32 s47, {32*self.TPI}\ns_mov_b32 s48, {48*self.TPI}') + self.tile_consts() + self.g1_pre[0], 68, 165, prio=1, name='g1pre', ahead=10, after=[lf])
        ck = Fill([self.stamp('_chk0') + self.check(pc, ['v31'], None) + self.stamp('_chk1')], g_chk, g_chk, prio=5, hard=True, name='tail')
        tail = Fill(self.tile_dma(0) + [self.barrier()] + self.ic2_loads(), g_chk, N - 3, prio=4, asap=True, after=[ck], name='tail')
        fpb = Fill([self.pB], N - self.o('gpB', 14), N - self.o('gpB', 14), prio=5, hard=True, name='tail')
        g1v = Fill(self.g1_pre[1], xlast + 2, N - 8, prio=1, name='g1pre', ahead=30, after=[tc])
        for k, it in enumerate(g1v.items):
            if ('v', 31) in it[0].defs: break
        for kk in range(k, len(g1v.items)): g1v.lo[kk] = g_chk + 4
        fills = [
            Fill(kreads[npre:], 0, 70, prio=3, hard=True),
            Fill(cvts((0, 1)), a1 + 8, a1 + 15, prio=2, hard=True),
            Fill(cvts((2, 3)), a2 + 8, a2 + 15, prio=2, hard=True),
            Fill(farld[:4], nB - 4, nB + 4, prio=2, hard=True, after=[lf]), Fill(farld[4:], nB + 30, nB + 50, prio=2),
            Fill(self.epi(0, '0', 'pA') + L(f'buffer_store_dword v127, v126, {sWS}, 0 offen sc1', tag='pA'), nA + 3, nA + 10, prio=3, burst=True),
            Fill(self.epi(1, 's46', 'pB'), nB + 3, nB + 10, prio=3, burst=True),
            Fill(self.epi(2, 's47', 'pC'), nC + 3, nC + 10, prio=3, burst=True),
            wck, w1f, lf, tc, g1v, ck, tail, fpb,
            Fill([self.stamp('_fa0') + self.flagC(0, 'pA') + self.stamp('_fa1')], gfA, gfA, prio=4, hard=True, after=[lf]),
            Fill([self.stamp('_fb0') + self.flagC(1, 'pB') + self.stamp('_fb1')], gfB, gfB, prio=4, hard=True),
            Fill([self.flagC(2, 'pC')], gfC, gfC, prio=4, hard=True),
            Fill([pc], g_poll, g_poll, prio=4, hard=True, name='tail'),
        ]
        if isinstance(self.stamps, list):
            for nm in self.stamps:
                if nm.startswith('_C'): fills.append(Fill([self.stamp(nm)], int(nm[2:]), int(nm[2:]), prio=9, hard=True))
        merged = interleave(bb, fills, pinned, report='conv', pipe=self.pipe,
                            quiet=[(q, self.o('qx', 0)) for b_, q in ((1, nA + 10), (2, nB + 10), (4, g_poll), (8, nC + 10)) if self.o('quiet', 0) & b_])
        S.emit(merged)
        k0 = max(k for k, i in enumerate(merged) if i in ck.items[0])
        self.mirror = [i for i in merged[k0+1:] if i.src in ('tail', 'w1') or i.kind == 'vmem']
        done = [i for i in merged[:k0] if i.src == 'w1' and i.kind == 'vmem' and i.defs]
        self.nA2 = npre_w1 + len(done)
        self.w1cur = {r: [i for i in merged[:k0] if i.src == 'w1' and ('s', 67 + r) in i.defs][-1] for r in range(3)}
        S.emit(self.stamp('conv'))
    def flagC(self, stage, tag, skip=False):
        o = self.barrier([tag])
        if skip: o += L('s_cmp_eq_u32 s0, 1\ns_cbranch_scc1 L_noflc')
        for r in range(self.RC//4): o += L(f's_atomic_swap {sN}, s[4:5], s66 offset:{stage*self.CSTG + r*self.CREP}')
        if skip: o += L('L_noflc:')
        return o
    def epi(self, j, soff, tag, t=None):
        t = t or 32 + 4*(j & 1); qa, qb = 96 + 8*j, 100 + 8*j
        return L(f'''
        v_cvt_pk_bf16_f32 v{t}, v{qa}, v{qa+1}
        v_cvt_pk_bf16_f32 v{t+2}, v{qb}, v{qb+1}
        v_cvt_pk_bf16_f32 v{t+1}, v{qa+2}, v{qa+3}
        v_cvt_pk_bf16_f32 v{t+3}, v{qb+2}, v{qb+3}
        v_permlane16_swap_b32 v{t}, v{t+2}
        v_permlane16_swap_b32 v{t+1}, v{t+3}
        ''') + L(f'buffer_store_dwordx4 v[{t}:{t+3}], v15, {sWS}, {soff} offen sc1', tag=tag)
    def mod_unit(self, S, su, scol='s71', va='v57', tag='moddma', mid=(), also=()):
        S.emit(f's_and_b32 s58, {su}, 1\ns_mul_i32 s58, s58, 640\nv_add_u32 v58, s58, v51')
        S.wait_tags([tag] + list(also)); S.emit('s_waitcnt lgkmcnt(0)\ns_barrier'); S.emit(list(mid))
        for b in range(10):
            S.emit(f'''
            ds_read_b64_tr_b16 v[{128+8*b}:{129+8*b}], {va} offset:{4096*b}
            ds_read_b64_tr_b16 v[{130+8*b}:{131+8*b}], {va} offset:{4096*b+512}
            ds_read_b128 v[{132+8*b}:{135+8*b}], v58 offset:{64*b}
            ''')
        for b in range(10):
            S.emit(f'v_mfma_f32_16x16x32_bf16 v[52:55], v[{132+8*b}:{135+8*b}], v[{128+8*b}:{131+8*b}], {"0" if b == 0 else "v[52:55]"}')
        S.emit(f'''
        s_and_b32 s58, {su}, 1
        s_mul_i32 s58, s58, 3840
        s_add_u32 s58, s58, {scol}
        s_lshl_b32 s59, s3, 4
        s_add_u32 s58, s58, s59
        s_lshl_b32 s58, s58, 3
        s_add_u32 s58, s58, {WS_MODP}
        v_mov_b32 v53, {sN}
        buffer_store_dwordx2 v[52:53], v59, {sWS}, s58 offen sc1
        ''')
    def w2_dma(self, sT):
        o = L(f'''
        s_mul_hi_u32 s40, {sT}, {(2**32 + 9)//10}
        s_mul_i32 s58, s40, 10
        s_sub_u32 s41, {sT}, s58
        s_lshl_b32 s40, s40, 2
        s_add_u32 s40, s40, s3
        s_mul_hi_u32 s58, s40, {(2**32 + 2)//3}
        s_mul_i32 s59, s58, 3
        s_sub_u32 s59, s40, s59
        s_mul_i32 s58, s58, 96
        s_mul_i32 s42, s59, 48
        s_cmp_eq_u32 s59, 2
        s_cselect_b32 s42, 32, s42
        s_cselect_b32 s43, 8, 4
        s_cselect_b32 s44, 48, 16
        s_cselect_b32 s45, 0, 4
        s_mul_i32 s43, s43, 1280
        s_mul_i32 s44, s44, 1280
        s_add_u32 s58, s58, s42
        s_mul_i32 s58, s58, 1280
        s_lshl_b32 s59, s41, 7
        s_add_u32 s42, s58, s59
        s_add_u32 s43, s42, s43
        v_and_b32 v12, s45, v104
        v_add_u32 v12, v12, v104
        v_mul_u32_u24 v12, 1280, v12
        v_add_u32 v13, v12, v106
        v_add_u32 v12, v12, v105
        ''')
        for d in range(4):
            if d == 2: o += L('s_add_u32 s42, s42, s44\ns_add_u32 s43, s43, s44')
            o += L(f's_add_u32 m0, s66, {1024*d}\ns_nop 0')
            o += L(f'buffer_load_dwordx4 v{12+(d&1)}, {sWD}, s{42+(d&1)} offen nt lds', tag='w2dma')
            o += L(f's_add_u32 m0, s66, {57344 + 1024*d - 128}\ns_nop 0')
            o += L(f'buffer_load_dwordx4 v{12+(d&1)}, {sWD}, s{42+(d&1)} offen offset:128 nt lds', tag='w2dma')
        return o
    def w2_finish(self):
        return L(f'''
        s_mul_i32 s58, s41, 192
        s_add_u32 s58, s58, s40
        s_lshl_b32 s58, s58, 10
        s_add_u32 s58, s58, {WS_W2P}
        ''') + self.prep_task('w2dma', 's58', 49152, 'w2st', tmp=208) + L('s_add_u32 s58, s58, 49152') + self.prep_task('w2dma', 's58', 49152, 'w2st', tmp=224, loff=57344)
    def spare_path(self, S):
        S.set_state(self.st_spare)
        S.emit('L_spare:'); S.dummy = 'ds_read_b32 v1, v3'; S.emit(self.touch('L_s')); S.emit('L_s0:\ns_mov_b64 exec, -1'); S.emit(self.common_consts()[:14]); S.emit(self.late_consts()[:2])
        S.emit(f'''
        s_lshl_b32 s58, s3, 5
        v_subrev_u32 v57, s66, v112
        v_xor_b32 v57, s58, v57
        v_add_u32 v56, {L_H}, v57
        v_lshrrev_b32 v58, 4, v2
        v_lshlrev_b32 v58, 4, v58
        v_add_u32 v51, {L_VEC}, v58
        v_lshlrev_b32 v59, 3, v2
        v_mov_b32 v43, {OOB}
        v_cmp_gt_u32 vcc, 16, v2
        v_add_u32 v42, {L_VEC}, v12
        s_mov_b32 s65, -1
        v_cndmask_b32 v59, v43, v59, vcc
        ''')
        for k in range(4): S.emit(f'v_lshlrev_b32 v{32+k}, 16, v{200+(k>>1)}' if k % 2 == 0 else f'v_and_b32 v{32+k}, 0xffff0000, v{200+(k>>1)}')
        for op in ('v_mul_f32 T, 0xbfb8aa3b, X', 'v_exp_f32 T, T', 'v_add_f32 T, 1.0, T', 'v_rcp_f32 T, T', 'v_mul_f32 X, X, T'):
            for k in range(4): S.emit(op.replace('T', f'v{36+k}').replace('X', f'v{32+k}'))
        S.emit('v_cvt_pk_bf16_f32 v32, v32, v33\nv_cvt_pk_bf16_f32 v33, v34, v35\nds_write_b64 v42, v[32:33]')
        S.emit(self.mod_late)
        S.emit(f's_cmp_lt_u32 {sJ}, 23\ns_cbranch_scc1 L_sp_a')
        st = S.state()
        self.mod_unit(S, 's70'); S.emit(self.stamp('slot0'))
        S.emit('s_sub_u32 s46, s2, 184\ns_cmp_ge_u32 s46, 60\ns_cbranch_scc1 L_sp_b2done\ns_lshl_b32 s46, s46, 1')
        S.emit(self.w2_dma('s46')); S.emit(self.w2_finish())
        S.emit('s_lshl_b32 s58, s46, 6\ns_lshl_b32 s59, s3, 2\ns_add_u32 s65, s58, s59\ns_branch L_sp_b2done')
        S.set_state(st)
        S.emit('L_sp_a:\ns_sub_u32 s46, s2, 64')
        md = self.mod_dma('s46', 's47', L_H, 'mod2'); nm = self.o('m2mid', 10)
        S.emit(md[0]); S.emit(flat(md[1][:nm]))
        self.mod_unit(S, 's70'); S.emit(self.stamp('slot0'))
        S.emit(flat(md[1][nm:]))
        self.mod_unit(S, 's46', 's47', 'v56', 'mod2')
        S.emit('L_sp_b2done:')
        S.emit(self.stamp('slot1'))
        S.emit(self.touch('L_gp')); S.emit('L_sp_t2:')
        S.emit(self.g_setup())
        S.emit(f'''
        v_mov_b32 v56, {OOB}
        v_mov_b32 v57, {OOB}
        s_mov_b32 s40, 0
        s_mov_b32 s41, 0
        s_mov_b32 s42, 0
        s_cmp_ge_u32 {sXC}, 4
        s_cbranch_scc1 L_sp_nog
        ''')
        S.emit(f'''
        v_min_u32 v56, 159, v0
        v_lshlrev_b32 v57, 5, v56
        v_add_u32 v57, {WS_MODP + 3*640*8}, v57
        v_add_u32 v58, {640*8}, v57
        s_mov_b32 s59, {3840*8}
        ''')
        gl = []
        for k, (a, so) in enumerate((('v58', '0'), ('v58', 's59'), ('v57', '0'), ('v57', 's59'))):
            gl += L(f'buffer_load_dwordx4 v[{64+8*k}:{67+8*k}], {a}, {sWS}, {so} offen sc1\nbuffer_load_dwordx4 v[{68+8*k}:{71+8*k}], {a}, {sWS}, {so} offen offset:16 sc1')
        S.emit(gl)
        S.emit(self.check(gl, [f'v{65+2*k}' for k in range(16)], 'v50', sleep=8))
        for k in range(4):
            S.emit(f'''
            v_add_f32 v{64+2*k}, v{64+2*k}, v{72+2*k}
            v_add_f32 v{80+2*k}, v{80+2*k}, v{88+2*k}
            v_cvt_pk_bf16_f32 v{64+2*k}, 0, v{64+2*k}
            v_add_f32 v{64+2*k}, 1.0, v{64+2*k}
            ''')
        S.emit(f'''
        v_cvt_pk_bf16_f32 v72, v64, v66
        v_cvt_pk_bf16_f32 v73, v68, v70
        v_cvt_pk_bf16_f32 v74, v80, v82
        v_cvt_pk_bf16_f32 v75, v84, v86
        v_lshlrev_b32 v56, 3, v56
        v_add_u32 v56, {L_VEC + 1536}, v56
        ds_write_b64 v56, v[72:73]
        ds_write_b64 v56, v[74:75] offset:1280
        v_and_b32 v57, 1, v2
        v_mul_u32_u24 v57, 1280, v57
        v_lshrrev_b32 v58, 5, v2
        v_lshl_add_u32 v57, v58, 4, v57
        s_and_b32 s59, s3, 1
        s_mul_i32 s58, s59, 640
        s_add_u32 s58, s58, {L_VEC + 1536}
        v_add_u32 v57, s58, v57
        s_waitcnt lgkmcnt(0)
        s_barrier
        ''')
        for s in range(20): S.emit(f'ds_read_b128 v[{128+4*s}:{131+4*s}], v57 offset:{32*s}')
        S.emit(f'''
        s_lshr_b32 s58, s3, 1
        s_mul_i32 s58, s58, 3
        s_mul_i32 s43, {sSIG}, 6
        s_add_u32 s58, s58, s43
        s_lshl_b32 s58, s58, 10
        s_lshl_b32 s43, s59, 9
        s_add_u32 s58, s58, s43
        s_add_u32 s58, s58, {WS_WX}
        s_lshl_b32 s43, s59, 10
        s_add_u32 s42, s58, s43
        s_sub_u32 s40, s58, s43
        s_add_u32 s40, s40, 1024
        s_add_u32 s41, s58, 2048
        v_mov_b32 v58, {OOB}
        v_cmp_gt_u32 vcc, 32, v2
        s_nop 1
        v_cndmask_b32 v56, v58, v3, vcc
        v_cndmask_b32 v57, v58, v5, vcc
        ''')
        S.emit('L_sp_nog:')
        S.emit(self.stamp('_xin'))
        pw = self.pollW()
        S.emit(pw); S.emit(self.check(pw, ['v4'], None, sleep=8))
        S.emit(f's_cmp_eq_u32 s65, -1\ns_cbranch_scc1 L_sp_nw2\ns_atomic_swap {sN}, s[4:5], s65 offset:{WS_FLW2}\nL_sp_nw2:')
        S.emit(self.stamp('slot2'))
        S.emit(f's_cmp_lt_u32 {sJ}, 24\ns_cbranch_scc1 L_sp_p0\ns_cmp_lt_u32 {sJ}, 28\ns_cbranch_scc1 L_sp_p1')
        st = S.state()
        for v in (2, 0, 1):
            S.set_state(st)
            if v != 2: S.emit(f'L_sp_p{v}:')
            lds = self.w1_loads(0, 60, only=v) + self.w1_loads(0, self.nA2, skip=v)
            nld = 0; k = 0; lag = self.o('xlag', 9)
            for it in lds:
                S.emit(it)
                if it[0].kind == 'vmem':
                    nld += 1
                    if nld > lag and k < 20:
                        S.emit(f'v_mfma_f32_32x32x16_bf16 v[64:79], v[{128+4*k}:{131+4*k}], a[{12*k+4*v}:{12*k+4*v+3}], {"0" if k == 0 else "v[64:79]"}'); k += 1
            assert k == 20
            d = 64
            S.emit(f'''
            v_cvt_pk_bf16_f32 v{d+2}, 0, v{d}
            v_cvt_pk_bf16_f32 v{d+3}, 0, v{d+1}
            v_sub_f32 v{d}, v{d}, v{d+2}
            v_sub_f32 v{d+1}, v{d+1}, v{d+3}
            v_cvt_pk_bf16_f32 v{d}, -v{d+2}, -v{d}
            v_cvt_pk_bf16_f32 v{d+1}, v{d+3}, v{d+1}
            v_mov_b32 v{d+2}, 0
            v_mov_b32 v{d+3}, {sN}
            buffer_store_dwordx4 v[{d}:{d+3}], v{57 if v == 1 else 56}, {sWS}, s{40+v} offen sc1
            ''')
            if v != 1: S.emit('s_branch L_sp_pj')
        S.emit('L_sp_pj:')
        S.emit(self.stamp('_wok'))
        S.emit(self.tile_consts())
        pc = self.pollC(0, 'v128')
        S.emit('s_waitcnt lgkmcnt(0)'); S.emit(pc)
        S.emit(f'''
        v_mov_b32 v15, {OOB}
        s_mov_b32 s47, 0
        s_mov_b32 s48, 0
        ''')
        S.emit(cp(flat(self.g1_pre[0]) + flat(self.g1_pre[1])))
        S.emit('s_barrier')
        S.emit(self.stamp('kexp'))
        S.emit(self.check(pc, ['v128'], None, sleep=9))
        S.emit(self.stamp('_chk1'))
        S.emit(cp(list(self.w1cur.values()))); S.emit(cp(self.mirror))
        tail = [i.text for i in S.vm]
        assert tail == [i.text for i in self.join_vm[-len(tail):]] or [i.text for i in self.join_vm] == tail[-len(self.join_vm):], (tail, self.join_vm)
        S.emit(self.stamp('conv'))
        S.emit('s_branch L_g1')
    def finish(self, S):
        if self.probe:
            S.emit(self.stamp('end'))
            S.wait_all(); S.out.append(Ins('s_waitcnt vmcnt(0) lgkmcnt(0)'))
            k = self.stamp_names.index(self.probe)
            role = self.o('prole', 2)
            S.emit(f's_sub_u32 s58, s{78+2*k}, s78')
            if role < 2: S.emit(f's_cmp_eq_u32 s0, {role}\ns_cselect_b32 s58, s58, 0')
            if self.o('pwg', -1) >= 0: S.emit(f's_cmp_eq_u32 s2, {self.o("pwg", 0)}\ns_cselect_b32 s58, s58, 0')
            S.emit('s_min_u32 s58, s58, 20000\ns_add_u32 s58, s58, 6000')
            if self.o('ponly', -1) >= 0: S.emit(f's_cmp_eq_u32 s2, {self.o("ponly", 0)}\ns_cselect_b32 s58, s58, 0')
            S.emit('L_spin:')
            S.out += L('s_memrealtime s[60:61]\ns_waitcnt lgkmcnt(0)\ns_sub_u32 s60, s60, s78\ns_cmp_lt_u32 s60, s58\ns_cbranch_scc1 L_spin')
        elif self.stamps:
            S.emit(self.stamp('end'))
            S.wait_all()
            S.out.append(Ins('s_waitcnt vmcnt(0) lgkmcnt(0)'))
            S.emit(f'''
            s_lshl_b32 s58, s2, 2
            s_add_u32 s58, s58, s3
            s_lshl_b32 s58, s58, 8
            s_add_u32 s58, s58, {WS_DBG}
            v_mov_b32 v31, {OOB}
            v_writelane_b32 v31, 0, 0
            ''')
            for k in range(len(self.stamp_names)):
                S.emit(f'v_mov_b32 v1, s{78+2*k}\nbuffer_store_dword v1, v31, {sWS}, s58 offen offset:{4*k}')
            S.emit(f'v_mov_b32 v1, {sBUD}\nbuffer_store_dword v1, v31, {sWS}, s58 offen offset:60')
        S.emit('s_endpgm')
    def build(self):
        import gen2, fw
        fw.LDSLIM[0] = self.o('ldslim', 56)
        self.g1_pre = gen2.g1_pre(self)
        P = Stream(); self.prologue(P)
        S = Stream(); self.conv_path(S)
        S.emit('L_g1:'); self.join_vm = list(S.vm)
        if self.stop == 'conv':
            S.emit('s_nop 7')
            S.emit(self.epi(2, 's47', 'p2') + self.epi(3, 's48', 'p2'))
        else:
            import gen2
            gen2.gemms(self, S)
        if self.o('wsite', -1) >= 0:
            k0 = self.o('wsite', 0); start = max(k for k, i in enumerate(S.out) if 'hw' in i.waitfor) + 1
            sites = []; gap = 0
            for k in range(start, len(S.out)):
                i = S.out[k]
                if i.kind == 'mfma': gap += 1
                if (i.mn == 's_waitcnt' and 'vmcnt' in i.text) or i.mn == 's_barrier' or i.mn == 's_cbranch_vccnz' or (i.mn == 's_cmp_lg_u64' and S.out[k+2].mn == 's_cmp_lg_u64'): sites.append((k, gap, i))
            self.nsites = len(sites); self.stamps = True
            ins = []
            for n, (k, gp, i) in enumerate(sites[k0:k0+5]):
                ph = f'C{gp}' if gp <= 238 else (f'G{gp-238}' if gp <= 484 else f'H{gp-484}')
                nm = ph + {'s_waitcnt': 'w' + i.text.split('(')[1].split(')')[0] if i.mn == 's_waitcnt' else '', 's_barrier': 'bar', 's_cbranch_vccnz': 'chk', 's_cmp_lg_u64': 'schk'}[i.mn]
                ins.append((k, self.stamp(f'.{n}'), self.stamp(nm + '.' * n), {'s_cbranch_vccnz': 2, 's_cmp_lg_u64': 5}.get(i.mn, 1)))
            for k, a_, b_, w in reversed(ins): S.out[k:k+w] = a_ + S.out[k:k+w] + b_
            self.stamps = ['none']
        self.finish(S)
        slow1 = self.slow; self.slow = []
        Q = Stream(); self.spare_path(Q)
        if self.o('static', 0):
            k0 = max(k for k, i in enumerate(S.out) if 'hw' in i.waitfor); k1 = max(k for k, i in enumerate(S.out) if 'pw3' in i.waitfor)
            for k in range(k0, k1):
                i = S.out[k]
                if i.kind == 'vmem' and self.o('static', 0) == 2 and 'store' not in i.mn:
                    continue
                if i.kind == 'vmem' or i.note == 'async': S.out[k] = Ins('s_mov_b32 vcc_hi, 0x12345')
        dm = self.o('drop', 0)
        if dm:
            import re
            pats = {1: r'buffer_load_dwordx4 a\[\d+:\d+\], v[35], s\[4:7\], s6[789]',
                    2: r'buffer_load_dword v\d+, v4,', 4: r'buffer_store_dwordx4 v\[\d+:\d+\], v1[578],', 8: r'buffer_store_dword v1, v30',
                    16: r'buffer_load_dwordx4 v6, .* lds', 32: r'buffer_load_dwordx4 v\[\d+:\d+\], v3, s\[4:7\], s6[78]', 64: r'buffer_(load|store)_dwordx2 v\[(10:11|32:33)\]'}
            pats[256] = r'(buffer_load_dwordx4 v1[23], s\[24:27\]|buffer_store_dwordx4 v\[\d+:\d+\], v3, s\[4:7\], s58)'
            pats[512] = r'buffer_store_dwordx4 v\[\d+:\d+\], v(3|199), s\[4:7\], s3[56]'
            lists = [S.out] + ([Q.out] if dm & 128 else [])
            for lst in lists:
                for k, i in enumerate(lst):
                    if any(dm & b and re.match(p, i.text) for b, p in pats.items()): lst[k] = Ins('s_mov_b32 vcc_hi, 0x12345')
        body = S.out + slow1 + Q.out + self.slow
        body, npages, nbytes, mis = layout(body, minpages=8)
        for i in P.out: i.text = i.text.replace('@CODEMAX@', str(nbytes // 128 * 128))
        pro, _, pbytes, _ = layout(P.out, stubs=False)
        self.info = dict(pages=npages, bytes=nbytes, pro=pbytes, misaligned=mis, nops=S.nops, waits=S.nwait, dummy=S.ndummy, n=len(S.out))
        self.log = P.log + S.log + Q.log
        txt = f'; @launch grid=(256,1,1) block=(256,1,1) lds={LDS_BYTES}\n.amdgcn_target "amdgcn-amd-amdhsa--gfx950"\n.text\n.p2align 12\n.globl {NAME}\n.p2align 8\n.type {NAME},@function\n{NAME}:\n'
        txt += render(pro)
        txt += '.p2align 12\n' + render(body)
        if not self.o('nt', 1): txt = txt.replace(' nt lds', ' lds').replace(' nt\n', '\n')
        txt += f'''.section .rodata,"a"
.p2align 6
.amdhsa_kernel {NAME}
  .amdhsa_next_free_vgpr 512
  .amdhsa_next_free_sgpr 102
  .amdhsa_accum_offset 256
  .amdhsa_group_segment_fixed_size 0
  .amdhsa_kernarg_size 144
  .amdhsa_user_sgpr_count 2
  .amdhsa_user_sgpr_kernarg_segment_ptr 1
  .amdhsa_system_sgpr_workgroup_id_x 1
  .amdhsa_float_denorm_mode_32 {self.o('denorm', 3)}
.end_amdhsa_kernel
'''
        return txt

def alloc_frags(seq, mn, pool, loader, lead, maxper=1, notbefore=None):
    first = {}; last = {}
    for k, (D, A, B, C) in enumerate(seq):
        for f in (A, B):
            if isinstance(f, tuple): first.setdefault(f, k); last[f] = k
    order = sorted(first, key=lambda f: first[f])
    freeat = {r: -1 for r in pool}
    used = {}; pinned = {}; head = []; reg = {}
    for f in order:
        r = min(freeat, key=lambda x: freeat[x])
        lds = loader(f, r)
        want = first[f] - 1 - lead
        lo = max(freeat[r], notbefore(f) if notbefore else -1)
        for i in lds:
            g = max(want, lo)
            if g >= 0:
                c = g
                while c > max(lo, 0) and used.get(c, 0) >= maxper and c > g - 4: c -= 1
                if used.get(c, 0) >= maxper:
                    c = g
                    while used.get(c, 0) >= maxper and c < first[f] - 3: c += 1
                g = c
            assert g < first[f], (f, g, first[f])
            if g < 0: head.append(i)
            else: pinned.setdefault(g, []).append(i); used[g] = used.get(g, 0) + 1
        reg[f] = r; freeat[r] = last[f]
    R = lambda f: f'v[{reg[f]}:{reg[f]+3}]' if isinstance(f, tuple) else f
    bb = [Ins(f'{mn} {D}, {R(A)}, {R(B)}, {C}') for D, A, B, C in seq]
    return bb, pinned, head

if __name__ == '__main__':
    import argparse
    ap = argparse.ArgumentParser(); ap.add_argument('-o', default='k.s'); ap.add_argument('--stop'); ap.add_argument('--stamps', action='store_true'); ap.add_argument('--log', action='store_true')
    ap.add_argument('--opt', default=''); ap.add_argument('--audit', action='store_true'); ap.add_argument('--probe')
    a = ap.parse_args()
    opt = {k: int(v) for k, v in (x.split('=') for x in a.opt.split(',') if x)}
    g = Gen(stop=a.stop, stamps=a.stamps, probe=a.probe, **opt)
    t = g.build(); open(a.o, 'w').write(t)
    print(g.info, g.stamp_names)
    if a.log: print('\n'.join(g.log))
    import fw
    print('\n'.join(x for x in fw.AUDIT if a.audit or x.startswith('CONFLICT') or x.startswith('sched') or (a.log and 'place' in x)))
```

```python
import sys
from fw import *

NAME = 'adaLN_cond__ssm_conv_s4__glu_gated_geglu__prompt_kernel'
WS_E = 0; WS_STAT = 0x1000; WS_FLW2 = 0x5000; WS_IC2 = 0x7000
WS_FLA = 0x8000; FLW_OFF = 0x4000; WS_FLH = 0x10000; FLH_STG = 0x2000; FLH_REP = 0x8000; WS_ST2 = 0x30000; WS_DMY = 0x48000; WS_FLC = 0x54000
WS_MODP = 0xC0000; WS_WX = 0xD0000; WS_DBG = 0x80000
WS_XT = 0x100000; WS_X1S = 0x400000; WS_W1P = 0x700000; WS_W2P = 0xB20000; WS_HH = 0xD00000
WS_SIZE = 0x1300000
OOB = 0x7F000000
L_TAB = 0; L_STG = 65536
L_KC = 81920; KC_PITCH = 4736; KC1 = 2236; KCD = 4384
L_LN = 81920 + 4 * KC_PITCH; LNP = 5152
L_VEC = L_LN + 10240
L_H = 122880; H_PITCH = 4608
L_X = L_H + 4 * H_PITCH
L_SLOT = [0, 40960, 81920, 0]
L_EX = 122880
L_CST = 159744
L_PART = 81920; L_XS = 114688
LDS_BYTES = 163840
TP = 272
P2 = 2*1056
sWS, sX, sOUT, sWG, sWU, sWD, sWM = 's[4:7]', 's[8:11]', 's[12:15]', 's[16:19]', 's[20:23]', 's[24:27]', 's[28:31]'
sN, sXC, sJ, sSIG, sR, sBUD = 's50', 's51', 's52', 's53', 's54', 's55'
sCH, sCB4 = 's56', 's57'
BUD = 40000
def cp(l): return [Ins(i.text, tag=i.tag, waitfor=i.waitfor) for i in l]
def flat(items): return [x for it in items for x in (it if isinstance(it, list) else [it])]

class Gen:
    def __init__(self, stop=None, stamps=False, probe=None, **opt):
        self.stop = stop; self.stamps = stamps; self.opt = opt; self.probe = probe
        if probe: self.stamps = [probe]
        self.slow = []; self.npoll = 0; self.stamp_names = []
        if isinstance(self.stamps, list): self.stamp_names = ['start'] + [x for x in self.stamps if x not in ('none', 'start', 'end')]
        self.XP = 16384 + opt.get('xpad', 0); self.TPI = 40960 + opt.get('tpad', 0)
        assert 160*self.XP <= WS_X1S - WS_XT and 64*self.TPI <= WS_W1P - WS_X1S
        self.RA = opt.get('ra', 2); self.FS = opt.get('fs', 32); self.AREP = 256*self.FS
        self.RC = opt.get('rc', 4); self.FC = opt.get('fc', 32); self.CREP = 160*self.FC; self.CSTG = self.RC*self.CREP
        assert 4*self.CSTG <= WS_DBG - WS_FLC and self.RA*self.AREP <= FLW_OFF
    def o(self, k, d): return self.opt.get(k, d)
    def stamp(self, name):
        if not self.stamps: return []
        if self.stamps is not True and name not in self.stamps and name not in ('start', 'end'): return []
        if self.stamps is True and name.startswith('_'): return []
        if name not in self.stamp_names: self.stamp_names.append(name)
        k = self.stamp_names.index(name); assert k < 12
        i = Ins(f's_{"memtime" if self.o("cyc", 0) else "memrealtime"} s[{78+2*k}:{79+2*k}]'); i.note = 'stamp'
        return [i]
    def check(self, loads, tagregs, tmp, sleep=4, split=False):
        k = self.npoll; self.npoll += 1
        def cmp():
            if len(tagregs) == 1: return L(f'v_cmp_ne_u32 vcc, {sN}, {tagregs[0]}')
            t = list(tagregs)
            o = L(f'v_xor_b32 {tmp}, {t[0]}, {t[1]}')
            for r in t[2:]: o += L(f'v_sad_u32 {tmp}, {t[0]}, {r}, {tmp} clamp')
            return o + L(f'v_sad_u32 {tmp}, {t[0]}, {sN}, {tmp} clamp\nv_cmp_ne_u32 vcc, 0, {tmp}')
        fast = cmp() + L(f's_cbranch_vccnz L_slow{k}\nL_back{k}:')
        if self.o('nocheck', 0) and (sleep == 4 or (sleep == 9 and (self.o('static', 0) or self.o('drop', 0) & 4106))) and k >= self.o('nocheck', 0) - 1: fast[-2] = Ins('s_nop 0')
        dd = set()
        for i in loads:
            fast[-2].xuses |= (i.uses - dd); dd |= i.defs
        fast[-2].xdefs = set(r for r in dd if not isv(r)) | {'scc'}
        s = Stream()
        s.emit(f'L_slow{k}:\ns_sub_u32 {sBUD}, {sBUD}, 1\ns_cbranch_scc1 L_giveup{k}\ns_sleep {sleep if sleep != 4 else self.o("slp", 2)}')
        s.emit([Ins(i.text) for i in loads]); s.wait_all(); s.emit(cmp())
        s.emit(f's_cbranch_vccnz L_slow{k}\ns_branch L_back{k}\nL_giveup{k}:\ns_mov_b32 {sBUD}, 0\ns_branch L_back{k}')
        self.slow += s.out
        if split: return [fast[:-2], fast[-2:]]
        return fast
    def spoll(self, base, soff, off):
        k = self.npoll; self.npoll += 1
        ld = f's_load_dwordx4 s[{base}:{base+3}], s[4:5], {soff} offset:{off} glc'
        test = lambda lab: f's_cmp_eq_u64 s[{base}:{base+1}], s[8:9]\ns_cselect_b64 s[10:11], s[{base+2}:{base+3}], 1\ns_cmp_lg_u64 s[10:11], s[8:9]\ns_cbranch_scc1 {lab}'
        issue = L(ld); issue[0].note = 'async'
        fast = L(test(f'L_slow{k}') + f'\nL_back{k}:')
        if self.o('nocheck', 0): fast = L(test(f'L_back{k}') + f'\nL_back{k}:')
        self.slow += L(f'''
        L_again{k}:
        s_sub_u32 {sBUD}, {sBUD}, 1
        s_cbranch_scc1 L_giveup{k}
        {ld}
        L_slow{k}:
        s_waitcnt lgkmcnt(0)
        {test(f'L_again{k}')}
        s_branch L_back{k}
        L_giveup{k}:
        s_mov_b32 {sBUD}, 0
        s_branch L_back{k}
        ''')
        return issue, fast
    def barrier(self, waitfor=None): return [Ins('s_barrier', waitfor=waitfor)]
    def touch(self, pre):
        return L(f'''
        s_mov_b64 exec, 0
        s_cmp_eq_u32 s3, 0
        s_cbranch_scc1 {pre}0
        s_cmp_eq_u32 s3, 1
        s_cbranch_scc1 {pre}1
        s_cmp_eq_u32 s3, 2
        s_cbranch_scc1 {pre}2
        s_branch {pre}3
        ''')
    def prologue(self, S):
        S.emit(self.stamp('start'))
        S.emit(f'''
        s_cmp_ge_u32 s2, 256
        s_cbranch_scc1 L_exit
        s_load_dwordx2 s[8:9], s[0:1], 0
        s_load_dwordx16 s[16:31], s[0:1], 80
        s_load_dwordx16 s[32:47], s[0:1], 8
        v_lshrrev_b32 v1, 6, v0
        s_lshr_b32 {sJ}, s2, 3
        v_and_b32 v2, 63, v0
        v_readfirstlane_b32 s3, v1
        s_lshl_b32 s60, {sJ}, 2
        s_getpc_b64 s[76:77]
        s_add_u32 s60, s60, s3
        s_mul_i32 s60, s60, 384
        s_min_u32 s60, s60, @CODEMAX@
        s_add_u32 s76, s76, s60
        s_addc_u32 s77, s77, 0
        v_min_u32 v4, 2, v2
        v_lshlrev_b32 v4, 7, v4
        ''')
        if self.o('codepf', 2) >= 2: S.emit('global_load_dword v252, v4, s[76:77]' + (' nt' if self.o('codepf', 2) == 3 else ''))
        S.emit(f'''
        v_lshlrev_b32 v3, 4, v2
        s_mov_b32 s10, 2621440
        s_mov_b32 s11, 0x20000
        s_and_b32 s63, s2, 127
        s_mul_i32 s60, s63, 20480
        s_mul_i32 s62, s3, 5120
        s_add_u32 s60, s60, s62
        s_add_u32 s65, s60, 4096
        s_mul_i32 s61, s3, {LNP}
        s_add_u32 s61, s61, {L_LN}
        s_mov_b32 m0, s61
        s_cmp_lt_u32 s2, 128
        s_cselect_b32 s62, 0, {OOB}
        v_or_b32 v125, s62, v3
        s_and_b32 {sXC}, s2, 7
        s_mul_i32 {sCB4}, {sXC}, 20
        s_add_u32 {sCB4}, {sCB4}, {sJ}
        s_lshl_b32 {sCH}, {sCB4}, 2
        s_add_u32 {sCH}, {sCH}, s3
        v_lshrrev_b32 v104, 3, v2
        v_bfe_u32 v105, v2, 4, 1
        v_lshlrev_b32 v105, 1, v105
        v_and_b32 v106, 7, v2
        v_xor_b32 v105, v105, v106
        v_lshlrev_b32 v105, 4, v105
        v_xor_b32 v106, 64, v105
        s_movk_i32 s64, 3072
        v_mad_u32_u24 v107, v104, s64, v105
        v_mad_u32_u24 v108, v104, s64, v106
        s_movk_i32 s64, 7680
        v_mad_u32_u24 v110, v104, s64, v105
        v_mad_u32_u24 v111, v104, s64, v106
        s_lshl_b32 s66, s3, 12
        s_add_u32 s66, s66, {L_STG}
        s_lshr_b32 s71, {sCH}, 1
        s_lshl_b32 s71, s71, 2
        s_min_u32 s71, s71, 1276
        s_mul_i32 s70, {sCH}, 384
        v_mul_u32_u24 v109, 6, v2
        v_and_b32 v109, 0x1fc, v109
        v_add_u32 v109, s70, v109
        s_and_b32 s70, {sXC}, 3
        s_lshl_b32 s70, s70, 2
        s_and_b32 {sSIG}, {sJ}, 3
        s_add_u32 {sSIG}, {sSIG}, s70
        s_lshr_b32 s70, {sXC}, 2
        s_lshl_b32 s70, s70, 3
        s_lshr_b32 {sR}, {sJ}, 2
        s_add_u32 {sR}, {sR}, s70
        s_mov_b32 {sBUD}, {BUD}
        s_cmp_ge_u32 {sJ}, 20
        s_cbranch_scc1 L_sp_pro
        s_waitcnt lgkmcnt(0)
        ''')
        srd = lambda: L(f'''
        s_mov_b64 s[12:13], s[26:27]
        s_mov_b64 s[28:29], s[24:25]
        s_mov_b64 s[48:49], s[22:23]
        s_mov_b64 s[24:25], s[20:21]
        s_mov_b64 s[20:21], s[18:19]
        s_mov_b32 s30, 4915200
        s_mov_b32 s31, s11
        s_mov_b32 s6, {WS_SIZE}
        s_mov_b32 s7, s11
        s_mov_b32 s14, s10
        s_mov_b32 s15, s11
        s_mov_b32 s18, 1966080
        s_mov_b32 s19, s11
        s_mov_b32 s22, s18
        s_mov_b32 s23, s11
        s_mov_b32 s26, s18
        s_mov_b32 s27, s11
        ''')
        pf = lambda: L('global_load_dword v252, v4, s[76:77]') if self.o('codepf', 2) == 1 else []
        S.emit(self.stamp('_karg'))
        S.emit(L('\n'.join(f'buffer_load_dwordx4 v125, {sX}, s60 offen offset:{o} nt lds' for o in (0, 1024, 2048, 3072)), tag='lndma'))
        S.emit('s_add_u32 m0, s61, 4096\ns_mov_b64 s[4:5], s[30:31]')
        S.emit(L(f'buffer_load_dwordx4 v125, {sX}, s65 offen nt lds', tag='lndma'))
        S.emit('s_mov_b32 s0, 0\ns_load_dword s68, s[44:45], s71\ns_load_dword s69, s[46:47], s71\ns_load_dword s67, s[4:5], 0')
        S.emit(pf())
        S.emit('\n'.join(f'global_load_dwordx2 v[{206+2*k}:{207+2*k}], v109, s[{32+2*k}:{33+2*k}] nt' for k in range(6)))
        S.emit(srd())
        cc = self.conv_consts(); nsh = max(2, min(len(cc), self.o('nshadow', 4)))
        wp = self.o('w1pro', 0)
        S.emit(cc[0]); S.emit(self.common_consts())
        if wp == 1: S.emit(self.w1_dma())
        S.emit(flat(cc[1:nsh])); self.cc_late = flat(cc[nsh:])
        if wp == 2: S.emit(self.w1_dma())
        S.emit(self.stamp('_cst'))
        self.ln_w1(S)
        S.emit(self.stamp('ln'))
        self.st_conv = (list(S.vm), list(S.lg), [])
        S.emit('s_branch L_main')
        S.set_state(([], [], []))
        S.emit(f'''
        L_sp_pro:
        s_sub_u32 s70, 255, s2
        v_min_u32 v12, 159, v0
        v_lshlrev_b32 v12, 3, v12
        ''')
        md = self.mod_dma('s70')
        S.emit(md[0]); S.out += L('s_waitcnt lgkmcnt(0)')
        S.emit('s_mov_b64 s[4:5], s[30:31]'); sr = srd(); S.emit(sr[:7])
        S.emit('global_load_dwordx2 v[200:201], v12, s[48:49]'); S.emit(pf())
        S.emit(sr[7:9])
        if self.o('warm', 2) == 1: S.emit(self.warm())
        ne = self.o('modearly', 2); self.mod_late = flat(md[1][ne:])
        S.emit(flat(md[1][:ne])); S.emit('s_mov_b32 s0, 1\ns_load_dword s67, s[4:5], 0'); S.emit(sr[7:])
        self.st_spare = S.state()
        S.emit(f'''
        s_branch L_spare
        L_tdone2:
        s_mov_b64 exec, -1
        s_cmp_eq_u32 s0, 1
        s_cbranch_scc1 L_sp_t2
        s_branch L_cv_t2
        L_exit:
        s_endpgm
        ''')
    def mod_dma(self, su, scol='s71', lbase=0, tag='moddma'):
        o = L(f'''
        s_lshr_b32 s58, {su}, 1
        s_mul_hi_u32 s59, s58, {(2**32 + 9)//10}
        s_mul_i32 {scol}, s59, 10
        s_sub_u32 s58, s58, {scol}
        s_lshl_b32 s59, s59, 2
        s_lshr_b32 s59, 0x534210, s59
        s_and_b32 s59, s59, 15
        s_mul_i32 {scol}, s59, 640
        s_lshl_b32 s58, s58, 6
        s_add_u32 {scol}, {scol}, s58
        s_and_b32 s58, {su}, 1
        s_mul_i32 s58, s58, {320*7680}
        s_mul_i32 s59, s3, {80*7680}
        s_add_u32 s72, s58, s59
        s_lshl_b32 s58, {scol}, 1
        s_add_u32 s72, s72, s58
        s_mul_i32 s73, s3, 10240
        ''')
        items = []
        for d in range(10):
            it = L(f's_add_u32 m0, s73, {lbase + 1024*d}')
            it += L('s_nop 0') if d == 0 else L(f's_add_u32 s72, s72, {8*7680}')
            it += L(f'buffer_load_dwordx4 v{110+(d&1)}, {sWM}, s72 offen nt lds', tag=tag)
            items.append(it)
        return o, items
    def warm(self):
        nl = (WS_FLC + 4*self.CSTG - WS_STAT)//128
        return L(f'''
            s_sub_u32 s58, s2, 160
            s_lshl_b32 s58, s58, 2
            s_add_u32 s58, s58, s3
            v_mul_u32_u24 v13, 384, v2
            v_add_u32 v13, s58, v13
            v_cmp_gt_u32 vcc, {nl}, v13
            v_lshlrev_b32 v13, 7, v13
            v_mov_b32 v14, {OOB}
            v_cndmask_b32 v13, v14, v13, vcc
            v_mov_b32 v14, 0
            s_movk_i32 s58, {WS_STAT}
            buffer_atomic_or v14, v13, {sWS}, s58 offen sc1
            ''')
    def common_consts(self):
        return L(f'''
        v_lshrrev_b32 v112, 4, v2
        v_bfe_u32 v113, v2, 2, 2
        v_lshlrev_b32 v114, 10, v112
        v_lshl_add_u32 v114, v113, 7, v114
        v_and_b32 v112, 1, v112
        v_lshrrev_b32 v113, 1, v113
        v_lshl_or_b32 v112, v112, 1, v113
        v_lshl_add_u32 v114, v112, 5, v114
        v_and_b32 v112, 3, v2
        v_lshl_add_u32 v112, v112, 3, v114
        v_add_u32 v112, s66, v112
        v_xor_b32 v113, 32, v112
        v_xor_b32 v114, 64, v112
        v_xor_b32 v115, 96, v112
        s_mul_i32 s65, s2, {self.FS}
        s_add_u32 s65, s65, {WS_FLA}
        s_and_b32 s58, {sXC}, {self.RA - 1}
        s_mul_i32 s58, s58, {self.AREP}
        s_add_u32 s58, s58, {WS_FLA}
        v_lshrrev_b32 v28, 1, v0
        v_mul_u32_u24 v28, {self.FS}, v28
        v_add_u32 v28, s58, v28
        ''')
    def late_consts(self):
        return L(f'''
        s_mul_i32 {sN}, s67, 1664525
        s_add_u32 {sN}, {sN}, 1013904223
        s_lshl_b32 s59, s68, 16
        s_and_b32 s68, s68, 0xffff0000
        s_lshl_b32 s67, s69, 16
        s_and_b32 s69, s69, 0xffff0000
        s_and_b32 s58, {sCH}, 1
        s_cselect_b32 s68, s68, s59
        s_cselect_b32 s69, s69, s67
        v_mov_b32 v226, s68
        v_mul_f32 v226, 0x3fb8aa3b, v226
        v_exp_f32 v226, v226
        v_mov_b32 v245, 0
        v_writelane_b32 v245, s69, 0
        v_cvt_pk_bf16_f32 v226, 0, v226
        v_mul_f32 v220, 0x3fb8aa3b, v226
        v_mul_f32 v223, 0.15915494, v226
        v_mul_f32 v221, 0x41000000, v220
        v_mul_f32 v224, 0x41000000, v223
        v_mul_f32 v222, 0x43800000, v220
        v_mul_f32 v225, 0x43800000, v223
        ''')
    def ln_w1(self, S):
        S.emit(f'''
        v_lshrrev_b32 v123, 4, v2
        v_mul_u32_u24 v120, {1280 - 256}, v123
        v_add3_u32 v120, v120, v3, s61
        v_bfe_u32 v121, v2, 2, 2
        v_mul_u32_u24 v121, 1280, v121
        v_lshl_add_u32 v121, v123, 4, v121
        v_and_b32 v122, 1, v2
        v_mul_u32_u24 v122, {2*LNP}, v122
        v_and_b32 v123, 2, v2
        v_lshl_add_u32 v121, v123, 2, v121
        s_mul_i32 s58, s3, 320
        s_add_u32 s58, s58, {L_LN}
        v_add3_u32 v121, v121, v122, s58
        v_mul_u32_u24 v124, {self.XP - 128}, v104
        v_add_u32 v124, v124, v125
        v_mov_b32 v126, {OOB}
        s_and_b32 s58, s3, 1
        s_lshl_b32 s58, s58, 13
        s_lshl_b32 s59, s63, 1
        s_lshr_b32 s60, s3, 1
        s_add_u32 s59, s59, s60
        s_lshl_b32 s59, s59, 4
        s_add_u32 s58, s58, s59
        s_add_u32 s58, s58, {WS_STAT}
        s_or_b32 s58, s58, s62
        s_add_u32 s59, s58, 4096
        v_writelane_b32 v126, s58, 0
        v_writelane_b32 v126, s59, 32
        ''')
        S.emit(self.touch('L_stub')); S.emit('L_tdone:\ns_mov_b64 exec, -1')
        S.emit(self.stamp('_touched'))
        S.emit(self.late_consts())
        S.emit(f'''
        s_mul_i32 s58, s3, {40*self.XP}
        s_lshl_b32 s59, s63, 7
        s_add_u32 s58, s58, s59
        s_add_u32 s60, s58, {WS_XT}
        s_mov_b32 s59, 0x3f803f80
        ''')
        S.emit(self.stamp('_preln'))
        S.wait_tags(['lndma'])
        S.emit(self.stamp('_lndma'))
        S.emit('\n'.join(f'ds_read_b128 v[{128+4*i}:{131+4*i}], v120 offset:{256*i}' for i in range(5)) + '\ns_barrier')
        for p in range(5):
            S.emit(f'ds_read_b64_tr_b16 v[{32+4*p}:{33+4*p}], v121 offset:{64*p}\nds_read_b64_tr_b16 v[{34+4*p}:{35+4*p}], v121 offset:{64*p+LNP}')
        xst = [L(f'buffer_store_dwordx4 v[{32+4*p}:{35+4*p}], v124, {sWS}, s60 offen sc1', tag='pa') + (L(f's_add_u32 s60, s60, {8*self.XP}') if p < 4 else []) for p in range(5)]
        self.xst = xst
        for r in range(128, 148):
            c1, c2 = ('0', '0') if r == 128 else ('v116', 'v117')
            S.emit(f'v_dot2_f32_bf16 v116, v{r}, s59, {c1}\nv_dot2_f32_bf16 v117, v{r}, v{r}, {c2}')
            if r == 131: S.emit(xst[0])
        S.emit(xst[1])
        for k in (8, 4, 2, 1):
            S.emit(f'v_add_f32_dpp v116, v116, v116 row_ror:{k} row_mask:0xf bank_mask:0xf\nv_add_f32_dpp v117, v117, v117 row_ror:{k} row_mask:0xf bank_mask:0xf')
        S.emit(self.finish_stats('v116', 'v117', 'v118'))
        S.emit(f'''
        v_and_b32 v116, 0xffff0000, v118
        v_rcp_f32 v116, v116
        v_lshlrev_b32 v118, 16, v118
        v_mul_f32 v118, -v118, v116
        v_permlane16_swap_b32 v116, v117
        v_permlane16_swap_b32 v118, v119
        ''')
        S.emit(L(f'buffer_store_dwordx4 v[116:119], v126, {sWS}, 0 offen sc1', tag='pa'))
        S.emit(xst[2])
    def finish_stats(self, s1, s2, out):
        return L(f'''
        v_mul_f32 {s1}, 0x3acccccd, {s1}
        v_mul_f32 {s2}, 0x3acccccd, {s2}
        v_fma_f32 {s2}, -{s1}, {s1}, {s2}
        v_max_f32 {s2}, 0, {s2}
        v_cvt_pk_bf16_f32 {s2}, 0, {s2}
        v_add_f32 {s2}, 0x3727c5ac, {s2}
        v_cvt_pk_bf16_f32 {s2}, 0, {s2}
        v_sqrt_f32 {s2}, {s2}
        v_cvt_pk_bf16_f32 {out}, {s1}, {s2}
        ''')
    def prep_task(self, dmatag, sdst, stride, sttag, tmp, loff=0, va='v3'):
        o = []
        for t in range(4):
            o += L(f'ds_read_b64_tr_b16 v[{tmp+4*t}:{tmp+4*t+1}], v{112+t} offset:{loff}\nds_read_b64_tr_b16 v[{tmp+4*t+2}:{tmp+4*t+3}], v{112+t} offset:{loff+512}', waitfor=[dmatag])
        for t in range(4):
            o += L(f'buffer_store_dwordx4 v[{tmp+4*t}:{tmp+4*t+3}], {va}, {sWS}, {sdst} offen sc1', tag=sttag)
            if t < 3: o += L(f's_add_u32 {sdst}, {sdst}, {stride}')
        return o
    def w1_setup(self):
        return L(f'''
        s_mul_hi_u32 s58, s2, {(2**32 + 19)//20}
        s_mul_i32 s59, s58, 20
        s_sub_u32 s59, s2, s59
        s_lshl_b32 s59, s59, 1
        s_and_b32 s36, s3, 1
        s_add_u32 s59, s59, s36
        s_lshr_b32 s37, s3, 1
        s_mul_i32 s34, s59, {16*3072}
        s_mul_i32 s32, s58, 384
        s_add_u32 s34, s34, s32
        s_lshl_b32 s32, s37, 7
        s_add_u32 s32, s32, s34
        s_add_u32 s33, s32, {8*3072}
        s_mul_i32 s35, s37, {8*3072}
        s_add_u32 s34, s34, s35
        s_add_u32 s34, s34, 256
        s_mul_i32 s58, s58, 480
        s_add_u32 s58, s58, s59
        s_lshl_b32 s58, s58, 10
        s_add_u32 s58, s58, {WS_W1P}
        s_mul_i32 s35, s37, 163840
        s_add_u32 s35, s35, s58
        s_lshl_b32 s36, s37, 9
        s_add_u32 s36, s36, s58
        s_add_u32 s36, s36, 327680
        s_add_u32 s37, s66, {L_X - L_STG}
        v_lshrrev_b32 v199, 5, v2
        v_mul_u32_u24 v199, {40960 - 512}, v199
        v_add_u32 v199, v199, v3
        ''')
    def w1_dma(self):
        o = []
        for d in range(6):
            o += L(f's_add_u32 m0, {"s66" if d < 4 else "s37"}, {1024*(d & 3)}')
            o += L(['v_cmp_gt_u32 vcc, 32, v2', 'v_add_u32 v197, -2048, v113', 's_sub_u32 s58, s37, s66', 'v_cndmask_b32 v197, v197, v112, vcc', 'v_add_u32 v197, s58, v197', 'v_xor_b32 v198, 64, v197'][d])
            o += L(f'buffer_load_dwordx4 v{107+(d&1)}, {sWU if d&1 else sWG}, s{32+(d>>1)} offen nt lds', tag='w1dma')
        return o
    def w1_task(self):
        o = self.prep_task('w1dma', 's35', 40960, 'pw', tmp=32)
        h = []
        for t in range(2):
            h += L(f'ds_read_b64_tr_b16 v[{48+4*t}:{49+4*t}], v{197+t}\nds_read_b64_tr_b16 v[{50+4*t}:{51+4*t}], v{197+t} offset:512')
        o = o[:8] + h + o[8:]
        o += L(f'buffer_store_dwordx4 v[48:51], v199, {sWS}, s36 offen sc1', tag='pw') + L('s_add_u32 s36, s36, 81920')
        o += L(f'buffer_store_dwordx4 v[52:55], v199, {sWS}, s36 offen sc1', tag='pw')
        return o
    def flagW(self): return self.barrier(['pw']) + L(f's_atomic_swap {sN}, s[4:5], s64 offset:{FLW_OFF}')
    def arrive(self, k, tag):
        return L('s_mov_b64 exec, 1') + L(f'ds_add_rtn_u32 v59, v254, v255 offset:{4*k}', waitfor=[tag]) + L('s_mov_b64 exec, -1')
    def publish(self, k):
        R = self.RA
        return L(f'v_readfirstlane_b32 s58, v59\ns_nop 0\ns_cmp_lg_u32 s58, 3\ns_cbranch_scc1 L_nopub{k}\n'
                 + '\n'.join(f's_atomic_swap {sN}, s[4:5], s65 offset:{k*FLW_OFF + r*self.AREP}' for r in range(R)) + f'\nL_nopub{k}:')
    def pollW(self): return L(f'buffer_load_dword v4, v6, {sWS}, 0 offen sc1')
    def flagA(self):
        self.nfa = getattr(self, 'nfa', 0) + 1
        return self.barrier(['pa']) + L(f's_cmp_ge_u32 s3, {self.RA}\ns_cbranch_scc1 L_nfa{self.nfa}\ns_atomic_swap {sN}, s[4:5], s64\nL_nfa{self.nfa}:')
    def g_setup(self):
        return L(f'''
        s_lshr_b32 s58, s3, 1
        s_mul_i32 s58, s58, 3
        s_mul_i32 s59, {sSIG}, 6
        s_add_u32 s58, s58, s59
        s_and_b32 s59, s3, 1
        s_lshr_b32 s74, {sSIG}, 1
        s_mul_i32 s74, s74, 20
        s_mul_i32 s76, s59, 10
        s_add_u32 s74, s74, s76
        {'s_mov_b32 s76, s0' if self.o('rolerep', 1) & 1 else f's_and_b32 s76, {sXC}, {self.RA - 1}'}
        s_lshl_b32 s76, s76, 8
        s_add_u32 s74, s74, s76
        v_min_u32 v6, 9, v2
        v_add_u32 v6, s74, v6
        v_mul_u32_u24 v6, {self.FS}, v6
        v_add_u32 v6, {WS_FLA + FLW_OFF}, v6
        s_lshl_b32 s74, s59, 7
        v_xor_b32 v5, s74, v3
        s_mul_i32 s58, s58, 40960
        s_mul_i32 s74, s59, 20480
        s_add_u32 s58, s58, s74
        s_add_u32 s58, s58, {WS_W1P}
        s_mul_i32 s59, s59, 40960
        s_add_u32 s76, s58, s59
        s_sub_u32 s74, s58, s59
        s_add_u32 s74, s74, 40960
        s_add_u32 s75, s58, 81920
        ''')
    def tile_consts(self):
        return L(f'''
        v_bfe_u32 v4, v2, 3, 1
        v_lshrrev_b32 v6, 5, v2
        v_lshl_or_b32 v4, v6, 1, v4
        v_lshlrev_b32 v4, 4, v4
        v_xor_b32 v6, v4, v3
        s_mul_i32 s58, s3, 40
        s_and_b32 s59, {sXC}, {1 if self.o('rolerep', 1) & 2 else self.RC - 1}
        {'s_lshl1_add_u32 s59, s0, s59' if self.o('rolerep', 1) & 2 else ''}
        s_mul_i32 s59, s59, 160
        s_add_u32 s58, s58, s59
        v_min_u32 v4, 39, v2
        v_add_u32 v4, s58, v4
        v_mul_u32_u24 v4, {self.FC}, v4
        v_add_u32 v4, {WS_FLC}, v4
        s_mul_i32 s61, s3, 10240
        s_mul_i32 s60, {sR}, {self.TPI}
        s_add_u32 s60, s60, s61
        s_add_u32 s60, s60, {WS_X1S}
        ''')
    def w1_loads(self, k0=0, k1=60, only=None, skip=None):
        ks = list(range(k0, k1))
        ks = [k for k in ks if (only is None or k % 3 == only) and k % 3 != skip]
        items = []; cur = {}
        for k in ks:
            s, role = divmod(k, 3); a = 4*k
            if cur.get(role) != s//4: items.append(L(f's_add_u32 s{67+role}, s{74+role}, {4096*(s//4)}')); cur[role] = s//4
            items.append(L(f'buffer_load_dwordx4 a[{a}:{a+3}], {"v5" if role == 1 else "v3"}, {sWS}, s{67+role} offen offset:{1024*(s%4)} sc1'))
        return items
    def w1_touch(self):
        if not self.o('w1touch', 1): return []
        return L(f'''
        s_and_b32 s58, {sR}, 7
        s_lshl_b32 s58, s58, 2
        s_add_u32 s58, s58, s3
        s_mul_i32 s58, s58, 7680
        s_mul_i32 s59, {sSIG}, 245760
        s_add_u32 s58, s58, s59
        s_add_u32 s58, s58, {WS_W1P}
        v_min_u32 v95, 59, v2
        v_lshlrev_b32 v95, 7, v95
        buffer_load_dword v95, v95, {sWS}, s58 offen sc1
        ''')
    def tile_dma(self, j):
        items = []
        for i in range(10):
            it = []
            if i % 4 == 0:
                items += [L(f's_add_u32 m0, s61, {L_SLOT[j] + 1024*i}'), L(f's_add_u32 s62, s60, {j*16*self.TPI + 1024*i}')]
            it += L(f'buffer_load_dwordx4 v6, {sWS}, s62 offen offset:{1024*(i%4)} sc1 lds', tag=f'tile{j}')
            items.append(it)
        return items
    def pollC(self, stage, dst):
        o = L(f's_mov_b32 s63, {stage*self.CSTG}\nbuffer_load_dword {dst}, v4, {sWS}, s63 offen sc1'); o[1].lines = 40*self.FC//128
        return o
    def ic2_loads(self):
        return [L(f's_mov_b32 s62, {WS_IC2}'), L('v_lshlrev_b32 v28, 3, v2'), L(f'buffer_load_dwordx4 v[20:23], v3, {sWS}, s62 offen sc1'),
                L(f'buffer_load_dwordx4 v[24:27], v3, {sWS}, s62 offen offset:1024 sc1'),
                L(f'buffer_load_dwordx2 v[28:29], v28, {sWS}, s62 offen offset:2048 sc1')]
    def cmul(self, out, z, e, t):
        return L(f'''
        v_pk_mul_f32 v[{t}:{t+1}], v[{z}:{z+1}], v[{e}:{e+1}] op_sel:[0,0] op_sel_hi:[1,0]
        v_pk_fma_f32 v[{out}:{out+1}], v[{z}:{z+1}], v[{e}:{e+1}], v[{t}:{t+1}] op_sel:[1,1,0] op_sel_hi:[0,1,1] neg_lo:[1,0,0]
        ''')
    ALPHA = {}
    for _h in range(2):
        for _r in range(5): ALPHA[(_h, _r)] = 4*_h + _r
        for _k in range(3): ALPHA[(_h, 5+_k)] = 256 + 4*_h + 2*_k; ALPHA[(_h, 8+_k)] = 512 + 256*_h + 4*_k
        ALPHA[(_h, 11)] = 1032 + 256*_h; ALPHA[(_h, 12)] = 1544 + 256*_h
    def alpha_rows(self):
        di = lambda h, r: 8*(r >> 2) + 4*h + (r & 3)
        row = {}; fixes = {}
        for (h, r), al in sorted(self.ALPHA.items(), key=lambda x: di(*x[0])):
            i = di(h, r)
            if al in row: fixes[i] = row[al]
            else: row[al] = i
        free = sorted(fixes.keys())
        for al, i in list(row.items()):
            if i >= 24: row[al] = free.pop(0); fixes[i] = row[al]
        assert max(row.values()) < 24 and len(set(row.values())) == 24
        return row, fixes
    def kgen_setup(self, slot):
        P = 200; o = L('\n'.join(f'v_perm_b32 v{P+k}, v{207+2*k}, v{206+2*k}, v{194+slot}' for k in range(6)))
        for k in range(3): o += L(f'v_mul_f32 v{66+k}, v{P}, v{220+k}\nv_mul_f32 v{61+2*k}, v{P+1}, v{223+k}')
        for k in range(3): o += L(f'v_exp_f32 v{66+k}, v{66+k}\nv_fract_f32 v{61+2*k}, v{61+2*k}')
        for k in range(3): o += L(f'v_cos_f32 v{60+2*k}, v{61+2*k}\nv_sin_f32 v{61+2*k}, v{61+2*k}')
        for k in range(3): o += L(f'v_mul_f32 v{60+2*k}, v{60+2*k}, v{66+k}\nv_mul_f32 v{61+2*k}, v{61+2*k}, v{66+k}')
        o += L(f'v_mul_f32 v{P+2}, v{P+2}, v226\nv_mul_f32 v{P+3}, v{P+3}, v226')
        return o
    def kgen_chains(self, slot):
        P = 200; E1, E8, E256 = 60, 62, 64; T = 70
        row, _ = self.alpha_rows()
        U = lambda k: 76 + 2*k
        pts = []
        pts.append((self.cmul(U(0), P+4, P+2, T), U(0), 32+row[0], True))
        for k in range(1, 9): pts.append((self.cmul(U(k), U(k-1), E1, T), U(k), 32+row[k], True))
        for e in (0, 2, 4, 6, 8): pts.append((self.cmul(U(e), U(e), E256, T), U(e), 32+row[256+e], True))
        for b in (512, 768):
            for e in (0, 4, 8): pts.append((self.cmul(U(e), U(e), E256, T), U(e), 32+row[b+e], True))
        for b in range(4): pts.append((self.cmul(U(8), U(8), E256, T), U(8), 32+row[1032+256*b], True))
        pts.append(([], E8, 1, False))
        pts.append((self.cmul(74, E8, E8, T), 74, 2, False))
        for j in range(3, 32): pts.append((self.cmul(74, 74, E8, T), 74, j, False))
        B = self.o('kbatch', 11); out = []
        for i in range(0, len(pts), B):
            o = []; w = []
            for k, (c, z, r, neg) in enumerate(pts[i:i+B]):
                o += c + L(f'v_cvt_pk_bf16_f32 v{230+k}, v{z}, {"-" if neg else ""}v{z+1}')
                if not self.o('nowr', 0): w += L(f'ds_write_addtid_b32 v{230+k} offset:{r*TP}')
            out.append(o + w)
        ard = [L(f'ds_read_b128 v[{128+8*k}:{131+8*k}], v227 offset:{32*k}')[0] for k in range(8)]
        first = -(-24 // B) - 1
        out[first] += ard[:3]; out[first+1] += ard[3:]
        return out
    def kgen_mfma(self, slot, fillers, sfill):
        o = []
        for k in range(8):
            o += L(f'ds_read_b128 v[{132+8*k}:{135+8*k}], v228 offset:{32*k}')
        npre = self.o('kpre', 12)
        bb = [Ins(f'v_mfma_f32_32x32x16_bf16 v[96:111], v[{128+8*k}:{131+8*k}], v[{132+8*k}:{135+8*k}], {"0" if slot == 0 and k == 0 else "v[96:111]"}') for k in range(8)]
        return o + fillers[:npre] + interleave(bb, [Fill(fillers[npre:], 0, 6, ahead=8, prio=2), Fill(sfill, 0, 6, ahead=8)])
    def conv_consts(self):
        row, fixes = self.alpha_rows()
        b0 = L(f'''
        v_and_b32 v194, 1, v2
        v_mul_u32_u24 v194, 0x0202, v194
        v_lshlrev_b32 v194, 16, v194
        v_add_u32 v194, 0x01000c0c, v194
        v_add_u32 v195, 0x02020000, v194
        v_add_u32 v196, 0x02020000, v195
        v_and_b32 v228, 31, v2
        v_min_u32 v227, 23, v228
        s_lshl_b32 s70, s3, 14
        s_mul_i32 s71, s3, {KC_PITCH}
        s_add_u32 s71, s71, {L_KC}
        s_mul_i32 s72, s3, {H_PITCH}
        s_add_u32 s72, s72, {L_H}
        ''')
        for i, rr in fixes.items():
            b0 += L(f'v_writelane_b32 v227, {rr}, {i}\nv_writelane_b32 v227, {rr}, {i+32}')
        b0 += L(f'''
        v_lshrrev_b32 v229, 5, v2
        v_lshlrev_b32 v243, 4, v228
        v_lshl_add_u32 v242, v229, 3, v243
        v_sub_u32 v242, s71, v242
        v_lshl_add_u32 v243, v229, 9, v243
        v_sub_u32 v243, s71, v243
        v_lshlrev_b32 v244, 1, v2
        v_sub_u32 v244, s71, v244
        v_mov_b32 v246, s71
        v_lshl_add_u32 v229, v229, 4, s70
        s_movk_i32 s58, {TP}
        v_add_u32 v227, 32, v227
        v_mad_u32_u24 v227, v227, s58, v229
        v_mad_u32_u24 v228, v228, s58, v229
        v_mov_b32 v72, 0x00003f80
        v_mov_b32 v56, 0
        v_mov_b32 v57, 0
        v_lshl_add_u32 v58, v2, 3, s72
        v_and_b32 v7, 15, v2
        v_lshl_add_u32 v59, v7, 2, s71
        v_lshl_add_u32 v73, v2, 2, s70
        ds_write_b32 v73, v72
        ds_write_b64 v58, v[56:57]
        ds_write_b32 v59, v56
        ds_write_b32 v59, v56 offset:{2112}
        ds_write_b32 v59, v56 offset:{KC1}
        ds_write_b32 v59, v56 offset:{KC1 + 2116}
        ds_write_b32 v59, v56 offset:{KCD + 256}
        v_mov_b32 v254, {L_CST}
        v_mov_b32 v255, 1
        ds_write_b64 v254, v[56:57]
        ''')
        b1 = L(f'''
        v_bfe_u32 v247, v0, 2, 2
        v_lshlrev_b32 v247, 4, v247
        v_lshl_add_u32 v247, v0, 6, v247
        v_add_u32 v247, {L_X}, v247
        v_xor_b32 v248, 16, v247
        v_xor_b32 v249, 32, v247
        v_xor_b32 v250, 48, v247
        v_lshlrev_b32 v192, 4, v0
        v_add_u32 v251, {L_H + 512}, v192
        v_lshrrev_b32 v8, 4, v2
        v_lshlrev_b32 v193, 4, v8
        v_lshlrev_b32 v9, 5, v7
        v_add3_u32 v9, v9, v193, s72
        v_and_b32 v10, 1, v7
        v_mul_u32_u24 v10, {KC1 + 2}, v10
        v_add3_u32 v10, v10, v193, s71
        v_xor_b32 v193, v193, v3
        v_lshlrev_b32 v11, 1, v7
        v_sub_u32 v10, v10, v11
        v_add_u32 v12, {P2 - 32 - 1024 - 960}, v10
        v_add_u32 v10, {P2 - 32 - 960}, v10
        v_lshrrev_b32 v29, 2, v7
        v_lshrrev_b32 v16, 1, v29
        v_and_b32 v16, v16, v29
        v_add_u32 v29, v29, v16
        v_and_b32 v14, 1, v8
        v_mad_u32_u24 v29, v14, 6, v29
        v_mul_u32_u24 v29, 640, v29
        v_and_b32 v16, 3, v7
        s_lshl_b32 s58, {sCB4}, 2
        s_add_u32 s58, s58, {WS_MODP//8}
        v_add3_u32 v29, v29, v16, s58
        v_lshlrev_b32 v29, 3, v29
        ''')
        ne = self.o('early', 3); cl = self.conv_late()
        fix = lambda l: [Ins(i.text.replace('s32', 's38').replace('s33', 's39').replace('s34', 's40').replace('v28', 'v60').replace('v29', 'v61').replace('v30', 'v62')) for i in l]
        return [self.w1_setup(), b0, b1 + flat([fix(cl[k]) for k in range(3) if ne >> k & 1]), self.g_setup()]
    def conv_late(self):
        c0 = L(f'''
        v_bfe_u32 v13, v7, 1, 2
        v_xor_b32 v13, s3, v13
        v_lshlrev_b32 v13, 4, v13
        v_lshl_add_u32 v13, v7, 7, v13
        v_lshl_add_u32 v13, v14, 6, v13
        v_add_u32 v13, {L_X}, v13
        ''')
        c1 = L(f'''
        v_mul_u32_u24 v15, {self.TPI - 256}, v8
        s_mul_i32 s32, s3, {4*self.TPI}
        s_lshl_b32 s33, {sCB4}, 8
        s_add_u32 s32, s32, s33
        s_add_u32 s32, s32, {WS_X1S}
        v_add3_u32 v15, v15, v3, s32
        v_lshrrev_b32 v28, 2, v7
        v_lshrrev_b32 v218, 1, v8
        v_lshl_add_u32 v218, v28, 1, v218
        v_and_b32 v28, 3, v7
        v_lshlrev_b32 v28, 1, v28
        v_add_lshl_u32 v28, v28, v14, 3
        v_lshl_add_u32 v218, v218, 8, v28
        s_lshl_b32 s32, s3, 6
        s_add_u32 s32, s32, {L_XS}
        v_add_u32 v218, s32, v218
        s_lshl_b32 s32, s3, 10
        s_add_u32 s32, s32, {L_XS}
        v_add_u32 v219, s32, v3
        ''')
        c2 = L(f'''
        s_movk_i32 s33, 0x1ff0
        v_lshlrev_b32 v28, 3, v8
        v_lshlrev_b32 v29, v7, s33
        s_movk_i32 s33, 0x0fe0
        v_lshrrev_b32 v29, v28, v29
        v_lshlrev_b32 v30, v7, s33
        s_mov_b32 s33, 0x8001
        v_lshrrev_b32 v30, v28, v30
        s_mov_b32 s34, 0x10001
        ''')
        for dst, m in ((20, 29), (24, 30)):
            for dw in range(4):
                c2 += L(f'''
                v_bfe_u32 v{dst+dw}, v{m}, {2*dw}, 2
                v_mul_u32_u24 v{dst+dw}, s33, v{dst+dw}
                v_and_b32 v{dst+dw}, s34, v{dst+dw}
                v_mul_u32_u24 v{dst+dw}, 0x3f80, v{dst+dw}
                ''')
        c3 = L(f'''
        v_add_u32 v11, {-1088}, v10
        v_lshlrev_b32 v14, 2, v8
        v_sub_u32 v14, v14, v7
        v_lshl_add_u32 v14, v14, 2, s71
        v_add_u32 v14, {KCD + 60}, v14
        s_mul_i32 s66, s3, {self.RC//4*self.CREP}
        s_mul_i32 s33, {sCB4}, {self.FC}
        s_add_u32 s66, s66, s33
        s_add_u32 s66, s66, {WS_FLC}
        ''')
        return c0, c1, c2, c3
    def conv_path(self, S):
        S.set_state(self.st_conv)
        S.emit('L_main:'); S.shadow_len = self.o('shadow', 1100); S.dummy = 'ds_read_b32 v1, v3'
        S.emit(self.cc_late); S.emit('s_mov_b32 m0, s70')
        pollA = L(f'buffer_load_dword v58, v28, {sWS}, 0 offen sc1')
        modld = L(f'buffer_load_dwordx2 v[56:57], v29, {sWS}, 0 offen sc1')
        pollW = self.pollW()
        xld = (L('s_mov_b32 m0, s43') + L('\n'.join(f'buffer_load_dwordx4 v[{32+4*g}:{35+4*g}], v192, {sWS}, {so} offen sc1' for g, so in enumerate(('s44', 's45', 's49', 's77'))))
               + L('\n'.join(f'buffer_load_dwordx4 v193, {sWS}, s42 offen offset:{1024*i} sc1 lds' for i in range(4)), tag='xdma') + L('s_mov_b32 m0, s70'))
        set0 = L(f'''
        s_mul_i32 s42, {sCB4}, {self.XP}
        s_lshl_b32 s43, s3, 12
        s_add_u32 s42, s42, s43
        s_add_u32 s42, s42, {WS_XT}
        s_add_u32 s43, s43, {L_X}
        s_movk_i32 s44, {WS_STAT}
        s_movk_i32 s45, {WS_STAT + 0x1000}
        s_movk_i32 s49, {WS_STAT + 0x2000}
        s_movk_i32 s77, {WS_STAT + 0x3000}
        ''')
        set1 = L(f's_lshl_b32 s73, s2, 4\ns_add_u32 s73, s73, {WS_IC2}\ns_and_b32 s62, s2, 3')
        modv = self.stamp('_mod0') + self.check(modld, ['v57'], None) + self.stamp('_modok') + L(f'''
        v_mov_b32 v57, v56
        v_bfe_u32 v52, v2, 2, 1
        v_cvt_f32_u32 v52, v52
        v_permlane16_swap_b32 v56, v57
        v_add_f32 v48, v56, v57
        v_cvt_pk_bf16_f32 v48, 0, v48
        v_add_f32 v48, v48, v52
        v_cvt_pk_bf16_f32 v48, 0, v48
        s_add_u32 s58, s3, 8
        s_add_u32 s59, s3, 12
        v_readlane_b32 s40, v48, s58
        v_readlane_b32 s41, v48, s59
        ''')
        for c in range(4): modv += L(f'v_readlane_b32 s{32+2*c}, v48, {4+c}\nv_readlane_b32 s{33+2*c}, v48, {c}')
        modv += L(f'''
        s_and_b32 s58, s41, 0x7fffffff
        s_cselect_b32 s41, s41, 0x21800000
        v_mov_b32 v51, s41
        v_mul_f32 v51, s40, v51
        v_mov_b32 v52, 0x21800000
        v_cmp_eq_f32 vcc, 0, v48
        v_add_u32 v54, -12, v0
        v_xor_b32 v55, s62, v54
        v_lshl_add_u32 v55, v55, 2, s73
        v_cndmask_b32 v52, v48, v52, vcc
        v_cmp_gt_u32 vcc, 4, v54
        v_rcp_f32 v127, v52
        v_mov_b32 v126, {OOB}
        v_cndmask_b32 v126, v126, v55, vcc
        v_lshlrev_b32 v53, 4, v2
        v_alignbit_b32 v53, s41, s41, v53
        v_alignbit_b32 v53, v53, v53, 16
        v_lshrrev_b32 v54, 1, v7
        v_lshlrev_b32 v55, 2, v8
        v_sub_u32 v54, v54, v55
        v_cmp_eq_u32 vcc, 0, v54
        v_cmp_eq_u32 s[58:59], 1, v54
        v_cmp_eq_u32 s[62:63], 2, v54
        v_cmp_eq_u32 s[64:65], 3, v54
        v_cndmask_b32 v16, 0, v53, vcc
        v_cndmask_b32 v17, 0, v53, s[58:59]
        v_cndmask_b32 v18, 0, v53, s[62:63]
        v_cndmask_b32 v19, 0, v53, s[64:65]
        ''')
        segs = []
        for slot in range(3):
            segs += self.kgen_chains(slot)
            segs.append(self.kgen_mfma(slot, [self.kgen_setup(1), self.kgen_setup(2), modv][slot], [set0, set1, []][slot]) + self.stamp(f'slot{slot}'))
        ns = len(segs)//3
        pos = lambda name, slot, frac: min(len(segs) - 1, int(round(ns*(self.o(name, int(100*(slot + frac)))/100.0))) - 1)
        ev = {}
        def at(p, code): ev.setdefault(p, []).extend(code)
        pfa, pw1, pfw = pos('e_fla', 1, 0), pos('e_w1', 1, .34), pos('e_flw', 2, .5)
        ppa, pca, pmo, ppw = pos('e_pa', 2, 0), pos('e_ca', 2, .67), pos('e_mo', 2, .5), pos('e_pw', 3, 0)
        assert pw1 >= 0 and pfw > pfa + 1 and pfw < 3*ns - 1 and pca >= max(ppa, ns - 1, pw1) and pmo < 3*ns - 1 and pfw >= pw1
        at(pfa, self.stamp('_ch0') + self.arrive(0, 'pa') + self.stamp('_fla'))
        at(pfa + 1, self.publish(0))
        at(pos('e_t2', 2, .5), self.stamp('_ta') + self.touch('L_gp') + L('L_cv_t2:') + self.stamp('_tb'))
        pwd = pos('e_wd', 0, .34); assert self.o('w1pro', 0) or pwd < min(pw1, ns - 1)
        if not self.o('w1pro', 0): at(pwd, self.w1_dma() + L('s_mov_b32 m0, s70'))
        wt = self.w1_task(); rd, st_ = wt[:12], wt[12:]
        groups = []
        for i in st_:
            if i.kind == 'vmem': groups.append([i])
            else: groups[-1].append(i)
        per = self.o('wsper', 2); at(pw1, rd); plast = pw1
        for k in range(0, 6, per):
            plast = pw1 + 1 + k//per; at(plast, flat(groups[k:k+per]))
        assert pfw >= plast and pca >= pw1 + 1 + 3//per
        at(pfw, self.stamp('_fw0') + self.arrive(1, 'pw') + self.stamp('_fw1')); at(pfw + 1, self.publish(1)); assert pfw + 1 < 3*ns - 1
        at(ppa, pollA)
        at(pmo, modld)
        at(pca, self.stamp('_a0') + self.check(pollA, ['v58'], None) + self.stamp('_aok') + xld)
        if self.o('e_cw', 500) < 500: at(ppw, pollW)
        ecw = self.o('e_cw', 500); nearly = self.o('w1e', 5); npre_w1 = 0
        wchk = self.stamp('_w0') + self.check(pollW, ['v4'], None) + self.stamp('_wok')
        if ecw <= 300:
            pcw = pos('e_cw', 3, 0); assert pcw >= ppw
            at(pcw, wchk)
            for k in range(pcw, len(segs)):
                at(k, flat(self.w1_loads(npre_w1, npre_w1 + nearly))); npre_w1 += nearly
        S.emit(ev.get(-1, []))
        S.emit(self.kgen_setup(0)); S.emit(self.xst[3]); ev[0] = self.xst[4] + ev.get(0, [])
        for k, sg in enumerate(segs):
            S.emit(sg); S.emit(self.stamp(f'_K{k}')); S.emit(ev.get(k, [])); S.emit(self.stamp(f'_E{k}'))
        S.emit(self.stamp('_t2'))
        if self.o('icearly', 0): S.emit(f'buffer_store_dword v127, v126, {sWS}, 0 offen sc1')
        S.emit('v_add_f32 v96, v96, v245')
        for r in range(0, 14, 2): S.emit(f'v_pk_mul_f32 v[{96+r}:{97+r}], v[{96+r}:{97+r}], v[50:51] op_sel:[0,1] op_sel_hi:[1,1]')
        cv = lambda d, a, b: f'v_cvt_pk_bf16_f32 v{d}, v{96+a}, v{96+b}\n'
        S.emit(cv(64, 4, 3) + cv(65, 2, 1) + cv(66, 3, 2) + cv(67, 1, 0) + cv(68, 7, 7) + cv(69, 6, 5) + cv(70, 7, 6) + cv(71, 5, 5) +
               cv(72, 10, 10) + cv(73, 10, 9) + cv(74, 9, 9) + cv(75, 8, 8) + cv(76, 10, 10) + cv(77, 9, 9) + cv(78, 9, 8) + cv(79, 8, 8) +
               cv(80, 11, 12) + cv(82, 10, 10) + cv(83, 10, 10) + f'''
        ds_write_b64 v242, v[64:65] offset:{P2 - 8}
        ds_write_b64 v242, v[66:67] offset:{KC1 + P2 - 4}
        ds_write_b64 v242, v[68:69] offset:{P2 - 8 - 512}
        ds_write_b64 v242, v[70:71] offset:{KC1 + P2 - 4 - 512}
        ds_write_b128 v243, v[72:75] offset:{P2 - 16 - 1024}
        ds_write_b128 v243, v[76:79] offset:{KC1 + P2 - 12 - 1024}
        ds_write_b16 v244, v80 offset:{KCD + 254}
        ds_write_b16_d16_hi v244, v80 offset:{KCD + 254 - 128}
        s_mov_b64 exec, 1
        ds_write_b16_d16_hi v246, v67 offset:{P2}
        s_mov_b32 exec_hi, 0x80000000
        s_mov_b32 exec_lo, 0
        ds_write_b64 v246, v[82:83] offset:56
        ds_write_b16 v246, v82 offset:{KC1 + 58}
        ds_write_b64 v246, v[82:83] offset:{KC1 + 60}
        s_mov_b64 exec, -1
        ''')
        S.emit(self.stamp('kexp'))
        def kread(G, dst):
            if G == 32: a, o = 'v11', 0
            else: a, o = ('v10', 16*(15 - G)) if G < 16 else ('v12', 16*(31 - G))
            return [Ins(f'ds_read2_b32 v[{dst}:{dst+1}], {a} offset0:{o} offset1:{o+1}'), Ins(f'ds_read2_b32 v[{dst+2}:{dst+3}], {a} offset0:{o+2} offset1:{o+3}')]
        KF = lambda p, r: 128 + 64*(p >> 1) + 8*r + 4*(p & 1)
        kreads = [x for pp in (0, 2) for r in range(8) for p in (pp, pp+1) for x in kread(8*p + r, KF(p, r))]
        npre = self.o('npre', 32); assert npre <= 32
        S.emit(L('\n'.join(f'ds_read_b128 v[{64+4*c}:{67+4*c}], v{247+c}' for c in range(4)), waitfor=['xdma']))
        S.emit(self.stamp('_xin'))
        S.emit(kreads[:npre//4])
        n2 = self.o('w1pre', 4)
        if ecw == 400: S.emit(wchk)
        if ecw <= 400: S.emit(flat(self.w1_loads(npre_w1, npre_w1 + n2))); npre_w1 += n2
        for c in range(4):
            x = 64 + 4*c; o = []
            for g in range(4):
                t = 80 + 2*(g & 1); b = 32 + 4*g
                o += L(f'''
                v_lshlrev_b32 v{t}, 16, v{x+g}
                v_and_b32 v{t+1}, 0xffff0000, v{x+g}
                v_pk_fma_f32 v[{t}:{t+1}], v[{t}:{t+1}], v[{b}:{b+1}], v[{b+2}:{b+3}]
                v_pk_fma_f32 v[{t}:{t+1}], v[{t}:{t+1}], s[{32+2*c}:{33+2*c}], s[{32+2*c}:{33+2*c}] op_sel:[0,0,1] op_sel_hi:[1,0,1]
                v_cvt_pk_bf16_f32 v{x+g}, v{t}, v{t+1}
                ''')
            o += L(f'ds_write_b128 v251, v[{x}:{x+3}] offset:{H_PITCH*c}', tag='hw')
            S.emit(o)
            if c < 3:
                S.emit(kreads[(c+1)*npre//4:(c+2)*npre//4])
            if ecw >= 500 and c == self.o('pwc', 1): S.emit(pollW)
            if ecw == 401 + c: S.emit(wchk)
            if ecw <= 401 + c:
                n2 = self.o('w1pre2', 2)
                S.emit(flat(self.w1_loads(npre_w1, npre_w1 + n2))); npre_w1 += n2
        assert self.o('early', 3) & 2
        S.emit('v_mov_b32 v38, v218\nv_mov_b32 v39, v219')
        S.emit(self.barrier(['hw']))
        S.emit(self.stamp('prep'))
        S.dummy = 'ds_read_b32 v1, v3'
        epoch = []
        acc = lambda q: f'v[{96+4*q}:{99+4*q}]'
        seq = []; started = set()
        def mm(q, A, B):
            C = acc(q) if q in started else '0'; started.add(q); seq.append((acc(q), A, B, C))
        def box(u):
            d = 112 + 8*(u & 1)
            seq.append((f'v[{d}:{d+3}]', ('h9', u), 'v[20:23]', '0')); seq.append((f'v[{d+4}:{d+7}]', ('h', 3, 0, u), 'v[24:27]', '0'))
        kf = lambda p, r: f'v[{KF(p, r)}:{KF(p, r)+3}]'
        for r in range(8):
            for q in range(2):
                if r == 7: mm(q, 'v[16:19]', ('x', q))
                for p in range(q + 1): mm(q, kf(p, r), ('h', 0, r, q - p))
        nA = len(seq)
        for r in range(8):
            if r == 4: a1 = len(seq); box(0); box(1)
            if r == 6: a2 = len(seq); box(2); box(3)
            for q in range(2, 4):
                if r == 7: mm(q, 'v[16:19]', ('x', q))
                for p in range(q + 1): mm(q, kf(p, r), ('h', 1, r, q - p))
        nB = len(seq)
        for ps, q0 in ((2, 4), (4, 6)):
            for r in range(8):
                for q in (q0, q0 + 1):
                    if r == 0: mm(q, 'v[116:119]' if False else ('k32', ps), ('h', ps, 0, q - 4))
                    if r == 2: mm(q, 'v[16:19]', ('x', q)); xlast = len(seq) - 1
                    for p in range(4): mm(q, kf(p, r), ('h', ps, r, q - p))
                    if r == 1:
                        for u in range(q - 3): mm(q, f'v[{40+4*u}:{43+4*u}]', f'a[{240+4*(q-u-4)}:{243+4*(q-u-4)}]')
            if ps == 2: nC = len(seq)
        def fragload(f, dst):
            if f[0] == 'h': return [Ins(f'ds_read_b128 v[{dst}:{dst+3}], v9 offset:{512 + 512*f[3] - 64*f[2] - 32}')]
            if f[0] == 'h9': return [Ins(f'ds_read_b128 v[{dst}:{dst+3}], v9 offset:{512 + 512*f[1] - 48}')]
            if f[0] == 'x': return [Ins(f'ds_read_b128 v[{dst}:{dst+3}], v13 offset:{2048*f[1]}')]
            if f[0] == 'k32': return kread(32, dst)
        bb, pinned, head = alloc_frags(seq, 'v_mfma_f32_16x16x32_bf16', list(range(56, 96, 4)), fragload, lead=self.o('lead', 7))
        S.emit(head)
        def cvts(us):
            o = []
            for u in us:
                d = 112 + 8*(u & 1)
                o += L('\n'.join(f'v_cvt_pk_bf16_f32 v{40+4*u+r}, v{d+r}, v{d+4+r}' for r in range(4)))
            return o
        farld = []
        for dl in range(4):
            o = 16*(3 - dl)
            farld += [Ins(f'ds_read2_b32 a[{240+4*dl}:{241+4*dl}], v14 offset0:{o} offset1:{o+1}'), Ins(f'ds_read2_b32 a[{242+4*dl}:{243+4*dl}], v14 offset0:{o+2} offset1:{o+3}')]
        N = len(bb)
        dr = self.o('drain', 50)
        icst = L(f'buffer_store_dword v127, v126, {sWS}, 0 offen sc1', tag='pA') if not self.o('icearly', 0) else []
        eA, sA = self.epi(0, '0', 'pA', nA + 2, 2, extra=icst); mg = self.mg = self.o('merge', 6)
        eB, sB = self.epi(1, 's46', 'pB', nB + 2, 2, flag=(0, 'pA') if mg & 1 else None)
        eC, sC = self.epi(2, 's47', 'pC', nC + 2 + self.o('ecd', 0), 2, flag=(1, 'pB') if mg & 2 else None)
        gfA = sA + dr; gfB = sB + self.o('drainb', 54); gfC = sC + self.o('drainc', 46); self.lateC = gfC - N; assert gfC < N and self.RC == 4
        g_poll = self.o('g_poll', 152); g_chk = self.o('g_chk', 188)
        pc = self.pollC(0, 'v31')
        c0, c1, c2, c3 = [c if not (k < 3 and self.o('early', 3) >> k & 1) else [] for k, c in enumerate(self.conv_late())]
        self.pB = self.pollC(1, 'v192')
        self.pipe = Pipe(self.o('sv', 68), self.o('svst', 280), self.o('win', 480))
        wck = Fill([wchk] if ecw >= 500 else [], max(0, ecw - 500), max(0, ecw - 500), prio=5, hard=True, name='w1')
        w1f = Fill(self.w1_loads(npre_w1, 60), 0, 10**9, prio=1, name='w1', asap=True, carry=True, after=[wck]); self.w1f = w1f
        lf = Fill(c0 + c1 + c2 + c3, 0, 1, prio=2, name='late', slack=1)
        marks = [(0, 0), (len(c0), 7), (len(c0 + c1), 18), (len(c0 + c1 + c2), a1 - 4), (len(c0 + c1 + c2 + c3), 66)]
        for (k0, g0), (k1, g1) in zip(marks, marks[1:]):
            for k in range(k0, k1): lf.want[k] = g0 + (g1 - g0)*(k - k0)/(k1 - k0)
        tc = Fill(L(f's_mov_b32 s46, {16*self.TPI}\ns_mov_b32 s47, {32*self.TPI}\ns_mov_b32 s48, {48*self.TPI}') + self.tile_consts() + self.g1_pre[0], 68, 165, prio=1, name='g1pre', ahead=10, after=[lf])
        ca_ = self.check(pc, ['v31'], None, split=True)
        ck = Fill([self.stamp('_chk0') + ca_[0], ca_[1] + self.stamp('_chk1')], g_chk - 1, g_chk, prio=5, hard=True, name='tail')
        tail = Fill(self.tile_dma(0) + [self.barrier()] + self.ic2_loads(), g_chk, N - 3, prio=4, asap=True, after=[ck], name='tail')
        if self.o('tburst', 10):
            for k in range(len(tail.items)): tail.dl[k] = g_chk + 1 + k*self.o('tburst', 10)/10.0
        fpb = Fill([self.pB], N - self.o('gpB', 4), N - self.o('gpB', 4), prio=5, hard=True, name='tail')
        g1v = Fill(self.g1_pre[1], xlast + 2, N - 8, prio=1, name='g1pre', ahead=30, after=[tc])
        for k, it in enumerate(g1v.items):
            if ('v', 31) in it[0].defs: break
        for kk in range(k, len(g1v.items)): g1v.lo[kk] = g_chk + 4
        fills = [
            Fill(kreads[npre:], 0, 70, prio=3, hard=True),
            Fill(cvts((0, 1)), a1 + 8, a1 + 15, prio=2, hard=True),
            Fill(cvts((2, 3)), a2 + 8, a2 + 15, prio=2, hard=True),
            Fill(farld[:4], nB - 4, nB + 4, prio=2, hard=True, after=[lf]), Fill(farld[4:], nB + 30, nB + 50, prio=2),
            *eA, *eB, *eC,
            wck, w1f, lf, tc, g1v, ck, tail, fpb,
            Fill([self.stamp('_fa0') + self.flagC(0, 'pA') + self.stamp('_fa1')] if not mg & 1 else [], gfA, gfA, prio=4, hard=True, after=[lf]),
            Fill([self.stamp('_fb0') + self.flagC(1, 'pB') + self.stamp('_fb1')] if not mg & 2 else [], gfB, gfB, prio=4, hard=True),
            Fill([self.flagC(2, 'pC')] if not mg & 4 else [], gfC, gfC, prio=4, hard=True),
            Fill([pc], g_poll, g_poll, prio=4, hard=True, name='tail'),
        ]
        if isinstance(self.stamps, list):
            for nm in self.stamps:
                if nm.startswith('_C'): fills.append(Fill([self.stamp(nm)], int(nm[2:]), int(nm[2:]), prio=9, hard=True))
        merged = interleave(bb, fills, pinned, report='conv', pipe=self.pipe,
                            quiet=[(q, self.o('qx', 0)) for b_, q in ((1, sA), (2, sB), (4, g_poll), (8, sC), (16, g_chk)) if self.o('quiet', 16) & b_])
        S.emit(merged)
        k0 = max(k for k, i in enumerate(merged) if i in ck.items[-1])
        self.mirror = [i for i in merged[k0+1:] if i.src in ('tail', 'w1') or i.kind == 'vmem']
        done = [i for i in merged[:k0] if i.src == 'w1' and i.kind == 'vmem' and i.defs]
        self.nA2 = npre_w1 + len(done)
        self.w1cur = {r: [i for i in merged[:k0] if i.src == 'w1' and ('s', 67 + r) in i.defs][-1] for r in range(3)}
        S.emit(self.stamp('conv'))
    def flagC(self, stage, tag, skip=False):
        return self.barrier([tag]) + L('\n'.join(f's_atomic_swap {sN}, s[4:5], s66 offset:{stage*self.CSTG + r*self.CREP}' for r in range(self.RC//4)))
    def epi(self, j, soff, tag, g0, step, t=None, extra=(), flag=None):
        t = t or 32; qa, qb = 96 + 8*j, 100 + 8*j
        f1 = Fill(L(f'''
        v_cvt_pk_bf16_f32 v{t}, v{qa}, v{qa+1}
        v_cvt_pk_bf16_f32 v{t+1}, v{qa+2}, v{qa+3}
        v_cvt_pk_bf16_f32 v{t+2}, v{qb}, v{qb+1}
        v_cvt_pk_bf16_f32 v{t+3}, v{qb+2}, v{qb+3}
        ''') + L(f'ds_write_b64 v38, v[{t}:{t+1}] offset:{4096*(j&1)}\nds_write_b64 v38, v[{t+2}:{t+3}] offset:{4096*(j&1) + 2048}', tag='xs' + tag), g0, g0 + 2*step, prio=5, hard=True, name='epi')
        bar = self.barrier(['xs' + tag])
        if flag: bar = self.flagC(*flag); bar[0].waitfor = bar[0].waitfor + ['xs' + tag]
        f2 = Fill([bar, L(f'ds_read_b128 v[{t}:{t+3}], v39 offset:{4096*(j&1)}')], g0 + 4*step, g0 + 4*step + 1, prio=5, hard=True, name='epi', after=[f1])
        gs = g0 + 6*step + 1
        f3 = Fill(L(f'buffer_store_dwordx4 v[{t}:{t+3}], v15, {sWS}, {soff} offen sc1', tag=tag) + list(extra), gs, gs + len(extra), prio=5, hard=True, name='epi', after=[f2])
        return [f1, f2, f3], gs
    def mod_unit(self, S, su, scol='s71', va='v57', tag='moddma', mid=(), also=()):
        S.emit(f's_and_b32 s58, {su}, 1\ns_mul_i32 s58, s58, 640\nv_add_u32 v58, s58, v51')
        S.wait_tags([tag] + list(also)); S.emit('s_waitcnt lgkmcnt(0)\ns_barrier'); S.emit(list(mid))
        for b in range(10):
            S.emit(f'''
            ds_read_b64_tr_b16 v[{128+8*b}:{129+8*b}], {va} offset:{4096*b}
            ds_read_b64_tr_b16 v[{130+8*b}:{131+8*b}], {va} offset:{4096*b+512}
            ds_read_b128 v[{132+8*b}:{135+8*b}], v58 offset:{64*b}
            ''')
        for b in range(10):
            S.emit(f'v_mfma_f32_16x16x32_bf16 v[52:55], v[{132+8*b}:{135+8*b}], v[{128+8*b}:{131+8*b}], {"0" if b == 0 else "v[52:55]"}')
        S.emit(f'''
        s_and_b32 s58, {su}, 1
        s_mul_i32 s58, s58, 3840
        s_add_u32 s58, s58, {scol}
        s_lshl_b32 s59, s3, 4
        s_add_u32 s58, s58, s59
        s_lshl_b32 s58, s58, 3
        s_add_u32 s58, s58, {WS_MODP}
        v_mov_b32 v53, {sN}
        buffer_store_dwordx2 v[52:53], v59, {sWS}, s58 offen sc1
        ''')
    def w2_dma(self, sT):
        o = L(f'''
        s_mul_hi_u32 s62, {sT}, {(2**32 + 9)//10}
        s_mul_i32 s58, s62, 10
        s_sub_u32 s63, {sT}, s58
        s_lshl_b32 s62, s62, 2
        s_add_u32 s62, s62, s3
        s_mul_hi_u32 s58, s62, {(2**32 + 2)//3}
        s_mul_i32 s59, s58, 3
        s_sub_u32 s59, s62, s59
        s_mul_i32 s58, s58, 96
        s_mul_i32 s67, s59, 48
        s_cmp_eq_u32 s59, 2
        s_cselect_b32 s67, 32, s67
        s_cselect_b32 s68, 8, 4
        s_cselect_b32 s69, 48, 16
        s_cselect_b32 s64, 0, 4
        s_mul_i32 s68, s68, 1280
        s_mul_i32 s69, s69, 1280
        s_add_u32 s58, s58, s67
        s_mul_i32 s58, s58, 1280
        s_lshl_b32 s59, s63, 7
        s_add_u32 s67, s58, s59
        s_add_u32 s68, s67, s68
        v_and_b32 v116, s64, v104
        v_add_u32 v116, v116, v104
        v_mul_u32_u24 v116, 1280, v116
        v_add_u32 v117, v116, v106
        v_add_u32 v116, v116, v105
        ''')
        for d in range(4):
            if d == 2: o += L('s_add_u32 s67, s67, s69\ns_add_u32 s68, s68, s69')
            o += L(f's_add_u32 m0, s66, {1024*d}\ns_nop 0')
            o += L(f'buffer_load_dwordx4 v{116+(d&1)}, {sWD}, s{67+(d&1)} offen nt lds', tag='w2dma')
            o += L(f's_add_u32 m0, s66, {57344 + 1024*d - 128}\ns_nop 0')
            o += L(f'buffer_load_dwordx4 v{116+(d&1)}, {sWD}, s{67+(d&1)} offen offset:128 nt lds', tag='w2dma')
        return o
    def w2_finish(self):
        return L(f'''
        s_mul_i32 s58, s63, 192
        s_add_u32 s58, s58, s62
        s_lshl_b32 s58, s58, 10
        s_add_u32 s58, s58, {WS_W2P}
        ''') + self.prep_task('w2dma', 's58', 49152, 'w2st', tmp=208) + L('s_add_u32 s58, s58, 49152') + self.prep_task('w2dma', 's58', 49152, 'w2st', tmp=224, loff=57344)
    def spare_path(self, S):
        S.set_state(self.st_spare)
        S.emit('L_spare:'); S.dummy = 'ds_read_b32 v1, v3'; S.emit(self.touch('L_s')); S.emit('L_s0:\ns_mov_b64 exec, -1'); S.emit(self.common_consts()[:14]); S.emit(self.late_consts()[:2])
        S.emit(f'''
        s_lshl_b32 s58, s3, 5
        v_subrev_u32 v57, s66, v112
        v_xor_b32 v57, s58, v57
        v_add_u32 v118, {L_H}, v57
        v_lshrrev_b32 v58, 4, v2
        v_lshlrev_b32 v58, 4, v58
        v_add_u32 v51, {L_VEC}, v58
        v_lshlrev_b32 v59, 3, v2
        v_mov_b32 v43, {OOB}
        v_cmp_gt_u32 vcc, 16, v2
        v_add_u32 v42, {L_VEC}, v12
        s_mov_b32 s65, -1
        v_cndmask_b32 v59, v43, v59, vcc
        ''')
        for k in range(4): S.emit(f'v_lshlrev_b32 v{32+k}, 16, v{200+(k>>1)}' if k % 2 == 0 else f'v_and_b32 v{32+k}, 0xffff0000, v{200+(k>>1)}')
        for op in ('v_mul_f32 T, 0xbfb8aa3b, X', 'v_exp_f32 T, T', 'v_add_f32 T, 1.0, T', 'v_rcp_f32 T, T', 'v_mul_f32 X, X, T'):
            for k in range(4): S.emit(op.replace('T', f'v{36+k}').replace('X', f'v{32+k}'))
        S.emit('v_cvt_pk_bf16_f32 v32, v32, v33\nv_cvt_pk_bf16_f32 v33, v34, v35\nds_write_b64 v42, v[32:33]')
        S.emit(self.mod_late)
        if self.o('warm', 2) == 2: S.emit(self.warm())
        S.emit(self.touch('L_gp')); S.emit('L_sp_t2:')
        S.emit(self.g_setup())
        S.emit(f'''
        s_and_b32 s59, s3, 1
        s_lshr_b32 s58, s3, 1
        s_mul_i32 s58, s58, 3
        s_mul_i32 s20, {sSIG}, 6
        s_add_u32 s58, s58, s20
        s_lshl_b32 s58, s58, 10
        s_lshl_b32 s20, s59, 9
        s_add_u32 s58, s58, s20
        s_add_u32 s58, s58, {WS_WX}
        s_lshl_b32 s20, s59, 10
        s_add_u32 s18, s58, s20
        s_sub_u32 s16, s58, s20
        s_add_u32 s16, s16, 1024
        s_add_u32 s17, s58, 2048
        s_cmp_lt_u32 {sXC}, 4
        s_cselect_b32 s20, 32, 0
        s_cselect_b32 s21, 0, 1
        v_mov_b32 v122, {OOB}
        v_cmp_gt_u32 vcc, s20, v2
        v_lshlrev_b32 v60, 4, v0
        v_min_u32 v61, 0x7f0, v60
        v_cndmask_b32 v120, v122, v3, vcc
        v_cndmask_b32 v121, v122, v5, vcc
        v_lshrrev_b32 v62, 2, v60
        v_lshrrev_b32 v63, 2, v61
        v_add_u32 v62, {L_VEC + 1536}, v62
        v_add_u32 v63, {L_VEC + 1536 + 2048}, v63
        v_and_b32 v123, 1, v2
        v_xor_b32 v123, 1, v123
        v_mul_u32_u24 v123, 1280, v123
        v_lshrrev_b32 v122, 5, v2
        v_lshl_add_u32 v123, v122, 4, v123
        s_mul_i32 s58, s59, 640
        s_add_u32 s58, s58, {L_VEC + 1536}
        v_add_u32 v123, s58, v123
        s_cmp_eq_u32 s3, 0
        s_cselect_b32 s20, 0, 1.0
        ''')
        S.emit('v_mov_b32 v119, v6'); S.emit(self.tile_consts())
        S.emit(cp(flat(self.g1_pre[0]) + flat(self.g1_pre[1])))
        S.emit(f's_cmp_lt_u32 {sJ}, 23\ns_cbranch_scc1 L_sp_a')
        st = S.state()
        S.emit('s_sub_u32 s22, s2, 184\ns_min_u32 s22, s22, 59\ns_lshl_b32 s22, s22, 1')
        wd = self.w2_dma('s22'); vi = [k for k, i in enumerate(wd) if i.kind == 'vmem']; nw = self.o('w2mid', 4)
        cutp = vi[nw - 1] + 1 if nw else vi[0] - 2
        S.emit(wd[:cutp])
        self.mod_unit(S, 's70'); S.emit(self.stamp('slot0'))
        S.emit('s_cmp_ge_u32 s2, 244\ns_cbranch_scc1 L_sp_b2done')
        S.emit(wd[cutp:]); S.emit(self.w2_finish())
        S.emit('s_lshl_b32 s58, s22, 6\ns_lshl_b32 s59, s3, 2\ns_add_u32 s65, s58, s59\ns_branch L_sp_b2done')
        S.set_state(st)
        S.emit('L_sp_a:\ns_sub_u32 s22, s2, 64')
        md = self.mod_dma('s22', 's23', L_H, 'mod2'); nm = self.o('m2mid', 4)
        S.emit(md[0]); S.emit(flat(md[1][:nm]))
        self.mod_unit(S, 's70'); S.emit(self.stamp('slot0'))
        S.emit(flat(md[1][nm:]))
        self.mod_unit(S, 's22', 's23', 'v118', 'mod2')
        S.emit('L_sp_b2done:')
        if self.o('warm', 2) == 3: S.emit(self.warm())
        S.emit(self.stamp('slot1'))
        gl = []
        for k in range(3):
            for h in range(2):
                gl += L(f's_mov_b32 s58, {WS_MODP + 3*640*8 + 4096*k + 3840*8*h}\nbuffer_load_dwordx4 v[{80+8*k+4*h}:{83+8*k+4*h}], {"v60" if k < 2 else "v61"}, {sWS}, s58 offen sc1')
        def process(v):
            S.emit(f's_cmp_eq_u32 s21, 1\ns_cbranch_scc1 L_sp_np{v}')
            S.emit(self.check(gl, [f'v{81+2*k}' for k in range(12)], 'v50', sleep=8))
            for k in range(3):
                r = 80 + 8*k; one = ['0', 's20', '1.0'][k]
                S.emit(f'v_add_f32 v{r}, v{r}, v{r+4}\nv_add_f32 v{r+2}, v{r+2}, v{r+6}')
                if k: S.emit(f'v_cvt_pk_bf16_f32 v{r}, 0, v{r}\nv_cvt_pk_bf16_f32 v{r+2}, 0, v{r+2}\nv_add_f32 v{r}, {one}, v{r}\nv_add_f32 v{r+2}, {one}, v{r+2}')
                S.emit(f'v_cvt_pk_bf16_f32 v{r}, v{r}, v{r+2}')
            S.emit('ds_write_b32 v62, v80\nds_write_b32 v62, v88 offset:1024\nds_write_b32 v63, v96\ns_waitcnt lgkmcnt(0)\ns_barrier')
            for k in range(20): S.emit(f'ds_read_b128 v[{128+4*k}:{131+4*k}], v123 offset:{32*k}')
            S.emit(f'L_sp_np{v}:')
        pw = L(f'buffer_load_dword v105, v119, {sWS}, 0 offen sc1')
        S.emit(f'''
        v_mov_b32 v15, {OOB}
        v_add_u32 v38, {L_XS}, v3
        v_mov_b32 v39, v38
        s_mov_b32 s47, 0
        s_mov_b32 s48, 0
        s_sub_u32 s66, s2, 160
        s_lshl_b32 s66, s66, 2
        s_add_u32 s66, s66, s3
        s_lshl_b32 s66, s66, 7
        s_add_u32 s66, s66, {WS_DMY - 3*self.CSTG}
        ''')
        S.emit('s_barrier')
        S.emit(pw); S.emit(self.check(pw, ['v105'], None, sleep=8))
        S.emit(f's_cmp_eq_u32 s65, -1\ns_cbranch_scc1 L_sp_nw2\ns_atomic_swap {sN}, s[4:5], s65 offset:{WS_FLW2}\nL_sp_nw2:')
        S.emit(self.stamp('slot2'))
        S.emit(f's_cmp_lt_u32 {sJ}, 24\ns_cbranch_scc1 L_sp_p0\ns_cmp_lt_u32 {sJ}, 28\ns_cbranch_scc1 L_sp_p1')
        st = S.state()
        for v in (2, 0, 1):
            S.set_state(st); S.shadow = []
            if v != 2: S.emit(f'L_sp_p{v}:')
            lds = self.w1_loads(0, 60, only=v) + self.w1_loads(0, self.nA2, skip=v)
            ntot = sum(1 for it in lds if it[0].kind == 'vmem')
            ng = self.o('gat', 22); npr = ng + 8; assert ng >= 20 and npr + 4 <= ntot
            nld = 0; k = 0
            for it in lds:
                S.emit(it)
                if it[0].kind != 'vmem': continue
                nld += 1
                if nld == ng:
                    S.emit(f's_cmp_eq_u32 s21, 1\ns_cbranch_scc1 L_sp_ng{v}'); S.emit(cp(gl)); S.emit(f'L_sp_ng{v}:')
                if nld == npr: process(v); S.emit(self.stamp('_xin'))
                if nld > npr:
                    while k < min(20, -(-20*(nld - npr)//min(10, ntot - npr))):
                        S.emit(f'v_mfma_f32_32x32x16_bf16 v[64:79], v[{128+4*k}:{131+4*k}], a[{12*k+4*v}:{12*k+4*v+3}], {"0" if k == 0 else "v[64:79]"}'); k += 1
                if nld == min(ntot, npr + 12):
                    assert k == 20
                    d = 64
                    S.emit(f'''
                    v_cvt_pk_bf16_f32 v{d+2}, 0, v{d}
                    v_cvt_pk_bf16_f32 v{d+3}, 0, v{d+1}
                    v_sub_f32 v{d}, v{d}, v{d+2}
                    v_sub_f32 v{d+1}, v{d+1}, v{d+3}
                    v_cvt_pk_bf16_f32 v{d}, -v{d+2}, -v{d}
                    v_cvt_pk_bf16_f32 v{d+1}, v{d+3}, v{d+1}
                    v_mov_b32 v{d+2}, 0
                    v_mov_b32 v{d+3}, {sN}
                    buffer_store_dwordx4 v[{d}:{d+3}], v{121 if v == 1 else 120}, {sWS}, s{16+v} offen sc1
                    ''')
            if v != 1: S.emit('s_branch L_sp_pj')
        S.emit('L_sp_pj:')
        S.emit(self.stamp('_wok'))
        pc = self.pollC(0, 'v105')
        S.emit(pc)
        S.emit(self.stamp('kexp'))
        S.emit(self.check(pc, ['v105'], None, sleep=9))
        S.emit(self.stamp('_chk1'))
        S.emit(cp(list(self.w1cur.values()))); S.emit(cp(self.mirror))
        tail = [i.text for i in S.vm]
        assert tail == [i.text for i in self.join_vm[-len(tail):]] or [i.text for i in self.join_vm] == tail[-len(self.join_vm):], (tail, self.join_vm)
        S.emit(self.stamp('conv'))
        S.emit(self.barrier(['tile0']))
        S.emit('s_branch L_g1')
    def finish(self, S):
        if self.probe:
            S.emit(self.stamp('end'))
            S.wait_all(); S.out.append(Ins('s_waitcnt vmcnt(0) lgkmcnt(0)'))
            k = self.stamp_names.index(self.probe)
            role = self.o('prole', 2)
            S.emit(f's_sub_u32 s58, s{78+2*k}, s78')
            if role < 2: S.emit(f's_cmp_eq_u32 s0, {role}\ns_cselect_b32 s58, s58, 0')
            if self.o('pwg', -1) >= 0: S.emit(f's_cmp_eq_u32 s2, {self.o("pwg", 0)}\ns_cselect_b32 s58, s58, 0')
            S.emit('s_min_u32 s58, s58, 20000\ns_add_u32 s58, s58, 6000')
            if self.o('ponly', -1) >= 0: S.emit(f's_cmp_eq_u32 s2, {self.o("ponly", 0)}\ns_cselect_b32 s58, s58, 0')
            S.emit('L_spin:')
            S.out += L('s_memrealtime s[60:61]\ns_waitcnt lgkmcnt(0)\ns_sub_u32 s60, s60, s78\ns_cmp_lt_u32 s60, s58\ns_cbranch_scc1 L_spin')
        elif self.stamps:
            S.emit(self.stamp('end'))
            S.wait_all()
            S.out.append(Ins('s_waitcnt vmcnt(0) lgkmcnt(0)'))
            S.emit(f'''
            s_lshl_b32 s58, s2, 2
            s_add_u32 s58, s58, s3
            s_lshl_b32 s58, s58, 8
            s_add_u32 s58, s58, {WS_DBG}
            v_mov_b32 v31, {OOB}
            v_writelane_b32 v31, 0, 0
            ''')
            for k in range(len(self.stamp_names)):
                S.emit(f'v_mov_b32 v1, s{78+2*k}\nbuffer_store_dword v1, v31, {sWS}, s58 offen offset:{4*k}')
            S.emit(f'v_mov_b32 v1, {sBUD}\nbuffer_store_dword v1, v31, {sWS}, s58 offen offset:60')
        S.emit('s_endpgm')
    def build(self):
        import gen2, fw
        fw.LDSLIM[0] = self.o('ldslim', 56)
        self.g1_pre = gen2.g1_pre(self)
        P = Stream(); self.prologue(P)
        S = Stream(); self.conv_path(S)
        self.join_vm = list(S.vm)
        if self.mg & 4:
            b0 = self.flagC(2, 'pC'); b0[0].waitfor = ['pC', 'tile0']; S.emit(b0)
        else: S.emit(self.barrier(['tile0']))
        S.emit('L_g1:')
        if self.stop == 'conv':
            S.emit('s_nop 7')
            S.emit(self.epi(2, 's47', 'p2') + self.epi(3, 's48', 'p2'))
        else:
            import gen2
            gen2.gemms(self, S)
        if self.o('wsite', -1) >= 0:
            k0 = self.o('wsite', 0); start = max(k for k, i in enumerate(S.out) if 'hw' in i.waitfor) + 1
            sites = []; gap = 0
            for k in range(start, len(S.out)):
                i = S.out[k]
                if i.kind == 'mfma': gap += 1
                if (i.mn == 's_waitcnt' and 'vmcnt' in i.text) or i.mn == 's_barrier' or i.mn == 's_cbranch_vccnz' or i.mn == 's_cmp_eq_u64': sites.append((k, gap, i))
            self.nsites = len(sites); self.stamps = True
            ins = []
            for n, (k, gp, i) in enumerate(sites[k0:k0+5]):
                ph = f'C{gp}' if gp <= 238 else (f'G{gp-238}' if gp <= 484 else f'H{gp-484}')
                nm = ph + {'s_waitcnt': 'w' + i.text.split('(')[1].split(')')[0] if i.mn == 's_waitcnt' else '', 's_barrier': 'bar', 's_cbranch_vccnz': 'chk', 's_cmp_eq_u64': 'schk'}[i.mn]
                ins.append((k, self.stamp(f'.{n}'), self.stamp(nm + '.' * n), {'s_cbranch_vccnz': 2, 's_cmp_eq_u64': 5}.get(i.mn, 1)))
            for k, a_, b_, w in reversed(ins): S.out[k:k+w] = a_ + S.out[k:k+w] + b_
            self.stamps = ['none']
        self.finish(S)
        slow1 = self.slow; self.slow = []
        Q = Stream(); self.spare_path(Q)
        if self.o('static', 0):
            k0 = max(k for k, i in enumerate(S.out) if 'hw' in i.waitfor); k1 = max(k for k, i in enumerate(S.out) if 'pw3' in i.waitfor)
            for k in range(k0, k1):
                i = S.out[k]
                if i.kind == 'vmem' and self.o('static', 0) == 2 and 'store' not in i.mn:
                    continue
                if i.kind == 'vmem' or i.note == 'async': S.out[k] = Ins('s_mov_b32 vcc_hi, 0x12345')
        hot = self.o('hot', 0)
        if hot:
            import re
            k0 = max(k for k, i in enumerate(S.out) if 'hw' in i.waitfor); kg = [k for k, i in enumerate(S.out) if i.text == 'L_g1:'][0]
            for lst, st0 in ((S.out, k0 - 200), (Q.out, 0)):
                for k in range(st0, len(lst)):
                    i = lst[k]
                    m = re.match(r's_add_u32 (s6[2789]), (s7[456]|s60|s44|s45), (\d+)$', i.text)
                    if m:
                        cls = {'s74': 1, 's75': 1, 's76': 1, 's60': 2, 's44': 4, 's45': 8}[m.group(2)]
                        if hot & cls: lst[k] = Ins(f's_mov_b32 {m.group(1)}, {WS_XT + (int(m.group(3)) // 4096 % 61) * 4096}')
        dm = self.o('drop', 0)
        if dm:
            import re
            pats = {1: r'buffer_load_dwordx4 a\[\d+:\d+\], v[35], s\[4:7\], s6[789]',
                    2: r'buffer_load_dword v\d+, v4,', 4: r'buffer_store_dwordx4 v\[\d+:\d+\], v1[578],', 8: r'buffer_store_dword v1, v30',
                    16: r'buffer_load_dwordx4 v6, .* lds', 32: r'buffer_load_dwordx4 v\[\d+:\d+\], v3, s\[4:7\], s6[78]', 64: r'buffer_(load|store)_dwordx2 v\[(10:11|32:33)\]'}
            pats[256] = r'(buffer_load_dwordx4 v1[23], s\[24:27\]|buffer_store_dwordx4 v\[\d+:\d+\], v3, s\[4:7\], s58)'
            pats[512] = r'buffer_store_dwordx4 v\[\d+:\d+\], v(3|199), s\[4:7\], s3[56]'
            pats[1024] = r'buffer_store_dword v127, v126'; pats[2048] = r'buffer_store_dwordx4 v\[\d+:\d+\], v15,'; pats[4096] = r's_atomic_swap s50, s\[4:5\], s66'
            lists = [S.out] + ([Q.out] if dm & 128 else [])
            for lst in lists:
                for k, i in enumerate(lst):
                    if any(dm & b and re.match(p, i.text) for b, p in pats.items()): lst[k] = Ins('s_mov_b32 vcc_hi, 0x12345')
        body = S.out + slow1 + Q.out + self.slow
        body, npages, nbytes, mis = layout(body, minpages=8)
        for i in P.out: i.text = i.text.replace('@CODEMAX@', str(nbytes // 128 * 128))
        pro, _, pbytes, _ = layout(P.out, stubs=False)
        self.info = dict(pages=npages, bytes=nbytes, pro=pbytes, misaligned=mis, nops=S.nops, waits=S.nwait, dummy=S.ndummy, n=len(S.out))
        self.log = P.log + S.log + Q.log
        txt = f'; @launch grid=(256,1,1) block=(256,1,1) lds={LDS_BYTES}\n.amdgcn_target "amdgcn-amd-amdhsa--gfx950"\n.text\n.p2align 12\n.globl {NAME}\n.p2align 8\n.type {NAME},@function\n{NAME}:\n'
        txt += render(pro)
        txt += '.p2align 12\n' + render(body)
        if not self.o('nt', 1): txt = txt.replace(' nt lds', ' lds').replace(' nt\n', '\n')
        txt += f'''.section .rodata,"a"
.p2align 6
.amdhsa_kernel {NAME}
  .amdhsa_next_free_vgpr 512
  .amdhsa_next_free_sgpr 102
  .amdhsa_accum_offset 256
  .amdhsa_group_segment_fixed_size 0
  .amdhsa_kernarg_size 144
  .amdhsa_user_sgpr_count 2
  .amdhsa_user_sgpr_kernarg_segment_ptr 1
  .amdhsa_system_sgpr_workgroup_id_x 1
  .amdhsa_float_denorm_mode_32 {self.o('denorm', 3)}
.end_amdhsa_kernel
'''
        return txt

def alloc_frags(seq, mn, pool, loader, lead, maxper=1, notbefore=None):
    first = {}; last = {}
    for k, (D, A, B, C) in enumerate(seq):
        for f in (A, B):
            if isinstance(f, tuple): first.setdefault(f, k); last[f] = k
    order = sorted(first, key=lambda f: first[f])
    freeat = {r: -1 for r in pool}
    used = {}; pinned = {}; head = []; reg = {}
    for f in order:
        r = min(freeat, key=lambda x: freeat[x])
        lds = loader(f, r)
        want = first[f] - 1 - lead
        lo = max(freeat[r], notbefore(f) if notbefore else -1)
        for i in lds:
            g = max(want, lo)
            if g >= 0:
                c = g
                while c > max(lo, 0) and used.get(c, 0) >= maxper and c > g - 4: c -= 1
                if used.get(c, 0) >= maxper:
                    c = g
                    while used.get(c, 0) >= maxper and c < first[f] - 3: c += 1
                g = c
            assert g < first[f], (f, g, first[f])
            if g < 0: head.append(i)
            else: pinned.setdefault(g, []).append(i); used[g] = used.get(g, 0) + 1
        reg[f] = r; freeat[r] = last[f]
    R = lambda f: f'v[{reg[f]}:{reg[f]+3}]' if isinstance(f, tuple) else f
    bb = [Ins(f'{mn} {D}, {R(A)}, {R(B)}, {C}') for D, A, B, C in seq]
    return bb, pinned, head

if __name__ == '__main__':
    import argparse
    ap = argparse.ArgumentParser(); ap.add_argument('-o', default='k.s'); ap.add_argument('--stop'); ap.add_argument('--stamps', action='store_true'); ap.add_argument('--log', action='store_true')
    ap.add_argument('--opt', default=''); ap.add_argument('--audit', action='store_true'); ap.add_argument('--probe')
    a = ap.parse_args()
    opt = {k: int(v) for k, v in (x.split('=') for x in a.opt.split(',') if x)}
    g = Gen(stop=a.stop, stamps=a.stamps, probe=a.probe, **opt)
    t = g.build(); open(a.o, 'w').write(t)
    print(g.info, g.stamp_names)
    if a.log: print('\n'.join(g.log))
    import fw
    print('\n'.join(x for x in fw.AUDIT if a.audit or x.startswith('CONFLICT') or x.startswith('sched') or (a.log and 'place' in x)))
```
